```python
import torch

def _softmax(x, axis=-1):
    return torch.softmax(x, dim=axis)
def _gelu(x):
    return torch.nn.functional.gelu(x, approximate="tanh")
def _silu(x):
    return torch.nn.functional.silu(x)
def _sigmoid(x):
    return torch.sigmoid(x)
def _layernorm(x, axis=-1, eps=1e-5):
    m = x.mean(dim=axis, keepdim=True)
    v = x.var(dim=axis, keepdim=True, unbiased=False)
    return (x - m) / torch.sqrt(v + eps)
def _scatter_add(tgt, idx, src, axis=0):
    return tgt.clone().index_add_(axis, idx, src)
def _segment_sum(src, seg, n):
    out = torch.zeros((n,) + src.shape[1:], dtype=src.dtype)
    return out.index_add_(0, seg, src)
def _pad(x, pw):
    flat = tuple(v for pair in reversed(pw) for v in pair)
    return torch.nn.functional.pad(x, flat)

kernel_name = 'sequential_preLN__sliding_block_cached__dense_activation_relu__decode'

def setup_inputs():

    _w = (lambda a: (lambda t: t.to(torch.bfloat16) if t.is_floating_point() else t)(torch.as_tensor(a)))
    def _A_setup():
        B, Sq, D = 8, 1, 640
        Hq, Hkv, Sk, Dh = 32, 32, 4096, 128
        assert Hq % Hkv == 0, (Hq, Hkv)
        return {
            "x": _w((lambda *s: torch.randn(*s, dtype=torch.bfloat16) * 0.05)(B, Sq, D)),
            "k_cache": _w((lambda *s: torch.randn(*s, dtype=torch.bfloat16) * 3.2)(B, Hkv, Sk, Dh)),
            "v_cache": _w((lambda *s: torch.randn(*s, dtype=torch.bfloat16) * 0.4)(B, Hkv, Sk, Dh)),
            "wq": _w((lambda *s: torch.randn(*s, dtype=torch.bfloat16) * 3.2)(D, Hq * Dh) * (D ** -0.5)),
            "wo": _w((lambda *s: torch.randn(*s, dtype=torch.bfloat16) * 0.4)(Hq * Dh, D) * ((Hq * Dh) ** -0.5)),
        }
    _A_in = _A_setup()

    def _B_setup():
        B, S, D, Dff = 8, 1, 640, 1728
        return {
            "x": _w((lambda *s: torch.randn(*s, dtype=torch.bfloat16) * 0.05)(B, S, D)),
            "w1": _w((lambda *s: torch.randn(*s, dtype=torch.bfloat16) * 0.05)(D, Dff)),
            "w2": _w((lambda *s: torch.randn(*s, dtype=torch.bfloat16) * 0.05)(Dff, D)),
        }
    _B_in = _B_setup()

    return {
        "A_x": _A_in["x"],
        "A_k_cache": _A_in["k_cache"],
        "A_v_cache": _A_in["v_cache"],
        "A_wq": _A_in["wq"],
        "A_wo": _A_in["wo"],
        "B_x": _B_in["x"],
        "B_w1": _B_in["w1"],
        "B_w2": _B_in["w2"],
    }

def reference(A_x, A_k_cache, A_v_cache, A_wq, A_wo, B_x, B_w1, B_w2):
    def _A_ref(x, k_cache, v_cache, wq, wo):
        B, Sq, D = x.shape
        Hq, Dh = 32, 128
        Hkv, Sk = k_cache.shape[1], k_cache.shape[2]
        W = min(4096, max(256, Sk // 4))
        rep = Hq // Hkv
        q = (lambda x, *d: x.permute(*d))((x @ wq).reshape(B, Sq, Hq, Dh), 0, 2, 1, 3)
        k = (lambda x, n, axis: torch.repeat_interleave(x, n, dim=axis))(k_cache[:, :, Sk - W:, :], rep, axis=1)
        v = (lambda x, n, axis: torch.repeat_interleave(x, n, dim=axis))(v_cache[:, :, Sk - W:, :], rep, axis=1)
        scores = torch.einsum("bhqd,bhkd->bhqk", q, k) * (Dh ** -0.5)
        p = _softmax(scores, axis=-1)
        o = torch.einsum("bhqk,bhkd->bhqd", p, v)
        return (lambda x, *d: x.permute(*d))(o, 0, 2, 1, 3).reshape(B, Sq, Hq * Dh) @ wo

    def _B_ref(x, w1, w2):
        h = torch.einsum("bsd,df->bsf", x, w1)
        zero = torch.zeros_like(h)
        h = torch.maximum(h, zero)
        return torch.einsum("bsf,fd->bsd", h, w2)

    x = A_x
    h = x + _A_ref(_layernorm(x, axis=-1), A_k_cache, A_v_cache, A_wq, A_wo)
    h2 = h + _B_ref(_layernorm(h, axis=-1), B_w1, B_w2)
    return h2
```

```python
import re

TRANS = ("v_exp_f32", "v_log_f32", "v_rcp_f32", "v_rsq_f32", "v_sqrt_f32", "v_sin_f32", "v_cos_f32")

def regs_of(tok):
    tok = tok.strip()
    tok = tok.lstrip('-')
    m = re.fullmatch(r"abs\((.*)\)", tok)
    if m: tok = m.group(1)
    m = re.fullmatch(r"\|(.*)\|", tok)
    if m: tok = m.group(1)
    m = re.fullmatch(r"([vsa])\[(\d+):(\d+)\]", tok)
    if m:
        return {(m.group(1), i) for i in range(int(m.group(2)), int(m.group(3)) + 1)}
    m = re.fullmatch(r"([vsa])(\d+)", tok)
    if m:
        return {(m.group(1), int(m.group(2)))}
    if tok in ("vcc", "vcc_lo", "vcc_hi"):
        return {("x", "vcc")}
    if tok in ("exec", "exec_lo", "exec_hi"):
        return {("x", "exec")}
    if tok == "m0":
        return {("x", "m0")}
    return set()

class Ins:
    def __init__(self, text):
        self.text = text
        t = text.split(";")[0].strip()
        parts = t.split(None, 1)
        self.op = parts[0]
        rest = parts[1] if len(parts) > 1 else ""
        ops = []
        depth = 0; cur = ""
        for ch in rest:
            if ch in "[(": depth += 1
            if ch in "])": depth -= 1
            if ch == "," and depth == 0:
                ops.append(cur.strip()); cur = ""
            else:
                cur += ch
        if cur.strip(): ops.append(cur.strip())
        self.mods = ""
        if ops:
            last = ops[-1].split(None, 1)
            ops[-1] = last[0]
            if len(last) > 1: self.mods = last[1]
        self.ops = ops
        op = self.op
        self.is_mfma = op.startswith("v_mfma")
        self.is_valu = op.startswith("v_") and not self.is_mfma
        self.is_dot = op.startswith("v_dot")
        self.is_trans = any(op.startswith(x) for x in TRANS)
        self.is_dpp = op.endswith("_dpp") or "row_" in self.mods or "quad_perm" in self.mods
        self.is_vmem = op.startswith("buffer_") or op.startswith("global_")
        self.is_ds = op.startswith("ds_")
        self.is_salu = op.startswith("s_")
        self.is_lane = op.startswith("v_readlane") or op.startswith("v_readfirstlane")
        self.is_perml = op.startswith("v_permlane")
        self.lds_dma = self.is_vmem and re.search(r"\blds\b", self.mods) is not None
        R = [regs_of(o) for o in ops]
        dst = set(); src = set()
        self.srcC = set(); self.srcAB = set()
        if self.is_mfma:
            dst = R[0]; self.srcAB = R[1] | R[2]; self.srcC = R[3]; src = self.srcAB | self.srcC
        elif self.is_vmem:
            if "store" in op or ("atomic" in op and "sc0" not in self.mods) or self.lds_dma or op in ("buffer_wbl2", "buffer_inv"):
                for r in R: src |= r
            elif "atomic" in op:
                dst = R[0]
                for r in R: src |= r
            else:
                dst = R[0]
                for r in R[1:]: src |= r
            if self.lds_dma: src |= {("x", "m0")}
        elif self.is_ds:
            if "write" in op or op.startswith("ds_add"):
                for r in R: src |= r
            else:
                dst = R[0]
                for r in R[1:]: src |= r
        elif self.is_valu:
            if op.startswith("v_permlane"):
                dst = R[0] | R[1]; src = R[0] | R[1]
            elif op.startswith("v_add_co") or op.startswith("v_addc_co") or op.startswith("v_sub_co"):
                dst = R[0] | R[1]
                for r in R[2:]: src |= r
            else:
                dst = R[0]
                for r in R[1:]: src |= r
                if op.startswith("v_fmac") or op.startswith("v_dot2c") or self.is_dpp:
                    src |= R[0]
            if self.is_dot and len(R) >= 4:
                self.srcAB = R[1] | R[2]; self.srcC = R[3]
            if op.startswith("v_dot2c"):
                self.srcAB = R[1] | R[2]; self.srcC = R[0]
            self.dppsrc = R[1] if self.is_dpp else set()
        elif self.is_salu:
            if op.startswith("s_cmp") or op.startswith("s_cbranch") or op in ("s_waitcnt", "s_nop", "s_barrier", "s_branch", "s_endpgm", "s_sleep", "s_setprio"):
                for r in R: src |= r
            else:
                if R: dst = R[0]
                for r in R[1:]: src |= r
                if "saveexec" in op: dst = dst | {("x", "exec")}
        self.dst = dst; self.src = src
        self.wide_store = self.is_vmem and "store" in op and ("x4" in op or "x3" in op)
        self.store_data = R[0] if self.wide_store and op.startswith("buffer") else (R[1] if self.wide_store else set())
        if op == "s_nop": self.states = int(ops[0], 0) + 1
        else: self.states = 1

def need(p, c):
    n = 0
    pv = {r for r in p.dst if r[0] in "va"}
    ps = {r for r in p.dst if r[0] == "s" or r == ("x", "vcc")}
    if p.is_valu:
        if c.is_valu and c.is_dpp and (pv & c.dppsrc): n = max(n, 2)
        if c.is_lane and (pv & c.src): n = max(n, 1)
        if c.is_perml and (pv & c.src): n = max(n, 2)
        if (c.is_valu or c.is_mfma) and (ps & c.src): n = max(n, 2)
        if c.is_lane and (ps & c.src): n = max(n, 4)
        if c.is_vmem and (ps & c.src): n = max(n, 5)
        if p.is_trans and c.is_valu and not c.is_trans and (pv & c.src): n = max(n, 1)
        if p.is_trans and (c.is_mfma or c.is_vmem or c.is_ds) and (pv & c.src): n = max(n, 1)
        if c.is_mfma and (pv & c.src): n = max(n, 2)
        if p.is_dot:
            if c.op == p.op:
                if pv & c.srcAB: n = max(n, 3)
            elif (pv & (c.src | c.dst)): n = max(n, 3)
        if ("x", "exec") in p.dst:
            n = max(n, 5)
    if p.is_mfma:
        passes = 4 if "16x16x32" in p.op or "16x16x16" in p.op else 8
        big = {4: 8, 8: 12}[passes]; ov = {4: 6, 8: 10}[passes]; war = {4: 3, 8: 7}[passes]
        if c.is_mfma:
            if pv & c.srcAB: n = max(n, big)
            if pv & c.srcC:
                if c.srcC == pv and c.op == p.op: pass
                else: n = max(n, ov)
            elif pv & c.dst: n = max(n, big)
        else:
            if pv & (c.src | c.dst): n = max(n, big)
        if c.is_valu and (p.srcC & c.dst): n = max(n, war)
    if p.wide_store:
        if c.dst & p.store_data: n = max(n, 2)
    if p.is_salu and ("x", "m0") in p.dst and (c.lds_dma or "addtid" in c.op): n = max(n, 1)
    return n

class Emitter:
    def __init__(self):
        self.lines = []
        self.hist = []
        self.vm = []
        self.nins = 0
    def raw(self, s):
        self.lines.append(s)
    def comment(self, s):
        self.lines.append("    ; " + s)
    def label(self, name):
        self.lines.append(name + ":")
    def flush(self, n=None):
        dist = 0; worst = 0
        for p in reversed(self.hist):
            req = 0
            if p.is_mfma: req = 12 if "32x32" in p.op else 8
            elif p.is_valu: req = 5 if any(r[0] == "s" or r[0] == "x" for r in p.dst) else 3
            elif p.wide_store: req = 2
            elif p.is_salu and ("x", "m0") in p.dst: req = 1
            worst = max(worst, req - dist)
            dist += p.states
            if dist >= 12: break
        if worst > 0:
            self("s_nop %d" % (worst - 1))
    def __call__(self, text, tag=None):
        c = Ins(text)
        dist = 0; pad = 0
        for p in reversed(self.hist):
            r = need(p, c)
            if r - dist > pad: pad = r - dist
            dist += p.states
            if dist >= 12: break
        if pad > 0:
            nop = Ins("s_nop %d" % (pad - 1))
            self.lines.append("    " + nop.text)
            self.hist.append(nop); self.nins += 1
        self.lines.append("    " + text)
        self.hist.append(c); self.nins += 1
        if len(self.hist) > 32: self.hist = self.hist[-32:]
        if c.is_vmem and c.op not in ("buffer_wbl2", "buffer_inv") and tag != "extra":
            self.vm.append(tag)
    def wait_vm(self, tag):
        idx = max(i for i, t in enumerate(self.vm) if t == tag)
        n = len(self.vm) - 1 - idx
        assert n <= 63, n
        self("s_waitcnt vmcnt(%d)" % n)
        self.vm = self.vm[idx + 1:]
    def wait_vm0(self):
        self("s_waitcnt vmcnt(0)")
        self.vm = []
    def outstanding(self):
        return len(self.vm)
    def text(self):
        return "\n".join(self.lines) + "\n"
```

```python
import sys, argparse
from asmlib import Emitter

NAME = "sequential_preLN__sliding_block_cached__dense_activation_relu__decode_kernel"
HDR = open("sequential_preLN__sliding_block_cached__dense_activation_relu__decode.s.ref").read().split("; Override launch")[0]

RED = 0
QF = 8448
ML = 8704
YP = 9216
HN = 29696
HNS = 1344
WT = 40960
F2R = 29696
LDS_TOTAL = 98304
H1_BASE = 32768
TS_BASE = 1 << 20

sW, sH, sB = 3, 26, 27
sK, sV, sWQ, sWO, sX, sWS, sDB, sWF, sOUT, sH1 = 28, 32, 36, 40, 44, 48, 52, 56, 60, 64
sLO8 = 70
sT0, sT1, sT2, sT3, sT4 = 72, 73, 74, 75, 76
sKO, sVO = 77, 78
sROLE, sTILE = 80, 81
sSPIN = 82
sTS = 84
vL, vL16, vWQ, vWO = 0, 1, 2, 3
vM = 4
vQ = 8
vB0, vB1 = 12, 16
vD1, vD2 = 20, 24
vT = 28
vS = 32
vW = 48
vKV = 128

LOG2E = 0x3fb8aa3b
SCALE = 0x3db504f3
INV640 = 0x3acccccd
EPS = 0x3727c5ac

def srd(E, d, lo, hi, nrec):
    E(f"s_mov_b32 s{d}, s{lo}") if lo != d else None
    E(f"s_and_b32 s{d+1}, s{hi}, 0xffff")
    E(f"s_mov_b32 s{d+2}, {nrec}")
    E(f"s_mov_b32 s{d+3}, 0x20000")

def srd_off(E, d, base, off_sgpr, nrec):
    E(f"s_add_u32 s{d}, s{base}, s{off_sgpr}")
    E(f"s_addc_u32 s{d+1}, s{base+1}, 0")
    E(f"s_and_b32 s{d+1}, s{d+1}, 0xffff")
    E(f"s_mov_b32 s{d+2}, {nrec}")
    E(f"s_mov_b32 s{d+3}, 0x20000")

def r4(b): return f"v[{b}:{b+3}]"
def r2(b): return f"v[{b}:{b+1}]"
def S4(b): return f"s[{b}:{b+3}]"

def row_reduce(E, regs, op="v_add_f32"):
    for sh in (8, 4, 2, 1):
        for r in regs:
            E(f"{op}_dpp v{r}, v{r}, v{r} row_ror:{sh} row_mask:0xf bank_mask:0xf")

def wave_reduce(E, r, sdst, op="v_add_f32"):
    row_reduce(E, [r], op)
    E(f"{op}_dpp v{r}, v{r}, v{r} row_bcast:15 row_mask:0xa bank_mask:0xf")
    E(f"{op}_dpp v{r}, v{r}, v{r} row_bcast:31 row_mask:0xc bank_mask:0xf")
    E(f"v_readlane_b32 s{sdst}, v{r}, 63")

def bf16r(E, d, s):
    E(f"v_cvt_pk_bf16_f32 v{d}, v{s}, v{s}")
    E(f"v_and_b32 v{d}, 0xffff0000, v{d}")

def unpack10(E, raw, dst):
    for i in range(5):
        E(f"v_lshlrev_b32 v{dst+2*i}, 16, v{raw+i}")
        E(f"v_and_b32 v{dst+2*i+1}, 0xffff0000, v{raw+i}")

def ln_stats(E, f, t0, t1, t2, vmean_bf, vrcp):
    E(f"v_add_f32 v{t0}, v{f}, v{f+1}")
    E(f"v_add_f32 v{t1}, v{f+2}, v{f+3}")
    for i in (4, 6, 8):
        E(f"v_add_f32 v{t0}, v{t0}, v{f+i}")
        E(f"v_add_f32 v{t1}, v{t1}, v{f+i+1}")
    E(f"v_add_f32 v{t0}, v{t0}, v{t1}")
    wave_reduce(E, t0, sT0)
    E(f"v_mov_b32 v{t2}, {INV640:#x}")
    E(f"v_mul_f32 v{vmean_bf}, s{sT0}, v{t2}")
    E(f"v_sub_f32 v{t1}, v{f}, v{vmean_bf}")
    E(f"v_mul_f32 v{t0}, v{t1}, v{t1}")
    for i in range(1, 10):
        E(f"v_sub_f32 v{t1}, v{f+i}, v{vmean_bf}")
        E(f"v_fmac_f32 v{t0}, v{t1}, v{t1}")
    wave_reduce(E, t0, sT0)
    E(f"v_mul_f32 v{t0}, s{sT0}, v{t2}")
    bf16r(E, vmean_bf, vmean_bf)
    bf16r(E, t0, t0)
    E(f"v_add_f32 v{t0}, {EPS:#x}, v{t0}")
    bf16r(E, t0, t0)
    E(f"v_sqrt_f32 v{t0}, v{t0}")
    bf16r(E, t0, t0)
    E(f"v_rcp_f32 v{vrcp}, v{t0}")

def gen(a):
    E = Emitter()
    nt = " nt" if a.nt else ""
    nts = [0]
    def stamp(i):
        if a.ts:
            E(f"s_memrealtime s[{sTS+2*i}:{sTS+2*i+1}]")
    def spin(lbl):
        E(f"s_sub_u32 s{sSPIN}, s{sSPIN}, 1")
        E(f"s_cbranch_scc1 {lbl}")
    def write_stamps():
        if not a.ts: return
        E("s_waitcnt lgkmcnt(0)")
        E("s_mov_b64 exec, 1")
        E(f"s_lshl_b32 s{sT0}, s2, 3")
        E(f"s_add_u32 s{sT0}, s{sT0}, s{sW}")
        E(f"s_lshl_b32 s{sT0}, s{sT0}, 7")
        E(f"s_add_u32 s{sT0}, s{sT0}, {TS_BASE}")
        for i in range(8):
            E(f"v_mov_b32 v{vT}, s{sTS+2*i}")
            E(f"v_mov_b32 v{vT+1}, s{sTS+2*i+1}")
            E(f"buffer_store_dwordx2 {r2(vT)}, off, {S4(sWS)}, s{sT0} offset:{8*i}", tag="extra")
            E("s_nop 1")
        E(f"s_getreg_b32 s{sT1}, hwreg(HW_REG_XCC_ID)")
        E(f"v_mov_b32 v{vT}, s{sT1}")
        E(f"s_getreg_b32 s{sT1}, hwreg(HW_REG_HW_ID)")
        E(f"v_mov_b32 v{vT+1}, s{sT1}")
        E(f"buffer_store_dwordx2 {r2(vT)}, off, {S4(sWS)}, s{sT0} offset:64", tag="extra")

    E("s_cmp_ge_u32 s2, 256")
    E("s_cbranch_scc1 L_end")
    E("s_load_dwordx16 s[4:19], s[0:1], 0")
    E("s_load_dwordx4 s[20:23], s[0:1], 64")
    E("s_load_dwordx2 s[24:25], s[0:1], 80")
    if a.ts:
        for i in range(8):
            E(f"s_mov_b64 s[{sTS+2*i}:{sTS+2*i+1}], 0")
        stamp(0)
    E(f"v_lshrrev_b32 v{vT}, 6, v0")
    E(f"v_and_b32 v{vL}, 63, v0")
    E(f"v_readfirstlane_b32 s{sW}, v{vT}")
    E(f"s_and_b32 s{sH}, s2, 31")
    E(f"s_lshr_b32 s{sB}, s2, 5")
    vJ, vN = vT, vT + 1
    E(f"v_lshlrev_b32 v{vL16}, 4, v{vL}")
    E(f"v_lshrrev_b32 v{vJ}, 4, v{vL}")
    E(f"v_and_b32 v{vN}, 15, v{vL}")
    E(f"v_mul_u32_u24 v{vWQ}, 81920, v{vJ}")
    E(f"v_lshl_add_u32 v{vWQ}, v{vN}, 4, v{vWQ}")
    vXS, vXC = vT + 2, vT + 3
    E(f"v_mul_u32_u24 v{vXS}, 20, v{vL}")
    E(f"v_lshrrev_b32 v{vXC}, 3, v{vN}")
    E(f"v_lshl_add_u32 v{vXC}, v{vXC}, 2, v{vJ}")
    E(f"s_lshl_b32 s{sT0}, s{sW}, 3")
    E(f"v_add_u32 v{vXC}, s{sT0}, v{vXC}")
    E(f"v_mul_u32_u24 v{vXC}, 20, v{vXC}")
    E(f"s_and_b32 s{sT0}, s2, 7")
    E(f"s_lshr_b32 s{sT1}, s2, 3")
    E(f"s_and_b32 s{sT2}, s{sT1}, 15")
    E(f"s_lshr_b32 s{sT2}, s{sT2}, 2")
    E(f"s_lshl_b32 s{sT2}, s{sT2}, 3")
    E(f"s_add_u32 s{sT2}, s{sT2}, s{sT0}")
    E(f"s_and_b32 s{sT3}, s{sT1}, 3")
    E(f"s_lshl_b32 s{sTILE}, s{sT2}, 2")
    E(f"s_add_u32 s{sTILE}, s{sTILE}, s{sT3}")
    E(f"s_cmp_lt_u32 s{sT1}, 16")
    E(f"s_cselect_b32 s{sROLE}, 1, 2")
    E(f"s_cselect_b32 s{sT3}, 27, 10")
    E(f"s_cmp_lt_u32 s{sT2}, s{sT3}")
    E(f"s_cselect_b32 s{sROLE}, s{sROLE}, 0")
    E(f"s_mov_b32 s{sSPIN}, 0x40000")
    E(f"s_mov_b32 s{sLO8}, 0x00ff00ff")
    E(f"s_mov_b32 s{sLO8+1}, 0x00ff00ff")
    E("s_waitcnt lgkmcnt(0)")
    srd(E, sX, 4, 5, 10240)
    E(f"s_mul_i32 s{sT4}, s{sB}, 1280")
    srd(E, sWS, 24, 25, 1 << 22)
    E(f"s_lshl_b32 s{sT0}, s{sH}, 8")
    srd_off(E, sWQ, 10, sT0, 640 * 8192)
    E(f"s_sub_u32 s{sWQ+2}, s{sWQ+2}, s{sT0}")
    E(f"s_lshl_b32 s{sT0}, s2, 20")
    E(f"s_add_u32 s{sT0}, s{sT0}, 0xc0000")
    srd_off(E, sK, 6, sT0, 0x40000)
    srd_off(E, sV, 8, sT0, 0x40000)
    srd(E, sDB, 22, 23, 256)
    E(f"s_mov_b32 s{sT0}, {H1_BASE}")
    srd_off(E, sH1, 24, sT0, 108 * 256)
    E(f"s_cmp_lg_u32 s{sW}, 7")
    E("s_cbranch_scc1 L_noinit")
    E(f"s_cmp_lg_u32 s{sROLE}, 1")
    E("s_cbranch_scc1 L_nosent")
    E(f"v_mov_b32 v{vB0}, -1")
    E(f"v_lshlrev_b32 v{vB0+1}, 2, v{vL}")
    E(f"s_lshl_b32 s{sT0}, s{sTILE}, 8")
    E(f"buffer_store_dword v{vB0}, v{vB0+1}, {S4(sH1)}, s{sT0} offen sc1", tag="extra")
    E.label("L_nosent")
    E(f"s_cmp_lg_u32 s{sH}, 0")
    E("s_cbranch_scc1 L_noinit")
    for i in range(4):
        E(f"v_mov_b32 v{vB1+i}, 0")
    E(f"s_lshl_b32 s{sT0}, s{sB}, 12")
    for i in range(4):
        E(f"buffer_store_dwordx4 {r4(vB1)}, v{vL16}, {S4(sWS)}, s{sT0} offen offset:{1024*i} sc1", tag="extra")
    E("s_waitcnt vmcnt(0)")
    E(f"v_mov_b32 v{vB0}, 1")
    E(f"s_lshl_b32 s{sT0}, s{sB}, 2")
    E("s_mov_b64 exec, 1")
    E(f"buffer_store_dword v{vB0}, off, {S4(sDB)}, s{sT0} sc1", tag="extra")
    E("s_mov_b64 exec, -1")
    E.label("L_noinit")
    xs_raw, xc_raw = vS, vS + 6
    E(f"buffer_load_dwordx4 {r4(xs_raw)}, v{vXS}, {S4(sX)}, s{sT4} offen", tag="xs")
    E(f"buffer_load_dword v{xs_raw+4}, v{vXS}, {S4(sX)}, s{sT4} offen offset:16", tag="xs")
    E(f"buffer_load_dwordx4 {r4(xc_raw)}, v{vXC}, {S4(sX)}, s{sT4} offen", tag="xc")
    E(f"buffer_load_dword v{xc_raw+4}, v{vXC}, {S4(sX)}, s{sT4} offen offset:16", tag="xc")
    E(f"s_mul_i32 s{sT0}, s{sW}, 655360")
    E(f"s_add_u32 s{sT1}, s{sT0}, 327680")
    for t in range(10):
        E(f"buffer_load_dwordx4 {r4(vW+8*t)}, v{vWQ}, {S4(sWQ)}, s{sT0} offen", tag=f"wq{2*t}")
        E(f"buffer_load_dwordx4 {r4(vW+8*t+4)}, v{vWQ}, {S4(sWQ)}, s{sT1} offen", tag=f"wq{2*t+1}")
        if t < 9:
            E(f"s_add_u32 s{sT0}, s{sT0}, 8192")
            E(f"s_add_u32 s{sT1}, s{sT1}, 8192")
    if a.pat == "inter":
        E(f"s_lshl_b32 s{sKO}, s{sW}, 10")
        step = 8192
    else:
        E(f"s_lshl_b32 s{sKO}, s{sW}, 15")
        step = 1024
    if a.rot:
        E(f"s_mul_i32 s{sT0}, s2, {a.rot}")
        E(f"s_lshl_b32 s{sT0}, s{sT0}, 13")
        E(f"s_add_u32 s{sKO}, s{sKO}, s{sT0}")
        E(f"s_and_b32 s{sKO}, s{sKO}, 0x3ffff")
    E(f"s_mov_b32 s{sVO}, s{sKO}")
    def adv(s):
        E(f"s_add_u32 s{s}, s{s}, {step}")
        if a.rot: E(f"s_and_b32 s{s}, s{s}, 0x3ffff")
    def kload(f):
        E(f"buffer_load_dwordx4 {r4(vKV+4*f)}, v{vL16}, {S4(sK)}, s{sKO} offen{nt}", tag=f"k{f}")
        if f < 31: adv(sKO)
    for f in range(a.kpre): kload(f)
    E(f"s_mul_i32 s{sT0}, s{sH}, {128*1280}")
    srd_off(E, sWO, 12, sT0, 128 * 1280)
    srd(E, sOUT, 20, 21, 10240)
    E(f"v_mul_u32_u24 v{vWO}, 40960, v{vJ}")
    E(f"v_and_b32 v{vB0}, 1, v{vN}")
    E(f"v_lshl_add_u32 v{vWO}, v{vB0}, 7, v{vWO}")
    E(f"v_lshrrev_b32 v{vB0+1}, 1, v{vN}")
    E(f"v_lshl_add_u32 v{vWO}, v{vB0+1}, 4, v{vWO}")
    E(f"v_lshlrev_b32 v{vB0}, 4, v{vB0}")
    E(f"v_mov_b32 v{vB0+2}, 0xffff")
    E(f"v_lshlrev_b32 v{vB0}, v{vB0}, v{vB0+2}")
    E(f"v_and_b32 v{vB0+1}, 3, v{vB0+1}")
    for w in range(4):
        E(f"v_cmp_eq_u32 vcc, {w}, v{vB0+1}")
        E(f"v_cndmask_b32 v{vM+w}, 0, v{vB0}, vcc")
    vRW, vRR = vXS, vXC
    E(f"v_lshrrev_b32 v{vB0}, 3, v{vN}")
    E(f"s_lshl_b32 s{sT0}, s{sW}, 1")
    E(f"v_add_u32 v{vB0}, s{sT0}, v{vB0}")
    E(f"v_mul_u32_u24 v{vRW}, 528, v{vB0}")
    E(f"v_and_b32 v{vB0}, 7, v{vN}")
    E(f"v_lshl_add_u32 v{vRW}, v{vB0}, 6, v{vRW}")
    E(f"v_lshl_add_u32 v{vRW}, v{vJ}, 4, v{vRW}")
    E(f"v_mul_u32_u24 v{vRR}, 528, v{vN}")
    E(f"v_lshl_add_u32 v{vRR}, v{vJ}, 4, v{vRR}")
    E(f"s_lshl_b32 s{sT0}, s{sW}, 6")
    E(f"v_add_u32 v{vRR}, s{sT0}, v{vRR}")
    E.wait_vm("xs")
    f = 8
    unpack10(E, xs_raw, f)
    vMEAN, vRCP = 18, 19
    ln_stats(E, f, 20, 21, 22, vMEAN, vRCP)
    E.wait_vm("xc")
    unpack10(E, xc_raw, f)
    for i in range(10):
        E(f"v_sub_f32 v{f+i}, v{f+i}, v{vMEAN}")
    for i in range(10):
        bf16r(E, f + i, f + i)
    for i in range(10):
        E(f"v_mul_f32 v{f+i}, v{f+i}, v{vRCP}")
    for i in range(10):
        E(f"v_cvt_pk_bf16_f32 v{vS+i}, v{f+i}, v{f+i}")
    def bfrag(dst, src):
        for w in range(4):
            E(f"v_and_b32 v{dst+w}, v{src}, v{vM+w}")
    for t in range(10):
        B = vB0 if t % 2 == 0 else vB1
        bfrag(B, vS + t)
        E.wait_vm(f"wq{2*t+1}")
        c1 = "0" if t == 0 else r4(vD1)
        c2 = "0" if t == 0 else r4(vD2)
        E(f"v_mfma_f32_16x16x32_bf16 {r4(vD1)}, {r4(vW+8*t)}, {r4(B)}, {c1}")
        E(f"v_mfma_f32_16x16x32_bf16 {r4(vD2)}, {r4(vW+8*t+4)}, {r4(B)}, {c2}")
    for f in range(a.kpre, 32): kload(f)
    E(f"s_mul_i32 s{sT0}, s{sW}, 1280")
    for fp in range(4):
        for cg in range(5):
            E(f"buffer_load_dwordx4 {r4(vW+(fp*5+cg)*4)}, v{vWO}, {S4(sWO)}, s{sT0} offen offset:{cg*256}", tag=f"wo{fp*5+cg}")
        if fp < 3: E(f"s_add_u32 s{sT0}, s{sT0}, {8*1280}")
    def reduce16(dst):
        for r in range(4):
            E(f"v_cndmask_b32 v{vD1+r}, v{vD2+r}, v{vD1+r}, s[{sLO8}:{sLO8+1}]")
        E(f"ds_write_b128 v{vRW}, {r4(vD1)} offset:{RED}")
        E("s_waitcnt lgkmcnt(0)")
        E("s_barrier")
        E(f"ds_read_b128 {r4(dst)}, v{vRR} offset:{RED}")
        E("s_waitcnt lgkmcnt(0)")
        row_reduce(E, [dst + i for i in range(4)])
    reduce16(vB0)
    for i in range(4):
        E(f"v_cvt_pk_bf16_f32 v{vB0+i}, v{vB0+i}, v{vB0+i}")
    E(f"v_lshlrev_b32 v{vB1}, 6, v{vJ}")
    E(f"s_lshl_b32 s{sT0}, s{sW}, 1")
    E(f"v_add_u32 v{vB1}, s{sT0}, v{vB1}")
    E(f"s_mov_b32 exec_lo, 0x00010001")
    E(f"s_mov_b32 exec_hi, 0x00010001")
    for i in range(4):
        E(f"ds_write_b16 v{vB1}, v{vB0+i} offset:{QF+16*i}")
    E("s_mov_b64 exec, -1")
    E(f"v_lshlrev_b32 v{vB1}, 4, v{vN}")
    E("s_waitcnt lgkmcnt(0)")
    E("s_barrier")
    E(f"ds_read_b128 {r4(vQ)}, v{vB1} offset:{QF}")
    E("s_waitcnt lgkmcnt(0)")
    stamp(1)
    sa, sb = vB0, vB0 + 1
    for t in range(16):
        k0, k1 = vKV + 8 * t, vKV + 8 * t + 4
        sa, sb = (vB0, vB0 + 1) if t % 2 == 0 else (vB0 + 2, vB0 + 3)
        E.wait_vm(f"k{2*t+1}")
        for i in range(4):
            E(f"v_dot2_f32_bf16 v{sa}, v{k0+i}, v{vQ+i}, {'0' if i == 0 else 'v%d' % sa}")
            E(f"v_dot2_f32_bf16 v{sb}, v{k1+i}, v{vQ+i}, {'0' if i == 0 else 'v%d' % sb}")
        E(f"buffer_load_dwordx4 {r4(k0)}, v{vL16}, {S4(sV)}, s{sVO} offen{nt}", tag=f"v{2*t}")
        adv(sVO)
        E(f"buffer_load_dwordx4 {r4(k1)}, v{vL16}, {S4(sV)}, s{sVO} offen{nt}", tag=f"v{2*t+1}")
        if t < 15: adv(sVO)
        s = vS + t
        E(f"v_add_f32_dpp v{s}, v{sa}, v{sa} row_ror:8 row_mask:0xf bank_mask:0x3")
        E(f"v_add_f32_dpp v{s}, v{sb}, v{sb} row_ror:8 row_mask:0xf bank_mask:0xc")
        E(f"v_add_f32_dpp v{s}, v{s}, v{s} row_half_mirror row_mask:0xf bank_mask:0xf")
        E(f"v_add_f32_dpp v{s}, v{s}, v{s} quad_perm:[1,0,3,2] row_mask:0xf bank_mask:0xf")
        E(f"v_add_f32_dpp v{s}, v{s}, v{s} quad_perm:[2,3,0,1] row_mask:0xf bank_mask:0xf")
        bf16r(E, s, s)
        E(f"v_mul_f32 v{s}, {SCALE:#x}, v{s}")
        bf16r(E, s, s)
    vFL = vQ
    E(f"v_and_b32 v{vQ+1}, 7, v{vL}")
    E(f"v_lshlrev_b32 v{vQ+1}, 2, v{vQ+1}")
    E(f"buffer_load_dword v{vFL}, v{vQ+1}, {S4(sDB)}, 0 offen sc1", tag="flag")
    m, l = vD1, vD1 + 1
    E(f"v_max3_f32 v{m}, v{vS}, v{vS+1}, v{vS+2}")
    for i in range(3, 15, 2):
        E(f"v_max3_f32 v{m}, v{m}, v{vS+i}, v{vS+i+1}")
    E(f"v_max_f32 v{m}, v{m}, v{vS+15}")
    for i in range(16):
        E(f"v_sub_f32 v{vS+i}, v{vS+i}, v{m}")
    for i in range(16):
        E(f"v_mul_f32 v{vS+i}, {LOG2E:#x}, v{vS+i}")
    for i in range(16):
        E(f"v_exp_f32 v{vS+i}, v{vS+i}")
    E(f"v_add_f32 v{l}, v{vS}, v{vS+1}")
    E(f"v_add_f32 v{vB0}, v{vS+2}, v{vS+3}")
    for i in range(4, 16, 2):
        E(f"v_add_f32 v{l}, v{l}, v{vS+i}")
        E(f"v_add_f32 v{vB0}, v{vB0}, v{vS+i+1}")
    E(f"v_add_f32 v{l}, v{l}, v{vB0}")
    E(f"v_and_b32 v{vB0}, 56, v{vL}")
    E(f"s_lshl_b32 s{sT0}, s{sW}, 6")
    E(f"v_add_u32 v{vB0}, s{sT0}, v{vB0}")
    E(f"ds_write_b64 v{vB0}, {r2(m)} offset:{ML}")
    E(f"v_lshlrev_b32 v{vB0}, 3, v{vL}")
    E("s_waitcnt lgkmcnt(0)")
    E("s_barrier")
    stamp(2)
    mg, lg = vD2, vD2 + 1
    E(f"ds_read_b64 {r2(mg)}, v{vB0} offset:{ML}")
    E("s_waitcnt lgkmcnt(0)")
    E(f"v_mov_b32 v{vB0}, v{mg}")
    wave_reduce(E, vB0, sT0, "v_max_f32")
    E(f"v_subrev_f32 v{mg}, s{sT0}, v{mg}")
    E(f"v_subrev_f32 v{m}, s{sT0}, v{m}")
    E(f"v_mul_f32 v{mg}, {LOG2E:#x}, v{mg}")
    E(f"v_mul_f32 v{m}, {LOG2E:#x}, v{m}")
    E(f"v_exp_f32 v{mg}, v{mg}")
    E(f"v_exp_f32 v{m}, v{m}")
    E(f"v_mul_f32 v{lg}, v{lg}, v{mg}")
    wave_reduce(E, lg, sT1)
    E(f"v_rcp_f32 v{l}, s{sT1}")
    E(f"v_mul_f32 v{m}, v{m}, v{l}")
    for i in range(16):
        E(f"v_mul_f32 v{vS+i}, v{vS+i}, v{m}")
    for i in range(16):
        E(f"v_cvt_pk_bf16_f32 v{vS+i}, v{vS+i}, v{vS+i}")
    for t in range(16):
        B = vB0 if t % 2 == 0 else vB1
        bfrag(B, vS + t)
        E.wait_vm(f"v{2*t+1}")
        c1 = "0" if t == 0 else r4(vD1)
        c2 = "0" if t == 0 else r4(vD2)
        E(f"v_mfma_f32_16x16x32_bf16 {r4(vD1)}, {r4(vKV+8*t)}, {r4(B)}, {c1}")
        E(f"v_mfma_f32_16x16x32_bf16 {r4(vD2)}, {r4(vKV+8*t+4)}, {r4(B)}, {c2}")
    stamp(3)
    E.label("L_flag")
    E.wait_vm0()
    E(f"v_cmp_eq_u32 vcc, 0, v{vFL}")
    E.flush()
    E("s_cbranch_vccz L_flagok")
    spin("L_flagok")
    E("s_sleep 2")
    E(f"buffer_load_dword v{vFL}, v{vQ+1}, {S4(sDB)}, 0 offen sc1", tag="extra")
    E("s_branch L_flag")
    E.label("L_flagok")
    vDM = vQ + 2
    E(f"s_cmp_lg_u32 s{sROLE}, 1")
    E("s_cselect_b32 s%d, s18, s16" % sWF)
    E("s_cselect_b32 s%d, s19, s17" % (sWF + 1))
    E(f"s_and_b32 s{sWF+1}, s{sWF+1}, 0xffff")
    E(f"s_mov_b32 s{sWF+2}, {640*3456}")
    E(f"s_mov_b32 s{sWF+3}, 0x20000")
    E(f"s_cmp_lg_u32 s{sROLE}, 1")
    E("s_cbranch_scc1 L_nodma1")
    E(f"s_cmp_lg_u32 s{sW}, 7")
    E("s_cbranch_scc1 L_nodma1")
    E(f"v_lshrrev_b32 v{vDM}, 1, v{vL}")
    E(f"v_mul_u32_u24 v{vDM}, 3456, v{vDM}")
    E(f"v_and_b32 v{vDM+1}, 1, v{vL}")
    E(f"v_lshl_add_u32 v{vDM}, v{vDM+1}, 4, v{vDM}")
    E(f"s_lshl_b32 s{sT0}, s{sTILE}, 5")
    for t in range(20):
        E(f"s_mov_b32 m0, {WT + t*1024}")
        E(f"buffer_load_dwordx4 v{vDM}, {S4(sWF)}, s{sT0} offen lds", tag="extra")
        if t < 19: E(f"s_add_u32 s{sT0}, s{sT0}, {32*3456}")
    E.label("L_nodma1")
    reduce16(vS)
    for i in range(4):
        E(f"v_cvt_pk_bf16_f32 v{vS+i}, v{vS+i}, v{vS+i}")
    vY = vKV
    Bs = [vB0, vB1, vD1, vD2]
    for fp in range(4):
        bfrag(Bs[fp], vS + fp)
    for fp in range(4):
        for cg in range(5):
            c = "0" if fp == 0 else r4(vY + 4 * cg)
            E(f"v_mfma_f32_16x16x32_bf16 {r4(vY+4*cg)}, {r4(vW+(fp*5+cg)*4)}, {r4(Bs[fp])}, {c}")
    vA = vS + 4
    E(f"v_and_b32 v{vA}, 7, v{vL}")
    E(f"v_lshlrev_b32 v{vA}, 6, v{vA}")
    E(f"v_lshl_add_u32 v{vA}, v{vJ}, 4, v{vA}")
    E(f"s_mul_i32 s{sT0}, s{sW}, 2560")
    E(f"v_add_u32 v{vA}, s{sT0}, v{vA}")
    vA2 = vS + 5
    E(f"v_and_b32 v{vA2}, 7, v{vL}")
    E(f"v_lshlrev_b32 v{vA2}, 6, v{vA2}")
    E(f"v_and_b32 v{vA2+1}, 56, v{vL}")
    E(f"v_add_u32 v{vA2}, v{vA2}, v{vA2+1}")
    E(f"s_lshl_b32 s{sT0}, s{sW}, 9")
    E(f"v_add_u32 v{vA2}, s{sT0}, v{vA2}")
    E(f"s_mov_b64 exec, s[{sLO8}:{sLO8+1}]")
    for cg in range(5):
        E(f"ds_write_b128 v{vA}, {r4(vY+4*cg)} offset:{YP+cg*512}")
    E("s_mov_b64 exec, -1")
    E("s_waitcnt lgkmcnt(0)")
    E("s_barrier")
    E(f"s_cmp_ge_u32 s{sW}, 5")
    E("s_cbranch_scc1 L_noatom")
    vP = vKV + 32
    for p in range(8):
        E(f"ds_read_b64 {r2(vP+2*p)}, v{vA2} offset:{YP+p*2560}")
    E(f"v_lshlrev_b32 v{vA}, 2, v{vL}")
    E(f"s_lshl_b32 s{sT0}, s{sB}, 12")
    E(f"s_lshl_b32 s{sT1}, s{sW}, 9")
    E(f"s_add_u32 s{sT0}, s{sT0}, s{sT1}")
    E("s_waitcnt lgkmcnt(0)")
    for st in (4, 2, 1):
        for p in range(st):
            E(f"v_add_f32 v{vP+2*p}, v{vP+2*p}, v{vP+2*(p+st)}")
            E(f"v_add_f32 v{vP+2*p+1}, v{vP+2*p+1}, v{vP+2*(p+st)+1}")
    E(f"buffer_atomic_add_f32 v{vP}, v{vA}, {S4(sWS)}, s{sT0} offen", tag="extra")
    E(f"buffer_atomic_add_f32 v{vP+1}, v{vA}, {S4(sWS)}, s{sT0} offen offset:256", tag="extra")
    E("s_waitcnt vmcnt(0)")
    E.label("L_noatom")
    E("s_barrier")
    stamp(4)
    E(f"s_cmp_lg_u32 s{sW}, 0")
    E("s_cbranch_scc1 L_noarr")
    E(f"v_mov_b32 v{vA}, 1")
    E(f"s_lshl_b32 s{sT0}, s{sB}, 12")
    E("s_mov_b64 exec, 1")
    E(f"buffer_atomic_add v{vA}, off, {S4(sWS)}, s{sT0} offset:3072", tag="extra")
    E("s_mov_b64 exec, -1")
    E.label("L_noarr")
    E(f"s_cmp_eq_u32 s{sROLE}, 2")
    E("s_cbranch_scc1 L_ffn2")
    E(f"s_cmp_eq_u32 s{sROLE}, 0")
    E("s_cbranch_scc1 L_fin")

    def tr_addr(v, tmp):
        E(f"v_lshlrev_b32 v{v}, 8, v{vJ}")
        E(f"v_lshl_add_u32 v{v}, v{vN}, 3, v{v}")
    xr = vS
    ac = vKV + 64
    E(f"v_mul_u32_u24 v{vA}, 20, v{vL}") if False else None
    vA = vB0
    E(f"v_mul_u32_u24 v{vA}, 20, v{vL}")
    E(f"s_mul_i32 s{sT0}, s{sW}, 1280")
    E(f"buffer_load_dwordx4 {r4(xr)}, v{vA}, {S4(sX)}, s{sT0} offen", tag="extra")
    E(f"buffer_load_dword v{xr+4}, v{vA}, {S4(sX)}, s{sT0} offen offset:16", tag="extra")
    E(f"v_lshlrev_b32 v{vA+1}, 1, v{vA}")
    E(f"s_mul_i32 s{sT1}, s{sW}, {HNS}")
    E(f"v_add_u32 v{vA+2}, s{sT1}, v{vA}")
    E(f"s_cmp_lg_u32 s{sW}, 7")
    E("s_cbranch_scc1 L_f1_notr")
    E("s_waitcnt vmcnt(0)")
    tr_addr(vA + 3, None)
    for t in range(20):
        E(f"ds_read_b64_tr_b16 {r2(vW+4*t)}, v{vA+3} offset:{WT+t*1024}")
        E(f"ds_read_b64_tr_b16 {r2(vW+4*t+2)}, v{vA+3} offset:{WT+t*1024+128}")
        if t % 4 == 3: E("s_waitcnt lgkmcnt(0)")
    E(f"v_and_b32 v{vA+3}, 7, v{vL}")
    E(f"v_mul_u32_u24 v{vA+3}, {HNS}, v{vA+3}")
    E(f"v_lshl_add_u32 v{vA+3}, v{vJ}, 4, v{vA+3}")
    E.label("L_f1_notr")
    E(f"s_lshl_b32 s{sT2}, s{sW}, 12")
    E.label("L_f1_poll")
    E(f"buffer_load_dword v{vB1}, off, {S4(sWS)}, s{sT2} offset:3072 sc1", tag="extra")
    E("s_waitcnt vmcnt(0)")
    E(f"v_readfirstlane_b32 s{sT0}, v{vB1}")
    E(f"s_cmp_ge_u32 s{sT0}, 32")
    E("s_cbranch_scc1 L_f1_go")
    spin("L_f1_go")
    E(f"s_sleep {a.sleep}")
    E("s_branch L_f1_poll")
    E.label("L_f1_go")
    E(f"buffer_load_dwordx4 {r4(ac)}, v{vA+1}, {S4(sWS)}, s{sT2} offen sc1", tag="extra")
    E(f"buffer_load_dwordx4 {r4(ac+4)}, v{vA+1}, {S4(sWS)}, s{sT2} offen offset:16 sc1", tag="extra")
    E(f"buffer_load_dwordx2 {r2(ac+8)}, v{vA+1}, {S4(sWS)}, s{sT2} offen offset:32 sc1", tag="extra")
    stamp(5)
    hx = vKV + 80
    unpack10(E, xr, hx)
    E("s_waitcnt vmcnt(0)")
    for i in range(10): bf16r(E, ac + i, ac + i)
    for i in range(10): E(f"v_add_f32 v{hx+i}, v{hx+i}, v{ac+i}")
    for i in range(10): bf16r(E, hx + i, hx + i)
    ln_stats(E, hx, vD1, vD1 + 1, vD1 + 2, vD2, vD2 + 1)
    for i in range(10): E(f"v_sub_f32 v{hx+i}, v{hx+i}, v{vD2}")
    for i in range(10): bf16r(E, hx + i, hx + i)
    for i in range(10): E(f"v_mul_f32 v{hx+i}, v{hx+i}, v{vD2+1}")
    for i in range(5): E(f"v_cvt_pk_bf16_f32 v{ac+i}, v{hx+2*i}, v{hx+2*i+1}")
    for i in range(5): E(f"ds_write_b32 v{vA+2}, v{ac+i} offset:{HN+4*i}")
    E("s_waitcnt lgkmcnt(0)")
    E("s_barrier")
    E(f"s_cmp_lg_u32 s{sW}, 7")
    E("s_cbranch_scc1 L_fin")
    hb = vKV
    for t in range(20):
        E(f"ds_read_b128 {r4(hb+4*t)}, v{vA+3} offset:{HN+64*t}")
        if t >= 12:
            pass
    for t in range(20):
        E(f"s_waitcnt lgkmcnt({min(15, 19-t)})")
        c = "0" if t == 0 else r4(vD1)
        E(f"v_mfma_f32_16x16x32_bf16 {r4(vD1)}, {r4(vW+4*t)}, {r4(hb+4*t)}, {c}")
    E(f"v_lshlrev_b32 v{vA}, 5, v{vN}")
    E(f"v_lshl_add_u32 v{vA}, v{vJ}, 3, v{vA}")
    E(f"s_lshl_b32 s{sT0}, s{sTILE}, 8")
    for i in range(4): E(f"v_max_f32 v{vD1+i}, 0, v{vD1+i}")
    E(f"v_cvt_pk_bf16_f32 v{vD2}, v{vD1}, v{vD1+1}")
    E(f"v_cvt_pk_bf16_f32 v{vD2+1}, v{vD1+2}, v{vD1+3}")
    E(f"s_mov_b64 exec, s[{sLO8}:{sLO8+1}]")
    E(f"buffer_store_dwordx2 {r2(vD2)}, v{vA}, {S4(sH1)}, s{sT0} offen sc1", tag="extra")
    stamp(6)
    E("s_branch L_fin")

    E.label("L_ffn2")
    vA = vB0
    E(f"v_lshrrev_b32 v{vA}, 1, v{vL}")
    E(f"v_mul_u32_u24 v{vA}, 1280, v{vA}")
    E(f"v_and_b32 v{vA+1}, 1, v{vL}")
    E(f"v_lshl_add_u32 v{vA}, v{vA+1}, 4, v{vA}")
    E(f"s_mul_i32 s{sT0}, s{sW}, {7*32*1280}")
    E(f"s_lshl_b32 s{sT1}, s{sTILE}, 5")
    E(f"s_add_u32 s{sT0}, s{sT0}, s{sT1}")
    E(f"s_mul_i32 s{sT3}, s{sW}, {7*1024}")
    E(f"s_add_u32 s{sT2}, s{sT3}, {WT}")
    for t in range(7):
        E(f"s_mov_b32 m0, s{sT2}")
        E(f"buffer_load_dwordx4 v{vA}, {S4(sWF)}, s{sT0} offen lds", tag="extra")
        if t < 6:
            E(f"s_add_u32 s{sT0}, s{sT0}, {32*1280}")
            E(f"s_add_u32 s{sT2}, s{sT2}, 1024")
    vXO = vA + 2
    E(f"v_and_b32 v{vA+1}, 7, v{vL}")
    E(f"v_mul_u32_u24 v{vXO}, 1280, v{vA+1}")
    E(f"v_lshl_add_u32 v{vXO}, v{vJ}, 3, v{vXO}")
    xr = vS
    E(f"buffer_load_dwordx2 {r2(xr)}, v{vXO}, {S4(sX)}, s{sT1} offen", tag="extra")
    vCO = vA + 3
    E(f"v_lshlrev_b32 v{vCO}, 12, v{vA+1}")
    vHO = vB1
    E(f"v_lshl_add_u32 v{vHO}, v{vJ}, 4, v{vCO}")
    vH1 = vB1 + 1
    E(f"v_lshrrev_b32 v{vH1}, 1, v{vJ}")
    E(f"v_lshlrev_b32 v{vH1}, 8, v{vH1}")
    E(f"v_lshl_add_u32 v{vH1}, v{vA+1}, 5, v{vH1}")
    E(f"v_and_b32 v{vB1+2}, 1, v{vJ}")
    E(f"v_lshl_add_u32 v{vH1}, v{vB1+2}, 4, v{vH1}")
    tr_addr(vB1 + 2, None)
    E(f"v_add_u32 v{vB1+2}, s{sT3}, v{vB1+2}")
    E("s_waitcnt vmcnt(0)")
    for t in range(7):
        E(f"ds_read_b64_tr_b16 {r2(vW+4*t)}, v{vB1+2} offset:{WT+t*1024}")
        E(f"ds_read_b64_tr_b16 {r2(vW+4*t+2)}, v{vB1+2} offset:{WT+t*1024+128}")
    E("s_waitcnt lgkmcnt(0)")
    E(f"s_cmp_lg_u32 s{sW}, 0")
    E("s_cbranch_scc1 L_f2_go")
    E.label("L_f2_poll")
    E(f"buffer_load_dword v{vD1}, v{vCO}, {S4(sWS)}, 0 offen offset:3072 sc1", tag="extra")
    E("s_waitcnt vmcnt(0)")
    E(f"v_cmp_gt_u32 vcc, 32, v{vD1}")
    E.flush()
    E("s_cbranch_vccz L_f2_cnt")
    spin("L_f2_cnt")
    E(f"s_sleep {a.sleep}")
    E("s_branch L_f2_poll")
    E.label("L_f2_cnt")
    ac = vS + 4
    E(f"s_lshl_b32 s{sT0}, s{sTILE}, 6")
    E(f"buffer_load_dwordx4 {r4(ac)}, v{vHO}, {S4(sWS)}, s{sT0} offen sc1", tag="extra")
    E.label("L_f2_go")
    E("s_barrier")
    stamp(5)
    E(f"s_mul_i32 s{sT2}, s{sW}, {7*512}")
    hb = vKV
    E.label("L_f2_poll2")
    for t in range(7):
        E(f"buffer_load_dwordx4 {r4(hb+4*t)}, v{vH1}, {S4(sH1)}, s{sT2} offen offset:{512*t} sc1", tag="extra")
    E("s_waitcnt vmcnt(0)")
    E(f"v_max3_u32 v{vD1}, v{hb}, v{hb+1}, v{hb+2}")
    E(f"v_max3_u32 v{vD1+1}, v{hb+3}, v{hb+4}, v{hb+5}")
    k = 6
    while k + 1 < 28:
        tgt = vD1 + ((k // 2) % 2)
        E(f"v_max3_u32 v{tgt}, v{tgt}, v{hb+k}, v{hb+k+1}")
        k += 2
    E(f"v_max_u32 v{vD1}, v{vD1}, v{vD1+1}")
    E(f"v_cmp_eq_u32 vcc, -1, v{vD1}")
    E.flush()
    E("s_cbranch_vccz L_f2_got")
    spin("L_f2_got")
    E(f"s_sleep {a.sleep}")
    E("s_branch L_f2_poll2")
    E.label("L_f2_got")
    stamp(6)
    for t in range(7):
        c = "0" if t == 0 else r4(vD1)
        E(f"v_mfma_f32_16x16x32_bf16 {r4(vD1)}, {r4(vW+4*t)}, {r4(hb+4*t)}, {c}")
    E(f"s_lshl_b32 s{sT0}, s{sW}, 10")
    E(f"v_add_u32 v{vD2}, s{sT0}, v{vL16}")
    E(f"ds_write_b128 v{vD2}, {r4(vD1)} offset:{F2R}")
    E("s_waitcnt lgkmcnt(0)")
    E("s_barrier")
    E(f"s_cmp_lg_u32 s{sW}, 0")
    E("s_cbranch_scc1 L_fin")
    for p in range(8):
        E(f"ds_read_b128 {r4(hb+4*p)}, v{vL16} offset:{F2R+1024*p}")
    hx = vS + 8
    for i in range(2):
        E(f"v_lshlrev_b32 v{hx+2*i}, 16, v{xr+i}")
        E(f"v_and_b32 v{hx+2*i+1}, 0xffff0000, v{xr+i}")
    for i in range(4): bf16r(E, ac + i, ac + i)
    for i in range(4): E(f"v_add_f32 v{hx+i}, v{hx+i}, v{ac+i}")
    for i in range(4): bf16r(E, hx + i, hx + i)
    E("s_waitcnt lgkmcnt(0)")
    for st in (4, 2, 1):
        for p in range(st):
            for i in range(4):
                E(f"v_add_f32 v{hb+4*p+i}, v{hb+4*p+i}, v{hb+4*(p+st)+i}")
    for i in range(4): bf16r(E, hb + i, hb + i)
    for i in range(4): E(f"v_add_f32 v{hx+i}, v{hx+i}, v{hb+i}")
    E(f"v_cvt_pk_bf16_f32 v{vD2}, v{hx}, v{hx+1}")
    E(f"v_cvt_pk_bf16_f32 v{vD2+1}, v{hx+2}, v{hx+3}")
    E(f"s_mov_b64 exec, s[{sLO8}:{sLO8+1}]")
    E(f"buffer_store_dwordx2 {r2(vD2)}, v{vXO}, {S4(sOUT)}, s{sT1} offen", tag="extra")
    E.label("L_fin")
    if a.ts:
        E("s_waitcnt vmcnt(0)")
        stamp(7)
        write_stamps()
    E.label("L_end")
    E("s_endpgm")

    out = HDR
    out += f"; @launch grid=(256,1,1) block=(512,1,1) lds={LDS_TOTAL}\n"
    out += f""".amdgcn_target "amdgcn-amd-amdhsa--gfx950"
.text
.globl {NAME}
.p2align 8
.type {NAME},@function
{NAME}:
"""
    out += E.text()
    out += f""".section .rodata,"a"
.p2align 6
.amdhsa_kernel {NAME}
  .amdhsa_next_free_vgpr 256
  .amdhsa_next_free_sgpr 102
  .amdhsa_accum_offset 256
  .amdhsa_group_segment_fixed_size 0
  .amdhsa_kernarg_size 88
  .amdhsa_user_sgpr_count 2
  .amdhsa_user_sgpr_kernarg_segment_ptr 1
  .amdhsa_system_sgpr_workgroup_id_x 1
  .amdhsa_float_denorm_mode_32 3
.end_amdhsa_kernel
"""
    return out

if __name__ == "__main__":
    p = argparse.ArgumentParser()
    p.add_argument("-o", default="sequential_preLN__sliding_block_cached__dense_activation_relu__decode.s")
    p.add_argument("--nt", type=int, default=1)
    p.add_argument("--ts", type=int, default=0)
    p.add_argument("--pat", default="inter")
    p.add_argument("--rot", type=int, default=0)
    p.add_argument("--sleep", type=int, default=1)
    p.add_argument("--kpre", type=int, default=32)
    a = p.parse_args()
    open(a.o, "w").write(gen(a))
```

```python
import sys, argparse
from collections import deque
from asmlib import Emitter

NAME = "sequential_preLN__sliding_block_cached__dense_activation_relu__decode_kernel"
HDR = open("sequential_preLN__sliding_block_cached__dense_activation_relu__decode.s.ref").read().split("; Override launch")[0]

RED = 0
QF = 8448
ML = 8704
YP = 9216
HN = 29696
HNS = 1344
F2R = 29696
WT = 40960
LDS_TOTAL = 98304
H1_BASE = 32768
TS_BASE = 1 << 20

sW, sH, sB = 3, 26, 27
sK, sV, sWQ, sWO, sX, sWS, sDB, sWF, sOUT, sH1 = 28, 32, 36, 40, 44, 48, 52, 56, 60, 64
sROLE, sTILE = 100, 101
sT0, sT1, sT2, sT3, sT4 = 4, 5, 6, 7, 8
sSPIN = 9
sLO8 = 10
sKO, sVO, sQ0, sQ1, sOO = 12, 13, 14, 15, 16
sTS = 68
vL, vL16, vWQ, vWO = 0, 1, 2, 3
vM = 4
vQ = 8
vB0, vB1 = 12, 16
vD1, vD2 = 20, 24
vT = 28
vS = 32
vW = 48
vKV = 128
vJ, vN = vT, vT + 1

LOG2E = 0x3fb8aa3b
SCALE = 0x3db504f3
INV640 = 0x3acccccd
EPS = 0x3727c5ac

def srd(E, d, lo, hi, nrec):
    E(f"s_mov_b32 s{d}, s{lo}")
    E(f"s_and_b32 s{d+1}, s{hi}, 0xffff")
    E(f"s_mov_b32 s{d+2}, {nrec}")
    E(f"s_mov_b32 s{d+3}, 0x20000")

def srd_off(E, d, base, off, nrec):
    E(f"s_add_u32 s{d}, s{base}, {off}")
    E(f"s_addc_u32 s{d+1}, s{base+1}, 0")
    E(f"s_and_b32 s{d+1}, s{d+1}, 0xffff")
    E(f"s_mov_b32 s{d+2}, {nrec}")
    E(f"s_mov_b32 s{d+3}, 0x20000")

def r4(b): return f"v[{b}:{b+3}]"
def r2(b): return f"v[{b}:{b+1}]"
def S4(b): return f"s[{b}:{b+3}]"

def row_reduce(E, regs, op="v_add_f32"):
    for sh in (8, 4, 2, 1):
        for r in regs:
            E(f"{op}_dpp v{r}, v{r}, v{r} row_ror:{sh} row_mask:0xf bank_mask:0xf")

def wave_reduce(E, r, sdst, op="v_add_f32"):
    row_reduce(E, [r], op)
    E(f"{op}_dpp v{r}, v{r}, v{r} row_bcast:15 row_mask:0xa bank_mask:0xf")
    E(f"{op}_dpp v{r}, v{r}, v{r} row_bcast:31 row_mask:0xc bank_mask:0xf")
    E(f"v_readlane_b32 s{sdst}, v{r}, 63")

def bf16r(E, d, s):
    E(f"v_cvt_pk_bf16_f32 v{d}, v{s}, v{s}")
    E(f"v_and_b32 v{d}, 0xffff0000, v{d}")

def bf16r_many(E, regs):
    regs = list(regs)
    for i in range(0, len(regs) - 1, 2):
        a, b = regs[i], regs[i + 1]
        E(f"v_cvt_pk_bf16_f32 v{b}, v{a}, v{b}")
    for i in range(0, len(regs) - 1, 2):
        a, b = regs[i], regs[i + 1]
        E(f"v_lshlrev_b32 v{a}, 16, v{b}")
        E(f"v_and_b32 v{b}, 0xffff0000, v{b}")
    if len(regs) % 2: bf16r(E, regs[-1], regs[-1])

def unpack10(E, raw, dst):
    for i in range(5):
        E(f"v_lshlrev_b32 v{dst+2*i}, 16, v{raw+i}")
        E(f"v_and_b32 v{dst+2*i+1}, 0xffff0000, v{raw+i}")

def ln_stats(E, f, t0, t1, t2, vmean_bf, vrcp):
    E(f"v_add_f32 v{t0}, v{f}, v{f+1}")
    E(f"v_add_f32 v{t1}, v{f+2}, v{f+3}")
    for i in (4, 6, 8):
        E(f"v_add_f32 v{t0}, v{t0}, v{f+i}")
        E(f"v_add_f32 v{t1}, v{t1}, v{f+i+1}")
    E(f"v_add_f32 v{t0}, v{t0}, v{t1}")
    E(f"v_mov_b32 v{t2}, {INV640:#x}")
    wave_reduce(E, t0, sT0)
    E(f"v_mul_f32 v{vmean_bf}, s{sT0}, v{t2}")
    E(f"v_sub_f32 v{t1}, v{f}, v{vmean_bf}")
    E(f"v_sub_f32 v{vrcp}, v{f+1}, v{vmean_bf}")
    E(f"v_mul_f32 v{t0}, v{t1}, v{t1}")
    E(f"v_fmac_f32 v{t0}, v{vrcp}, v{vrcp}")
    for i in range(2, 10, 2):
        E(f"v_sub_f32 v{t1}, v{f+i}, v{vmean_bf}")
        E(f"v_sub_f32 v{vrcp}, v{f+i+1}, v{vmean_bf}")
        E(f"v_fmac_f32 v{t0}, v{t1}, v{t1}")
        E(f"v_fmac_f32 v{t0}, v{vrcp}, v{vrcp}")
    wave_reduce(E, t0, sT0)
    bf16r(E, vmean_bf, vmean_bf)
    E(f"v_mul_f32 v{t0}, s{sT0}, v{t2}")
    bf16r(E, t0, t0)
    E(f"v_add_f32 v{t0}, {EPS:#x}, v{t0}")
    bf16r(E, t0, t0)
    E(f"v_sqrt_f32 v{t0}, v{t0}")
    bf16r(E, t0, t0)
    E(f"v_rcp_f32 v{vrcp}, v{t0}")

class Task:
    def __init__(self, fn, needs=(), before=(), barrier=False, cost=1):
        self.fn, self.needs, self.before, self.barrier, self.cost = fn, list(needs), set(before), barrier, cost

def gen(a):
    E = Emitter()
    nt = " nt" if a.nt else ""
    wnt = " nt" if a.wnt else ""
    fnt = " nt" if a.fnt else ""
    def stamp(i):
        if a.ts:
            E(f"s_memrealtime s[{sTS+2*i}:{sTS+2*i+1}]")
    def spin(lbl):
        E(f"s_sub_u32 s{sSPIN}, s{sSPIN}, 1")
        E(f"s_cbranch_scc1 {lbl}")
    def write_stamps():
        E("s_waitcnt lgkmcnt(0)")
        E("s_mov_b64 exec, 1")
        E(f"s_lshl_b32 s{sT0}, s2, 3")
        E(f"s_add_u32 s{sT0}, s{sT0}, s{sW}")
        E(f"s_lshl_b32 s{sT0}, s{sT0}, 8")
        E(f"s_add_u32 s{sT0}, s{sT0}, {TS_BASE}")
        for i in range(16):
            E(f"v_mov_b32 v{vT}, s{sTS+2*i}")
            E(f"v_mov_b32 v{vT+1}, s{sTS+2*i+1}")
            E(f"buffer_store_dwordx2 {r2(vT)}, off, {S4(sWS)}, s{sT0} offset:{8*i}", tag="extra")
            E("s_nop 1")
        E(f"s_getreg_b32 s{sT1}, hwreg(HW_REG_XCC_ID)")
        E(f"v_mov_b32 v{vT}, s{sT1}")
        E(f"v_mov_b32 v{vT+1}, s{sROLE}")
        E(f"buffer_store_dwordx2 {r2(vT)}, off, {S4(sWS)}, s{sT0} offset:128", tag="extra")

    E("s_cmp_ge_u32 s2, 256")
    E("s_cbranch_scc1 L_end")
    E("s_load_dwordx16 s[4:19], s[0:1], 0")
    E("s_load_dwordx4 s[20:23], s[0:1], 64")
    E("s_load_dwordx2 s[24:25], s[0:1], 80")
    if a.ts:
        for i in range(1, 16):
            E(f"s_mov_b64 s[{sTS+2*i}:{sTS+2*i+1}], 0")
        stamp(0)
    E(f"v_lshrrev_b32 v{vT}, 6, v0")
    E(f"v_and_b32 v{vL}, 63, v0")
    E(f"v_readfirstlane_b32 s{sW}, v{vT}")
    E(f"s_and_b32 s{sH}, s2, 31")
    E(f"s_lshr_b32 s{sB}, s2, 5")
    E(f"v_lshlrev_b32 v{vL16}, 4, v{vL}")
    E(f"v_lshrrev_b32 v{vJ}, 4, v{vL}")
    E(f"v_and_b32 v{vN}, 15, v{vL}")
    E(f"v_mul_u32_u24 v{vWQ}, 81920, v{vJ}")
    E(f"v_lshl_add_u32 v{vWQ}, v{vN}, 4, v{vWQ}")
    vXS, vXC = vT + 2, vT + 3
    E(f"v_mul_u32_u24 v{vXS}, 20, v{vL}")
    E(f"v_lshrrev_b32 v{vXC}, 3, v{vN}")
    E(f"v_lshl_add_u32 v{vXC}, v{vXC}, 2, v{vJ}")
    t0, t1, t2, t3 = 64, 65, 66, 67
    E(f"s_lshl_b32 s{t0}, s{sW}, 3")
    E(f"v_add_u32 v{vXC}, s{t0}, v{vXC}")
    E(f"v_mul_u32_u24 v{vXC}, 20, v{vXC}")
    E(f"s_and_b32 s{t0}, s2, 7")
    E(f"s_lshr_b32 s{t1}, s2, 3")
    E(f"s_and_b32 s{t2}, s{t1}, 12")
    E(f"s_lshl_b32 s{t2}, s{t2}, 1")
    E(f"s_add_u32 s{t2}, s{t2}, s{t0}")
    E(f"s_and_b32 s{t3}, s{t1}, 3")
    E(f"s_lshl_b32 s{sTILE}, s{t2}, 2")
    E(f"s_add_u32 s{sTILE}, s{sTILE}, s{t3}")
    E(f"s_cmp_lt_u32 s{t1}, 16")
    E(f"s_cselect_b32 s{sROLE}, 1, 2")
    E(f"s_cselect_b32 s{t3}, 27, 10")
    E(f"s_cmp_lt_u32 s{t2}, s{t3}")
    E(f"s_cselect_b32 s{sROLE}, s{sROLE}, 0")
    E(f"s_lshl_b32 s{t0}, s2, 20")
    E(f"s_add_u32 s{t0}, s{t0}, 0xc0000")
    E(f"s_lshl_b32 s{t1}, s{sH}, 8")
    E(f"s_mul_i32 s{t2}, s{sH}, {128*1280}")
    E(f"s_mul_i32 s{t3}, s{sB}, 1280")
    E("s_waitcnt lgkmcnt(0)")
    srd(E, sX, 4, 5, 10240)
    xs_raw, xc_raw = vS, vS + 6
    E(f"buffer_load_dwordx4 {r4(xs_raw)}, v{vXS}, {S4(sX)}, s{t3} offen", tag="xs")
    E(f"buffer_load_dword v{xs_raw+4}, v{vXS}, {S4(sX)}, s{t3} offen offset:16", tag="xs")
    E(f"buffer_load_dwordx4 {r4(xc_raw)}, v{vXC}, {S4(sX)}, s{t3} offen", tag="xc")
    E(f"buffer_load_dword v{xc_raw+4}, v{vXC}, {S4(sX)}, s{t3} offen offset:16", tag="xc")
    srd_off(E, sK, 6, f"s{t0}", 0x40000)
    srd_off(E, sWQ, 10, f"s{t1}", 639 * 8192 + 256)
    srd_off(E, sV, 8, f"s{t0}", 0x40000)
    srd_off(E, sWO, 12, f"s{t2}", 128 * 1280)
    srd(E, sWS, 24, 25, 1 << 22)
    srd(E, sDB, 22, 23, 256)
    srd(E, sOUT, 20, 21, 10240)
    E(f"s_cmp_lg_u32 s{sROLE}, 1")
    E(f"s_cselect_b32 s{sWF}, s18, s16")
    E(f"s_cselect_b32 s{sWF+1}, s19, s17")
    E(f"s_and_b32 s{sWF+1}, s{sWF+1}, 0xffff")
    E(f"s_mov_b32 s{sWF+2}, {640*3456}")
    E(f"s_mov_b32 s{sWF+3}, 0x20000")
    srd_off(E, sH1, 24, H1_BASE, 108 * 256)
    E(f"s_lshl_b32 s{sKO}, s{sW}, 10")
    E(f"s_mov_b32 s{sVO}, s{sKO}")
    E(f"s_mul_i32 s{sQ0}, s{sW}, 655360")
    E(f"s_add_u32 s{sQ1}, s{sQ0}, 327680")
    E(f"s_mul_i32 s{sOO}, s{sW}, 1280")
    E(f"s_cmp_lg_u32 s{sW}, 7")
    E("s_cbranch_scc1 L_noinit")
    E(f"s_cmp_lg_u32 s{sROLE}, 1")
    E("s_cbranch_scc1 L_nosent")
    E(f"v_mov_b32 v{vB0}, -1")
    E(f"v_lshlrev_b32 v{vB0+1}, 2, v{vL}")
    E(f"s_lshl_b32 s{sT0}, s{sTILE}, 8")
    E(f"buffer_store_dword v{vB0}, v{vB0+1}, {S4(sH1)}, s{sT0} offen sc1", tag="extra")
    E.label("L_nosent")
    E(f"s_cmp_lg_u32 s{sH}, 0")
    E("s_cbranch_scc1 L_noinit")
    for i in range(4):
        E(f"v_mov_b32 v{vB1+i}, 0")
    E(f"s_lshl_b32 s{sT0}, s{sB}, 12")
    for i in range(4):
        E(f"buffer_store_dwordx4 {r4(vB1)}, v{vL16}, {S4(sWS)}, s{sT0} offen offset:{1024*i} sc1", tag="extra")
    E("s_waitcnt vmcnt(0)")
    E(f"v_mov_b32 v{vB0}, 1")
    E(f"s_lshl_b32 s{sT0}, s{sB}, 2")
    E("s_mov_b64 exec, 1")
    E(f"buffer_store_dword v{vB0}, off, {S4(sDB)}, s{sT0} sc1", tag="extra")
    E("s_mov_b64 exec, -1")
    E.label("L_noinit")

    def kload(f):
        def fn():
            E(f"buffer_load_dwordx4 {r4(vKV+4*f)}, v{vL16}, {S4(sK)}, s{sKO} offen{nt}", tag=f"k{f}")
            if f < 31: E(f"s_add_u32 s{sKO}, s{sKO}, 8192")
        return (f"k{f}", fn)
    def vload(f):
        def fn():
            E(f"buffer_load_dwordx4 {r4(vKV+4*f)}, v{vL16}, {S4(sV)}, s{sVO} offen{nt}", tag=f"v{f}")
            if f < 31: E(f"s_add_u32 s{sVO}, s{sVO}, 8192")
        return (f"v{f}", fn)
    def qload(f):
        def fn():
            s = sQ0 if f % 2 == 0 else sQ1
            E(f"buffer_load_dwordx4 {r4(vW+4*f)}, v{vWQ}, {S4(sWQ)}, s{s} offen{wnt}", tag=f"wq{f}")
            if f < 18: E(f"s_add_u32 s{s}, s{s}, 8192")
        return (f"wq{f}", fn)
    def oload(f):
        def fn():
            fp, cg = divmod(f, 5)
            E(f"buffer_load_dwordx4 {r4(vW+4*f)}, v{vWO}, {S4(sWO)}, s{sOO} offen offset:{cg*256}{wnt}", tag=f"wo{f}")
            if cg == 4 and fp < 3: E(f"s_add_u32 s{sOO}, s{sOO}, {8*1280}")
        return (f"wo{f}", fn)
    vFL, vFA = vWQ, vQ + 1
    def fload():
        def fn():
            E(f"v_and_b32 v{vFL}, 7, v{vL}")
            E(f"v_lshlrev_b32 v{vFL}, 2, v{vFL}")
            E(f"buffer_load_dword v{vFL}, v{vFL}, {S4(sDB)}, 0 offen sc1", tag="flag")
        return ("flag", fn)
    loads = []
    qi = 0
    for f in range(32):
        loads.append(kload(f))
        for _ in range(a.qrate):
            if qi < 20:
                loads.append(qload(qi)); qi += 1
    nmid = 20 - a.otail
    oi = 0
    for f in range(32):
        loads.append(vload(f))
        if f == 8: loads.append(fload())
        want = (f + 1) * nmid // 32
        while oi < want:
            loads.append(oload(oi)); oi += 1
    while oi < 20:
        loads.append(oload(oi)); oi += 1

    tasks = []
    vRW, vRR = vXS, vXC
    def t_setup():
        E(f"s_mov_b32 s{sSPIN}, 0x40000")
        E(f"s_mov_b32 s{sLO8}, 0x00ff00ff")
        E(f"s_mov_b32 s{sLO8+1}, 0x00ff00ff")
        E(f"v_mul_u32_u24 v{vWO}, 40960, v{vJ}")
        E(f"v_and_b32 v{vB0}, 1, v{vN}")
        E(f"v_lshl_add_u32 v{vWO}, v{vB0}, 7, v{vWO}")
        E(f"v_lshrrev_b32 v{vB0+1}, 1, v{vN}")
        E(f"v_lshl_add_u32 v{vWO}, v{vB0+1}, 4, v{vWO}")
        E(f"v_lshlrev_b32 v{vB0}, 4, v{vB0}")
        E(f"v_mov_b32 v{vB0+2}, 0xffff")
        E(f"v_lshlrev_b32 v{vB0}, v{vB0}, v{vB0+2}")
        E(f"v_and_b32 v{vB0+1}, 3, v{vB0+1}")
        for w in range(4):
            E(f"v_cmp_eq_u32 vcc, {w}, v{vB0+1}")
            E(f"v_cndmask_b32 v{vM+w}, 0, v{vB0}, vcc")
        E(f"v_lshrrev_b32 v{vB0}, 3, v{vN}")
        E(f"s_lshl_b32 s{sT0}, s{sW}, 1")
        E(f"v_add_u32 v{vB0}, s{sT0}, v{vB0}")
        E(f"v_mul_u32_u24 v{vRW}, 528, v{vB0}")
        E(f"v_and_b32 v{vB0}, 7, v{vN}")
        E(f"v_lshl_add_u32 v{vRW}, v{vB0}, 6, v{vRW}")
        E(f"v_lshl_add_u32 v{vRW}, v{vJ}, 4, v{vRW}")
        E(f"v_mul_u32_u24 v{vRR}, 528, v{vN}")
        E(f"v_lshl_add_u32 v{vRR}, v{vJ}, 4, v{vRR}")
        E(f"s_lshl_b32 s{sT0}, s{sW}, 6")
        E(f"v_add_u32 v{vRR}, s{sT0}, v{vRR}")
    f0 = 8
    vMEAN, vRCP = 18, 19
    def t_ln1a():
        stamp(1)
        unpack10(E, xs_raw, f0)
        ln_stats(E, f0, 20, 21, 22, vMEAN, vRCP)
    def t_ln1b():
        unpack10(E, xc_raw, f0)
        for i in range(10): E(f"v_sub_f32 v{f0+i}, v{f0+i}, v{vMEAN}")
        bf16r_many(E, range(f0, f0 + 10))
        for i in range(10): E(f"v_mul_f32 v{f0+i}, v{f0+i}, v{vRCP}")
        for i in range(10): E(f"v_cvt_pk_bf16_f32 v{vS+i}, v{f0+i}, v{f0+i}")
    def bfrag(dst, src):
        for w in range(4):
            E(f"v_and_b32 v{dst+w}, v{src}, v{vM+w}")
    def t_pair(t, base):
        def fn():
            B = vB0 if t % 2 == 0 else vB1
            bfrag(B, vS + t)
            c1 = "0" if t == 0 else r4(vD1)
            c2 = "0" if t == 0 else r4(vD2)
            E(f"v_mfma_f32_16x16x32_bf16 {r4(vD1)}, {r4(base+8*t)}, {r4(B)}, {c1}")
            E(f"v_mfma_f32_16x16x32_bf16 {r4(vD2)}, {r4(base+8*t+4)}, {r4(B)}, {c2}")
        return fn
    def red_a():
        for r in range(4):
            E(f"v_cndmask_b32 v{vD1+r}, v{vD2+r}, v{vD1+r}, s[{sLO8}:{sLO8+1}]")
        E(f"ds_write_b128 v{vRW}, {r4(vD1)} offset:{RED}")
        E("s_waitcnt lgkmcnt(0)")
        E("s_barrier")
    def red_b(dst):
        E(f"ds_read_b128 {r4(dst)}, v{vRR} offset:{RED}")
        E("s_waitcnt lgkmcnt(0)")
        row_reduce(E, [dst + i for i in range(4)])
        for i in range(4):
            E(f"v_cvt_pk_bf16_f32 v{dst+i}, v{dst+i}, v{dst+i}")
    def t_qr2():
        E(f"v_lshlrev_b32 v{vB1}, 6, v{vJ}")
        E(f"s_lshl_b32 s{sT0}, s{sW}, 1")
        E(f"v_add_u32 v{vB1}, s{sT0}, v{vB1}")
        red_b(vB0)
        E(f"s_mov_b32 exec_lo, 0x00010001")
        E(f"s_mov_b32 exec_hi, 0x00010001")
        for i in range(4):
            E(f"ds_write_b16 v{vB1}, v{vB0+i} offset:{QF+16*i}")
        E("s_mov_b64 exec, -1")
        E(f"v_lshlrev_b32 v{vB1}, 4, v{vN}")
        E("s_waitcnt lgkmcnt(0)")
        E("s_barrier")
    def t_qr3():
        E(f"ds_read_b128 {r4(vQ)}, v{vB1} offset:{QF}")
        E("s_waitcnt lgkmcnt(0)")
        stamp(2)
    def t_k(t):
        def fn():
            k0, k1 = vKV + 8 * t, vKV + 8 * t + 4
            sa, sb = (vB0, vB0 + 1) if t % 2 == 0 else (vB0 + 2, vB0 + 3)
            for i in range(4):
                E(f"v_dot2_f32_bf16 v{sa}, v{k0+i}, v{vQ+i}, {'0' if i == 0 else 'v%d' % sa}")
                E(f"v_dot2_f32_bf16 v{sb}, v{k1+i}, v{vQ+i}, {'0' if i == 0 else 'v%d' % sb}")
            s = vS + t
            E(f"v_add_f32_dpp v{s}, v{sa}, v{sa} row_ror:8 row_mask:0xf bank_mask:0x3")
            E(f"v_add_f32_dpp v{s}, v{sb}, v{sb} row_ror:8 row_mask:0xf bank_mask:0xc")
            E(f"v_add_f32_dpp v{s}, v{s}, v{s} row_half_mirror row_mask:0xf bank_mask:0xf")
            E(f"v_add_f32_dpp v{s}, v{s}, v{s} quad_perm:[1,0,3,2] row_mask:0xf bank_mask:0xf")
            E(f"v_add_f32_dpp v{s}, v{s}, v{s} quad_perm:[2,3,0,1] row_mask:0xf bank_mask:0xf")
            bf16r(E, s, s)
            E(f"v_mul_f32 v{s}, {SCALE:#x}, v{s}")
            bf16r(E, s, s)
        return fn
    m, l = vD1, vD1 + 1
    def t_sm1():
        E(f"v_max3_f32 v{m}, v{vS}, v{vS+1}, v{vS+2}")
        for i in range(3, 15, 2):
            E(f"v_max3_f32 v{m}, v{m}, v{vS+i}, v{vS+i+1}")
        E(f"v_max_f32 v{m}, v{m}, v{vS+15}")
        for i in range(16): E(f"v_sub_f32 v{vS+i}, v{vS+i}, v{m}")
        for i in range(16): E(f"v_mul_f32 v{vS+i}, {LOG2E:#x}, v{vS+i}")
        for i in range(16): E(f"v_exp_f32 v{vS+i}, v{vS+i}")
        E(f"v_add_f32 v{l}, v{vS}, v{vS+1}")
        E(f"v_add_f32 v{vB0}, v{vS+2}, v{vS+3}")
        for i in range(4, 16, 2):
            E(f"v_add_f32 v{l}, v{l}, v{vS+i}")
            E(f"v_add_f32 v{vB0}, v{vB0}, v{vS+i+1}")
        E(f"v_add_f32 v{l}, v{l}, v{vB0}")
        E(f"v_and_b32 v{vB0}, 56, v{vL}")
        E(f"s_lshl_b32 s{sT0}, s{sW}, 6")
        E(f"v_add_u32 v{vB0}, s{sT0}, v{vB0}")
        E(f"ds_write_b64 v{vB0}, {r2(m)} offset:{ML}")
        E(f"v_lshlrev_b32 v{vB0}, 3, v{vL}")
        stamp(3)
    def t_smb():
        E("s_waitcnt lgkmcnt(0)")
        E("s_barrier")
        stamp(4)
    def t_sm2():
        mg, lg = vD2, vD2 + 1
        E(f"ds_read_b64 {r2(mg)}, v{vB0} offset:{ML}")
        E("s_waitcnt lgkmcnt(0)")
        E(f"v_mov_b32 v{vB0}, v{mg}")
        wave_reduce(E, vB0, sT0, "v_max_f32")
        E(f"v_subrev_f32 v{mg}, s{sT0}, v{mg}")
        E(f"v_subrev_f32 v{m}, s{sT0}, v{m}")
        E(f"v_mul_f32 v{mg}, {LOG2E:#x}, v{mg}")
        E(f"v_mul_f32 v{m}, {LOG2E:#x}, v{m}")
        E(f"v_exp_f32 v{mg}, v{mg}")
        E(f"v_exp_f32 v{m}, v{m}")
        E(f"v_mul_f32 v{lg}, v{lg}, v{mg}")
        wave_reduce(E, lg, sT1)
        E(f"v_rcp_f32 v{l}, s{sT1}")
        E(f"v_mul_f32 v{m}, v{m}, v{l}")
        for i in range(16): E(f"v_mul_f32 v{vS+i}, v{vS+i}, v{m}")
        for i in range(16): E(f"v_cvt_pk_bf16_f32 v{vS+i}, v{vS+i}, v{vS+i}")
    vY = vKV
    Bs = [vB0, vB1, vD1, vD2]
    vA, vA2 = vQ, vQ + 1
    def t_pre_tail():
        E(f"v_and_b32 v{vA}, 7, v{vL}")
        E(f"v_lshlrev_b32 v{vA2}, 6, v{vA}")
        E(f"v_lshl_add_u32 v{vA}, v{vJ}, 4, v{vA2}")
        E(f"s_mul_i32 s{sT0}, s{sW}, 2560")
        E(f"v_add_u32 v{vA}, s{sT0}, v{vA}")
        E(f"v_and_b32 v{vQ+2}, 56, v{vL}")
        E(f"v_add_u32 v{vA2}, v{vA2}, v{vQ+2}")
        E(f"s_lshl_b32 s{sT0}, s{sW}, 9")
        E(f"v_add_u32 v{vA2}, s{sT0}, v{vA2}")
        E(f"v_lshlrev_b32 v{vQ+2}, 2, v{vL}")
    def t_flag():
        E(f"v_cmp_eq_u32 vcc, 0, v{vFL}")
        E.flush()
        E("s_cbranch_vccz L_flagok")
        E.label("L_flag")
        E("s_sleep 2")
        E(f"v_and_b32 v{vFL}, 7, v{vL}")
        E(f"v_lshlrev_b32 v{vFL}, 2, v{vFL}")
        E(f"buffer_load_dword v{vFL}, v{vFL}, {S4(sDB)}, 0 offen sc1", tag="extra")
        E("s_waitcnt vmcnt(0)")
        E(f"v_cmp_eq_u32 vcc, 0, v{vFL}")
        E.flush()
        E("s_cbranch_vccz L_flagok")
        spin("L_flagok")
        E("s_branch L_flag")
        E.label("L_flagok")
    def t_or1():
        stamp(5)
        red_a()
        stamp(6)
    def t_or2():
        red_b(vS)
        for fp in range(4): bfrag(Bs[fp], vS + fp)
    def t_y(f):
        def fn():
            fp, cg = divmod(f, 5)
            c = "0" if fp == 0 else r4(vY + 4 * cg)
            E(f"v_mfma_f32_16x16x32_bf16 {r4(vY+4*cg)}, {r4(vW+4*f)}, {r4(Bs[fp])}, {c}")
        return fn
    tasks.append(Task(t_setup))
    tasks.append(Task(t_ln1a, ["xs"], cost=3))
    tasks.append(Task(t_ln1b, ["xc"], cost=2))
    for t in range(10): tasks.append(Task(t_pair(t, vW), [f"wq{2*t+1}"]))
    tasks.append(Task(red_a, barrier=True))
    tasks.append(Task(t_qr2, barrier=True))
    tasks.append(Task(t_qr3))
    for t in range(16): tasks.append(Task(t_k(t), [f"k{2*t+1}"], before=[f"v{2*t}"]))
    tasks.append(Task(t_sm1, cost=2))
    tasks.append(Task(t_smb, barrier=True))
    tasks.append(Task(t_sm2, cost=2))
    tasks.append(Task(t_pre_tail))
    tasks.append(Task(t_flag, ["flag"]))
    for t in range(16): tasks.append(Task(t_pair(t, vKV), [f"v{2*t+1}"]))
    tasks.append(Task(t_or1, barrier=True))
    tasks.append(Task(t_or2))
    for f in range(20): tasks.append(Task(t_y(f), [f"wo{f}"], cost=0.25))

    issued = {"xs", "xc"}
    pend = deque(tasks)
    def ready(t): return all(n in issued and n not in E.vm for n in t.needs)
    def run(t):
        for n in t.needs:
            assert n in issued, n
            if n in E.vm: E.wait_vm(n)
        t.fn()
    D = a.depth
    i = 0
    boost_left = 0
    while i < len(loads):
        tag, fn = loads[i]
        while any(tag in t.before for t in pend):
            run(pend.popleft())
        lim = D + (a.boost if boost_left > 0 else 0)
        if i < a.first: lim = 63
        if len(E.vm) >= lim:
            E(f"s_waitcnt vmcnt({lim-1})")
            E.vm = E.vm[len(E.vm) - (lim - 1):]
        fn(); issued.add(tag); i += 1
        if boost_left > 0:
            boost_left -= 1
            blocked = i < len(loads) and any(loads[i][0] in t.before for t in pend)
            if boost_left > 0 and not blocked: continue
            boost_left = 0
            run(pend.popleft())
        if i < a.first: continue
        budget = a.budget
        while pend and budget > 0 and ready(pend[0]):
            if pend[0].barrier and a.boost > 0 and i < len(loads) and not any(loads[i][0] in t.before for t in pend):
                boost_left = a.boost
                break
            t = pend.popleft(); run(t); budget -= t.cost
    while pend: run(pend.popleft())
    assert not E.vm, E.vm
    stamp(7)

    E(f"s_mov_b64 exec, s[{sLO8}:{sLO8+1}]")
    for cg in range(5):
        E(f"ds_write_b128 v{vA}, {r4(vY+4*cg)} offset:{YP+cg*512}")
    E("s_mov_b64 exec, -1")
    E(f"s_lshl_b32 s{sT0}, s{sB}, 12")
    E(f"s_lshl_b32 s{sT1}, s{sW}, 9")
    E(f"s_add_u32 s{sT0}, s{sT0}, s{sT1}")
    E("s_waitcnt lgkmcnt(0)")
    E("s_barrier")
    stamp(8)
    E(f"s_cmp_ge_u32 s{sW}, 5")
    E("s_cbranch_scc1 L_noatom")
    vP = vKV + 32
    for p in range(8):
        E(f"ds_read_b64 {r2(vP+2*p)}, v{vA2} offset:{YP+p*2560}")
    E("s_waitcnt lgkmcnt(0)")
    for st in (4, 2, 1):
        for p in range(st):
            E(f"v_add_f32 v{vP+2*p}, v{vP+2*p}, v{vP+2*(p+st)}")
            E(f"v_add_f32 v{vP+2*p+1}, v{vP+2*p+1}, v{vP+2*(p+st)+1}")
    E(f"buffer_atomic_add_f32 v{vP}, v{vQ+2}, {S4(sWS)}, s{sT0} offen", tag="extra")
    E(f"buffer_atomic_add_f32 v{vP+1}, v{vQ+2}, {S4(sWS)}, s{sT0} offen offset:256", tag="extra")
    E("s_waitcnt vmcnt(0)")
    stamp(9)
    E("s_branch L_arr")
    E.label("L_noatom")
    vDM = vB0
    E(f"s_cmp_lg_u32 s{sROLE}, 1")
    E("s_cbranch_scc1 L_arr")
    E(f"s_cmp_lg_u32 s{sW}, 7")
    E("s_cbranch_scc1 L_arr")
    E(f"v_lshrrev_b32 v{vDM}, 1, v{vL}")
    E(f"v_mul_u32_u24 v{vDM}, 3456, v{vDM}")
    E(f"v_and_b32 v{vDM+1}, 1, v{vL}")
    E(f"v_lshl_add_u32 v{vDM}, v{vDM+1}, 4, v{vDM}")
    E(f"s_lshl_b32 s{sT0}, s{sTILE}, 5")
    for t in range(20):
        E(f"s_mov_b32 m0, {WT + t*1024}")
        E(f"buffer_load_dwordx4 v{vDM}, {S4(sWF)}, s{sT0} offen{fnt} lds", tag="extra")
        if t < 19: E(f"s_add_u32 s{sT0}, s{sT0}, {32*3456}")
    E.label("L_arr")
    E("s_barrier")
    stamp(10)
    E(f"s_cmp_lg_u32 s{sW}, 0")
    E("s_cbranch_scc1 L_noarr")
    E(f"v_mov_b32 v{vB0}, 1")
    E(f"s_lshl_b32 s{sT0}, s{sB}, 12")
    E("s_mov_b64 exec, 1")
    E(f"buffer_atomic_add v{vB0}, off, {S4(sWS)}, s{sT0} offset:3072", tag="extra")
    E("s_mov_b64 exec, -1")
    E.label("L_noarr")
    E(f"s_cmp_eq_u32 s{sROLE}, 2")
    E("s_cbranch_scc1 L_ffn2")
    E(f"s_cmp_eq_u32 s{sROLE}, 0")
    E("s_cbranch_scc1 L_fin")

    def tr_addr(v):
        E(f"v_lshlrev_b32 v{v}, 8, v{vJ}")
        E(f"v_lshl_add_u32 v{v}, v{vN}, 3, v{v}")
    xr = vS
    ac = vKV + 64
    vA = vB1
    E(f"v_mul_u32_u24 v{vA}, 20, v{vL}")
    E(f"s_mul_i32 s{sT0}, s{sW}, 1280")
    E(f"buffer_load_dwordx4 {r4(xr)}, v{vA}, {S4(sX)}, s{sT0} offen", tag="extra")
    E(f"buffer_load_dword v{xr+4}, v{vA}, {S4(sX)}, s{sT0} offen offset:16", tag="extra")
    E(f"v_lshlrev_b32 v{vA+1}, 1, v{vA}")
    E(f"s_mul_i32 s{sT1}, s{sW}, {HNS}")
    E(f"v_add_u32 v{vA+2}, s{sT1}, v{vA}")
    E(f"s_cmp_lg_u32 s{sW}, 7")
    E("s_cbranch_scc1 L_f1_notr")
    E("s_waitcnt vmcnt(0)")
    tr_addr(vA + 3)
    for t in range(20):
        E(f"ds_read_b64_tr_b16 {r2(vW+4*t)}, v{vA+3} offset:{WT+t*1024}")
        E(f"ds_read_b64_tr_b16 {r2(vW+4*t+2)}, v{vA+3} offset:{WT+t*1024+128}")
        if t % 4 == 3: E("s_waitcnt lgkmcnt(0)")
    E(f"v_and_b32 v{vA+3}, 7, v{vL}")
    E(f"v_mul_u32_u24 v{vA+3}, {HNS}, v{vA+3}")
    E(f"v_lshl_add_u32 v{vA+3}, v{vJ}, 4, v{vA+3}")
    E.label("L_f1_notr")
    E(f"s_lshl_b32 s{sT2}, s{sW}, 12")
    E.label("L_f1_poll")
    E(f"buffer_load_dword v{vB0}, off, {S4(sWS)}, s{sT2} offset:3072 sc1", tag="extra")
    E("s_waitcnt vmcnt(0)")
    E(f"v_readfirstlane_b32 s{sT0}, v{vB0}")
    E(f"s_cmp_ge_u32 s{sT0}, 32")
    E("s_cbranch_scc1 L_f1_go")
    spin("L_f1_go")
    if a.sleep: E(f"s_sleep {a.sleep}")
    E("s_branch L_f1_poll")
    E.label("L_f1_go")
    E(f"buffer_load_dwordx4 {r4(ac)}, v{vA+1}, {S4(sWS)}, s{sT2} offen sc1", tag="extra")
    E(f"buffer_load_dwordx4 {r4(ac+4)}, v{vA+1}, {S4(sWS)}, s{sT2} offen offset:16 sc1", tag="extra")
    E(f"buffer_load_dwordx2 {r2(ac+8)}, v{vA+1}, {S4(sWS)}, s{sT2} offen offset:32 sc1", tag="extra")
    stamp(11)
    hx = vKV + 80
    unpack10(E, xr, hx)
    E("s_waitcnt vmcnt(0)")
    stamp(12)
    bf16r_many(E, range(ac, ac + 10))
    for i in range(10): E(f"v_add_f32 v{hx+i}, v{hx+i}, v{ac+i}")
    bf16r_many(E, range(hx, hx + 10))
    ln_stats(E, hx, vD1, vD1 + 1, vD1 + 2, vD2, vD2 + 1)
    for i in range(10): E(f"v_sub_f32 v{hx+i}, v{hx+i}, v{vD2}")
    bf16r_many(E, range(hx, hx + 10))
    for i in range(10): E(f"v_mul_f32 v{hx+i}, v{hx+i}, v{vD2+1}")
    for i in range(5): E(f"v_cvt_pk_bf16_f32 v{ac+i}, v{hx+2*i}, v{hx+2*i+1}")
    for i in range(5): E(f"ds_write_b32 v{vA+2}, v{ac+i} offset:{HN+4*i}")
    E("s_waitcnt lgkmcnt(0)")
    E("s_barrier")
    E(f"s_cmp_lg_u32 s{sW}, 7")
    E("s_cbranch_scc1 L_fin")
    if a.ts:
        stamp(13); E("s_waitcnt lgkmcnt(0)")
    hb = vKV
    for t in range(20):
        E(f"ds_read_b128 {r4(hb+4*t)}, v{vA+3} offset:{HN+64*t}")
    E(f"v_lshlrev_b32 v{vA}, 5, v{vN}")
    E(f"v_lshl_add_u32 v{vA}, v{vJ}, 3, v{vA}")
    E(f"s_lshl_b32 s{sT0}, s{sTILE}, 8")
    for t in range(20):
        E(f"s_waitcnt lgkmcnt({min(15, 19-t)})")
        c = "0" if t == 0 else r4(vD1)
        E(f"v_mfma_f32_16x16x32_bf16 {r4(vD1)}, {r4(vW+4*t)}, {r4(hb+4*t)}, {c}")
    for i in range(4): E(f"v_max_f32 v{vD1+i}, 0, v{vD1+i}")
    E(f"v_cvt_pk_bf16_f32 v{vD2}, v{vD1}, v{vD1+1}")
    E(f"v_cvt_pk_bf16_f32 v{vD2+1}, v{vD1+2}, v{vD1+3}")
    E(f"s_mov_b64 exec, s[{sLO8}:{sLO8+1}]")
    E(f"buffer_store_dwordx2 {r2(vD2)}, v{vA}, {S4(sH1)}, s{sT0} offen sc1", tag="extra")
    stamp(14)
    E("s_branch L_fin")

    E.label("L_ffn2")
    vA = vQ
    E(f"v_lshrrev_b32 v{vA}, 1, v{vL}")
    E(f"v_mul_u32_u24 v{vA}, 1280, v{vA}")
    E(f"v_and_b32 v{vA+1}, 1, v{vL}")
    E(f"v_lshl_add_u32 v{vA}, v{vA+1}, 4, v{vA}")
    E(f"s_mul_i32 s{sT0}, s{sW}, {7*32*1280}")
    E(f"s_lshl_b32 s{sT1}, s{sTILE}, 5")
    E(f"s_add_u32 s{sT0}, s{sT0}, s{sT1}")
    E(f"s_mul_i32 s{sT3}, s{sW}, {7*1024}")
    E(f"s_add_u32 s{sT2}, s{sT3}, {WT}")
    for t in range(7):
        E(f"s_mov_b32 m0, s{sT2}")
        E(f"buffer_load_dwordx4 v{vA}, {S4(sWF)}, s{sT0} offen{fnt} lds", tag="extra")
        if t < 6:
            E(f"s_add_u32 s{sT0}, s{sT0}, {32*1280}")
            E(f"s_add_u32 s{sT2}, s{sT2}, 1024")
    vXO = vA + 2
    E(f"v_and_b32 v{vA+1}, 7, v{vL}")
    E(f"v_mul_u32_u24 v{vXO}, 1280, v{vA+1}")
    E(f"v_lshl_add_u32 v{vXO}, v{vJ}, 3, v{vXO}")
    xr = vS
    E(f"buffer_load_dwordx2 {r2(xr)}, v{vXO}, {S4(sX)}, s{sT1} offen", tag="extra")
    vCO = vA + 3
    E(f"v_lshlrev_b32 v{vCO}, 12, v{vA+1}")
    vHO = vB1
    E(f"v_lshl_add_u32 v{vHO}, v{vJ}, 4, v{vCO}")
    vH1 = vB1 + 1
    E(f"v_lshrrev_b32 v{vH1}, 1, v{vJ}")
    E(f"v_lshlrev_b32 v{vH1}, 8, v{vH1}")
    E(f"v_lshl_add_u32 v{vH1}, v{vA+1}, 5, v{vH1}")
    E(f"v_and_b32 v{vB1+2}, 1, v{vJ}")
    E(f"v_lshl_add_u32 v{vH1}, v{vB1+2}, 4, v{vH1}")
    tr_addr(vB1 + 2)
    E(f"v_add_u32 v{vB1+2}, s{sT3}, v{vB1+2}")
    E("s_waitcnt vmcnt(0)")
    for t in range(7):
        E(f"ds_read_b64_tr_b16 {r2(vW+4*t)}, v{vB1+2} offset:{WT+t*1024}")
        E(f"ds_read_b64_tr_b16 {r2(vW+4*t+2)}, v{vB1+2} offset:{WT+t*1024+128}")
    E("s_waitcnt lgkmcnt(0)")
    stamp(11)
    E(f"s_cmp_lg_u32 s{sW}, 0")
    E("s_cbranch_scc1 L_f2_go")
    E.label("L_f2_poll")
    E(f"buffer_load_dword v{vD1}, v{vCO}, {S4(sWS)}, 0 offen offset:3072 sc1", tag="extra")
    E("s_waitcnt vmcnt(0)")
    E(f"v_cmp_gt_u32 vcc, 32, v{vD1}")
    E.flush()
    E("s_cbranch_vccz L_f2_cnt")
    spin("L_f2_cnt")
    if a.sleep: E(f"s_sleep {a.sleep}")
    E("s_branch L_f2_poll")
    E.label("L_f2_cnt")
    ac = vS + 4
    E(f"s_lshl_b32 s{sT0}, s{sTILE}, 6")
    E(f"buffer_load_dwordx4 {r4(ac)}, v{vHO}, {S4(sWS)}, s{sT0} offen sc1", tag="extra")
    E.label("L_f2_go")
    E("s_barrier")
    stamp(12)
    E(f"s_mul_i32 s{sT2}, s{sW}, {7*512}")
    hb = vKV
    E.label("L_f2_poll2")
    for t in range(7):
        E(f"buffer_load_dwordx4 {r4(hb+4*t)}, v{vH1}, {S4(sH1)}, s{sT2} offen offset:{512*t} sc1", tag="extra")
    E("s_waitcnt vmcnt(0)")
    E(f"v_max3_u32 v{vD1}, v{hb}, v{hb+1}, v{hb+2}")
    E(f"v_max3_u32 v{vD1+1}, v{hb+3}, v{hb+4}, v{hb+5}")
    k = 6
    while k + 1 < 28:
        tgt = vD1 + ((k // 2) % 2)
        E(f"v_max3_u32 v{tgt}, v{tgt}, v{hb+k}, v{hb+k+1}")
        k += 2
    E(f"v_max_u32 v{vD1}, v{vD1}, v{vD1+1}")
    E(f"v_cmp_eq_u32 vcc, -1, v{vD1}")
    E.flush()
    E("s_cbranch_vccz L_f2_got")
    spin("L_f2_got")
    if a.sleep: E(f"s_sleep {a.sleep}")
    E("s_branch L_f2_poll2")
    E.label("L_f2_got")
    stamp(13)
    for t in range(7):
        c = "0" if t == 0 else r4(vD1)
        E(f"v_mfma_f32_16x16x32_bf16 {r4(vD1)}, {r4(vW+4*t)}, {r4(hb+4*t)}, {c}")
    E(f"s_lshl_b32 s{sT0}, s{sW}, 10")
    E(f"v_add_u32 v{vD2}, s{sT0}, v{vL16}")
    E(f"ds_write_b128 v{vD2}, {r4(vD1)} offset:{F2R}")
    E("s_waitcnt lgkmcnt(0)")
    E("s_barrier")
    E(f"s_cmp_lg_u32 s{sW}, 0")
    E("s_cbranch_scc1 L_fin")
    for p in range(8):
        E(f"ds_read_b128 {r4(hb+4*p)}, v{vL16} offset:{F2R+1024*p}")
    hx = vS + 8
    for i in range(2):
        E(f"v_lshlrev_b32 v{hx+2*i}, 16, v{xr+i}")
        E(f"v_and_b32 v{hx+2*i+1}, 0xffff0000, v{xr+i}")
    bf16r_many(E, range(ac, ac + 4))
    for i in range(4): E(f"v_add_f32 v{hx+i}, v{hx+i}, v{ac+i}")
    bf16r_many(E, range(hx, hx + 4))
    E("s_waitcnt lgkmcnt(0)")
    for st in (4, 2, 1):
        for p in range(st):
            for i in range(4):
                E(f"v_add_f32 v{hb+4*p+i}, v{hb+4*p+i}, v{hb+4*(p+st)+i}")
    bf16r_many(E, range(hb, hb + 4))
    for i in range(4): E(f"v_add_f32 v{hx+i}, v{hx+i}, v{hb+i}")
    E(f"v_cvt_pk_bf16_f32 v{vD2}, v{hx}, v{hx+1}")
    E(f"v_cvt_pk_bf16_f32 v{vD2+1}, v{hx+2}, v{hx+3}")
    E(f"s_mov_b64 exec, s[{sLO8}:{sLO8+1}]")
    E(f"buffer_store_dwordx2 {r2(vD2)}, v{vXO}, {S4(sOUT)}, s{sT1} offen", tag="extra")
    stamp(14)
    E.label("L_fin")
    if a.ts:
        E("s_waitcnt vmcnt(0)")
        stamp(15)
        write_stamps()
    E.label("L_end")
    E("s_endpgm")

    out = HDR
    out += f"; @launch grid=(256,1,1) block=(512,1,1) lds={LDS_TOTAL}\n"
    out += f""".amdgcn_target "amdgcn-amd-amdhsa--gfx950"
.text
.globl {NAME}
.p2align 8
.type {NAME},@function
{NAME}:
"""
    out += E.text()
    out += f""".section .rodata,"a"
.p2align 6
.amdhsa_kernel {NAME}
  .amdhsa_next_free_vgpr 256
  .amdhsa_next_free_sgpr 102
  .amdhsa_accum_offset 256
  .amdhsa_group_segment_fixed_size 0
  .amdhsa_kernarg_size 88
  .amdhsa_user_sgpr_count 2
  .amdhsa_user_sgpr_kernarg_segment_ptr 1
  .amdhsa_system_sgpr_workgroup_id_x 1
  .amdhsa_float_denorm_mode_32 3
.end_amdhsa_kernel
"""
    return out

def parser():
    p = argparse.ArgumentParser()
    p.add_argument("-o", default="sequential_preLN__sliding_block_cached__dense_activation_relu__decode.s")
    p.add_argument("--nt", type=int, default=1)
    p.add_argument("--wnt", type=int, default=1)
    p.add_argument("--fnt", type=int, default=1)
    p.add_argument("--ts", type=int, default=0)
    p.add_argument("--sleep", type=int, default=1)
    p.add_argument("--depth", type=int, default=6)
    p.add_argument("--boost", type=int, default=0)
    p.add_argument("--first", type=int, default=6)
    p.add_argument("--budget", type=float, default=2)
    p.add_argument("--qrate", type=int, default=1)
    p.add_argument("--otail", type=int, default=4)
    return p

if __name__ == "__main__":
    a = parser().parse_args()
    open(a.o, "w").write(gen(a))
```

```python
import sys, argparse
from collections import deque
from asmlib import Emitter
from gen2 import (NAME, HDR, srd, srd_off, r4, r2, S4, row_reduce, wave_reduce, bf16r, bf16r_many, unpack10, ln_stats,
                  LOG2E, SCALE, sT0, sT1, sT2, sT3, sT4)

RED = 0
QF = 8448
ML = 8704
TK = 9216
YP = 9472
HN = 29952
HNS = 1344
F2R = 29952
WT = 46592
LDS_TOTAL = 161280
H1_BASE = 32768
TS_BASE = 1 << 20
NF2, NF1 = 20, 27

sW, sH, sB = 3, 26, 27
sK, sV, sWQ, sWO, sX, sWS, sDB, sWF, sOUT, sH1 = 28, 32, 36, 40, 44, 48, 52, 56, 60, 64
sROLE, sTILE = 100, 101
sSPIN = 9
sLO8 = 10
sKO, sVO, sQ0, sQ1, sOO = 12, 13, 14, 15, 20
sDRY = 22
sEX = 24
sTS = 68
vL, vL16, vWQ, vWO = 0, 1, 2, 3
vM = 4
vQ = 8
vB0, vB1 = 12, 16
vD1, vD2 = 20, 24
vT = 28
vS = 32
vF = 48
vJ, vN = vT, vT + 1

class Task:
    def __init__(self, fn, needs=(), frees=(), barrier=0, cost=1):
        self.fn, self.needs, self.frees, self.barrier, self.cost = fn, list(needs), list(frees), barrier, cost

def gen(a):
    E = Emitter()
    nt = " nt"
    fnt = " nt" if a.fnt else ""
    def stamp(i):
        if a.ts: E(f"s_memrealtime s[{sTS+2*i}:{sTS+2*i+1}]")
    def spin(lbl):
        E(f"s_sub_u32 s{sSPIN}, s{sSPIN}, 1")
        E(f"s_cbranch_scc1 {lbl}")
    def write_stamps():
        E("s_waitcnt lgkmcnt(0)")
        E("s_mov_b64 exec, 1")
        E(f"s_lshl_b32 s{sT0}, s2, 3")
        E(f"s_add_u32 s{sT0}, s{sT0}, s{sW}")
        E(f"s_lshl_b32 s{sT0}, s{sT0}, 8")
        E(f"s_add_u32 s{sT0}, s{sT0}, {TS_BASE}")
        for i in range(16):
            E(f"v_mov_b32 v{vT}, s{sTS+2*i}")
            E(f"v_mov_b32 v{vT+1}, s{sTS+2*i+1}")
            E(f"buffer_store_dwordx2 {r2(vT)}, off, {S4(sWS)}, s{sT0} offset:{8*i}", tag="extra")
            E("s_nop 1")
        E(f"s_getreg_b32 s{sT1}, hwreg(HW_REG_XCC_ID)")
        E(f"v_mov_b32 v{vT}, s{sT1}")
        E(f"v_mov_b32 v{vT+1}, s{sROLE}")
        E(f"buffer_store_dwordx2 {r2(vT)}, off, {S4(sWS)}, s{sT0} offset:128", tag="extra")

    E("s_cmp_ge_u32 s2, 256")
    E("s_cbranch_scc1 L_end")
    E("s_load_dwordx16 s[4:19], s[0:1], 0")
    E("s_load_dwordx4 s[20:23], s[0:1], 64")
    E("s_load_dwordx2 s[24:25], s[0:1], 80")
    if a.ts:
        for i in range(1, 16): E(f"s_mov_b64 s[{sTS+2*i}:{sTS+2*i+1}], 0")
        stamp(0)
    E(f"v_lshrrev_b32 v{vT}, 6, v0")
    E(f"v_and_b32 v{vL}, 63, v0")
    E(f"v_readfirstlane_b32 s{sW}, v{vT}")
    if a.hmap:
        E(f"s_and_b32 s{sH}, s2, 7")
        E(f"s_lshl_b32 s{sH}, s{sH}, 2")
        E(f"s_bfe_u32 s{sB}, s2, 0x20003")
        E(f"s_add_u32 s{sH}, s{sH}, s{sB}")
    else:
        E(f"s_and_b32 s{sH}, s2, 31")
    E(f"s_lshr_b32 s{sB}, s2, 5")
    E(f"v_lshlrev_b32 v{vL16}, 4, v{vL}")
    E(f"v_lshrrev_b32 v{vJ}, 4, v{vL}")
    E(f"v_and_b32 v{vN}, 15, v{vL}")
    E(f"v_mul_u32_u24 v{vWQ}, 81920, v{vJ}")
    E(f"v_lshl_add_u32 v{vWQ}, v{vN}, 4, v{vWQ}")
    vXS, vXC = vT + 2, vT + 3
    E(f"v_mul_u32_u24 v{vXS}, 20, v{vL}")
    E(f"v_lshrrev_b32 v{vXC}, 3, v{vN}")
    E(f"v_lshl_add_u32 v{vXC}, v{vXC}, 2, v{vJ}")
    t0, t1, t2, t3 = 64, 65, 66, 67
    E(f"s_lshl_b32 s{t0}, s{sW}, 3")
    E(f"v_add_u32 v{vXC}, s{t0}, v{vXC}")
    E(f"v_mul_u32_u24 v{vXC}, 20, v{vXC}")
    E(f"s_lshl_b32 s{t0}, s{sB}, 5")
    E(f"s_add_u32 s{t0}, s{t0}, s{sH}")
    E(f"s_lshl_b32 s{t0}, s{t0}, 20")
    E(f"s_add_u32 s{t0}, s{t0}, 0xc0000")
    E(f"s_lshl_b32 s{t1}, s{sH}, 8")
    E(f"s_mul_i32 s{t2}, s{sH}, {128*1280}")
    E(f"s_mul_i32 s{t3}, s{sB}, 1280")
    E(f"s_mov_b32 s{sROLE}, 0")
    E(f"s_lshl_b32 s{sTILE}, s{sW}, 10")
    if a.pf:
        E(f"s_getpc_b64 s[{sWF}:{sWF+1}]")
        E.label("L_pc")
        E(f"s_and_b32 s{sWF+1}, s{sWF+1}, 0xffff")
        E(f"s_mov_b32 s{sWF+2}, L_codeend-L_pc")
        E(f"s_mov_b32 s{sWF+3}, 0x20000")
        E(f"v_lshlrev_b32 v{vB0}, 7, v{vL}")
        E(f"s_lshl_b32 s{sOUT}, s{sW}, 13")
        E(f"s_cmp_gt_u32 s{sW}, {a.pf - 1}")
        E("s_cbranch_scc1 L_nopf")
        E(f"buffer_load_dword v{vS+15}, v{vB0}, {S4(sWF)}, s{sOUT} offen", tag="extra")
        E.label("L_nopf")
    E("s_waitcnt lgkmcnt(0)")
    srd_off(E, sK, 6, f"s{t0}", 0x40000)
    slot_of = {}
    free = deque(range(52))
    def alloc(tag):
        s = free.popleft(); slot_of[tag] = vF + 4 * s; return slot_of[tag]
    def release(tag):
        free.append((slot_of[tag] - vF) // 4)
    E(f"buffer_load_dwordx4 {r4(alloc('k0'))}, v{vL16}, {S4(sK)}, s{sTILE} offen{nt}", tag="k0")
    srd(E, sX, 4, 5, 10240)
    xs_raw, xc_raw = vS, vS + 6
    E(f"buffer_load_dwordx4 {r4(xs_raw)}, v{vXS}, {S4(sX)}, s{t3} offen", tag="xs")
    E(f"buffer_load_dword v{xs_raw+4}, v{vXS}, {S4(sX)}, s{t3} offen offset:16", tag="xs")
    E(f"buffer_load_dwordx4 {r4(xc_raw)}, v{vXC}, {S4(sX)}, s{t3} offen", tag="xc")
    E(f"buffer_load_dword v{xc_raw+4}, v{vXC}, {S4(sX)}, s{t3} offen offset:16", tag="xc")
    E(f"s_add_u32 s{sTILE}, s{sTILE}, 8192")
    E(f"buffer_load_dwordx4 {r4(alloc('k1'))}, v{vL16}, {S4(sK)}, s{sTILE} offen{nt}", tag="k1")
    E(f"s_add_u32 s{sTILE}, s{sTILE}, 8192")
    E(f"buffer_load_dwordx4 {r4(alloc('k2'))}, v{vL16}, {S4(sK)}, s{sTILE} offen{nt}", tag="k2")
    srd_off(E, sWQ, 10, f"s{t1}", 639 * 8192 + 256)
    srd_off(E, sV, 8, f"s{t0}", 0x40000)
    srd_off(E, sWO, 12, f"s{t2}", 128 * 1280)
    srd(E, sWS, 24, 25, 1 << 22)
    srd(E, sDB, 22, 23, 256)
    srd(E, sOUT, 20, 21, 10240)
    srd_off(E, sH1, 24, H1_BASE, 108 * 256)
    E(f"s_add_u32 s{sKO}, s{sTILE}, 8192")
    E(f"s_lshl_b32 s{sVO}, s{sW}, 10")
    E(f"s_mul_i32 s{sQ0}, s{sW}, 655360")
    E(f"s_add_u32 s{sQ1}, s{sQ0}, 327680")
    E(f"s_mul_i32 s{sOO}, s{sW}, 1280")

    if a.tlb:
        E(f"s_cmp_lg_u32 s{sW}, 1")
        E("s_cbranch_scc1 L_notlb")
        E(f"buffer_load_dword v{vS+14}, off, {S4(sV)}, 0 nt", tag="extra")
        E(f"buffer_load_dword v{vS+14}, off, {S4(sWO)}, 0 nt", tag="extra")
        if a.tlb > 1:
            E(f"s_mov_b32 s{sWF+2}, {640*3456}")
            E(f"s_mov_b32 s{sWF+3}, 0x20000")
            E(f"s_mov_b32 s{sT0}, {640*3456-4}")
            for p in (16, 18):
                E(f"s_mov_b32 s{sWF}, s{p}")
                E(f"s_and_b32 s{sWF+1}, s{p+1}, 0xffff")
                E(f"buffer_load_dword v{vS+14}, off, {S4(sWF)}, 0 nt", tag="extra")
                E(f"buffer_load_dword v{vS+14}, off, {S4(sWF)}, s{sT0} nt", tag="extra")
            E(f"s_mov_b32 s{sT0}, 0x20000")
            E(f"buffer_load_dword v{vS+14}, off, {S4(sWS)}, s{sT0} nt", tag="extra")
            E(f"buffer_load_dword v{vS+14}, off, {S4(sOUT)}, 0 nt", tag="extra")
        E.label("L_notlb")
    def t_init():
        E(f"s_cmp_lg_u32 s{sW}, 7")
        E("s_cbranch_scc1 L_nosent")
        E(f"v_mov_b32 v{vB0}, -1")
        E(f"v_lshlrev_b32 v{vB0+1}, 2, v{vL}")
        E(f"s_lshl_b32 s{sT0}, s2, 8")
        E(f"buffer_store_dword v{vB0}, v{vB0+1}, {S4(sH1)}, s{sT0} offen sc1", tag="extra")
        E.label("L_nosent")
        E(f"s_cmp_lg_u32 s{sW}, 6")
        E("s_cbranch_scc1 L_noinit")
        E(f"s_cmp_lg_u32 s{sH}, 0")
        E("s_cbranch_scc1 L_noinit")
        for i in range(4): E(f"v_mov_b32 v{vB1+i}, 0")
        E(f"s_lshl_b32 s{sT0}, s{sB}, 12")
        for i in range(4):
            E(f"buffer_store_dwordx4 {r4(vB1)}, v{vL16}, {S4(sWS)}, s{sT0} offen offset:{1024*i} sc1", tag="extra")
        E("s_waitcnt vmcnt(0)")
        E(f"v_mov_b32 v{vB0}, 1")
        E(f"s_lshl_b32 s{sT0}, s{sB}, 2")
        E("s_mov_b64 exec, 1")
        E(f"buffer_store_dword v{vB0}, off, {S4(sDB)}, s{sT0} sc1", tag="extra")
        E("s_mov_b64 exec, -1")
        E.label("L_noinit")

    def kload(f):
        def fn():
            E(f"buffer_load_dwordx4 {r4(alloc(f'k{f}'))}, v{vL16}, {S4(sK)}, s{sKO} offen{nt}", tag=f"k{f}")
            if f < 31: E(f"s_add_u32 s{sKO}, s{sKO}, 8192")
        return (f"k{f}", fn, True)
    def vload(f):
        def fn():
            E(f"buffer_load_dwordx4 {r4(alloc(f'v{f}'))}, v{vL16}, {S4(sV)}, s{sVO} offen{nt}", tag=f"v{f}")
            if f < 31: E(f"s_add_u32 s{sVO}, s{sVO}, 8192")
        return (f"v{f}", fn, True)
    def qload(f):
        def fn():
            s = sQ0 if f % 2 == 0 else sQ1
            E(f"buffer_load_dwordx4 {r4(alloc(f'wq{f}'))}, v{vWQ}, {S4(sWQ)}, s{s} offen{nt}", tag=f"wq{f}")
            if f < 18: E(f"s_add_u32 s{s}, s{s}, 8192")
        return (f"wq{f}", fn, True)
    def oload(f):
        def fn():
            fp, cg = divmod(f, 5)
            E(f"buffer_load_dwordx4 {r4(alloc(f'wo{f}'))}, v{vWO}, {S4(sWO)}, s{sOO} offen offset:{cg*256}{nt}", tag=f"wo{f}")
            if cg == 4 and fp < 3: E(f"s_add_u32 s{sOO}, s{sOO}, {8*1280}")
        return (f"wo{f}", fn, True)
    vFL = vWQ
    vTK = vQ + 3
    def fload():
        def fn():
            E(f"v_and_b32 v{vFL}, 7, v{vL}")
            E(f"v_lshlrev_b32 v{vFL}, 2, v{vFL}")
            E(f"buffer_load_dword v{vFL}, v{vFL}, {S4(sDB)}, 0 offen sc1", tag="flag")
        return ("flag", fn, False)
    def ticket():
        def fn():
            E(f"s_cmp_lg_u32 s{sW}, 0")
            E("s_cbranch_scc1 L_notk")
            E(f"v_mov_b32 v{vTK}, 1")
            E("s_mov_b64 exec, 1")
            E(f"buffer_atomic_add v{vTK}, off, {S4(sDB)}, 0 offset:128 sc0", tag="extra")
            E("s_mov_b64 exec, -1")
            E.label("L_notk")
        return ("tk", fn, False)
    loads = []
    qi = 0
    for f in range(3, 32):
        want = min(20, (f - 2) * 20 // (a.qspan - 2) + 1)
        while qi < want:
            loads.append(qload(qi)); qi += 1
        loads.append(kload(f))
    while qi < 20:
        loads.append(qload(qi)); qi += 1
    nmid = 20 - a.otail
    oi = 0
    for f in range(32):
        loads.append(vload(f))
        if f == 16: loads.append(fload())
        if f == a.tkpos: loads.append(ticket())
        want = max(0, (f + 1 - a.ostart)) * nmid // (32 - a.ostart)
        while oi < want:
            loads.append(oload(oi)); oi += 1
    while oi < 20:
        loads.append(oload(oi)); oi += 1

    vRW, vRR = vXS, vXC
    def t_setup():
        E(f"s_mov_b32 s{sSPIN}, 0x40000")
        E(f"s_mov_b32 s{sLO8}, 0x00ff00ff")
        E(f"s_mov_b32 s{sLO8+1}, 0x00ff00ff")
        E(f"v_mul_u32_u24 v{vWO}, 40960, v{vJ}")
        E(f"v_and_b32 v{vB0}, 1, v{vN}")
        E(f"v_lshl_add_u32 v{vWO}, v{vB0}, 7, v{vWO}")
        E(f"v_lshrrev_b32 v{vB0+1}, 1, v{vN}")
        E(f"v_lshl_add_u32 v{vWO}, v{vB0+1}, 4, v{vWO}")
        E(f"v_lshlrev_b32 v{vB0}, 4, v{vB0}")
        E(f"v_mov_b32 v{vB0+2}, 0xffff")
        E(f"v_lshlrev_b32 v{vB0}, v{vB0}, v{vB0+2}")
        E(f"v_and_b32 v{vB0+1}, 3, v{vB0+1}")
        for w in range(4):
            E(f"v_cmp_eq_u32 vcc, {w}, v{vB0+1}")
            E(f"v_cndmask_b32 v{vM+w}, 0, v{vB0}, vcc")
        E(f"v_lshrrev_b32 v{vB0}, 3, v{vN}")
        E(f"s_lshl_b32 s{sT0}, s{sW}, 1")
        E(f"v_add_u32 v{vB0}, s{sT0}, v{vB0}")
        E(f"v_mul_u32_u24 v{vRW}, 528, v{vB0}")
        E(f"v_and_b32 v{vB0}, 7, v{vN}")
        E(f"v_lshl_add_u32 v{vRW}, v{vB0}, 6, v{vRW}")
        E(f"v_lshl_add_u32 v{vRW}, v{vJ}, 4, v{vRW}")
        E(f"v_mul_u32_u24 v{vRR}, 528, v{vN}")
        E(f"v_lshl_add_u32 v{vRR}, v{vJ}, 4, v{vRR}")
        E(f"s_lshl_b32 s{sT0}, s{sW}, 6")
        E(f"v_add_u32 v{vRR}, s{sT0}, v{vRR}")
    f0 = 8
    vMEAN, vRCP = 18, 19
    def t_ln1a():
        stamp(1)
        unpack10(E, xs_raw, f0)
        ln_stats(E, f0, 20, 21, 22, vMEAN, vRCP)
    def t_ln1b():
        unpack10(E, xc_raw, f0)
        for i in range(10): E(f"v_sub_f32 v{f0+i}, v{f0+i}, v{vMEAN}")
        bf16r_many(E, range(f0, f0 + 10))
        for i in range(10): E(f"v_mul_f32 v{f0+i}, v{f0+i}, v{vRCP}")
        for i in range(10): E(f"v_cvt_pk_bf16_f32 v{vS+i}, v{f0+i}, v{f0+i}")
    def bfrag(dst, src):
        for w in range(4): E(f"v_and_b32 v{dst+w}, v{src}, v{vM+w}")
    def t_pair(t, pre):
        def fn():
            B = vB0 if t % 2 == 0 else vB1
            bfrag(B, vS + t)
            c1 = "0" if t == 0 else r4(vD1)
            c2 = "0" if t == 0 else r4(vD2)
            E(f"v_mfma_f32_16x16x32_bf16 {r4(vD1)}, {r4(slot_of[f'{pre}{2*t}'])}, {r4(B)}, {c1}")
            E(f"v_mfma_f32_16x16x32_bf16 {r4(vD2)}, {r4(slot_of[f'{pre}{2*t+1}'])}, {r4(B)}, {c2}")
        return fn
    def red_a():
        for r in range(4):
            E(f"v_cndmask_b32 v{vD1+r}, v{vD2+r}, v{vD1+r}, s[{sLO8}:{sLO8+1}]")
        E(f"ds_write_b128 v{vRW}, {r4(vD1)} offset:{RED}")
    def t_bar():
        E("s_waitcnt lgkmcnt(0)")
        E("s_barrier")
    def red_b(dst):
        E(f"ds_read_b128 {r4(dst)}, v{vRR} offset:{RED}")
        E("s_waitcnt lgkmcnt(0)")
        row_reduce(E, [dst + i for i in range(4)])
        for i in range(4): E(f"v_cvt_pk_bf16_f32 v{dst+i}, v{dst+i}, v{dst+i}")
    def t_qr2():
        E(f"v_lshlrev_b32 v{vB1}, 6, v{vJ}")
        E(f"s_lshl_b32 s{sT0}, s{sW}, 1")
        E(f"v_add_u32 v{vB1}, s{sT0}, v{vB1}")
        red_b(vB0)
        E(f"s_mov_b32 exec_lo, 0x00010001")
        E(f"s_mov_b32 exec_hi, 0x00010001")
        for i in range(4): E(f"ds_write_b16 v{vB1}, v{vB0+i} offset:{QF+16*i}")
        E("s_mov_b64 exec, -1")
        E(f"v_lshlrev_b32 v{vB1}, 4, v{vN}")
    def t_qr3():
        E(f"ds_read_b128 {r4(vQ)}, v{vB1} offset:{QF}")
        E("s_waitcnt lgkmcnt(0)")
        stamp(2)
    def t_k2(t):
        def fn():
            ks = [slot_of[f"k{2*t+i}"] for i in range(4)]
            acc = [vB0 + i for i in range(4)]
            for i in range(4):
                for u in range(4):
                    E(f"v_dot2_f32_bf16 v{acc[u]}, v{ks[u]+i}, v{vQ+i}, {'0' if i == 0 else 'v%d' % acc[u]}")
            s0, s1 = vS + t, vS + t + 1
            E(f"v_add_f32_dpp v{s0}, v{acc[0]}, v{acc[0]} row_ror:8 row_mask:0xf bank_mask:0x3")
            E(f"v_add_f32_dpp v{s0}, v{acc[1]}, v{acc[1]} row_ror:8 row_mask:0xf bank_mask:0xc")
            E(f"v_add_f32_dpp v{s1}, v{acc[2]}, v{acc[2]} row_ror:8 row_mask:0xf bank_mask:0x3")
            E(f"v_add_f32_dpp v{s1}, v{acc[3]}, v{acc[3]} row_ror:8 row_mask:0xf bank_mask:0xc")
            for mod in ("row_half_mirror", "quad_perm:[1,0,3,2]", "quad_perm:[2,3,0,1]"):
                for s in (s0, s1):
                    E(f"v_add_f32_dpp v{s}, v{s}, v{s} {mod} row_mask:0xf bank_mask:0xf")
            bf16r_many(E, [s0, s1])
            E(f"v_mul_f32 v{s0}, {SCALE:#x}, v{s0}")
            E(f"v_mul_f32 v{s1}, {SCALE:#x}, v{s1}")
            bf16r_many(E, [s0, s1])
        return fn
    m, l = vD1, vD1 + 1
    def t_sm1():
        E(f"v_max3_f32 v{m}, v{vS}, v{vS+1}, v{vS+2}")
        for i in range(3, 15, 2): E(f"v_max3_f32 v{m}, v{m}, v{vS+i}, v{vS+i+1}")
        E(f"v_max_f32 v{m}, v{m}, v{vS+15}")
        for i in range(16): E(f"v_sub_f32 v{vS+i}, v{vS+i}, v{m}")
        for i in range(16): E(f"v_mul_f32 v{vS+i}, {LOG2E:#x}, v{vS+i}")
        for i in range(16): E(f"v_exp_f32 v{vS+i}, v{vS+i}")
        E(f"v_add_f32 v{l}, v{vS}, v{vS+1}")
        E(f"v_add_f32 v{vB0}, v{vS+2}, v{vS+3}")
        for i in range(4, 16, 2):
            E(f"v_add_f32 v{l}, v{l}, v{vS+i}")
            E(f"v_add_f32 v{vB0}, v{vB0}, v{vS+i+1}")
        E(f"v_add_f32 v{l}, v{l}, v{vB0}")
        E(f"v_and_b32 v{vB0}, 56, v{vL}")
        E(f"s_lshl_b32 s{sT0}, s{sW}, 6")
        E(f"v_add_u32 v{vB0}, s{sT0}, v{vB0}")
        E(f"ds_write_b64 v{vB0}, {r2(m)} offset:{ML}")
        E(f"v_lshlrev_b32 v{vB0}, 3, v{vL}")
        stamp(3)
    def t_smb():
        E("s_waitcnt lgkmcnt(0)")
        E("s_barrier")
        stamp(4)
    def t_sm2():
        mg, lg = vD2, vD2 + 1
        E(f"ds_read_b64 {r2(mg)}, v{vB0} offset:{ML}")
        E("s_waitcnt lgkmcnt(0)")
        E(f"v_mov_b32 v{vB0}, v{mg}")
        wave_reduce(E, vB0, sT0, "v_max_f32")
        E(f"v_subrev_f32 v{mg}, s{sT0}, v{mg}")
        E(f"v_subrev_f32 v{m}, s{sT0}, v{m}")
        E(f"v_mul_f32 v{mg}, {LOG2E:#x}, v{mg}")
        E(f"v_mul_f32 v{m}, {LOG2E:#x}, v{m}")
        E(f"v_exp_f32 v{mg}, v{mg}")
        E(f"v_exp_f32 v{m}, v{m}")
        E(f"v_mul_f32 v{lg}, v{lg}, v{mg}")
        wave_reduce(E, lg, sT1)
        E(f"v_rcp_f32 v{l}, s{sT1}")
        E(f"v_mul_f32 v{m}, v{m}, v{l}")
        for i in range(16): E(f"v_mul_f32 v{vS+i}, v{vS+i}, v{m}")
        for i in range(16): E(f"v_cvt_pk_bf16_f32 v{vS+i}, v{vS+i}, v{vS+i}")
    Bs = [vB0, vB1, vD1, vD2]
    vA, vA2, vA3 = vQ, vQ + 1, vQ + 2
    def t_pre_tail():
        E(f"v_and_b32 v{vA}, 7, v{vL}")
        E(f"v_lshlrev_b32 v{vA2}, 6, v{vA}")
        E(f"v_lshl_add_u32 v{vA}, v{vJ}, 4, v{vA2}")
        E(f"s_mul_i32 s{sT0}, s{sW}, 2560")
        E(f"v_add_u32 v{vA}, s{sT0}, v{vA}")
        E(f"v_and_b32 v{vA3}, 56, v{vL}")
        E(f"v_add_u32 v{vA2}, v{vA2}, v{vA3}")
        E(f"s_lshl_b32 s{sT0}, s{sW}, 9")
        E(f"v_add_u32 v{vA2}, s{sT0}, v{vA2}")
        E(f"v_lshlrev_b32 v{vA3}, 2, v{vL}")
    def t_flag():
        E(f"v_cmp_eq_u32 vcc, 0, v{vFL}")
        E.flush()
        E("s_cbranch_vccz L_flagok")
        E.label("L_flag")
        E("s_sleep 2")
        E(f"v_and_b32 v{vFL}, 7, v{vL}")
        E(f"v_lshlrev_b32 v{vFL}, 2, v{vFL}")
        E(f"buffer_load_dword v{vFL}, v{vFL}, {S4(sDB)}, 0 offen sc1", tag="extra")
        E("s_waitcnt vmcnt(0)")
        E(f"v_cmp_eq_u32 vcc, 0, v{vFL}")
        E.flush()
        E("s_cbranch_vccz L_flagok")
        spin("L_flagok")
        E("s_branch L_flag")
        E.label("L_flagok")
    def t_or1():
        stamp(5)
        red_a()
        t_bar()
        stamp(6)
    def t_or2():
        red_b(vS)
        for fp in range(4): bfrag(Bs[fp], vS + fp)
        for cg in range(5): alloc(f"y{cg}")
    def t_y(f):
        def fn():
            fp, cg = divmod(f, 5)
            y = slot_of[f"y{cg}"]
            c = "0" if fp == 0 else r4(y)
            E(f"v_mfma_f32_16x16x32_bf16 {r4(y)}, {r4(slot_of[f'wo{f}'])}, {r4(Bs[fp])}, {c}")
        return fn
    tasks = []
    tasks.append(Task(t_setup))
    tasks.append(Task(t_ln1a, ["xs"], cost=3))
    tasks.append(Task(t_ln1b, ["xc"], cost=2))
    for t in range(10):
        tasks.append(Task(t_pair(t, "wq"), [f"wq{2*t+1}"], frees=[f"wq{2*t}", f"wq{2*t+1}"]))
        if t == 1: tasks.append(Task(t_init))
    tasks.append(Task(red_a))
    tasks.append(Task(t_bar, barrier=a.bd1))
    tasks.append(Task(t_qr2))
    tasks.append(Task(t_bar, barrier=a.bd2))
    tasks.append(Task(t_qr3))
    for t in range(0, 16, 2):
        tasks.append(Task(t_k2(t), [f"k{2*t+3}"], frees=[f"k{2*t+i}" for i in range(4)], cost=2))
    tasks.append(Task(t_sm1, cost=2))
    tasks.append(Task(t_smb, barrier=a.bd3))
    tasks.append(Task(t_sm2, cost=2))
    tasks.append(Task(t_pre_tail))
    for t in range(16):
        tasks.append(Task(t_pair(t, "v"), [f"v{2*t+1}"], frees=[f"v{2*t}", f"v{2*t+1}"], cost=0.5))
        if t == 9: tasks.append(Task(t_flag, ["flag"]))
    tasks.append(Task(t_or1, barrier=99))
    tasks.append(Task(t_or2))
    for f in range(20): tasks.append(Task(t_y(f), [f"wo{f}"], cost=0.25))

    issued = {"xs", "xc", "k0", "k1", "k2"}
    pend = deque(tasks)
    def ready(t): return all(n in issued and n not in E.vm for n in t.needs)
    def run(t):
        for n in t.needs:
            assert n in issued, n
            if n in E.vm: E.wait_vm(n)
        t.fn()
        for n in t.frees: release(n)
    D = a.depth
    for i, (tag, fn, needs_slot) in enumerate(loads):
        while needs_slot and not free:
            run(pend.popleft())
        if tag == "tk":
            while any(t.fn is t_sm1 for t in pend): run(pend.popleft())
        lim = 63 if i < a.first else D
        if len(E.vm) >= lim:
            E(f"s_waitcnt vmcnt({lim-1})")
            E.vm = E.vm[len(E.vm) - (lim - 1):]
        fn(); issued.add(tag)
        if i + 1 < a.first: continue
        budget = a.budget
        while pend and budget > 0 and ready(pend[0]):
            if pend[0].barrier > 0:
                pend[0].barrier -= 1
                break
            t = pend.popleft(); run(t); budget -= t.cost
    while pend: run(pend.popleft())
    assert not E.vm, E.vm
    stamp(7)

    E(f"s_mov_b64 exec, s[{sLO8}:{sLO8+1}]")
    for cg in range(5):
        E(f"ds_write_b128 v{vA}, {r4(slot_of[f'y{cg}'])} offset:{YP+cg*512}")
    E(f"s_cmp_lg_u32 s{sW}, 0")
    E("s_cselect_b32 exec_lo, 0, 1")
    E("s_mov_b32 exec_hi, 0")
    E(f"v_mov_b32 v{vB0}, {TK}")
    E(f"ds_write_b32 v{vB0}, v{vTK}")
    E("s_mov_b64 exec, -1")
    E(f"v_mov_b32 v{vB0}, {TK}")
    E(f"s_lshl_b32 s{sT0}, s{sB}, 12")
    E(f"s_lshl_b32 s{sT1}, s{sW}, 9")
    E(f"s_add_u32 s{sT0}, s{sT0}, s{sT1}")
    E("s_waitcnt lgkmcnt(0)")
    E("s_barrier")
    stamp(8)
    E(f"ds_read_b32 v{vTK}, v{vB0}")
    E(f"s_cmp_ge_u32 s{sW}, 5")
    E("s_cbranch_scc1 L_arr")
    vP = vS
    for p in range(8):
        E(f"ds_read_b64 {r2(vP+2*p)}, v{vA2} offset:{YP+p*2560}")
    E("s_waitcnt lgkmcnt(0)")
    for st in (4, 2, 1):
        for p in range(st):
            E(f"v_add_f32 v{vP+2*p}, v{vP+2*p}, v{vP+2*(p+st)}")
            E(f"v_add_f32 v{vP+2*p+1}, v{vP+2*p+1}, v{vP+2*(p+st)+1}")
    E(f"buffer_atomic_add_f32 v{vP}, v{vA3}, {S4(sWS)}, s{sT0} offen", tag="extra")
    E(f"buffer_atomic_add_f32 v{vP+1}, v{vA3}, {S4(sWS)}, s{sT0} offen offset:256", tag="extra")
    E("s_waitcnt vmcnt(0)")
    stamp(9)
    E.label("L_arr")
    E("s_waitcnt lgkmcnt(0)")
    E(f"v_readfirstlane_b32 s{sTILE}, v{vTK}")
    E("s_barrier")
    stamp(10)
    E(f"s_cmp_lg_u32 s{sW}, 0")
    E("s_cbranch_scc1 L_noarr")
    E(f"v_mov_b32 v{vB0}, 1")
    E(f"s_lshl_b32 s{sT0}, s{sB}, 12")
    E("s_mov_b64 exec, 1")
    E(f"buffer_atomic_add v{vB0}, off, {S4(sWS)}, s{sT0} offset:3072", tag="extra")
    E("s_mov_b64 exec, -1")
    E.label("L_noarr")
    E(f"s_cmp_ge_u32 s{sTILE}, {NF2 + NF1}")
    E("s_cbranch_scc1 L_fin")
    E(f"s_mov_b32 s{sWF+2}, {640*3456}")
    E(f"s_mov_b32 s{sWF+3}, 0x20000")
    E(f"s_mov_b64 s[{sDRY}:{sDRY+1}], {0 if a.dry else -1}")
    E(f"s_cmp_lt_u32 s{sTILE}, {NF2}")
    E("s_cbranch_scc1 L_ffn2")

    vW = vF
    E(f"s_mov_b32 s{sROLE}, 1")
    E(f"s_sub_u32 s{sTILE}, s{sTILE}, {NF2}")
    E(f"s_mov_b32 s{sWF}, s16")
    E(f"s_and_b32 s{sWF+1}, s17, 0xffff")
    vA = vB1
    vDM = vB0
    E(f"v_lshrrev_b32 v{vDM}, 3, v{vL}")
    E(f"v_mul_u32_u24 v{vDM}, 3456, v{vDM}")
    E(f"v_and_b32 v{vDM+1}, 7, v{vL}")
    E(f"v_lshl_add_u32 v{vDM}, v{vDM+1}, 4, v{vDM}")
    E(f"s_mul_i32 s{sT0}, s{sW}, {80*3456}")
    E(f"s_lshl_b32 s{sT1}, s{sTILE}, 7")
    E(f"s_add_u32 s{sT0}, s{sT0}, s{sT1}")
    E(f"s_mul_i32 s{sT2}, s{sW}, {10*1024}")
    E(f"s_add_u32 s{sT2}, s{sT2}, {WT}")
    for t in range(10):
        E(f"s_mov_b32 m0, s{sT2}")
        E(f"buffer_load_dwordx4 v{vDM}, {S4(sWF)}, s{sT0} offen{fnt} lds", tag="extra")
        if t < 9:
            E(f"s_add_u32 s{sT0}, s{sT0}, {8*3456}")
            E(f"s_add_u32 s{sT2}, s{sT2}, 1024")
    xr = vS
    ac = vF + 160
    hx = vF + 176
    hb = vF + 80
    E(f"v_mul_u32_u24 v{vA}, 20, v{vL}")
    E(f"s_mul_i32 s{sT0}, s{sW}, 1280")
    E(f"buffer_load_dwordx4 {r4(xr)}, v{vA}, {S4(sX)}, s{sT0} offen", tag="extra")
    E(f"buffer_load_dword v{xr+4}, v{vA}, {S4(sX)}, s{sT0} offen offset:16", tag="extra")
    E(f"v_lshlrev_b32 v{vA+1}, 1, v{vA}")
    E(f"s_mul_i32 s{sT1}, s{sW}, {HNS}")
    E(f"v_add_u32 v{vA+2}, s{sT1}, v{vA}")
    E(f"v_lshlrev_b32 v{vA+3}, 10, v{vJ}")
    E(f"v_lshrrev_b32 v{vDM}, 2, v{vN}")
    E(f"v_lshl_add_u32 v{vA+3}, v{vDM}, 7, v{vA+3}")
    E(f"v_and_b32 v{vDM}, 3, v{vN}")
    E(f"v_lshl_add_u32 v{vA+3}, v{vDM}, 3, v{vA+3}")
    E(f"s_and_b32 s{sT0}, s{sW}, 3")
    E(f"s_lshl_b32 s{sT0}, s{sT0}, 5")
    E(f"s_add_u32 s{sT0}, s{sT0}, {WT}")
    E(f"v_add_u32 v{vA+3}, s{sT0}, v{vA+3}")
    E("s_waitcnt vmcnt(0)")
    E("s_barrier")
    for t in range(20):
        if t == 10: E(f"v_add_u32 v{vA+3}, {10*4096}, v{vA+3}")
        o = (t % 10) * 4096
        E(f"ds_read_b64_tr_b16 {r2(vW+4*t)}, v{vA+3} offset:{o}")
        E(f"ds_read_b64_tr_b16 {r2(vW+4*t+2)}, v{vA+3} offset:{o+512}")
        if t % 4 == 3: E("s_waitcnt lgkmcnt(0)")
    E(f"v_and_b32 v{vA+3}, 7, v{vL}")
    E(f"v_mul_u32_u24 v{vA+3}, {HNS}, v{vA+3}")
    E(f"v_lshl_add_u32 v{vA+3}, v{vJ}, 4, v{vA+3}")
    E(f"v_lshrrev_b32 v{vDM}, 3, v{vN}")
    E(f"v_lshl_add_u32 v{vA+3}, v{vDM}, 6, v{vA+3}")
    E(f"v_lshlrev_b32 v{vA}, 5, v{vN}")
    E(f"v_lshl_add_u32 v{vA}, v{vJ}, 3, v{vA}")
    E(f"s_lshl_b32 s{sT3}, s{sTILE}, 2")
    E(f"s_add_u32 s{sT3}, s{sT3}, s{sW}")
    E(f"s_lshl_b32 s{sT3}, s{sT3}, 8")
    E(f"s_lshl_b32 s{sT2}, s{sW}, 12")
    xk = vF + 192
    unpack10(E, xr, xk)
    stamp(11)
    E.label("L_f1_top")
    E(f"s_mov_b64 exec, s[{sDRY}:{sDRY+1}]")
    E("s_cbranch_execz L_f1_go")
    E.label("L_f1_poll")
    E(f"buffer_load_dword v{vB0}, off, {S4(sWS)}, s{sT2} offset:3072 sc1", tag="extra")
    E("s_waitcnt vmcnt(0)")
    E(f"v_readfirstlane_b32 s{sT0}, v{vB0}")
    E(f"s_cmp_ge_u32 s{sT0}, 32")
    E("s_cbranch_scc1 L_f1_ld")
    spin("L_f1_ld")
    if a.sleep: E(f"s_sleep {a.sleep}")
    E("s_branch L_f1_poll")
    E.label("L_f1_ld")
    E(f"buffer_load_dwordx4 {r4(ac)}, v{vA+1}, {S4(sWS)}, s{sT2} offen sc1", tag="extra")
    E(f"buffer_load_dwordx4 {r4(ac+4)}, v{vA+1}, {S4(sWS)}, s{sT2} offen offset:16 sc1", tag="extra")
    E(f"buffer_load_dwordx2 {r2(ac+8)}, v{vA+1}, {S4(sWS)}, s{sT2} offen offset:32 sc1", tag="extra")
    stamp(12)
    E("s_waitcnt vmcnt(0)")
    E.label("L_f1_go")
    bf16r_many(E, range(ac, ac + 10))
    for i in range(10): E(f"v_add_f32 v{hx+i}, v{xk+i}, v{ac+i}")
    bf16r_many(E, range(hx, hx + 10))
    ln_stats(E, hx, vD1, vD1 + 1, vD1 + 2, vD2, vD2 + 1)
    for i in range(10): E(f"v_sub_f32 v{hx+i}, v{hx+i}, v{vD2}")
    bf16r_many(E, range(hx, hx + 10))
    for i in range(10): E(f"v_mul_f32 v{hx+i}, v{hx+i}, v{vD2+1}")
    for i in range(5): E(f"v_cvt_pk_bf16_f32 v{ac+i}, v{hx+2*i}, v{hx+2*i+1}")
    for i in range(5): E(f"ds_write_b32 v{vA+2}, v{ac+i} offset:{HN+4*i}")
    E("s_waitcnt lgkmcnt(0)")
    E("s_barrier")
    E(f"s_cmp_ge_u32 s{sW}, 4")
    E("s_cbranch_scc1 L_f1_next")
    if a.ts:
        stamp(13); E("s_waitcnt lgkmcnt(0)")
    for u in range(10):
        E(f"ds_read_b128 {r4(hb+4*u)}, v{vA+3} offset:{HN+128*u}")
    for u in range(10):
        E(f"s_waitcnt lgkmcnt({9-u})")
        c1 = "0" if u == 0 else r4(vD1)
        c2 = "0" if u == 0 else r4(vD2)
        E(f"v_mfma_f32_16x16x32_bf16 {r4(vD1)}, {r4(vW+8*u)}, {r4(hb+4*u)}, {c1}")
        E(f"v_mfma_f32_16x16x32_bf16 {r4(vD2)}, {r4(vW+8*u+4)}, {r4(hb+4*u)}, {c2}")
    for i in range(4):
        E(f"v_add_f32_dpp v{vD1+i}, v{vD2+i}, v{vD1+i} row_ror:8 row_mask:0xf bank_mask:0xf")
    for i in range(4): E(f"v_max_f32 v{vD1+i}, 0, v{vD1+i}")
    E(f"v_cvt_pk_bf16_f32 v{vD2}, v{vD1}, v{vD1+1}")
    E(f"v_cvt_pk_bf16_f32 v{vD2+1}, v{vD1+2}, v{vD1+3}")
    E(f"s_and_b64 exec, exec, s[{sLO8}:{sLO8+1}]")
    E("s_cbranch_execz L_f1_next")
    E(f"buffer_store_dwordx2 {r2(vD2)}, v{vA}, {S4(sH1)}, s{sT3} offen sc1", tag="extra")
    stamp(14)
    E.label("L_f1_next")
    E(f"s_cmp_lg_u32 s{sDRY}, 0")
    E("s_cbranch_scc1 L_fin")
    E(f"s_mov_b64 s[{sDRY}:{sDRY+1}], -1")
    E.flush()
    E("s_branch L_f1_top")

    E.label("L_ffn2")
    E(f"s_mov_b32 s{sROLE}, 2")
    E(f"s_mov_b32 s{sWF}, s18")
    E(f"s_and_b32 s{sWF+1}, s19, 0xffff")
    vA = vQ
    E(f"v_lshrrev_b32 v{vA}, 2, v{vL}")
    E(f"v_mul_u32_u24 v{vA}, 1280, v{vA}")
    E(f"v_and_b32 v{vA+1}, 3, v{vL}")
    E(f"v_lshl_add_u32 v{vA}, v{vA+1}, 4, v{vA}")
    E(f"s_mul_i32 s{sT0}, s{sW}, {7*32*1280}")
    E(f"s_lshl_b32 s{sT1}, s{sTILE}, 6")
    E(f"s_add_u32 s{sT0}, s{sT0}, s{sT1}")
    E(f"s_mul_i32 s{sT3}, s{sW}, {14*1024}")
    E(f"s_add_u32 s{sT3}, s{sT3}, {WT}")
    E(f"s_mov_b32 s{sT2}, s{sT3}")
    for t in range(14):
        E(f"s_mov_b32 m0, s{sT2}")
        E(f"buffer_load_dwordx4 v{vA}, {S4(sWF)}, s{sT0} offen{fnt} lds", tag="extra")
        if t < 13:
            E(f"s_add_u32 s{sT0}, s{sT0}, {16*1280}")
            E(f"s_add_u32 s{sT2}, s{sT2}, 1024")
    vXO = vA + 2
    E(f"v_and_b32 v{vA+1}, 7, v{vL}")
    E(f"v_mul_u32_u24 v{vXO}, 1280, v{vA+1}")
    E(f"v_lshl_add_u32 v{vXO}, v{vJ}, 3, v{vXO}")
    E(f"s_and_b32 s{sT4}, s{sW}, 1")
    E(f"s_lshl_b32 s{sT4}, s{sT4}, 5")
    E(f"s_add_u32 s{sT1}, s{sT1}, s{sT4}")
    xr = vS
    E(f"buffer_load_dwordx2 {r2(xr)}, v{vXO}, {S4(sX)}, s{sT1} offen", tag="extra")
    vCO = vA + 3
    E(f"v_lshlrev_b32 v{vCO}, 12, v{vA+1}")
    vHO = vB1
    E(f"v_lshl_add_u32 v{vHO}, v{vJ}, 4, v{vCO}")
    vH1 = vB1 + 1
    E(f"v_lshrrev_b32 v{vH1}, 1, v{vJ}")
    E(f"v_lshlrev_b32 v{vH1}, 8, v{vH1}")
    E(f"v_lshl_add_u32 v{vH1}, v{vA+1}, 5, v{vH1}")
    E(f"v_and_b32 v{vB1+2}, 1, v{vJ}")
    E(f"v_lshl_add_u32 v{vH1}, v{vB1+2}, 4, v{vH1}")
    E(f"v_lshrrev_b32 v{vB1+2}, 3, v{vN}")
    E(f"v_lshl_add_u32 v{vH1}, v{vB1+2}, 9, v{vH1}")
    vTR = vB1 + 2
    E(f"v_lshlrev_b32 v{vTR}, 9, v{vJ}")
    E(f"v_lshrrev_b32 v{vB1+3}, 2, v{vN}")
    E(f"v_lshl_add_u32 v{vTR}, v{vB1+3}, 6, v{vTR}")
    E(f"v_and_b32 v{vB1+3}, 3, v{vN}")
    E(f"v_lshl_add_u32 v{vTR}, v{vB1+3}, 3, v{vTR}")
    E(f"v_add_u32 v{vTR}, s{sT3}, v{vTR}")
    vRWp, vRRp = vB0, vB0 + 1
    E(f"s_lshl_b32 s{sT0}, s{sW}, 11")
    E(f"v_add_u32 v{vRWp}, s{sT0}, v{vL16}")
    E(f"s_lshl_b32 s{sT0}, s{sT4}, 5")
    E(f"v_add_u32 v{vRRp}, s{sT0}, v{vL16}")
    E("s_waitcnt vmcnt(0)")
    for t in range(7):
        for c in range(2):
            E(f"ds_read_b64_tr_b16 {r2(vW+8*t+4*c)}, v{vTR} offset:{t*2048+c*32}")
            E(f"ds_read_b64_tr_b16 {r2(vW+8*t+4*c+2)}, v{vTR} offset:{t*2048+c*32+256}")
        if t % 2 == 1: E("s_waitcnt lgkmcnt(0)")
    hxk = vS + 8
    for i in range(2):
        E(f"v_lshlrev_b32 v{hxk+2*i}, 16, v{xr+i}")
        E(f"v_and_b32 v{hxk+2*i+1}, 0xffff0000, v{xr+i}")
    E(f"s_mul_i32 s{sT2}, s{sW}, {7*512}")
    E(f"s_lshl_b32 s{sT3}, s{sT1}, 1")
    E("s_waitcnt lgkmcnt(0)")
    stamp(11)
    hb = vF + 64
    acc = [vF + 96 + 4 * i for i in range(4)]
    ac = vS + 4
    hx = vS + 12
    E.label("L_f2_top")
    E(f"s_mov_b64 exec, s[{sDRY}:{sDRY+1}]")
    E("s_cbranch_execz L_f2_got")
    E(f"s_cmp_ge_u32 s{sW}, 2")
    E("s_cbranch_scc1 L_f2_go")
    E.label("L_f2_poll")
    E(f"buffer_load_dword v{vD1}, v{vCO}, {S4(sWS)}, 0 offen offset:3072 sc1", tag="extra")
    E("s_waitcnt vmcnt(0)")
    E(f"v_cmp_gt_u32 vcc, 32, v{vD1}")
    E.flush()
    E("s_cbranch_vccz L_f2_cnt")
    spin("L_f2_cnt")
    if a.sleep: E(f"s_sleep {a.sleep}")
    E("s_branch L_f2_poll")
    E.label("L_f2_cnt")
    E(f"buffer_load_dwordx4 {r4(ac)}, v{vHO}, {S4(sWS)}, s{sT3} offen sc1", tag="extra")
    E.label("L_f2_go")
    E("s_barrier")
    stamp(12)
    E.label("L_f2_poll2")
    for u in range(4):
        E(f"buffer_load_dwordx4 {r4(hb+4*u)}, v{vH1}, {S4(sH1)}, s{sT2} offen offset:{1024*u} sc1", tag="extra")
    E("s_waitcnt vmcnt(0)")
    E(f"v_max3_u32 v{vD1}, v{hb}, v{hb+1}, v{hb+2}")
    E(f"v_max3_u32 v{vD1+1}, v{hb+3}, v{hb+4}, v{hb+5}")
    for k in range(6, 16, 2):
        tgt = vD1 + ((k // 2) % 2)
        E(f"v_max3_u32 v{tgt}, v{tgt}, v{hb+k}, v{hb+k+1}")
    E(f"v_max_u32 v{vD1}, v{vD1}, v{vD1+1}")
    E(f"v_cmp_eq_u32 vcc, -1, v{vD1}")
    E.flush()
    E("s_cbranch_vccz L_f2_got")
    spin("L_f2_got")
    if a.sleep2: E(f"s_sleep {a.sleep2}")
    E("s_branch L_f2_poll2")
    E.label("L_f2_got")
    stamp(13)
    for t in range(7):
        u, half = divmod(t, 2)
        for c in range(2):
            d = acc[2 * c + half]
            cc = "0" if u == 0 else r4(d)
            E(f"v_mfma_f32_16x16x32_bf16 {r4(d)}, {r4(vW+8*t+4*c)}, {r4(hb+4*u)}, {cc}")
    bf16r_many(E, range(ac, ac + 4))
    for i in range(4): E(f"v_add_f32 v{hx+i}, v{hxk+i}, v{ac+i}")
    bf16r_many(E, range(hx, hx + 4))
    for c in range(2):
        for r in range(4):
            E(f"v_cndmask_b32 v{acc[2*c]+r}, v{acc[2*c+1]+r}, v{acc[2*c]+r}, s[{sLO8}:{sLO8+1}]")
        E(f"ds_write_b128 v{vRWp}, {r4(acc[2*c])} offset:{F2R+1024*c}")
    E("s_waitcnt lgkmcnt(0)")
    E("s_barrier")
    E(f"s_cmp_ge_u32 s{sW}, 2")
    E("s_cbranch_scc1 L_f2_next")
    pb = vF + 112
    for p in range(8):
        E(f"ds_read_b128 {r4(pb+4*p)}, v{vRRp} offset:{F2R+2048*p}")
    E("s_waitcnt lgkmcnt(0)")
    for st in (4, 2, 1):
        for p in range(st):
            for i in range(4):
                E(f"v_add_f32 v{pb+4*p+i}, v{pb+4*p+i}, v{pb+4*(p+st)+i}")
    for i in range(4):
        E(f"v_add_f32_dpp v{pb+i}, v{pb+i}, v{pb+i} row_ror:8 row_mask:0xf bank_mask:0xf")
    bf16r_many(E, range(pb, pb + 4))
    for i in range(4): E(f"v_add_f32 v{pb+i}, v{hx+i}, v{pb+i}")
    E(f"v_cvt_pk_bf16_f32 v{vD2}, v{pb}, v{pb+1}")
    E(f"v_cvt_pk_bf16_f32 v{vD2+1}, v{pb+2}, v{pb+3}")
    E(f"s_and_b64 exec, exec, s[{sLO8}:{sLO8+1}]")
    E("s_cbranch_execz L_f2_next")
    E(f"buffer_store_dwordx2 {r2(vD2)}, v{vXO}, {S4(sOUT)}, s{sT1} offen", tag="extra")
    stamp(14)
    E.label("L_f2_next")
    E(f"s_cmp_lg_u32 s{sDRY}, 0")
    E("s_cbranch_scc1 L_fin")
    E(f"s_mov_b64 s[{sDRY}:{sDRY+1}], -1")
    E.flush()
    E("s_branch L_f2_top")
    E.label("L_fin")
    if a.ts:
        E("s_waitcnt vmcnt(0)")
        stamp(15)
        write_stamps()
    E.label("L_end")
    E("s_endpgm")
    E.label("L_codeend")

    out = HDR
    out += f"; @launch grid=(256,1,1) block=(512,1,1) lds={LDS_TOTAL}\n"
    out += f""".amdgcn_target "amdgcn-amd-amdhsa--gfx950"
.text
.globl {NAME}
.p2align 8
.type {NAME},@function
{NAME}:
"""
    out += E.text().replace("CODE_BYTES", f"L_codeend-{NAME}")
    out += f""".section .rodata,"a"
.p2align 6
.amdhsa_kernel {NAME}
  .amdhsa_next_free_vgpr 256
  .amdhsa_next_free_sgpr 102
  .amdhsa_accum_offset 256
  .amdhsa_group_segment_fixed_size 0
  .amdhsa_kernarg_size 88
  .amdhsa_user_sgpr_count 2
  .amdhsa_user_sgpr_kernarg_segment_ptr 1
  .amdhsa_system_sgpr_workgroup_id_x 1
  .amdhsa_float_denorm_mode_32 3
.end_amdhsa_kernel
"""
    return out

def parser():
    p = argparse.ArgumentParser()
    p.add_argument("-o", default="sequential_preLN__sliding_block_cached__dense_activation_relu__decode.s")
    p.add_argument("--fnt", type=int, default=1)
    p.add_argument("--ts", type=int, default=0)
    p.add_argument("--sleep", type=int, default=1)
    p.add_argument("--sleep2", type=int, default=1)
    p.add_argument("--depth", type=int, default=6)
    p.add_argument("--first", type=int, default=3)
    p.add_argument("--budget", type=float, default=2)
    p.add_argument("--qspan", type=int, default=30)
    p.add_argument("--ostart", type=int, default=0)
    p.add_argument("--otail", type=int, default=4)
    p.add_argument("--tkpos", type=int, default=28)
    p.add_argument("--pf", type=int, default=0)
    p.add_argument("--bd1", type=int, default=0)
    p.add_argument("--bd2", type=int, default=0)
    p.add_argument("--bd3", type=int, default=0)
    p.add_argument("--hmap", type=int, default=0)
    p.add_argument("--tlb", type=int, default=0)
    p.add_argument("--dry", type=int, default=0)
    return p

if __name__ == "__main__":
    a = parser().parse_args()
    open(a.o, "w").write(gen(a))
```

```python
import sys, argparse
from collections import deque
from asmlib import Emitter
from gen2 import (NAME, HDR, srd, srd_off, r4, r2, S4, row_reduce, wave_reduce, bf16r, bf16r_many, unpack10, ln_stats,
                  LOG2E, SCALE, sT0, sT1, sT2, sT3, sT4)

RED = 0
QF = 8448
ML = 8704
TK = 9216
YP = 9472
HN = 29952
HNS = 1344
F2R = 29952
WT = 46592
LDS_TOTAL = 161280
H1_BASE = 32768
TS_BASE = 1 << 20
NF2, NF1 = 20, 27

sW, sH, sB = 3, 26, 27
sK, sV, sWQ, sWO, sX, sWS, sDB, sWF, sOUT, sH1 = 28, 32, 36, 40, 44, 48, 52, 56, 60, 64
sROLE, sTILE = 100, 101
sSPIN = 9
sLO8 = 10
sKO, sVO, sQ0, sQ1, sOO = 12, 13, 14, 15, 20
sDRY = 22
sEX = 24
sTS = 68
vL, vL16, vWQ, vWO = 0, 1, 2, 3
vM = 4
vQ = 8
vB0, vB1 = 12, 16
vD1, vD2 = 20, 24
vT = 28
vS = 32
vF = 48
vJ, vN = vT, vT + 1

class Task:
    def __init__(self, fn, needs=(), frees=(), barrier=0, cost=1):
        self.fn, self.needs, self.frees, self.barrier, self.cost = fn, list(needs), list(frees), barrier, cost

def gen(a):
    E = Emitter()
    nt = a.kvpol
    wnt = a.wpol
    fnt = " nt" if a.fnt else ""
    def stamp(i):
        if a.ts: E(f"s_memrealtime s[{sTS+2*i}:{sTS+2*i+1}]")
    def spin(lbl):
        E(f"s_sub_u32 s{sSPIN}, s{sSPIN}, 1")
        E(f"s_cbranch_scc1 {lbl}")
    def write_stamps():
        E("s_waitcnt lgkmcnt(0)")
        E("s_mov_b64 exec, 1")
        E(f"s_lshl_b32 s{sT0}, s2, 3")
        E(f"s_add_u32 s{sT0}, s{sT0}, s{sW}")
        E(f"s_lshl_b32 s{sT0}, s{sT0}, 8")
        E(f"s_add_u32 s{sT0}, s{sT0}, {TS_BASE}")
        for i in range(16):
            E(f"v_mov_b32 v{vT}, s{sTS+2*i}")
            E(f"v_mov_b32 v{vT+1}, s{sTS+2*i+1}")
            E(f"buffer_store_dwordx2 {r2(vT)}, off, {S4(sWS)}, s{sT0} offset:{8*i}", tag="extra")
            E("s_nop 1")
        E(f"s_getreg_b32 s{sT1}, hwreg(HW_REG_XCC_ID)")
        E(f"v_mov_b32 v{vT}, s{sT1}")
        E(f"v_mov_b32 v{vT+1}, s{sROLE}")
        E(f"buffer_store_dwordx2 {r2(vT)}, off, {S4(sWS)}, s{sT0} offset:128", tag="extra")

    E("s_cmp_ge_u32 s2, 256")
    E("s_cbranch_scc1 L_end")
    E("s_load_dwordx16 s[4:19], s[0:1], 0")
    E("s_load_dwordx4 s[20:23], s[0:1], 64")
    E("s_load_dwordx2 s[24:25], s[0:1], 80")
    if a.ts:
        for i in range(1, 16): E(f"s_mov_b64 s[{sTS+2*i}:{sTS+2*i+1}], 0")
        stamp(0)
    E(f"v_lshrrev_b32 v{vT}, 6, v0")
    E(f"v_and_b32 v{vL}, 63, v0")
    E(f"v_readfirstlane_b32 s{sW}, v{vT}")
    if a.hmap:
        E(f"s_and_b32 s{sH}, s2, 7")
        E(f"s_lshl_b32 s{sH}, s{sH}, 2")
        E(f"s_bfe_u32 s{sB}, s2, 0x20003")
        E(f"s_add_u32 s{sH}, s{sH}, s{sB}")
    else:
        E(f"s_and_b32 s{sH}, s2, 31")
    E(f"s_lshr_b32 s{sB}, s2, 5")
    E(f"v_lshlrev_b32 v{vL16}, 4, v{vL}")
    E(f"v_lshrrev_b32 v{vJ}, 4, v{vL}")
    E(f"v_and_b32 v{vN}, 15, v{vL}")
    E(f"v_mul_u32_u24 v{vWQ}, 81920, v{vJ}")
    E(f"v_lshl_add_u32 v{vWQ}, v{vN}, 4, v{vWQ}")
    vXS, vXC = vT + 2, vT + 3
    E(f"v_mul_u32_u24 v{vXS}, 20, v{vL}")
    E(f"v_lshrrev_b32 v{vXC}, 3, v{vN}")
    E(f"v_lshl_add_u32 v{vXC}, v{vXC}, 2, v{vJ}")
    t0, t1, t2, t3 = 64, 65, 66, 67
    E(f"s_lshl_b32 s{t0}, s{sW}, 3")
    E(f"v_add_u32 v{vXC}, s{t0}, v{vXC}")
    E(f"v_mul_u32_u24 v{vXC}, 20, v{vXC}")
    E(f"s_lshl_b32 s{t0}, s{sB}, 5")
    E(f"s_add_u32 s{t0}, s{t0}, s{sH}")
    E(f"s_lshl_b32 s{t0}, s{t0}, 20")
    E(f"s_add_u32 s{t0}, s{t0}, 0xc0000")
    E(f"s_lshl_b32 s{t1}, s{sH}, 8")
    E(f"s_mul_i32 s{t2}, s{sH}, {128*1280}")
    E(f"s_mul_i32 s{t3}, s{sB}, 1280")
    E(f"s_mov_b32 s{sROLE}, 0")
    E(f"s_lshl_b32 s{sTILE}, s{sW}, 10")
    if a.pf:
        E(f"s_getpc_b64 s[{sWF}:{sWF+1}]")
        E.label("L_pc")
        E(f"s_and_b32 s{sWF+1}, s{sWF+1}, 0xffff")
        E(f"s_mov_b32 s{sWF+2}, L_codeend-L_pc")
        E(f"s_mov_b32 s{sWF+3}, 0x20000")
        E(f"v_lshlrev_b32 v{vB0}, 7, v{vL}")
        E(f"s_lshl_b32 s{sOUT}, s{sW}, 13")
        E(f"s_cmp_gt_u32 s{sW}, {a.pf - 1}")
        E("s_cbranch_scc1 L_nopf")
        E(f"buffer_load_dword v{vS+15}, v{vB0}, {S4(sWF)}, s{sOUT} offen", tag="extra")
        E.label("L_nopf")
    E("s_waitcnt lgkmcnt(0)")
    srd_off(E, sK, 6, f"s{t0}", 0x40000)
    slot_of = {}
    free = deque(range(52))
    def alloc(tag):
        s = free.popleft(); slot_of[tag] = vF + 4 * s; return slot_of[tag]
    def release(tag):
        free.append((slot_of[tag] - vF) // 4)
    E(f"buffer_load_dwordx4 {r4(alloc('k0'))}, v{vL16}, {S4(sK)}, s{sTILE} offen{nt}", tag="k0")
    srd(E, sX, 4, 5, 10240)
    xs_raw, xc_raw = vS, vS + 6
    E(f"buffer_load_dwordx4 {r4(xs_raw)}, v{vXS}, {S4(sX)}, s{t3} offen", tag="xs")
    E(f"buffer_load_dword v{xs_raw+4}, v{vXS}, {S4(sX)}, s{t3} offen offset:16", tag="xs")
    E(f"buffer_load_dwordx4 {r4(xc_raw)}, v{vXC}, {S4(sX)}, s{t3} offen", tag="xc")
    E(f"buffer_load_dword v{xc_raw+4}, v{vXC}, {S4(sX)}, s{t3} offen offset:16", tag="xc")
    E(f"s_add_u32 s{sTILE}, s{sTILE}, 8192")
    E(f"buffer_load_dwordx4 {r4(alloc('k1'))}, v{vL16}, {S4(sK)}, s{sTILE} offen{nt}", tag="k1")
    E(f"s_add_u32 s{sTILE}, s{sTILE}, 8192")
    E(f"buffer_load_dwordx4 {r4(alloc('k2'))}, v{vL16}, {S4(sK)}, s{sTILE} offen{nt}", tag="k2")
    srd_off(E, sWQ, 10, f"s{t1}", 639 * 8192 + 256)
    srd_off(E, sV, 8, f"s{t0}", 0x40000)
    srd_off(E, sWO, 12, f"s{t2}", 128 * 1280)
    srd(E, sWS, 24, 25, 1 << 22)
    srd(E, sDB, 22, 23, 256)
    srd(E, sOUT, 20, 21, 10240)
    srd_off(E, sH1, 24, H1_BASE, 108 * 256)
    E(f"s_add_u32 s{sKO}, s{sTILE}, 8192")
    E(f"s_lshl_b32 s{sVO}, s{sW}, 10")
    E(f"s_mul_i32 s{sQ0}, s{sW}, 655360")
    E(f"s_add_u32 s{sQ1}, s{sQ0}, 327680")
    E(f"s_mul_i32 s{sOO}, s{sW}, 1280")

    if a.tlb:
        E(f"s_cmp_lg_u32 s{sW}, 1")
        E("s_cbranch_scc1 L_notlb")
        E(f"buffer_load_dword v{vS+14}, off, {S4(sV)}, 0 nt", tag="extra")
        E(f"buffer_load_dword v{vS+14}, off, {S4(sWO)}, 0 nt", tag="extra")
        if a.tlb > 1:
            E(f"s_mov_b32 s{sWF+2}, {640*3456}")
            E(f"s_mov_b32 s{sWF+3}, 0x20000")
            E(f"s_mov_b32 s{sT0}, {640*3456-4}")
            for p in (16, 18):
                E(f"s_mov_b32 s{sWF}, s{p}")
                E(f"s_and_b32 s{sWF+1}, s{p+1}, 0xffff")
                E(f"buffer_load_dword v{vS+14}, off, {S4(sWF)}, 0 nt", tag="extra")
                E(f"buffer_load_dword v{vS+14}, off, {S4(sWF)}, s{sT0} nt", tag="extra")
            E(f"s_mov_b32 s{sT0}, 0x20000")
            E(f"buffer_load_dword v{vS+14}, off, {S4(sWS)}, s{sT0} nt", tag="extra")
            E(f"buffer_load_dword v{vS+14}, off, {S4(sOUT)}, 0 nt", tag="extra")
        E.label("L_notlb")
    def t_init():
        E(f"s_cmp_lg_u32 s{sW}, 7")
        E("s_cbranch_scc1 L_nosent")
        E(f"v_mov_b32 v{vB0}, -1")
        E(f"v_lshlrev_b32 v{vB0+1}, 2, v{vL}")
        E(f"s_lshl_b32 s{sT0}, s2, 8")
        E(f"buffer_store_dword v{vB0}, v{vB0+1}, {S4(sH1)}, s{sT0} offen sc1", tag="extra")
        E.label("L_nosent")
        E(f"s_cmp_lg_u32 s{sW}, 6")
        E("s_cbranch_scc1 L_noinit")
        E(f"s_cmp_lg_u32 s{sH}, 0")
        E("s_cbranch_scc1 L_noinit")
        for i in range(4): E(f"v_mov_b32 v{vB1+i}, 0")
        E(f"s_lshl_b32 s{sT0}, s{sB}, 12")
        for i in range(4):
            E(f"buffer_store_dwordx4 {r4(vB1)}, v{vL16}, {S4(sWS)}, s{sT0} offen offset:{1024*i} sc1", tag="extra")
        E("s_waitcnt vmcnt(0)")
        E(f"v_mov_b32 v{vB0}, 1")
        E(f"s_lshl_b32 s{sT0}, s{sB}, 2")
        E("s_mov_b64 exec, 1")
        E(f"buffer_store_dword v{vB0}, off, {S4(sDB)}, s{sT0} sc1", tag="extra")
        E("s_mov_b64 exec, -1")
        E.label("L_noinit")

    def kload(f):
        def fn():
            E(f"buffer_load_dwordx4 {r4(alloc(f'k{f}'))}, v{vL16}, {S4(sK)}, s{sKO} offen{nt}", tag=f"k{f}")
            if f < 31: E(f"s_add_u32 s{sKO}, s{sKO}, 8192")
        return (f"k{f}", fn, True)
    def vload(f):
        def fn():
            E(f"buffer_load_dwordx4 {r4(alloc(f'v{f}'))}, v{vL16}, {S4(sV)}, s{sVO} offen{nt}", tag=f"v{f}")
            if f < 31: E(f"s_add_u32 s{sVO}, s{sVO}, 8192")
        return (f"v{f}", fn, True)
    def qload(f):
        def fn():
            s = sQ0 if f % 2 == 0 else sQ1
            E(f"buffer_load_dwordx4 {r4(alloc(f'wq{f}'))}, v{vWQ}, {S4(sWQ)}, s{s} offen{wnt}", tag=f"wq{f}")
            if f < 18: E(f"s_add_u32 s{s}, s{s}, 8192")
        return (f"wq{f}", fn, True)
    def oload(f):
        def fn():
            fp, cg = divmod(f, 5)
            E(f"buffer_load_dwordx4 {r4(alloc(f'wo{f}'))}, v{vWO}, {S4(sWO)}, s{sOO} offen offset:{cg*256}{wnt}", tag=f"wo{f}")
            if cg == 4 and fp < 3: E(f"s_add_u32 s{sOO}, s{sOO}, {8*1280}")
        return (f"wo{f}", fn, True)
    vFL = vWQ
    vTK = vQ + 3
    def fload():
        def fn():
            E(f"v_and_b32 v{vFL}, 7, v{vL}")
            E(f"v_lshlrev_b32 v{vFL}, 2, v{vFL}")
            E(f"buffer_load_dword v{vFL}, v{vFL}, {S4(sDB)}, 0 offen sc1", tag="flag")
        return ("flag", fn, False)
    def ticket():
        def fn():
            E(f"s_cmp_lg_u32 s{sW}, 0")
            E("s_cbranch_scc1 L_notk")
            E(f"v_mov_b32 v{vTK}, 1")
            E("s_mov_b64 exec, 1")
            E(f"buffer_atomic_add v{vTK}, off, {S4(sDB)}, 0 offset:128 sc0", tag="extra")
            E("s_mov_b64 exec, -1")
            E.label("L_notk")
        return ("tk", fn, False)
    loads = []
    qi = 0
    for f in range(3, 32):
        want = min(20, (f - 2) * 20 // (a.qspan - 2) + 1)
        while qi < want:
            loads.append(qload(qi)); qi += 1
        loads.append(kload(f))
    while qi < 20:
        loads.append(qload(qi)); qi += 1
    nmid = 20 - a.otail
    oi = 0
    for f in range(32):
        loads.append(vload(f))
        if f == 16: loads.append(fload())
        if f == a.tkpos: loads.append(ticket())
        want = max(0, (f + 1 - a.ostart)) * nmid // (32 - a.ostart)
        while oi < want:
            loads.append(oload(oi)); oi += 1
    while oi < 20:
        loads.append(oload(oi)); oi += 1

    vRW, vRR = vXS, vXC
    def t_setup():
        E(f"s_mov_b32 s{sSPIN}, 0x40000")
        E(f"s_mov_b32 s{sLO8}, 0x00ff00ff")
        E(f"s_mov_b32 s{sLO8+1}, 0x00ff00ff")
        E(f"v_mul_u32_u24 v{vWO}, 40960, v{vJ}")
        E(f"v_and_b32 v{vB0}, 1, v{vN}")
        E(f"v_lshl_add_u32 v{vWO}, v{vB0}, 7, v{vWO}")
        E(f"v_lshrrev_b32 v{vB0+1}, 1, v{vN}")
        E(f"v_lshl_add_u32 v{vWO}, v{vB0+1}, 4, v{vWO}")
        E(f"v_lshlrev_b32 v{vB0}, 4, v{vB0}")
        E(f"v_mov_b32 v{vB0+2}, 0xffff")
        E(f"v_lshlrev_b32 v{vB0}, v{vB0}, v{vB0+2}")
        E(f"v_and_b32 v{vB0+1}, 3, v{vB0+1}")
        for w in range(4):
            E(f"v_cmp_eq_u32 vcc, {w}, v{vB0+1}")
            E(f"v_cndmask_b32 v{vM+w}, 0, v{vB0}, vcc")
        E(f"v_lshrrev_b32 v{vB0}, 3, v{vN}")
        E(f"s_lshl_b32 s{sT0}, s{sW}, 1")
        E(f"v_add_u32 v{vB0}, s{sT0}, v{vB0}")
        E(f"v_mul_u32_u24 v{vRW}, 528, v{vB0}")
        E(f"v_and_b32 v{vB0}, 7, v{vN}")
        E(f"v_lshl_add_u32 v{vRW}, v{vB0}, 6, v{vRW}")
        E(f"v_lshl_add_u32 v{vRW}, v{vJ}, 4, v{vRW}")
        E(f"v_mul_u32_u24 v{vRR}, 528, v{vN}")
        E(f"v_lshl_add_u32 v{vRR}, v{vJ}, 4, v{vRR}")
        E(f"s_lshl_b32 s{sT0}, s{sW}, 6")
        E(f"v_add_u32 v{vRR}, s{sT0}, v{vRR}")
    f0 = 8
    vMEAN, vRCP = 18, 19
    def t_ln1a():
        stamp(1)
        unpack10(E, xs_raw, f0)
        ln_stats(E, f0, 20, 21, 22, vMEAN, vRCP)
    def t_ln1b():
        unpack10(E, xc_raw, f0)
        for i in range(10): E(f"v_sub_f32 v{f0+i}, v{f0+i}, v{vMEAN}")
        bf16r_many(E, range(f0, f0 + 10))
        for i in range(10): E(f"v_mul_f32 v{f0+i}, v{f0+i}, v{vRCP}")
        for i in range(10): E(f"v_cvt_pk_bf16_f32 v{vS+i}, v{f0+i}, v{f0+i}")
    def bfrag(dst, src):
        for w in range(4): E(f"v_and_b32 v{dst+w}, v{src}, v{vM+w}")
    def t_pair(t, pre):
        def fn():
            B = vB0 if t % 2 == 0 else vB1
            bfrag(B, vS + t)
            c1 = "0" if t == 0 else r4(vD1)
            c2 = "0" if t == 0 else r4(vD2)
            E(f"v_mfma_f32_16x16x32_bf16 {r4(vD1)}, {r4(slot_of[f'{pre}{2*t}'])}, {r4(B)}, {c1}")
            E(f"v_mfma_f32_16x16x32_bf16 {r4(vD2)}, {r4(slot_of[f'{pre}{2*t+1}'])}, {r4(B)}, {c2}")
        return fn
    def red_a():
        for r in range(4):
            E(f"v_cndmask_b32 v{vD1+r}, v{vD2+r}, v{vD1+r}, s[{sLO8}:{sLO8+1}]")
        E(f"ds_write_b128 v{vRW}, {r4(vD1)} offset:{RED}")
    def t_bar():
        E("s_waitcnt lgkmcnt(0)")
        E("s_barrier")
    def red_b(dst):
        E(f"ds_read_b128 {r4(dst)}, v{vRR} offset:{RED}")
        E("s_waitcnt lgkmcnt(0)")
        row_reduce(E, [dst + i for i in range(4)])
        for i in range(4): E(f"v_cvt_pk_bf16_f32 v{dst+i}, v{dst+i}, v{dst+i}")
    def t_qr2():
        E(f"v_lshlrev_b32 v{vB1}, 6, v{vJ}")
        E(f"s_lshl_b32 s{sT0}, s{sW}, 1")
        E(f"v_add_u32 v{vB1}, s{sT0}, v{vB1}")
        red_b(vB0)
        E(f"s_mov_b32 exec_lo, 0x00010001")
        E(f"s_mov_b32 exec_hi, 0x00010001")
        for i in range(4): E(f"ds_write_b16 v{vB1}, v{vB0+i} offset:{QF+16*i}")
        E("s_mov_b64 exec, -1")
        E(f"v_lshlrev_b32 v{vB1}, 4, v{vN}")
    def t_qr3():
        E(f"ds_read_b128 {r4(vQ)}, v{vB1} offset:{QF}")
        E("s_waitcnt lgkmcnt(0)")
        stamp(2)
    def t_k2(t):
        def fn():
            ks = [slot_of[f"k{2*t+i}"] for i in range(4)]
            acc = [vB0 + i for i in range(4)]
            for i in range(4):
                for u in range(4):
                    E(f"v_dot2_f32_bf16 v{acc[u]}, v{ks[u]+i}, v{vQ+i}, {'0' if i == 0 else 'v%d' % acc[u]}")
            s0, s1 = vS + t, vS + t + 1
            E(f"v_add_f32_dpp v{s0}, v{acc[0]}, v{acc[0]} row_ror:8 row_mask:0xf bank_mask:0x3")
            E(f"v_add_f32_dpp v{s0}, v{acc[1]}, v{acc[1]} row_ror:8 row_mask:0xf bank_mask:0xc")
            E(f"v_add_f32_dpp v{s1}, v{acc[2]}, v{acc[2]} row_ror:8 row_mask:0xf bank_mask:0x3")
            E(f"v_add_f32_dpp v{s1}, v{acc[3]}, v{acc[3]} row_ror:8 row_mask:0xf bank_mask:0xc")
            for mod in ("row_half_mirror", "quad_perm:[1,0,3,2]", "quad_perm:[2,3,0,1]"):
                for s in (s0, s1):
                    E(f"v_add_f32_dpp v{s}, v{s}, v{s} {mod} row_mask:0xf bank_mask:0xf")
            bf16r_many(E, [s0, s1])
            E(f"v_mul_f32 v{s0}, {SCALE:#x}, v{s0}")
            E(f"v_mul_f32 v{s1}, {SCALE:#x}, v{s1}")
            bf16r_many(E, [s0, s1])
        return fn
    m, l = vD1, vD1 + 1
    def t_sm1():
        E(f"v_max3_f32 v{m}, v{vS}, v{vS+1}, v{vS+2}")
        for i in range(3, 15, 2): E(f"v_max3_f32 v{m}, v{m}, v{vS+i}, v{vS+i+1}")
        E(f"v_max_f32 v{m}, v{m}, v{vS+15}")
        for i in range(16): E(f"v_sub_f32 v{vS+i}, v{vS+i}, v{m}")
        for i in range(16): E(f"v_mul_f32 v{vS+i}, {LOG2E:#x}, v{vS+i}")
        for i in range(16): E(f"v_exp_f32 v{vS+i}, v{vS+i}")
        E(f"v_add_f32 v{l}, v{vS}, v{vS+1}")
        E(f"v_add_f32 v{vB0}, v{vS+2}, v{vS+3}")
        for i in range(4, 16, 2):
            E(f"v_add_f32 v{l}, v{l}, v{vS+i}")
            E(f"v_add_f32 v{vB0}, v{vB0}, v{vS+i+1}")
        E(f"v_add_f32 v{l}, v{l}, v{vB0}")
        E(f"v_and_b32 v{vB0}, 56, v{vL}")
        E(f"s_lshl_b32 s{sT0}, s{sW}, 6")
        E(f"v_add_u32 v{vB0}, s{sT0}, v{vB0}")
        E(f"ds_write_b64 v{vB0}, {r2(m)} offset:{ML}")
        E(f"v_lshlrev_b32 v{vB0}, 3, v{vL}")
        stamp(3)
    def t_smb():
        E("s_waitcnt lgkmcnt(0)")
        E("s_barrier")
        stamp(4)
    def t_sm2():
        mg, lg = vD2, vD2 + 1
        E(f"ds_read_b64 {r2(mg)}, v{vB0} offset:{ML}")
        E("s_waitcnt lgkmcnt(0)")
        E(f"v_mov_b32 v{vB0}, v{mg}")
        wave_reduce(E, vB0, sT0, "v_max_f32")
        E(f"v_subrev_f32 v{mg}, s{sT0}, v{mg}")
        E(f"v_subrev_f32 v{m}, s{sT0}, v{m}")
        E(f"v_mul_f32 v{mg}, {LOG2E:#x}, v{mg}")
        E(f"v_mul_f32 v{m}, {LOG2E:#x}, v{m}")
        E(f"v_exp_f32 v{mg}, v{mg}")
        E(f"v_exp_f32 v{m}, v{m}")
        E(f"v_mul_f32 v{lg}, v{lg}, v{mg}")
        wave_reduce(E, lg, sT1)
        E(f"v_rcp_f32 v{l}, s{sT1}")
        E(f"v_mul_f32 v{m}, v{m}, v{l}")
        for i in range(16): E(f"v_mul_f32 v{vS+i}, v{vS+i}, v{m}")
        for i in range(16): E(f"v_cvt_pk_bf16_f32 v{vS+i}, v{vS+i}, v{vS+i}")
    Bs = [vB0, vB1, vD1, vD2]
    vA, vA2, vA3 = vQ, vQ + 1, vQ + 2
    def t_pre_tail():
        E(f"v_and_b32 v{vA}, 7, v{vL}")
        E(f"v_lshlrev_b32 v{vA2}, 6, v{vA}")
        E(f"v_lshl_add_u32 v{vA}, v{vJ}, 4, v{vA2}")
        E(f"s_mul_i32 s{sT0}, s{sW}, 2560")
        E(f"v_add_u32 v{vA}, s{sT0}, v{vA}")
        E(f"v_and_b32 v{vA3}, 56, v{vL}")
        E(f"v_add_u32 v{vA2}, v{vA2}, v{vA3}")
        E(f"s_lshl_b32 s{sT0}, s{sW}, 9")
        E(f"v_add_u32 v{vA2}, s{sT0}, v{vA2}")
        E(f"v_lshlrev_b32 v{vA3}, 2, v{vL}")
    def t_flag():
        E(f"v_cmp_eq_u32 vcc, 0, v{vFL}")
        E.flush()
        E("s_cbranch_vccz L_flagok")
        E.label("L_flag")
        E("s_sleep 2")
        E(f"v_and_b32 v{vFL}, 7, v{vL}")
        E(f"v_lshlrev_b32 v{vFL}, 2, v{vFL}")
        E(f"buffer_load_dword v{vFL}, v{vFL}, {S4(sDB)}, 0 offen sc1", tag="extra")
        E("s_waitcnt vmcnt(0)")
        E(f"v_cmp_eq_u32 vcc, 0, v{vFL}")
        E.flush()
        E("s_cbranch_vccz L_flagok")
        spin("L_flagok")
        E("s_branch L_flag")
        E.label("L_flagok")
    def t_or1():
        stamp(5)
        red_a()
        t_bar()
        stamp(6)
    def t_or2():
        red_b(vS)
        for fp in range(4): bfrag(Bs[fp], vS + fp)
        for cg in range(5): alloc(f"y{cg}")
    def t_y(f):
        def fn():
            fp, cg = divmod(f, 5)
            y = slot_of[f"y{cg}"]
            c = "0" if fp == 0 else r4(y)
            E(f"v_mfma_f32_16x16x32_bf16 {r4(y)}, {r4(slot_of[f'wo{f}'])}, {r4(Bs[fp])}, {c}")
        return fn
    tasks = []
    tasks.append(Task(t_setup))
    tasks.append(Task(t_ln1a, ["xs"], cost=3))
    tasks.append(Task(t_ln1b, ["xc"], cost=2))
    for t in range(10):
        tasks.append(Task(t_pair(t, "wq"), [f"wq{2*t+1}"], frees=[f"wq{2*t}", f"wq{2*t+1}"]))
        if t == 1: tasks.append(Task(t_init))
    tasks.append(Task(red_a))
    tasks.append(Task(t_bar, barrier=a.bd1))
    tasks.append(Task(t_qr2))
    tasks.append(Task(t_bar, barrier=a.bd2))
    tasks.append(Task(t_qr3))
    for t in range(0, 16, 2):
        tasks.append(Task(t_k2(t), [f"k{2*t+3}"], frees=[f"k{2*t+i}" for i in range(4)], cost=2))
    tasks.append(Task(t_sm1, cost=2))
    tasks.append(Task(t_smb, barrier=a.bd3))
    tasks.append(Task(t_sm2, cost=2))
    tasks.append(Task(t_pre_tail))
    for t in range(16):
        tasks.append(Task(t_pair(t, "v"), [f"v{2*t+1}"], frees=[f"v{2*t}", f"v{2*t+1}"], cost=0.5))
        if t == 9: tasks.append(Task(t_flag, ["flag"]))
    tasks.append(Task(t_or1, barrier=99))
    tasks.append(Task(t_or2))
    for f in range(20): tasks.append(Task(t_y(f), [f"wo{f}"], cost=0.25))

    issued = {"xs", "xc", "k0", "k1", "k2"}
    pend = deque(tasks)
    def ready(t): return all(n in issued and n not in E.vm for n in t.needs)
    def run(t):
        for n in t.needs:
            assert n in issued, n
            if n in E.vm: E.wait_vm(n)
        t.fn()
        for n in t.frees: release(n)
    D = a.depth
    for i, (tag, fn, needs_slot) in enumerate(loads):
        while needs_slot and not free:
            run(pend.popleft())
        if tag == "tk":
            while any(t.fn is t_sm1 for t in pend): run(pend.popleft())
        lim = 63 if i < a.first else D
        if len(E.vm) >= lim:
            E(f"s_waitcnt vmcnt({lim-1})")
            E.vm = E.vm[len(E.vm) - (lim - 1):]
        fn(); issued.add(tag)
        if i + 1 < a.first: continue
        budget = a.budget
        while pend and budget > 0 and ready(pend[0]):
            if pend[0].barrier > 0:
                pend[0].barrier -= 1
                break
            t = pend.popleft(); run(t); budget -= t.cost
    while pend: run(pend.popleft())
    assert not E.vm, E.vm
    stamp(7)

    E(f"s_mov_b64 exec, s[{sLO8}:{sLO8+1}]")
    for cg in range(5):
        E(f"ds_write_b128 v{vA}, {r4(slot_of[f'y{cg}'])} offset:{YP+cg*512}")
    E(f"s_cmp_lg_u32 s{sW}, 0")
    E("s_cselect_b32 exec_lo, 0, 1")
    E("s_mov_b32 exec_hi, 0")
    E(f"v_mov_b32 v{vB0}, {TK}")
    E(f"ds_write_b32 v{vB0}, v{vTK}")
    E("s_mov_b64 exec, -1")
    E(f"v_mov_b32 v{vB0}, {TK}")
    E(f"s_lshl_b32 s{sT0}, s{sB}, 12")
    E(f"s_lshl_b32 s{sT1}, s{sW}, 9")
    E(f"s_add_u32 s{sT0}, s{sT0}, s{sT1}")
    E("s_waitcnt lgkmcnt(0)")
    E("s_barrier")
    stamp(8)
    E(f"ds_read_b32 v{vTK}, v{vB0}")
    E(f"s_cmp_ge_u32 s{sW}, 5")
    E("s_cbranch_scc1 L_arr")
    vP = vS
    for p in range(8):
        E(f"ds_read_b64 {r2(vP+2*p)}, v{vA2} offset:{YP+p*2560}")
    E("s_waitcnt lgkmcnt(0)")
    for st in (4, 2, 1):
        for p in range(st):
            E(f"v_add_f32 v{vP+2*p}, v{vP+2*p}, v{vP+2*(p+st)}")
            E(f"v_add_f32 v{vP+2*p+1}, v{vP+2*p+1}, v{vP+2*(p+st)+1}")
    E(f"buffer_atomic_add_f32 v{vP}, v{vA3}, {S4(sWS)}, s{sT0} offen", tag="extra")
    E(f"buffer_atomic_add_f32 v{vP+1}, v{vA3}, {S4(sWS)}, s{sT0} offen offset:256", tag="extra")
    E("s_waitcnt vmcnt(0)")
    stamp(9)
    E.label("L_arr")
    E("s_waitcnt lgkmcnt(0)")
    E(f"v_readfirstlane_b32 s{sTILE}, v{vTK}")
    E("s_barrier")
    stamp(10)
    E(f"s_cmp_lg_u32 s{sW}, 0")
    E("s_cbranch_scc1 L_noarr")
    E(f"v_mov_b32 v{vB0}, 1")
    E(f"s_lshl_b32 s{sT0}, s{sB}, 12")
    E("s_mov_b64 exec, 1")
    E(f"buffer_atomic_add v{vB0}, off, {S4(sWS)}, s{sT0} offset:3072", tag="extra")
    E("s_mov_b64 exec, -1")
    E.label("L_noarr")
    E(f"s_cmp_ge_u32 s{sTILE}, {NF2 + NF1}")
    E("s_cbranch_scc1 L_fin")
    E(f"s_mov_b32 s{sWF+2}, {640*3456}")
    E(f"s_mov_b32 s{sWF+3}, 0x20000")
    E(f"s_mov_b64 s[{sDRY}:{sDRY+1}], {0 if a.dry else -1}")
    E(f"s_cmp_lt_u32 s{sTILE}, {NF2}")
    E("s_cbranch_scc1 L_ffn2")

    vW = vF
    E(f"s_mov_b32 s{sROLE}, 1")
    E(f"s_sub_u32 s{sTILE}, s{sTILE}, {NF2}")
    E(f"s_mov_b32 s{sWF}, s16")
    E(f"s_and_b32 s{sWF+1}, s17, 0xffff")
    vA = vB1
    vDM = vB0
    E(f"v_lshrrev_b32 v{vDM}, 3, v{vL}")
    E(f"v_mul_u32_u24 v{vDM}, 3456, v{vDM}")
    E(f"v_and_b32 v{vDM+1}, 7, v{vL}")
    E(f"v_lshl_add_u32 v{vDM}, v{vDM+1}, 4, v{vDM}")
    E(f"s_mul_i32 s{sT0}, s{sW}, {80*3456}")
    E(f"s_lshl_b32 s{sT1}, s{sTILE}, 7")
    E(f"s_add_u32 s{sT0}, s{sT0}, s{sT1}")
    E(f"s_mul_i32 s{sT2}, s{sW}, {10*1024}")
    E(f"s_add_u32 s{sT2}, s{sT2}, {WT}")
    for t in range(10):
        E(f"s_mov_b32 m0, s{sT2}")
        E(f"buffer_load_dwordx4 v{vDM}, {S4(sWF)}, s{sT0} offen{fnt} lds", tag="extra")
        if t < 9:
            E(f"s_add_u32 s{sT0}, s{sT0}, {8*3456}")
            E(f"s_add_u32 s{sT2}, s{sT2}, 1024")
    xr = vS
    ac = vF + 160
    hx = vF + 176
    hb = vF + 80
    E(f"v_mul_u32_u24 v{vA}, 20, v{vL}")
    E(f"s_mul_i32 s{sT0}, s{sW}, 1280")
    E(f"buffer_load_dwordx4 {r4(xr)}, v{vA}, {S4(sX)}, s{sT0} offen", tag="extra")
    E(f"buffer_load_dword v{xr+4}, v{vA}, {S4(sX)}, s{sT0} offen offset:16", tag="extra")
    E(f"v_lshlrev_b32 v{vA+1}, 1, v{vA}")
    E(f"s_mul_i32 s{sT1}, s{sW}, {HNS}")
    E(f"v_add_u32 v{vA+2}, s{sT1}, v{vA}")
    E(f"v_lshlrev_b32 v{vA+3}, 10, v{vJ}")
    E(f"v_lshrrev_b32 v{vDM}, 2, v{vN}")
    E(f"v_lshl_add_u32 v{vA+3}, v{vDM}, 7, v{vA+3}")
    E(f"v_and_b32 v{vDM}, 3, v{vN}")
    E(f"v_lshl_add_u32 v{vA+3}, v{vDM}, 3, v{vA+3}")
    E(f"s_and_b32 s{sT0}, s{sW}, 3")
    E(f"s_lshl_b32 s{sT0}, s{sT0}, 5")
    E(f"s_add_u32 s{sT0}, s{sT0}, {WT}")
    E(f"v_add_u32 v{vA+3}, s{sT0}, v{vA+3}")
    E("s_waitcnt vmcnt(0)")
    E("s_barrier")
    for t in range(20):
        if t == 10: E(f"v_add_u32 v{vA+3}, {10*4096}, v{vA+3}")
        o = (t % 10) * 4096
        E(f"ds_read_b64_tr_b16 {r2(vW+4*t)}, v{vA+3} offset:{o}")
        E(f"ds_read_b64_tr_b16 {r2(vW+4*t+2)}, v{vA+3} offset:{o+512}")
        if t % 4 == 3: E("s_waitcnt lgkmcnt(0)")
    E(f"v_and_b32 v{vA+3}, 7, v{vL}")
    E(f"v_mul_u32_u24 v{vA+3}, {HNS}, v{vA+3}")
    E(f"v_lshl_add_u32 v{vA+3}, v{vJ}, 4, v{vA+3}")
    E(f"v_lshrrev_b32 v{vDM}, 3, v{vN}")
    E(f"v_lshl_add_u32 v{vA+3}, v{vDM}, 6, v{vA+3}")
    E(f"v_lshlrev_b32 v{vA}, 5, v{vN}")
    E(f"v_lshl_add_u32 v{vA}, v{vJ}, 3, v{vA}")
    E(f"s_lshl_b32 s{sT3}, s{sTILE}, 2")
    E(f"s_add_u32 s{sT3}, s{sT3}, s{sW}")
    E(f"s_lshl_b32 s{sT3}, s{sT3}, 8")
    E(f"s_lshl_b32 s{sT2}, s{sW}, 12")
    xk = vF + 192
    unpack10(E, xr, xk)
    stamp(11)
    E.label("L_f1_top")
    E(f"s_mov_b64 exec, s[{sDRY}:{sDRY+1}]")
    E("s_cbranch_execz L_f1_go")
    E.label("L_f1_poll")
    E(f"buffer_load_dword v{vB0}, off, {S4(sWS)}, s{sT2} offset:3072 sc1", tag="extra")
    E("s_waitcnt vmcnt(0)")
    E(f"v_readfirstlane_b32 s{sT0}, v{vB0}")
    E(f"s_cmp_ge_u32 s{sT0}, 32")
    E("s_cbranch_scc1 L_f1_ld")
    spin("L_f1_ld")
    if a.sleep: E(f"s_sleep {a.sleep}")
    E("s_branch L_f1_poll")
    E.label("L_f1_ld")
    E(f"buffer_load_dwordx4 {r4(ac)}, v{vA+1}, {S4(sWS)}, s{sT2} offen sc1", tag="extra")
    E(f"buffer_load_dwordx4 {r4(ac+4)}, v{vA+1}, {S4(sWS)}, s{sT2} offen offset:16 sc1", tag="extra")
    E(f"buffer_load_dwordx2 {r2(ac+8)}, v{vA+1}, {S4(sWS)}, s{sT2} offen offset:32 sc1", tag="extra")
    stamp(12)
    E("s_waitcnt vmcnt(0)")
    E.label("L_f1_go")
    bf16r_many(E, range(ac, ac + 10))
    for i in range(10): E(f"v_add_f32 v{hx+i}, v{xk+i}, v{ac+i}")
    bf16r_many(E, range(hx, hx + 10))
    ln_stats(E, hx, vD1, vD1 + 1, vD1 + 2, vD2, vD2 + 1)
    for i in range(10): E(f"v_sub_f32 v{hx+i}, v{hx+i}, v{vD2}")
    bf16r_many(E, range(hx, hx + 10))
    for i in range(10): E(f"v_mul_f32 v{hx+i}, v{hx+i}, v{vD2+1}")
    for i in range(5): E(f"v_cvt_pk_bf16_f32 v{ac+i}, v{hx+2*i}, v{hx+2*i+1}")
    for i in range(5): E(f"ds_write_b32 v{vA+2}, v{ac+i} offset:{HN+4*i}")
    E("s_waitcnt lgkmcnt(0)")
    E("s_barrier")
    E(f"s_cmp_ge_u32 s{sW}, 4")
    E("s_cbranch_scc1 L_f1_next")
    if a.ts:
        stamp(13); E("s_waitcnt lgkmcnt(0)")
    for u in range(10):
        E(f"ds_read_b128 {r4(hb+4*u)}, v{vA+3} offset:{HN+128*u}")
    for u in range(10):
        E(f"s_waitcnt lgkmcnt({9-u})")
        c1 = "0" if u == 0 else r4(vD1)
        c2 = "0" if u == 0 else r4(vD2)
        E(f"v_mfma_f32_16x16x32_bf16 {r4(vD1)}, {r4(vW+8*u)}, {r4(hb+4*u)}, {c1}")
        E(f"v_mfma_f32_16x16x32_bf16 {r4(vD2)}, {r4(vW+8*u+4)}, {r4(hb+4*u)}, {c2}")
    for i in range(4):
        E(f"v_add_f32_dpp v{vD1+i}, v{vD2+i}, v{vD1+i} row_ror:8 row_mask:0xf bank_mask:0xf")
    for i in range(4): E(f"v_max_f32 v{vD1+i}, 0, v{vD1+i}")
    E(f"v_cvt_pk_bf16_f32 v{vD2}, v{vD1}, v{vD1+1}")
    E(f"v_cvt_pk_bf16_f32 v{vD2+1}, v{vD1+2}, v{vD1+3}")
    E(f"s_and_b64 exec, exec, s[{sLO8}:{sLO8+1}]")
    E("s_cbranch_execz L_f1_next")
    E(f"buffer_store_dwordx2 {r2(vD2)}, v{vA}, {S4(sH1)}, s{sT3} offen sc1", tag="extra")
    stamp(14)
    E.label("L_f1_next")
    E(f"s_cmp_lg_u32 s{sDRY}, 0")
    E("s_cbranch_scc1 L_fin")
    E(f"s_mov_b64 s[{sDRY}:{sDRY+1}], -1")
    E.flush()
    E("s_branch L_f1_top")

    E.label("L_ffn2")
    E(f"s_mov_b32 s{sROLE}, 2")
    E(f"s_mov_b32 s{sWF}, s18")
    E(f"s_and_b32 s{sWF+1}, s19, 0xffff")
    vA = vQ
    E(f"v_lshrrev_b32 v{vA}, 2, v{vL}")
    E(f"v_mul_u32_u24 v{vA}, 1280, v{vA}")
    E(f"v_and_b32 v{vA+1}, 3, v{vL}")
    E(f"v_lshl_add_u32 v{vA}, v{vA+1}, 4, v{vA}")
    E(f"s_mul_i32 s{sT0}, s{sW}, {7*32*1280}")
    E(f"s_lshl_b32 s{sT1}, s{sTILE}, 6")
    E(f"s_add_u32 s{sT0}, s{sT0}, s{sT1}")
    E(f"s_mul_i32 s{sT3}, s{sW}, {14*1024}")
    E(f"s_add_u32 s{sT3}, s{sT3}, {WT}")
    E(f"s_mov_b32 s{sT2}, s{sT3}")
    for t in range(14):
        E(f"s_mov_b32 m0, s{sT2}")
        E(f"buffer_load_dwordx4 v{vA}, {S4(sWF)}, s{sT0} offen{fnt} lds", tag="extra")
        if t < 13:
            E(f"s_add_u32 s{sT0}, s{sT0}, {16*1280}")
            E(f"s_add_u32 s{sT2}, s{sT2}, 1024")
    vXO = vA + 2
    E(f"v_and_b32 v{vA+1}, 7, v{vL}")
    E(f"v_mul_u32_u24 v{vXO}, 1280, v{vA+1}")
    E(f"v_lshl_add_u32 v{vXO}, v{vJ}, 3, v{vXO}")
    E(f"s_and_b32 s{sT4}, s{sW}, 1")
    E(f"s_lshl_b32 s{sT4}, s{sT4}, 5")
    E(f"s_add_u32 s{sT1}, s{sT1}, s{sT4}")
    xr = vS
    E(f"buffer_load_dwordx2 {r2(xr)}, v{vXO}, {S4(sX)}, s{sT1} offen", tag="extra")
    vCO = vA + 3
    E(f"v_lshlrev_b32 v{vCO}, 12, v{vA+1}")
    vHO = vB1
    E(f"v_lshl_add_u32 v{vHO}, v{vJ}, 4, v{vCO}")
    vH1 = vB1 + 1
    E(f"v_lshrrev_b32 v{vH1}, 1, v{vJ}")
    E(f"v_lshlrev_b32 v{vH1}, 8, v{vH1}")
    E(f"v_lshl_add_u32 v{vH1}, v{vA+1}, 5, v{vH1}")
    E(f"v_and_b32 v{vB1+2}, 1, v{vJ}")
    E(f"v_lshl_add_u32 v{vH1}, v{vB1+2}, 4, v{vH1}")
    E(f"v_lshrrev_b32 v{vB1+2}, 3, v{vN}")
    E(f"v_lshl_add_u32 v{vH1}, v{vB1+2}, 9, v{vH1}")
    vTR = vB1 + 2
    E(f"v_lshlrev_b32 v{vTR}, 9, v{vJ}")
    E(f"v_lshrrev_b32 v{vB1+3}, 2, v{vN}")
    E(f"v_lshl_add_u32 v{vTR}, v{vB1+3}, 6, v{vTR}")
    E(f"v_and_b32 v{vB1+3}, 3, v{vN}")
    E(f"v_lshl_add_u32 v{vTR}, v{vB1+3}, 3, v{vTR}")
    E(f"v_add_u32 v{vTR}, s{sT3}, v{vTR}")
    vRWp, vRRp = vB0, vB0 + 1
    E(f"s_lshl_b32 s{sT0}, s{sW}, 11")
    E(f"v_add_u32 v{vRWp}, s{sT0}, v{vL16}")
    E(f"s_lshl_b32 s{sT0}, s{sT4}, 5")
    E(f"v_add_u32 v{vRRp}, s{sT0}, v{vL16}")
    E("s_waitcnt vmcnt(0)")
    for t in range(7):
        for c in range(2):
            E(f"ds_read_b64_tr_b16 {r2(vW+8*t+4*c)}, v{vTR} offset:{t*2048+c*32}")
            E(f"ds_read_b64_tr_b16 {r2(vW+8*t+4*c+2)}, v{vTR} offset:{t*2048+c*32+256}")
        if t % 2 == 1: E("s_waitcnt lgkmcnt(0)")
    hxk = vS + 8
    for i in range(2):
        E(f"v_lshlrev_b32 v{hxk+2*i}, 16, v{xr+i}")
        E(f"v_and_b32 v{hxk+2*i+1}, 0xffff0000, v{xr+i}")
    E(f"s_mul_i32 s{sT2}, s{sW}, {7*512}")
    E(f"s_lshl_b32 s{sT3}, s{sT1}, 1")
    E("s_waitcnt lgkmcnt(0)")
    stamp(11)
    hb = vF + 64
    acc = [vF + 96 + 4 * i for i in range(4)]
    ac = vS + 4
    hx = vS + 12
    E.label("L_f2_top")
    E(f"s_mov_b64 exec, s[{sDRY}:{sDRY+1}]")
    E("s_cbranch_execz L_f2_got")
    E(f"s_cmp_ge_u32 s{sW}, 2")
    E("s_cbranch_scc1 L_f2_go")
    E.label("L_f2_poll")
    E(f"buffer_load_dword v{vD1}, v{vCO}, {S4(sWS)}, 0 offen offset:3072 sc1", tag="extra")
    E("s_waitcnt vmcnt(0)")
    E(f"v_cmp_gt_u32 vcc, 32, v{vD1}")
    E.flush()
    E("s_cbranch_vccz L_f2_cnt")
    spin("L_f2_cnt")
    if a.sleep: E(f"s_sleep {a.sleep}")
    E("s_branch L_f2_poll")
    E.label("L_f2_cnt")
    E(f"buffer_load_dwordx4 {r4(ac)}, v{vHO}, {S4(sWS)}, s{sT3} offen sc1", tag="extra")
    E.label("L_f2_go")
    E("s_barrier")
    stamp(12)
    E.label("L_f2_poll2")
    for u in range(4):
        E(f"buffer_load_dwordx4 {r4(hb+4*u)}, v{vH1}, {S4(sH1)}, s{sT2} offen offset:{1024*u} sc1", tag="extra")
    E("s_waitcnt vmcnt(0)")
    E(f"v_max3_u32 v{vD1}, v{hb}, v{hb+1}, v{hb+2}")
    E(f"v_max3_u32 v{vD1+1}, v{hb+3}, v{hb+4}, v{hb+5}")
    for k in range(6, 16, 2):
        tgt = vD1 + ((k // 2) % 2)
        E(f"v_max3_u32 v{tgt}, v{tgt}, v{hb+k}, v{hb+k+1}")
    E(f"v_max_u32 v{vD1}, v{vD1}, v{vD1+1}")
    E(f"v_cmp_eq_u32 vcc, -1, v{vD1}")
    E.flush()
    E("s_cbranch_vccz L_f2_got")
    spin("L_f2_got")
    if a.sleep2: E(f"s_sleep {a.sleep2}")
    E("s_branch L_f2_poll2")
    E.label("L_f2_got")
    stamp(13)
    for t in range(7):
        u, half = divmod(t, 2)
        for c in range(2):
            d = acc[2 * c + half]
            cc = "0" if u == 0 else r4(d)
            E(f"v_mfma_f32_16x16x32_bf16 {r4(d)}, {r4(vW+8*t+4*c)}, {r4(hb+4*u)}, {cc}")
    bf16r_many(E, range(ac, ac + 4))
    for i in range(4): E(f"v_add_f32 v{hx+i}, v{hxk+i}, v{ac+i}")
    bf16r_many(E, range(hx, hx + 4))
    for c in range(2):
        for r in range(4):
            E(f"v_cndmask_b32 v{acc[2*c]+r}, v{acc[2*c+1]+r}, v{acc[2*c]+r}, s[{sLO8}:{sLO8+1}]")
        E(f"ds_write_b128 v{vRWp}, {r4(acc[2*c])} offset:{F2R+1024*c}")
    E("s_waitcnt lgkmcnt(0)")
    E("s_barrier")
    E(f"s_cmp_ge_u32 s{sW}, 2")
    E("s_cbranch_scc1 L_f2_next")
    pb = vF + 112
    for p in range(8):
        E(f"ds_read_b128 {r4(pb+4*p)}, v{vRRp} offset:{F2R+2048*p}")
    E("s_waitcnt lgkmcnt(0)")
    for st in (4, 2, 1):
        for p in range(st):
            for i in range(4):
                E(f"v_add_f32 v{pb+4*p+i}, v{pb+4*p+i}, v{pb+4*(p+st)+i}")
    for i in range(4):
        E(f"v_add_f32_dpp v{pb+i}, v{pb+i}, v{pb+i} row_ror:8 row_mask:0xf bank_mask:0xf")
    bf16r_many(E, range(pb, pb + 4))
    for i in range(4): E(f"v_add_f32 v{pb+i}, v{hx+i}, v{pb+i}")
    E(f"v_cvt_pk_bf16_f32 v{vD2}, v{pb}, v{pb+1}")
    E(f"v_cvt_pk_bf16_f32 v{vD2+1}, v{pb+2}, v{pb+3}")
    E(f"s_and_b64 exec, exec, s[{sLO8}:{sLO8+1}]")
    E("s_cbranch_execz L_f2_next")
    E(f"buffer_store_dwordx2 {r2(vD2)}, v{vXO}, {S4(sOUT)}, s{sT1} offen", tag="extra")
    stamp(14)
    E.label("L_f2_next")
    E(f"s_cmp_lg_u32 s{sDRY}, 0")
    E("s_cbranch_scc1 L_fin")
    E(f"s_mov_b64 s[{sDRY}:{sDRY+1}], -1")
    E.flush()
    E("s_branch L_f2_top")
    E.label("L_fin")
    if a.ts:
        E("s_waitcnt vmcnt(0)")
        stamp(15)
        write_stamps()
    E.label("L_end")
    E("s_endpgm")
    E.label("L_codeend")

    out = HDR
    out += f"; @launch grid=(256,1,1) block=(512,1,1) lds={LDS_TOTAL}\n"
    out += f""".amdgcn_target "amdgcn-amd-amdhsa--gfx950"
.text
.globl {NAME}
.p2align 8
.type {NAME},@function
{NAME}:
"""
    out += E.text().replace("CODE_BYTES", f"L_codeend-{NAME}")
    out += f""".section .rodata,"a"
.p2align 6
.amdhsa_kernel {NAME}
  .amdhsa_next_free_vgpr 256
  .amdhsa_next_free_sgpr 102
  .amdhsa_accum_offset 256
  .amdhsa_group_segment_fixed_size 0
  .amdhsa_kernarg_size 88
  .amdhsa_user_sgpr_count 2
  .amdhsa_user_sgpr_kernarg_segment_ptr 1
  .amdhsa_system_sgpr_workgroup_id_x 1
  .amdhsa_float_denorm_mode_32 3
.end_amdhsa_kernel
"""
    return out

def parser():
    p = argparse.ArgumentParser()
    p.add_argument("-o", default="sequential_preLN__sliding_block_cached__dense_activation_relu__decode.s")
    p.add_argument("--fnt", type=int, default=1)
    p.add_argument("--ts", type=int, default=0)
    p.add_argument("--sleep", type=int, default=1)
    p.add_argument("--sleep2", type=int, default=1)
    p.add_argument("--depth", type=int, default=6)
    p.add_argument("--first", type=int, default=3)
    p.add_argument("--budget", type=float, default=2)
    p.add_argument("--qspan", type=int, default=30)
    p.add_argument("--ostart", type=int, default=0)
    p.add_argument("--otail", type=int, default=4)
    p.add_argument("--tkpos", type=int, default=28)
    p.add_argument("--pf", type=int, default=0)
    p.add_argument("--kvpol", default=" nt")
    p.add_argument("--wpol", default=" nt")
    p.add_argument("--bd1", type=int, default=0)
    p.add_argument("--bd2", type=int, default=0)
    p.add_argument("--bd3", type=int, default=0)
    p.add_argument("--hmap", type=int, default=0)
    p.add_argument("--tlb", type=int, default=0)
    p.add_argument("--dry", type=int, default=0)
    return p

if __name__ == "__main__":
    a = parser().parse_args()
    open(a.o, "w").write(gen(a))
```

```python
import sys, argparse
from collections import deque
from asmlib import Emitter
from gen2 import (NAME, HDR, srd, srd_off, r4, r2, S4, row_reduce, wave_reduce, bf16r, bf16r_many, unpack10, ln_stats,
                  LOG2E, SCALE, sT0, sT1, sT2, sT3, sT4)

RED = 0
QF = 8448
ML = 8704
TK = 9216
YP = 9472
HN = 29952
HNS = 1344
F2R = 29952
WT = 46592
LDS_TOTAL = 161280
H1_BASE = 32768
TS_BASE = 1 << 20
NF2, NF1 = 20, 27

sW, sH, sB = 3, 26, 27
sK, sV, sWQ, sWO, sX, sWS, sDB, sWF, sOUT, sH1 = 28, 32, 36, 40, 44, 48, 52, 56, 60, 64
sROLE, sTILE = 100, 101
sSPIN = 9
sLO8 = 10
sKO, sVO, sQ0, sQ1, sOO = 12, 13, 14, 15, 20
sDRY = 22
sEX = 24
sTS = 68
vL, vL16, vWQ, vWO = 0, 1, 2, 3
vM = 4
vQ = 8
vB0, vB1 = 12, 16
vD1, vD2 = 20, 24
vT = 28
vS = 32
vF = 48
vJ, vN = vT, vT + 1

class Task:
    def __init__(self, fn, needs=(), frees=(), barrier=0, cost=1):
        self.fn, self.needs, self.frees, self.barrier, self.cost = fn, list(needs), list(frees), barrier, cost

def gen(a):
    E = Emitter()
    nt = a.kvpol
    wnt = a.wpol
    fnt = " nt" if a.fnt else ""
    def stamp(i):
        if a.ts: E(f"s_memrealtime s[{sTS+2*i}:{sTS+2*i+1}]")
    def spin(lbl):
        E(f"s_sub_u32 s{sSPIN}, s{sSPIN}, 1")
        E(f"s_cbranch_scc1 {lbl}")
    def write_stamps():
        E("s_waitcnt lgkmcnt(0)")
        E("s_mov_b64 exec, 1")
        E(f"s_lshl_b32 s{sT0}, s2, 3")
        E(f"s_add_u32 s{sT0}, s{sT0}, s{sW}")
        E(f"s_lshl_b32 s{sT0}, s{sT0}, 8")
        E(f"s_add_u32 s{sT0}, s{sT0}, {TS_BASE}")
        for i in range(16):
            E(f"v_mov_b32 v{vT}, s{sTS+2*i}")
            E(f"v_mov_b32 v{vT+1}, s{sTS+2*i+1}")
            E(f"buffer_store_dwordx2 {r2(vT)}, off, {S4(sWS)}, s{sT0} offset:{8*i}", tag="extra")
            E("s_nop 1")
        E(f"s_getreg_b32 s{sT1}, hwreg(HW_REG_XCC_ID)")
        E(f"v_mov_b32 v{vT}, s{sT1}")
        E(f"v_mov_b32 v{vT+1}, s{sROLE}")
        E(f"buffer_store_dwordx2 {r2(vT)}, off, {S4(sWS)}, s{sT0} offset:128", tag="extra")

    E("s_cmp_ge_u32 s2, 256")
    E("s_cbranch_scc1 L_end")
    E("s_load_dwordx16 s[4:19], s[0:1], 0")
    E("s_load_dwordx4 s[20:23], s[0:1], 64")
    E("s_load_dwordx2 s[24:25], s[0:1], 80")
    if a.ts:
        for i in range(1, 16): E(f"s_mov_b64 s[{sTS+2*i}:{sTS+2*i+1}], 0")
        stamp(0)
    E(f"v_lshrrev_b32 v{vT}, 6, v0")
    E(f"v_and_b32 v{vL}, 63, v0")
    E(f"v_readfirstlane_b32 s{sW}, v{vT}")
    if a.hmap:
        E(f"s_and_b32 s{sH}, s2, 7")
        E(f"s_lshl_b32 s{sH}, s{sH}, 2")
        E(f"s_bfe_u32 s{sB}, s2, 0x20003")
        E(f"s_add_u32 s{sH}, s{sH}, s{sB}")
    else:
        E(f"s_and_b32 s{sH}, s2, 31")
    E(f"s_lshr_b32 s{sB}, s2, 5")
    E(f"v_lshlrev_b32 v{vL16}, 4, v{vL}")
    E(f"v_lshrrev_b32 v{vJ}, 4, v{vL}")
    E(f"v_and_b32 v{vN}, 15, v{vL}")
    E(f"v_mul_u32_u24 v{vWQ}, 81920, v{vJ}")
    E(f"v_lshl_add_u32 v{vWQ}, v{vN}, 4, v{vWQ}")
    vXS, vXC = vT + 2, vT + 3
    E(f"v_mul_u32_u24 v{vXS}, 20, v{vL}")
    E(f"v_lshrrev_b32 v{vXC}, 3, v{vN}")
    E(f"v_lshl_add_u32 v{vXC}, v{vXC}, 2, v{vJ}")
    t0, t1, t2, t3 = 64, 65, 66, 67
    E(f"s_lshl_b32 s{t0}, s{sW}, 3")
    E(f"v_add_u32 v{vXC}, s{t0}, v{vXC}")
    E(f"v_mul_u32_u24 v{vXC}, 20, v{vXC}")
    E(f"s_lshl_b32 s{t0}, s{sB}, 5")
    E(f"s_add_u32 s{t0}, s{t0}, s{sH}")
    E(f"s_lshl_b32 s{t0}, s{t0}, 20")
    E(f"s_add_u32 s{t0}, s{t0}, 0xc0000")
    E(f"s_lshl_b32 s{t1}, s{sH}, 8")
    E(f"s_mul_i32 s{t2}, s{sH}, {128*1280}")
    E(f"s_mul_i32 s{t3}, s{sB}, 1280")
    E(f"s_mov_b32 s{sROLE}, 0")
    E(f"s_lshl_b32 s{sTILE}, s{sW}, 10")
    if a.pf:
        E(f"s_getpc_b64 s[{sWF}:{sWF+1}]")
        E.label("L_pc")
        E(f"s_and_b32 s{sWF+1}, s{sWF+1}, 0xffff")
        E(f"s_mov_b32 s{sWF+2}, L_codeend-L_pc")
        E(f"s_mov_b32 s{sWF+3}, 0x20000")
        E(f"v_lshlrev_b32 v{vB0}, 7, v{vL}")
        E(f"s_lshl_b32 s{sOUT}, s{sW}, 13")
        E(f"s_cmp_gt_u32 s{sW}, {a.pf - 1}")
        E("s_cbranch_scc1 L_nopf")
        E(f"buffer_load_dword v{vS+15}, v{vB0}, {S4(sWF)}, s{sOUT} offen", tag="extra")
        E.label("L_nopf")
    E("s_waitcnt lgkmcnt(0)")
    srd_off(E, sK, 6, f"s{t0}", 0x40000)
    slot_of = {}
    free = deque(range(52))
    def alloc(tag):
        s = free.popleft(); slot_of[tag] = vF + 4 * s; return slot_of[tag]
    def release(tag):
        free.append((slot_of[tag] - vF) // 4)
    E(f"buffer_load_dwordx4 {r4(alloc('k0'))}, v{vL16}, {S4(sK)}, s{sTILE} offen{nt}", tag="k0")
    srd(E, sX, 4, 5, 10240)
    xs_raw, xc_raw = vS, vS + 6
    E(f"buffer_load_dwordx4 {r4(xs_raw)}, v{vXS}, {S4(sX)}, s{t3} offen", tag="xs")
    E(f"buffer_load_dword v{xs_raw+4}, v{vXS}, {S4(sX)}, s{t3} offen offset:16", tag="xs")
    E(f"buffer_load_dwordx4 {r4(xc_raw)}, v{vXC}, {S4(sX)}, s{t3} offen", tag="xc")
    E(f"buffer_load_dword v{xc_raw+4}, v{vXC}, {S4(sX)}, s{t3} offen offset:16", tag="xc")
    E(f"s_add_u32 s{sTILE}, s{sTILE}, 8192")
    E(f"buffer_load_dwordx4 {r4(alloc('k1'))}, v{vL16}, {S4(sK)}, s{sTILE} offen{nt}", tag="k1")
    E(f"s_add_u32 s{sTILE}, s{sTILE}, 8192")
    E(f"buffer_load_dwordx4 {r4(alloc('k2'))}, v{vL16}, {S4(sK)}, s{sTILE} offen{nt}", tag="k2")
    srd_off(E, sWQ, 10, f"s{t1}", 639 * 8192 + 256)
    srd_off(E, sV, 8, f"s{t0}", 0x40000)
    srd_off(E, sWO, 12, f"s{t2}", 128 * 1280)
    srd(E, sWS, 24, 25, 1 << 22)
    srd(E, sDB, 22, 23, 256)
    srd(E, sOUT, 20, 21, 10240)
    srd_off(E, sH1, 24, H1_BASE, 108 * 256)
    E(f"s_add_u32 s{sKO}, s{sTILE}, 8192")
    E(f"s_lshl_b32 s{sVO}, s{sW}, 10")
    E(f"s_mul_i32 s{sQ0}, s{sW}, 655360")
    E(f"s_add_u32 s{sQ1}, s{sQ0}, 327680")
    E(f"s_mul_i32 s{sOO}, s{sW}, 1280")

    if a.tlb:
        E(f"s_cmp_lg_u32 s{sW}, 1")
        E("s_cbranch_scc1 L_notlb")
        E(f"buffer_load_dword v{vS+14}, off, {S4(sV)}, 0 nt", tag="extra")
        E(f"buffer_load_dword v{vS+14}, off, {S4(sWO)}, 0 nt", tag="extra")
        if a.tlb > 1:
            E(f"s_mov_b32 s{sWF+2}, {640*3456}")
            E(f"s_mov_b32 s{sWF+3}, 0x20000")
            E(f"s_mov_b32 s{sT0}, {640*3456-4}")
            for p in (16, 18):
                E(f"s_mov_b32 s{sWF}, s{p}")
                E(f"s_and_b32 s{sWF+1}, s{p+1}, 0xffff")
                E(f"buffer_load_dword v{vS+14}, off, {S4(sWF)}, 0 nt", tag="extra")
                E(f"buffer_load_dword v{vS+14}, off, {S4(sWF)}, s{sT0} nt", tag="extra")
            E(f"s_mov_b32 s{sT0}, 0x20000")
            E(f"buffer_load_dword v{vS+14}, off, {S4(sWS)}, s{sT0} nt", tag="extra")
            E(f"buffer_load_dword v{vS+14}, off, {S4(sOUT)}, 0 nt", tag="extra")
        E.label("L_notlb")
    def t_init():
        E(f"s_cmp_lg_u32 s{sW}, 7")
        E("s_cbranch_scc1 L_nosent")
        E(f"v_mov_b32 v{vB0}, -1")
        E(f"v_lshlrev_b32 v{vB0+1}, 2, v{vL}")
        E(f"s_lshl_b32 s{sT0}, s2, 8")
        E(f"buffer_store_dword v{vB0}, v{vB0+1}, {S4(sH1)}, s{sT0} offen sc1", tag="extra")
        E.label("L_nosent")
        E(f"s_cmp_lg_u32 s{sW}, 6")
        E("s_cbranch_scc1 L_noinit")
        E(f"s_cmp_lg_u32 s{sH}, 0")
        E("s_cbranch_scc1 L_noinit")
        for i in range(4): E(f"v_mov_b32 v{vB1+i}, 0")
        E(f"s_lshl_b32 s{sT0}, s{sB}, 12")
        for i in range(4):
            E(f"buffer_store_dwordx4 {r4(vB1)}, v{vL16}, {S4(sWS)}, s{sT0} offen offset:{1024*i} sc1", tag="extra")
        E("s_waitcnt vmcnt(0)")
        E(f"v_mov_b32 v{vB0}, 1")
        E(f"s_lshl_b32 s{sT0}, s{sB}, 2")
        E("s_mov_b64 exec, 1")
        E(f"buffer_store_dword v{vB0}, off, {S4(sDB)}, s{sT0} sc1", tag="extra")
        E("s_mov_b64 exec, -1")
        E.label("L_noinit")

    def kload(f):
        def fn():
            E(f"buffer_load_dwordx4 {r4(alloc(f'k{f}'))}, v{vL16}, {S4(sK)}, s{sKO} offen{nt}", tag=f"k{f}")
            if f < 31: E(f"s_add_u32 s{sKO}, s{sKO}, 8192")
        return (f"k{f}", fn, True)
    def vload(f):
        def fn():
            E(f"buffer_load_dwordx4 {r4(alloc(f'v{f}'))}, v{vL16}, {S4(sV)}, s{sVO} offen{nt}", tag=f"v{f}")
            if f < 31: E(f"s_add_u32 s{sVO}, s{sVO}, 8192")
        return (f"v{f}", fn, True)
    def qload(f):
        def fn():
            s = sQ0 if f % 2 == 0 else sQ1
            E(f"buffer_load_dwordx4 {r4(alloc(f'wq{f}'))}, v{vWQ}, {S4(sWQ)}, s{s} offen{wnt}", tag=f"wq{f}")
            if f < 18: E(f"s_add_u32 s{s}, s{s}, 8192")
        return (f"wq{f}", fn, True)
    def oload(f):
        def fn():
            fp, cg = divmod(f, 5)
            E(f"buffer_load_dwordx4 {r4(alloc(f'wo{f}'))}, v{vWO}, {S4(sWO)}, s{sOO} offen offset:{cg*256}{wnt}", tag=f"wo{f}")
            if cg == 4 and fp < 3: E(f"s_add_u32 s{sOO}, s{sOO}, {8*1280}")
        return (f"wo{f}", fn, True)
    vFL = vWQ
    vTK = vQ + 3
    def fload():
        def fn():
            E(f"v_and_b32 v{vFL}, 7, v{vL}")
            E(f"v_lshlrev_b32 v{vFL}, 2, v{vFL}")
            E(f"buffer_load_dword v{vFL}, v{vFL}, {S4(sDB)}, 0 offen sc1", tag="flag")
        return ("flag", fn, False)
    def ticket():
        def fn():
            E(f"s_cmp_lg_u32 s{sW}, 0")
            E("s_cbranch_scc1 L_notk")
            E(f"v_mov_b32 v{vTK}, 1")
            E("s_mov_b64 exec, 1")
            E(f"buffer_atomic_add v{vTK}, off, {S4(sDB)}, 0 offset:128 sc0", tag="extra")
            E("s_mov_b64 exec, -1")
            E.label("L_notk")
        return ("tk", fn, False)
    loads = []
    qi = 0
    for f in range(3, 32):
        want = min(20, (f - 2) * 20 // (a.qspan - 2) + 1)
        while qi < want:
            loads.append(qload(qi)); qi += 1
        loads.append(kload(f))
    while qi < 20:
        loads.append(qload(qi)); qi += 1
    nmid = 20 - a.otail
    oi = 0
    for f in range(32):
        loads.append(vload(f))
        if f == 16: loads.append(fload())
        if f == a.tkpos: loads.append(ticket())
        want = max(0, (f + 1 - a.ostart)) * nmid // (32 - a.ostart)
        while oi < want:
            loads.append(oload(oi)); oi += 1
    while oi < 20:
        loads.append(oload(oi)); oi += 1

    vRW, vRR = vXS, vXC
    def t_setup():
        E(f"s_mov_b32 s{sSPIN}, 0x40000")
        E(f"s_mov_b32 s{sLO8}, 0x00ff00ff")
        E(f"s_mov_b32 s{sLO8+1}, 0x00ff00ff")
        E(f"v_mul_u32_u24 v{vWO}, 40960, v{vJ}")
        E(f"v_and_b32 v{vB0}, 1, v{vN}")
        E(f"v_lshl_add_u32 v{vWO}, v{vB0}, 7, v{vWO}")
        E(f"v_lshrrev_b32 v{vB0+1}, 1, v{vN}")
        E(f"v_lshl_add_u32 v{vWO}, v{vB0+1}, 4, v{vWO}")
        E(f"v_lshlrev_b32 v{vB0}, 4, v{vB0}")
        E(f"v_mov_b32 v{vB0+2}, 0xffff")
        E(f"v_lshlrev_b32 v{vB0}, v{vB0}, v{vB0+2}")
        E(f"v_and_b32 v{vB0+1}, 3, v{vB0+1}")
        for w in range(4):
            E(f"v_cmp_eq_u32 vcc, {w}, v{vB0+1}")
            E(f"v_cndmask_b32 v{vM+w}, 0, v{vB0}, vcc")
        E(f"v_lshrrev_b32 v{vB0}, 3, v{vN}")
        E(f"s_lshl_b32 s{sT0}, s{sW}, 1")
        E(f"v_add_u32 v{vB0}, s{sT0}, v{vB0}")
        E(f"v_mul_u32_u24 v{vRW}, 528, v{vB0}")
        E(f"v_and_b32 v{vB0}, 7, v{vN}")
        E(f"v_lshl_add_u32 v{vRW}, v{vB0}, 6, v{vRW}")
        E(f"v_lshl_add_u32 v{vRW}, v{vJ}, 4, v{vRW}")
        E(f"v_mul_u32_u24 v{vRR}, 528, v{vN}")
        E(f"v_lshl_add_u32 v{vRR}, v{vJ}, 4, v{vRR}")
        E(f"s_lshl_b32 s{sT0}, s{sW}, 6")
        E(f"v_add_u32 v{vRR}, s{sT0}, v{vRR}")
    f0 = 8
    vMEAN, vRCP = 18, 19
    def t_ln1a():
        stamp(1)
        unpack10(E, xs_raw, f0)
        ln_stats(E, f0, 20, 21, 22, vMEAN, vRCP)
    def t_ln1b():
        unpack10(E, xc_raw, f0)
        for i in range(10): E(f"v_sub_f32 v{f0+i}, v{f0+i}, v{vMEAN}")
        bf16r_many(E, range(f0, f0 + 10))
        for i in range(10): E(f"v_mul_f32 v{f0+i}, v{f0+i}, v{vRCP}")
        for i in range(10): E(f"v_cvt_pk_bf16_f32 v{vS+i}, v{f0+i}, v{f0+i}")
    def bfrag(dst, src):
        for w in range(4): E(f"v_and_b32 v{dst+w}, v{src}, v{vM+w}")
    def t_pair(t, pre):
        def fn():
            B = vB0 if t % 2 == 0 else vB1
            bfrag(B, vS + t)
            c1 = "0" if t == 0 else r4(vD1)
            c2 = "0" if t == 0 else r4(vD2)
            E(f"v_mfma_f32_16x16x32_bf16 {r4(vD1)}, {r4(slot_of[f'{pre}{2*t}'])}, {r4(B)}, {c1}")
            E(f"v_mfma_f32_16x16x32_bf16 {r4(vD2)}, {r4(slot_of[f'{pre}{2*t+1}'])}, {r4(B)}, {c2}")
        return fn
    def red_a():
        for r in range(4):
            E(f"v_cndmask_b32 v{vD1+r}, v{vD2+r}, v{vD1+r}, s[{sLO8}:{sLO8+1}]")
        E(f"ds_write_b128 v{vRW}, {r4(vD1)} offset:{RED}")
    def t_bar():
        E("s_waitcnt lgkmcnt(0)")
        E("s_barrier")
    def red_b(dst):
        E(f"ds_read_b128 {r4(dst)}, v{vRR} offset:{RED}")
        E("s_waitcnt lgkmcnt(0)")
        row_reduce(E, [dst + i for i in range(4)])
        for i in range(4): E(f"v_cvt_pk_bf16_f32 v{dst+i}, v{dst+i}, v{dst+i}")
    def t_qr2():
        E(f"v_lshlrev_b32 v{vB1}, 6, v{vJ}")
        E(f"s_lshl_b32 s{sT0}, s{sW}, 1")
        E(f"v_add_u32 v{vB1}, s{sT0}, v{vB1}")
        red_b(vB0)
        E(f"s_mov_b32 exec_lo, 0x00010001")
        E(f"s_mov_b32 exec_hi, 0x00010001")
        for i in range(4): E(f"ds_write_b16 v{vB1}, v{vB0+i} offset:{QF+16*i}")
        E("s_mov_b64 exec, -1")
        E(f"v_lshlrev_b32 v{vB1}, 4, v{vN}")
    def t_qr3():
        E(f"ds_read_b128 {r4(vQ)}, v{vB1} offset:{QF}")
        E("s_waitcnt lgkmcnt(0)")
        stamp(2)
    def t_k2(t):
        def fn():
            ks = [slot_of[f"k{2*t+i}"] for i in range(4)]
            acc = [vB0 + i for i in range(4)]
            for i in range(4):
                for u in range(4):
                    E(f"v_dot2_f32_bf16 v{acc[u]}, v{ks[u]+i}, v{vQ+i}, {'0' if i == 0 else 'v%d' % acc[u]}")
            s0, s1 = vS + t, vS + t + 1
            E(f"v_add_f32_dpp v{s0}, v{acc[0]}, v{acc[0]} row_ror:8 row_mask:0xf bank_mask:0x3")
            E(f"v_add_f32_dpp v{s0}, v{acc[1]}, v{acc[1]} row_ror:8 row_mask:0xf bank_mask:0xc")
            E(f"v_add_f32_dpp v{s1}, v{acc[2]}, v{acc[2]} row_ror:8 row_mask:0xf bank_mask:0x3")
            E(f"v_add_f32_dpp v{s1}, v{acc[3]}, v{acc[3]} row_ror:8 row_mask:0xf bank_mask:0xc")
            for mod in ("row_half_mirror", "quad_perm:[1,0,3,2]", "quad_perm:[2,3,0,1]"):
                for s in (s0, s1):
                    E(f"v_add_f32_dpp v{s}, v{s}, v{s} {mod} row_mask:0xf bank_mask:0xf")
            bf16r_many(E, [s0, s1])
            E(f"v_mul_f32 v{s0}, {SCALE:#x}, v{s0}")
            E(f"v_mul_f32 v{s1}, {SCALE:#x}, v{s1}")
            bf16r_many(E, [s0, s1])
        return fn
    m, l = vD1, vD1 + 1
    def t_sm1():
        E(f"v_max3_f32 v{m}, v{vS}, v{vS+1}, v{vS+2}")
        for i in range(3, 15, 2): E(f"v_max3_f32 v{m}, v{m}, v{vS+i}, v{vS+i+1}")
        E(f"v_max_f32 v{m}, v{m}, v{vS+15}")
        for i in range(16): E(f"v_sub_f32 v{vS+i}, v{vS+i}, v{m}")
        for i in range(16): E(f"v_mul_f32 v{vS+i}, {LOG2E:#x}, v{vS+i}")
        for i in range(16): E(f"v_exp_f32 v{vS+i}, v{vS+i}")
        E(f"v_add_f32 v{l}, v{vS}, v{vS+1}")
        E(f"v_add_f32 v{vB0}, v{vS+2}, v{vS+3}")
        for i in range(4, 16, 2):
            E(f"v_add_f32 v{l}, v{l}, v{vS+i}")
            E(f"v_add_f32 v{vB0}, v{vB0}, v{vS+i+1}")
        E(f"v_add_f32 v{l}, v{l}, v{vB0}")
        E(f"v_and_b32 v{vB0}, 56, v{vL}")
        E(f"s_lshl_b32 s{sT0}, s{sW}, 6")
        E(f"v_add_u32 v{vB0}, s{sT0}, v{vB0}")
        E(f"ds_write_b64 v{vB0}, {r2(m)} offset:{ML}")
        E(f"v_lshlrev_b32 v{vB0}, 3, v{vL}")
        stamp(3)
    def t_smb():
        E("s_waitcnt lgkmcnt(0)")
        E("s_barrier")
        stamp(4)
    def t_sm2():
        mg, lg = vD2, vD2 + 1
        E(f"ds_read_b64 {r2(mg)}, v{vB0} offset:{ML}")
        E("s_waitcnt lgkmcnt(0)")
        E(f"v_mov_b32 v{vB0}, v{mg}")
        wave_reduce(E, vB0, sT0, "v_max_f32")
        E(f"v_subrev_f32 v{mg}, s{sT0}, v{mg}")
        E(f"v_subrev_f32 v{m}, s{sT0}, v{m}")
        E(f"v_mul_f32 v{mg}, {LOG2E:#x}, v{mg}")
        E(f"v_mul_f32 v{m}, {LOG2E:#x}, v{m}")
        E(f"v_exp_f32 v{mg}, v{mg}")
        E(f"v_exp_f32 v{m}, v{m}")
        E(f"v_mul_f32 v{lg}, v{lg}, v{mg}")
        wave_reduce(E, lg, sT1)
        E(f"v_rcp_f32 v{l}, s{sT1}")
        E(f"v_mul_f32 v{m}, v{m}, v{l}")
        for i in range(16): E(f"v_mul_f32 v{vS+i}, v{vS+i}, v{m}")
        for i in range(16): E(f"v_cvt_pk_bf16_f32 v{vS+i}, v{vS+i}, v{vS+i}")
    Bs = [vB0, vB1, vD1, vD2]
    vA, vA2, vA3 = vQ, vQ + 1, vQ + 2
    def t_pre_tail():
        E(f"v_and_b32 v{vA}, 7, v{vL}")
        E(f"v_lshlrev_b32 v{vA2}, 6, v{vA}")
        E(f"v_lshl_add_u32 v{vA}, v{vJ}, 4, v{vA2}")
        E(f"s_mul_i32 s{sT0}, s{sW}, 2560")
        E(f"v_add_u32 v{vA}, s{sT0}, v{vA}")
        E(f"v_and_b32 v{vA3}, 56, v{vL}")
        E(f"v_add_u32 v{vA2}, v{vA2}, v{vA3}")
        E(f"s_lshl_b32 s{sT0}, s{sW}, 9")
        E(f"v_add_u32 v{vA2}, s{sT0}, v{vA2}")
        E(f"v_lshlrev_b32 v{vA3}, 2, v{vL}")
    def t_flag():
        E(f"v_cmp_eq_u32 vcc, 0, v{vFL}")
        E.flush()
        E("s_cbranch_vccz L_flagok")
        E.label("L_flag")
        E("s_sleep 2")
        E(f"v_and_b32 v{vFL}, 7, v{vL}")
        E(f"v_lshlrev_b32 v{vFL}, 2, v{vFL}")
        E(f"buffer_load_dword v{vFL}, v{vFL}, {S4(sDB)}, 0 offen sc1", tag="extra")
        E("s_waitcnt vmcnt(0)")
        E(f"v_cmp_eq_u32 vcc, 0, v{vFL}")
        E.flush()
        E("s_cbranch_vccz L_flagok")
        spin("L_flagok")
        E("s_branch L_flag")
        E.label("L_flagok")
    def t_or1():
        stamp(5)
        red_a()
        t_bar()
        stamp(6)
    def t_or2():
        red_b(vS)
        for fp in range(4): bfrag(Bs[fp], vS + fp)
        for cg in range(5): alloc(f"y{cg}")
    def t_y(f):
        def fn():
            fp, cg = divmod(f, 5)
            y = slot_of[f"y{cg}"]
            c = "0" if fp == 0 else r4(y)
            E(f"v_mfma_f32_16x16x32_bf16 {r4(y)}, {r4(slot_of[f'wo{f}'])}, {r4(Bs[fp])}, {c}")
        return fn
    tasks = []
    tasks.append(Task(t_setup))
    tasks.append(Task(t_ln1a, ["xs"], cost=3))
    tasks.append(Task(t_ln1b, ["xc"], cost=2))
    for t in range(10):
        tasks.append(Task(t_pair(t, "wq"), [f"wq{2*t+1}"], frees=[f"wq{2*t}", f"wq{2*t+1}"]))
        if t == 1: tasks.append(Task(t_init))
    tasks.append(Task(red_a))
    tasks.append(Task(t_bar, barrier=a.bd1))
    tasks.append(Task(t_qr2))
    tasks.append(Task(t_bar, barrier=a.bd2))
    tasks.append(Task(t_qr3))
    for t in range(0, 16, 2):
        tasks.append(Task(t_k2(t), [f"k{2*t+3}"], frees=[f"k{2*t+i}" for i in range(4)], cost=2))
    tasks.append(Task(t_sm1, cost=2))
    tasks.append(Task(t_smb, barrier=a.bd3))
    tasks.append(Task(t_sm2, cost=2))
    tasks.append(Task(t_pre_tail))
    for t in range(16):
        tasks.append(Task(t_pair(t, "v"), [f"v{2*t+1}"], frees=[f"v{2*t}", f"v{2*t+1}"], cost=0.5))
        if t == 9: tasks.append(Task(t_flag, ["flag"]))
    tasks.append(Task(t_or1, barrier=99))
    tasks.append(Task(t_or2))
    for f in range(20): tasks.append(Task(t_y(f), [f"wo{f}"], cost=0.25))

    issued = {"xs", "xc", "k0", "k1", "k2"}
    pend = deque(tasks)
    def ready(t): return all(n in issued and n not in E.vm for n in t.needs)
    def run(t):
        for n in t.needs:
            assert n in issued, n
            if n in E.vm: E.wait_vm(n)
        t.fn()
        for n in t.frees: release(n)
    D = a.depth
    for i, (tag, fn, needs_slot) in enumerate(loads):
        while needs_slot and not free:
            run(pend.popleft())
        if tag == "tk":
            while any(t.fn is t_sm1 for t in pend): run(pend.popleft())
        lim = 63 if i < a.first else D
        if len(E.vm) >= lim:
            E(f"s_waitcnt vmcnt({lim-1})")
            E.vm = E.vm[len(E.vm) - (lim - 1):]
        fn(); issued.add(tag)
        if i + 1 < a.first: continue
        budget = a.budget
        while pend and budget > 0 and ready(pend[0]):
            if pend[0].barrier > 0:
                pend[0].barrier -= 1
                break
            t = pend.popleft(); run(t); budget -= t.cost
    while pend: run(pend.popleft())
    assert not E.vm, E.vm
    stamp(7)

    E(f"s_mov_b64 exec, s[{sLO8}:{sLO8+1}]")
    for cg in range(5):
        E(f"ds_write_b128 v{vA}, {r4(slot_of[f'y{cg}'])} offset:{YP+cg*512}")
    E(f"s_cmp_lg_u32 s{sW}, 0")
    E("s_cselect_b32 exec_lo, 0, 1")
    E("s_mov_b32 exec_hi, 0")
    E(f"v_mov_b32 v{vB0}, {TK}")
    E(f"ds_write_b32 v{vB0}, v{vTK}")
    E("s_mov_b64 exec, -1")
    E(f"v_mov_b32 v{vB0}, {TK}")
    E(f"s_lshl_b32 s{sT0}, s{sB}, 12")
    E(f"s_lshl_b32 s{sT1}, s{sW}, 9")
    E(f"s_add_u32 s{sT0}, s{sT0}, s{sT1}")
    E("s_waitcnt lgkmcnt(0)")
    E("s_barrier")
    stamp(8)
    E(f"ds_read_b32 v{vTK}, v{vB0}")
    E(f"s_cmp_ge_u32 s{sW}, 5")
    E("s_cbranch_scc1 L_arr")
    vP = vS
    for p in range(8):
        E(f"ds_read_b64 {r2(vP+2*p)}, v{vA2} offset:{YP+p*2560}")
    E("s_waitcnt lgkmcnt(0)")
    for st in (4, 2, 1):
        for p in range(st):
            E(f"v_add_f32 v{vP+2*p}, v{vP+2*p}, v{vP+2*(p+st)}")
            E(f"v_add_f32 v{vP+2*p+1}, v{vP+2*p+1}, v{vP+2*(p+st)+1}")
    E(f"buffer_atomic_add_f32 v{vP}, v{vA3}, {S4(sWS)}, s{sT0} offen", tag="extra")
    E(f"buffer_atomic_add_f32 v{vP+1}, v{vA3}, {S4(sWS)}, s{sT0} offen offset:256", tag="extra")
    E("s_waitcnt vmcnt(0)")
    stamp(9)
    E.label("L_arr")
    E("s_waitcnt lgkmcnt(0)")
    E(f"v_readfirstlane_b32 s{sTILE}, v{vTK}")
    E("s_barrier")
    stamp(10)
    E(f"s_cmp_lg_u32 s{sW}, 0")
    E("s_cbranch_scc1 L_noarr")
    E(f"v_mov_b32 v{vB0}, 1")
    E(f"s_lshl_b32 s{sT0}, s{sB}, 12")
    E("s_mov_b64 exec, 1")
    E(f"buffer_atomic_add v{vB0}, off, {S4(sWS)}, s{sT0} offset:3072", tag="extra")
    E("s_mov_b64 exec, -1")
    E.label("L_noarr")
    E(f"s_cmp_ge_u32 s{sTILE}, {NF2 + NF1}")
    E("s_cbranch_scc1 L_fin")
    E(f"s_mov_b32 s{sWF+2}, {640*3456}")
    E(f"s_mov_b32 s{sWF+3}, 0x20000")
    E(f"s_mov_b64 s[{sDRY}:{sDRY+1}], {0 if a.dry else -1}")
    E(f"s_cmp_lt_u32 s{sTILE}, {NF2}")
    E("s_cbranch_scc1 L_ffn2")

    vW = vF
    E(f"s_mov_b32 s{sROLE}, 1")
    E(f"s_sub_u32 s{sTILE}, s{sTILE}, {NF2}")
    E(f"s_mov_b32 s{sWF}, s16")
    E(f"s_and_b32 s{sWF+1}, s17, 0xffff")
    vA = vB1
    vDM = vB0
    E(f"v_lshrrev_b32 v{vDM}, 3, v{vL}")
    E(f"v_mul_u32_u24 v{vDM}, 3456, v{vDM}")
    E(f"v_and_b32 v{vDM+1}, 7, v{vL}")
    E(f"v_lshl_add_u32 v{vDM}, v{vDM+1}, 4, v{vDM}")
    E(f"s_mul_i32 s{sT0}, s{sW}, {80*3456}")
    E(f"s_lshl_b32 s{sT1}, s{sTILE}, 7")
    E(f"s_add_u32 s{sT0}, s{sT0}, s{sT1}")
    E(f"s_mul_i32 s{sT2}, s{sW}, {10*1024}")
    E(f"s_add_u32 s{sT2}, s{sT2}, {WT}")
    for t in range(10):
        E(f"s_mov_b32 m0, s{sT2}")
        E(f"buffer_load_dwordx4 v{vDM}, {S4(sWF)}, s{sT0} offen{fnt} lds", tag="extra")
        if t < 9:
            E(f"s_add_u32 s{sT0}, s{sT0}, {8*3456}")
            E(f"s_add_u32 s{sT2}, s{sT2}, 1024")
    xr = vS
    ac = vF + 160
    hx = vF + 176
    hb = vF + 80
    E(f"v_mul_u32_u24 v{vA}, 20, v{vL}")
    E(f"s_mul_i32 s{sT0}, s{sW}, 1280")
    E(f"buffer_load_dwordx4 {r4(xr)}, v{vA}, {S4(sX)}, s{sT0} offen", tag="extra")
    E(f"buffer_load_dword v{xr+4}, v{vA}, {S4(sX)}, s{sT0} offen offset:16", tag="extra")
    E(f"v_lshlrev_b32 v{vA+1}, 1, v{vA}")
    E(f"s_mul_i32 s{sT1}, s{sW}, {HNS}")
    E(f"v_add_u32 v{vA+2}, s{sT1}, v{vA}")
    E(f"v_lshlrev_b32 v{vA+3}, 10, v{vJ}")
    E(f"v_lshrrev_b32 v{vDM}, 2, v{vN}")
    E(f"v_lshl_add_u32 v{vA+3}, v{vDM}, 7, v{vA+3}")
    E(f"v_and_b32 v{vDM}, 3, v{vN}")
    E(f"v_lshl_add_u32 v{vA+3}, v{vDM}, 3, v{vA+3}")
    E(f"s_and_b32 s{sT0}, s{sW}, 3")
    E(f"s_lshl_b32 s{sT0}, s{sT0}, 5")
    E(f"s_add_u32 s{sT0}, s{sT0}, {WT}")
    E(f"v_add_u32 v{vA+3}, s{sT0}, v{vA+3}")
    E("s_waitcnt vmcnt(0)")
    E("s_barrier")
    for t in range(20):
        if t == 10: E(f"v_add_u32 v{vA+3}, {10*4096}, v{vA+3}")
        o = (t % 10) * 4096
        E(f"ds_read_b64_tr_b16 {r2(vW+4*t)}, v{vA+3} offset:{o}")
        E(f"ds_read_b64_tr_b16 {r2(vW+4*t+2)}, v{vA+3} offset:{o+512}")
        if t % 4 == 3: E("s_waitcnt lgkmcnt(0)")
    E(f"v_and_b32 v{vA+3}, 7, v{vL}")
    E(f"v_mul_u32_u24 v{vA+3}, {HNS}, v{vA+3}")
    E(f"v_lshl_add_u32 v{vA+3}, v{vJ}, 4, v{vA+3}")
    E(f"v_lshrrev_b32 v{vDM}, 3, v{vN}")
    E(f"v_lshl_add_u32 v{vA+3}, v{vDM}, 6, v{vA+3}")
    E(f"v_lshlrev_b32 v{vA}, 5, v{vN}")
    E(f"v_lshl_add_u32 v{vA}, v{vJ}, 3, v{vA}")
    E(f"s_lshl_b32 s{sT3}, s{sTILE}, 2")
    E(f"s_add_u32 s{sT3}, s{sT3}, s{sW}")
    E(f"s_lshl_b32 s{sT3}, s{sT3}, 8")
    E(f"s_lshl_b32 s{sT2}, s{sW}, 12")
    xk = vF + 192
    unpack10(E, xr, xk)
    stamp(11)
    E.label("L_f1_top")
    E(f"s_mov_b64 exec, s[{sDRY}:{sDRY+1}]")
    E("s_cbranch_execz L_f1_go")
    E.label("L_f1_poll")
    E(f"buffer_load_dword v{vB0}, off, {S4(sWS)}, s{sT2} offset:3072 sc1", tag="extra")
    E("s_waitcnt vmcnt(0)")
    E(f"v_readfirstlane_b32 s{sT0}, v{vB0}")
    E(f"s_cmp_ge_u32 s{sT0}, 32")
    E("s_cbranch_scc1 L_f1_ld")
    spin("L_f1_ld")
    if a.sleep: E(f"s_sleep {a.sleep}")
    E("s_branch L_f1_poll")
    E.label("L_f1_ld")
    E(f"buffer_load_dwordx4 {r4(ac)}, v{vA+1}, {S4(sWS)}, s{sT2} offen sc1", tag="extra")
    E(f"buffer_load_dwordx4 {r4(ac+4)}, v{vA+1}, {S4(sWS)}, s{sT2} offen offset:16 sc1", tag="extra")
    E(f"buffer_load_dwordx2 {r2(ac+8)}, v{vA+1}, {S4(sWS)}, s{sT2} offen offset:32 sc1", tag="extra")
    stamp(12)
    E("s_waitcnt vmcnt(0)")
    E.label("L_f1_go")
    bf16r_many(E, range(ac, ac + 10))
    for i in range(10): E(f"v_add_f32 v{hx+i}, v{xk+i}, v{ac+i}")
    bf16r_many(E, range(hx, hx + 10))
    ln_stats(E, hx, vD1, vD1 + 1, vD1 + 2, vD2, vD2 + 1)
    for i in range(10): E(f"v_sub_f32 v{hx+i}, v{hx+i}, v{vD2}")
    bf16r_many(E, range(hx, hx + 10))
    for i in range(10): E(f"v_mul_f32 v{hx+i}, v{hx+i}, v{vD2+1}")
    for i in range(5): E(f"v_cvt_pk_bf16_f32 v{ac+i}, v{hx+2*i}, v{hx+2*i+1}")
    for i in range(5): E(f"ds_write_b32 v{vA+2}, v{ac+i} offset:{HN+4*i}")
    E("s_waitcnt lgkmcnt(0)")
    E("s_barrier")
    E(f"s_cmp_ge_u32 s{sW}, 4")
    E("s_cbranch_scc1 L_f1_next")
    if a.ts:
        stamp(13); E("s_waitcnt lgkmcnt(0)")
    for u in range(10):
        E(f"ds_read_b128 {r4(hb+4*u)}, v{vA+3} offset:{HN+128*u}")
    for u in range(10):
        E(f"s_waitcnt lgkmcnt({9-u})")
        c1 = "0" if u == 0 else r4(vD1)
        c2 = "0" if u == 0 else r4(vD2)
        E(f"v_mfma_f32_16x16x32_bf16 {r4(vD1)}, {r4(vW+8*u)}, {r4(hb+4*u)}, {c1}")
        E(f"v_mfma_f32_16x16x32_bf16 {r4(vD2)}, {r4(vW+8*u+4)}, {r4(hb+4*u)}, {c2}")
    for i in range(4):
        E(f"v_add_f32_dpp v{vD1+i}, v{vD2+i}, v{vD1+i} row_ror:8 row_mask:0xf bank_mask:0xf")
    for i in range(4): E(f"v_max_f32 v{vD1+i}, 0, v{vD1+i}")
    E(f"v_cvt_pk_bf16_f32 v{vD2}, v{vD1}, v{vD1+1}")
    E(f"v_cvt_pk_bf16_f32 v{vD2+1}, v{vD1+2}, v{vD1+3}")
    E(f"s_and_b64 exec, exec, s[{sLO8}:{sLO8+1}]")
    E("s_cbranch_execz L_f1_next")
    E(f"buffer_store_dwordx2 {r2(vD2)}, v{vA}, {S4(sH1)}, s{sT3} offen sc1", tag="extra")
    stamp(14)
    E.label("L_f1_next")
    E(f"s_cmp_lg_u32 s{sDRY}, 0")
    E("s_cbranch_scc1 L_fin")
    E(f"s_mov_b64 s[{sDRY}:{sDRY+1}], -1")
    E.flush()
    E("s_branch L_f1_top")

    E.label("L_ffn2")
    E(f"s_mov_b32 s{sROLE}, 2")
    E(f"s_mov_b32 s{sWF}, s18")
    E(f"s_and_b32 s{sWF+1}, s19, 0xffff")
    vA = vQ
    E(f"v_lshrrev_b32 v{vA}, 2, v{vL}")
    E(f"v_mul_u32_u24 v{vA}, 1280, v{vA}")
    E(f"v_and_b32 v{vA+1}, 3, v{vL}")
    E(f"v_lshl_add_u32 v{vA}, v{vA+1}, 4, v{vA}")
    E(f"s_mul_i32 s{sT0}, s{sW}, {7*32*1280}")
    E(f"s_lshl_b32 s{sT1}, s{sTILE}, 6")
    E(f"s_add_u32 s{sT0}, s{sT0}, s{sT1}")
    E(f"s_mul_i32 s{sT3}, s{sW}, {14*1024}")
    E(f"s_add_u32 s{sT3}, s{sT3}, {WT}")
    E(f"s_mov_b32 s{sT2}, s{sT3}")
    for t in range(14):
        E(f"s_mov_b32 m0, s{sT2}")
        E(f"buffer_load_dwordx4 v{vA}, {S4(sWF)}, s{sT0} offen{fnt} lds", tag="extra")
        if t < 13:
            E(f"s_add_u32 s{sT0}, s{sT0}, {16*1280}")
            E(f"s_add_u32 s{sT2}, s{sT2}, 1024")
    vXO = vA + 2
    E(f"v_and_b32 v{vA+1}, 7, v{vL}")
    E(f"v_mul_u32_u24 v{vXO}, 1280, v{vA+1}")
    E(f"v_lshl_add_u32 v{vXO}, v{vJ}, 3, v{vXO}")
    E(f"s_and_b32 s{sT4}, s{sW}, 1")
    E(f"s_lshl_b32 s{sT4}, s{sT4}, 5")
    E(f"s_add_u32 s{sT1}, s{sT1}, s{sT4}")
    xr = vS
    E(f"buffer_load_dwordx2 {r2(xr)}, v{vXO}, {S4(sX)}, s{sT1} offen", tag="extra")
    vCO = vA + 3
    E(f"v_lshlrev_b32 v{vCO}, 12, v{vA+1}")
    vHO = vB1
    E(f"v_lshl_add_u32 v{vHO}, v{vJ}, 4, v{vCO}")
    vH1 = vB1 + 1
    E(f"v_lshrrev_b32 v{vH1}, 1, v{vJ}")
    E(f"v_lshlrev_b32 v{vH1}, 8, v{vH1}")
    E(f"v_lshl_add_u32 v{vH1}, v{vA+1}, 5, v{vH1}")
    E(f"v_and_b32 v{vB1+2}, 1, v{vJ}")
    E(f"v_lshl_add_u32 v{vH1}, v{vB1+2}, 4, v{vH1}")
    E(f"v_lshrrev_b32 v{vB1+2}, 3, v{vN}")
    E(f"v_lshl_add_u32 v{vH1}, v{vB1+2}, 9, v{vH1}")
    vTR = vB1 + 2
    E(f"v_lshlrev_b32 v{vTR}, 9, v{vJ}")
    E(f"v_lshrrev_b32 v{vB1+3}, 2, v{vN}")
    E(f"v_lshl_add_u32 v{vTR}, v{vB1+3}, 6, v{vTR}")
    E(f"v_and_b32 v{vB1+3}, 3, v{vN}")
    E(f"v_lshl_add_u32 v{vTR}, v{vB1+3}, 3, v{vTR}")
    E(f"v_add_u32 v{vTR}, s{sT3}, v{vTR}")
    vRWp, vRRp = vB0, vB0 + 1
    E(f"s_lshl_b32 s{sT0}, s{sW}, 11")
    E(f"v_add_u32 v{vRWp}, s{sT0}, v{vL16}")
    E(f"s_lshl_b32 s{sT0}, s{sT4}, 5")
    E(f"v_add_u32 v{vRRp}, s{sT0}, v{vL16}")
    E("s_waitcnt vmcnt(0)")
    for t in range(7):
        for c in range(2):
            E(f"ds_read_b64_tr_b16 {r2(vW+8*t+4*c)}, v{vTR} offset:{t*2048+c*32}")
            E(f"ds_read_b64_tr_b16 {r2(vW+8*t+4*c+2)}, v{vTR} offset:{t*2048+c*32+256}")
        if t % 2 == 1: E("s_waitcnt lgkmcnt(0)")
    hxk = vS + 8
    for i in range(2):
        E(f"v_lshlrev_b32 v{hxk+2*i}, 16, v{xr+i}")
        E(f"v_and_b32 v{hxk+2*i+1}, 0xffff0000, v{xr+i}")
    E(f"s_mul_i32 s{sT2}, s{sW}, {7*512}")
    E(f"s_lshl_b32 s{sT3}, s{sT1}, 1")
    E("s_waitcnt lgkmcnt(0)")
    stamp(11)
    hb = vF + 64
    acc = [vF + 96 + 4 * i for i in range(4)]
    ac = vS + 4
    hx = vS + 12
    E.label("L_f2_top")
    E(f"s_mov_b64 exec, s[{sDRY}:{sDRY+1}]")
    E("s_cbranch_execz L_f2_got")
    E(f"s_cmp_ge_u32 s{sW}, 2")
    E("s_cbranch_scc1 L_f2_go")
    E.label("L_f2_poll")
    E(f"buffer_load_dword v{vD1}, v{vCO}, {S4(sWS)}, 0 offen offset:3072 sc1", tag="extra")
    E("s_waitcnt vmcnt(0)")
    E(f"v_cmp_gt_u32 vcc, 32, v{vD1}")
    E.flush()
    E("s_cbranch_vccz L_f2_cnt")
    spin("L_f2_cnt")
    if a.sleep: E(f"s_sleep {a.sleep}")
    E("s_branch L_f2_poll")
    E.label("L_f2_cnt")
    E(f"buffer_load_dwordx4 {r4(ac)}, v{vHO}, {S4(sWS)}, s{sT3} offen sc1", tag="extra")
    E.label("L_f2_go")
    E("s_barrier")
    stamp(12)
    E.label("L_f2_poll2")
    for u in range(4):
        E(f"buffer_load_dwordx4 {r4(hb+4*u)}, v{vH1}, {S4(sH1)}, s{sT2} offen offset:{1024*u} sc1", tag="extra")
    E("s_waitcnt vmcnt(0)")
    E(f"v_max3_u32 v{vD1}, v{hb}, v{hb+1}, v{hb+2}")
    E(f"v_max3_u32 v{vD1+1}, v{hb+3}, v{hb+4}, v{hb+5}")
    for k in range(6, 16, 2):
        tgt = vD1 + ((k // 2) % 2)
        E(f"v_max3_u32 v{tgt}, v{tgt}, v{hb+k}, v{hb+k+1}")
    E(f"v_max_u32 v{vD1}, v{vD1}, v{vD1+1}")
    E(f"v_cmp_eq_u32 vcc, -1, v{vD1}")
    E.flush()
    E("s_cbranch_vccz L_f2_got")
    spin("L_f2_got")
    if a.sleep2: E(f"s_sleep {a.sleep2}")
    E("s_branch L_f2_poll2")
    E.label("L_f2_got")
    stamp(13)
    for t in range(7):
        u, half = divmod(t, 2)
        for c in range(2):
            d = acc[2 * c + half]
            cc = "0" if u == 0 else r4(d)
            E(f"v_mfma_f32_16x16x32_bf16 {r4(d)}, {r4(vW+8*t+4*c)}, {r4(hb+4*u)}, {cc}")
    bf16r_many(E, range(ac, ac + 4))
    for i in range(4): E(f"v_add_f32 v{hx+i}, v{hxk+i}, v{ac+i}")
    bf16r_many(E, range(hx, hx + 4))
    for c in range(2):
        for r in range(4):
            E(f"v_cndmask_b32 v{acc[2*c]+r}, v{acc[2*c+1]+r}, v{acc[2*c]+r}, s[{sLO8}:{sLO8+1}]")
        E(f"ds_write_b128 v{vRWp}, {r4(acc[2*c])} offset:{F2R+1024*c}")
    E("s_waitcnt lgkmcnt(0)")
    E("s_barrier")
    E(f"s_cmp_ge_u32 s{sW}, 2")
    E("s_cbranch_scc1 L_f2_next")
    pb = vF + 112
    for p in range(8):
        E(f"ds_read_b128 {r4(pb+4*p)}, v{vRRp} offset:{F2R+2048*p}")
    E("s_waitcnt lgkmcnt(0)")
    for st in (4, 2, 1):
        for p in range(st):
            for i in range(4):
                E(f"v_add_f32 v{pb+4*p+i}, v{pb+4*p+i}, v{pb+4*(p+st)+i}")
    for i in range(4):
        E(f"v_add_f32_dpp v{pb+i}, v{pb+i}, v{pb+i} row_ror:8 row_mask:0xf bank_mask:0xf")
    bf16r_many(E, range(pb, pb + 4))
    for i in range(4): E(f"v_add_f32 v{pb+i}, v{hx+i}, v{pb+i}")
    E(f"v_cvt_pk_bf16_f32 v{vD2}, v{pb}, v{pb+1}")
    E(f"v_cvt_pk_bf16_f32 v{vD2+1}, v{pb+2}, v{pb+3}")
    E(f"s_and_b64 exec, exec, s[{sLO8}:{sLO8+1}]")
    E("s_cbranch_execz L_f2_next")
    E(f"buffer_store_dwordx2 {r2(vD2)}, v{vXO}, {S4(sOUT)}, s{sT1} offen", tag="extra")
    stamp(14)
    E.label("L_f2_next")
    E(f"s_cmp_lg_u32 s{sDRY}, 0")
    E("s_cbranch_scc1 L_fin")
    E(f"s_mov_b64 s[{sDRY}:{sDRY+1}], -1")
    E.flush()
    E("s_branch L_f2_top")
    E.label("L_fin")
    if a.ts and a.echo:
        E(f"s_cmp_lg_u32 s{sROLE}, 2")
        E("s_cbranch_scc1 L_end")
        E(f"s_cmp_lg_u32 s{sW}, 0")
        E("s_cbranch_scc1 L_end")
        E("s_waitcnt vmcnt(0)")
        stamp(15)
        E("s_waitcnt lgkmcnt(0)")
        E(f"s_sub_u32 s{sT0}, s{sTS+2*a.echo}, s{sTS+2*a.echo0}")
        E(f"s_min_u32 s{sT0}, s{sT0}, 20000")
        E(f"s_add_u32 s{sT0}, s{sT0}, s{sTS+30}")
        E.label("L_echo")
        E(f"s_memrealtime s[{sT2}:{sT2+1}]")
        E("s_waitcnt lgkmcnt(0)")
        E(f"s_sub_u32 s{sT1}, s{sT0}, s{sT2}")
        E(f"s_cmp_gt_i32 s{sT1}, 0")
        E("s_cbranch_scc1 L_echo")
    elif a.ts:
        E("s_waitcnt vmcnt(0)")
        stamp(15)
        write_stamps()
    E.label("L_end")
    E("s_endpgm")
    E.label("L_codeend")

    out = HDR
    out += f"; @launch grid=(256,1,1) block=(512,1,1) lds={LDS_TOTAL}\n"
    out += f""".amdgcn_target "amdgcn-amd-amdhsa--gfx950"
.text
.globl {NAME}
.p2align 8
.type {NAME},@function
{NAME}:
"""
    out += E.text().replace("CODE_BYTES", f"L_codeend-{NAME}")
    out += f""".section .rodata,"a"
.p2align 6
.amdhsa_kernel {NAME}
  .amdhsa_next_free_vgpr 256
  .amdhsa_next_free_sgpr 102
  .amdhsa_accum_offset 256
  .amdhsa_group_segment_fixed_size 0
  .amdhsa_kernarg_size 88
  .amdhsa_user_sgpr_count 2
  .amdhsa_user_sgpr_kernarg_segment_ptr 1
  .amdhsa_system_sgpr_workgroup_id_x 1
  .amdhsa_float_denorm_mode_32 3
.end_amdhsa_kernel
"""
    return out

def parser():
    p = argparse.ArgumentParser()
    p.add_argument("-o", default="sequential_preLN__sliding_block_cached__dense_activation_relu__decode.s")
    p.add_argument("--fnt", type=int, default=1)
    p.add_argument("--ts", type=int, default=0)
    p.add_argument("--sleep", type=int, default=1)
    p.add_argument("--sleep2", type=int, default=1)
    p.add_argument("--depth", type=int, default=6)
    p.add_argument("--first", type=int, default=3)
    p.add_argument("--budget", type=float, default=2)
    p.add_argument("--qspan", type=int, default=30)
    p.add_argument("--ostart", type=int, default=0)
    p.add_argument("--otail", type=int, default=4)
    p.add_argument("--tkpos", type=int, default=28)
    p.add_argument("--pf", type=int, default=0)
    p.add_argument("--echo", type=int, default=0)
    p.add_argument("--echo0", type=int, default=0)
    p.add_argument("--kvpol", default=" nt")
    p.add_argument("--wpol", default=" nt")
    p.add_argument("--bd1", type=int, default=0)
    p.add_argument("--bd2", type=int, default=0)
    p.add_argument("--bd3", type=int, default=0)
    p.add_argument("--hmap", type=int, default=0)
    p.add_argument("--tlb", type=int, default=0)
    p.add_argument("--dry", type=int, default=0)
    return p

if __name__ == "__main__":
    a = parser().parse_args()
    open(a.o, "w").write(gen(a))
```

```python
import re

TRANS = ("v_exp_f32", "v_log_f32", "v_rcp_f32", "v_rsq_f32", "v_sqrt_f32", "v_sin_f32", "v_cos_f32")

def regs_of(tok):
    tok = tok.strip()
    tok = tok.lstrip('-')
    m = re.fullmatch(r"abs\((.*)\)", tok)
    if m: tok = m.group(1)
    m = re.fullmatch(r"\|(.*)\|", tok)
    if m: tok = m.group(1)
    m = re.fullmatch(r"([vsa])\[(\d+):(\d+)\]", tok)
    if m:
        return {(m.group(1), i) for i in range(int(m.group(2)), int(m.group(3)) + 1)}
    m = re.fullmatch(r"([vsa])(\d+)", tok)
    if m:
        return {(m.group(1), int(m.group(2)))}
    if tok in ("vcc", "vcc_lo", "vcc_hi"):
        return {("x", "vcc")}
    if tok in ("exec", "exec_lo", "exec_hi"):
        return {("x", "exec")}
    if tok == "m0":
        return {("x", "m0")}
    return set()

class Ins:
    def __init__(self, text):
        self.text = text
        t = text.split(";")[0].strip()
        parts = t.split(None, 1)
        self.op = parts[0]
        rest = parts[1] if len(parts) > 1 else ""
        ops = []
        depth = 0; cur = ""
        for ch in rest:
            if ch in "[(": depth += 1
            if ch in "])": depth -= 1
            if ch == "," and depth == 0:
                ops.append(cur.strip()); cur = ""
            else:
                cur += ch
        if cur.strip(): ops.append(cur.strip())
        self.mods = ""
        if ops:
            last = ops[-1].split(None, 1)
            ops[-1] = last[0]
            if len(last) > 1: self.mods = last[1]
        self.ops = ops
        op = self.op
        self.is_mfma = op.startswith("v_mfma")
        self.is_valu = op.startswith("v_") and not self.is_mfma
        self.is_dot = op.startswith("v_dot")
        self.is_trans = any(op.startswith(x) for x in TRANS)
        self.is_dpp = op.endswith("_dpp") or "row_" in self.mods or "quad_perm" in self.mods
        self.is_vmem = op.startswith("buffer_") or op.startswith("global_")
        self.is_ds = op.startswith("ds_")
        self.is_salu = op.startswith("s_")
        self.is_lane = op.startswith("v_readlane") or op.startswith("v_readfirstlane")
        self.is_perml = op.startswith("v_permlane")
        self.lds_dma = self.is_vmem and re.search(r"\blds\b", self.mods) is not None
        R = [regs_of(o) for o in ops]
        dst = set(); src = set()
        self.srcC = set(); self.srcAB = set()
        if self.is_mfma:
            dst = R[0]; self.srcAB = R[1] | R[2]; self.srcC = R[3]; src = self.srcAB | self.srcC
        elif self.is_vmem:
            if "store" in op or ("atomic" in op and "sc0" not in self.mods) or self.lds_dma or op in ("buffer_wbl2", "buffer_inv"):
                for r in R: src |= r
            elif "atomic" in op:
                dst = R[0]
                for r in R: src |= r
            else:
                dst = R[0]
                for r in R[1:]: src |= r
            if self.lds_dma: src |= {("x", "m0")}
        elif self.is_ds:
            if "write" in op or op.startswith("ds_add"):
                for r in R: src |= r
            else:
                dst = R[0]
                for r in R[1:]: src |= r
        elif self.is_valu:
            if op.startswith("v_permlane"):
                dst = R[0] | R[1]; src = R[0] | R[1]
            elif op.startswith("v_add_co") or op.startswith("v_addc_co") or op.startswith("v_sub_co"):
                dst = R[0] | R[1]
                for r in R[2:]: src |= r
            else:
                dst = R[0]
                for r in R[1:]: src |= r
                if op.startswith("v_fmac") or op.startswith("v_dot2c") or self.is_dpp:
                    src |= R[0]
            if self.is_dot and len(R) >= 4:
                self.srcAB = R[1] | R[2]; self.srcC = R[3]
            if op.startswith("v_dot2c"):
                self.srcAB = R[1] | R[2]; self.srcC = R[0]
            self.dppsrc = R[1] if self.is_dpp else set()
        elif self.is_salu:
            if op.startswith("s_cmp") or op.startswith("s_cbranch") or op in ("s_waitcnt", "s_nop", "s_barrier", "s_branch", "s_endpgm", "s_sleep", "s_setprio"):
                for r in R: src |= r
            else:
                if R: dst = R[0]
                for r in R[1:]: src |= r
                if "saveexec" in op: dst = dst | {("x", "exec")}
        self.dst = dst; self.src = src
        self.wide_store = self.is_vmem and "store" in op and ("x4" in op or "x3" in op)
        self.store_data = R[0] if self.wide_store and op.startswith("buffer") else (R[1] if self.wide_store else set())
        if op == "s_nop": self.states = int(ops[0], 0) + 1
        else: self.states = 1

def need(p, c):
    n = 0
    pv = {r for r in p.dst if r[0] in "va"}
    ps = {r for r in p.dst if r[0] == "s" or r == ("x", "vcc")}
    if p.is_valu:
        if c.is_valu and c.is_dpp and (pv & c.dppsrc): n = max(n, 2)
        if c.is_lane and (pv & c.src): n = max(n, 1)
        if c.is_perml and (pv & c.src): n = max(n, 2)
        if (c.is_valu or c.is_mfma) and (ps & c.src): n = max(n, 2)
        if c.is_lane and (ps & c.src): n = max(n, 4)
        if c.is_vmem and (ps & c.src): n = max(n, 5)
        if p.is_trans and c.is_valu and not c.is_trans and (pv & c.src): n = max(n, 1)
        if p.is_trans and (c.is_mfma or c.is_vmem or c.is_ds) and (pv & c.src): n = max(n, 1)
        if c.is_mfma and (pv & c.src): n = max(n, 2)
        if p.is_dot:
            if c.op == p.op:
                if pv & c.srcAB: n = max(n, 3)
            elif (pv & (c.src | c.dst)): n = max(n, 3)
        if ("x", "exec") in p.dst:
            n = max(n, 5)
    if p.is_mfma:
        passes = 4 if "16x16x32" in p.op or "16x16x16" in p.op else 8
        big = {4: 8, 8: 12}[passes]; ov = {4: 6, 8: 10}[passes]; war = {4: 3, 8: 7}[passes]
        if c.is_mfma:
            if pv & c.srcAB: n = max(n, big)
            if pv & c.srcC:
                if c.srcC == pv and c.op == p.op: pass
                else: n = max(n, ov)
            elif pv & c.dst: n = max(n, big)
        else:
            if pv & (c.src | c.dst): n = max(n, big)
        if c.is_valu and (p.srcC & c.dst): n = max(n, war)
    if p.wide_store:
        if c.dst & p.store_data: n = max(n, 2)
    if p.is_salu and ("x", "m0") in p.dst and (c.lds_dma or "addtid" in c.op): n = max(n, 1)
    return n

class Emitter:
    def __init__(self):
        self.lines = []
        self.hist = []
        self.vm = []
        self.nins = 0
    def raw(self, s):
        self.lines.append(s)
    def comment(self, s):
        self.lines.append("    ; " + s)
    def label(self, name):
        self.lines.append(name + ":")
    def flush(self, n=None):
        dist = 0; worst = 0
        for p in reversed(self.hist):
            req = 0
            if p.is_mfma: req = 12 if "32x32" in p.op else 8
            elif p.is_valu: req = 5 if any(r[0] == "s" or r[0] == "x" for r in p.dst) else 3
            elif p.wide_store: req = 2
            elif p.is_salu and ("x", "m0") in p.dst: req = 1
            worst = max(worst, req - dist)
            dist += p.states
            if dist >= 12: break
        if worst > 1:
            Emitter.__call__(self, "s_nop %d" % (worst - 2))
    def __call__(self, text, tag=None):
        c = Ins(text)
        if c.op.startswith("s_cbranch") or c.op == "s_branch":
            Emitter.flush(self)
        dist = 0; pad = 0
        for p in reversed(self.hist):
            r = need(p, c)
            if r - dist > pad: pad = r - dist
            dist += p.states
            if dist >= 12: break
        if pad > 0:
            nop = Ins("s_nop %d" % (pad - 1))
            self.lines.append("    " + nop.text)
            self.hist.append(nop); self.nins += 1
        self.lines.append("    " + text)
        self.hist.append(c); self.nins += 1
        if len(self.hist) > 32: self.hist = self.hist[-32:]
        if c.is_vmem and c.op not in ("buffer_wbl2", "buffer_inv") and tag != "extra":
            self.vm.append(tag)
    def wait_vm(self, tag):
        idx = max(i for i, t in enumerate(self.vm) if t == tag)
        n = len(self.vm) - 1 - idx
        assert n <= 63, n
        self("s_waitcnt vmcnt(%d)" % n)
        self.vm = self.vm[idx + 1:]
    def wait_vm0(self):
        self("s_waitcnt vmcnt(0)")
        self.vm = []
    def outstanding(self):
        return len(self.vm)
    def text(self):
        return "\n".join(self.lines) + "\n"
```

```python
import sys, argparse
from collections import deque
from asmlib import Emitter
from gen2 import (NAME, HDR, srd, srd_off, r4, r2, S4, row_reduce, wave_reduce, bf16r, bf16r_many, unpack10, ln_stats,
                  LOG2E, SCALE, sT0, sT1, sT2, sT3, sT4)

RED = 0
QF = 8448
ML = 8704
TK = 9216
YP = 9472
HN = 29952
HNS = 1344
F2R = 29952
WT = 46592
LDS_TOTAL = 161280
CNT_BASE = 20480
H1_BASE = 40960
TS_BASE = 1 << 20
NF2, NF1 = 20, 27

sW, sH, sB = 3, 26, 27
sK, sV, sWQ, sWO, sX, sWS, sDB, sWF, sOUT, sH1 = 28, 32, 36, 40, 44, 48, 52, 56, 60, 64
sROLE, sTILE = 100, 101
sSPIN = 9
sLO8 = 10
sKO, sVO, sQ0, sQ1, sOO = 12, 13, 14, 15, 20
sDRY = 22
sEX = 24
sTS = 68
vL, vL16, vWQ, vWO = 0, 1, 2, 3
vM = 4
vQ = 8
vB0, vB1 = 12, 16
vD1, vD2 = 20, 24
vT = 28
vS = 32
vF = 48
vJ, vN = vT, vT + 1

class Task:
    def __init__(self, fn, needs=(), frees=(), barrier=0, cost=1, atomic=False):
        self.fn, self.needs, self.frees, self.barrier, self.cost = fn, list(needs), list(frees), barrier, cost
        self.atomic = atomic
        self.q = None

class RecEmitter(Emitter):
    def __init__(self):
        super().__init__(); self.rec = None
    def __call__(self, text, tag=None):
        if self.rec is not None: self.rec.append(("i", text, tag))
        else: super().__call__(text, tag)
    def label(self, name):
        if self.rec is not None: self.rec.append(("l", name, None))
        else: super().label(name)
    def flush(self, n=None):
        if self.rec is not None: self.rec.append(("f", None, None))
        else: super().flush(n)
    def record(self, fn):
        self.rec = []; fn(); r = self.rec; self.rec = None; return deque(r)
    def play(self, item):
        k, a, b = item
        if k == "i": self(a, b)
        elif k == "l": self.label(a)
        else: self.flush()

def gen(a):
    E = RecEmitter()
    nt = a.kvpol
    wnt = a.wpol
    fnt = " nt" if a.fnt else ""
    def stamp(i):
        if a.ts: E(f"s_memrealtime s[{sTS+2*i}:{sTS+2*i+1}]")
    def spin(lbl):
        E(f"s_sub_u32 s{sSPIN}, s{sSPIN}, 1")
        E(f"s_cbranch_scc1 {lbl}")
    def write_stamps():
        E("s_waitcnt lgkmcnt(0)")
        E("s_mov_b64 exec, 1")
        E(f"s_lshl_b32 s{sT0}, s2, 3")
        E(f"s_add_u32 s{sT0}, s{sT0}, s{sW}")
        E(f"s_lshl_b32 s{sT0}, s{sT0}, 8")
        E(f"s_add_u32 s{sT0}, s{sT0}, {TS_BASE}")
        for i in range(16):
            E(f"v_mov_b32 v{vT}, s{sTS+2*i}")
            E(f"v_mov_b32 v{vT+1}, s{sTS+2*i+1}")
            E(f"buffer_store_dwordx2 {r2(vT)}, off, {S4(sWS)}, s{sT0} offset:{8*i}", tag="extra")
            E("s_nop 1")
        E(f"s_getreg_b32 s{sT1}, hwreg(HW_REG_XCC_ID)")
        E(f"v_mov_b32 v{vT}, s{sT1}")
        E(f"v_mov_b32 v{vT+1}, s{sROLE}")
        E(f"buffer_store_dwordx2 {r2(vT)}, off, {S4(sWS)}, s{sT0} offset:128", tag="extra")

    E("s_cmp_ge_u32 s2, 256")
    E("s_cbranch_scc1 L_end")
    E("s_load_dwordx16 s[4:19], s[0:1], 0")
    E("s_load_dwordx4 s[20:23], s[0:1], 64")
    E("s_load_dwordx2 s[24:25], s[0:1], 80")
    if a.ts:
        for i in range(1, 16): E(f"s_mov_b64 s[{sTS+2*i}:{sTS+2*i+1}], 0")
        stamp(0)
    E(f"v_lshrrev_b32 v{vT}, 6, v0")
    E(f"v_and_b32 v{vL}, 63, v0")
    E(f"v_readfirstlane_b32 s{sW}, v{vT}")
    if a.hmap == 3:
        E(f"s_and_b32 s{sH}, s2, 7")
        E(f"s_lshl_b32 s{sH}, s{sH}, 2")
        E(f"s_lshr_b32 s{sH}, {a.htab}, s{sH}")
        E(f"s_and_b32 s{sB}, s{sH}, 4")
        E(f"s_lshl_b32 s{sB}, s{sB}, 2")
        E(f"s_and_b32 s{sH}, s{sH}, 3")
        E(f"s_add_u32 s{sH}, s{sH}, s{sB}")
        E(f"s_bfe_u32 s{sB}, s2, 0x20003")
        E(f"s_lshl_b32 s{sB}, s{sB}, 2")
        E(f"s_add_u32 s{sH}, s{sH}, s{sB}")
    elif a.hmap == 2:
        E(f"s_and_b32 s{sH}, s2, 6")
        E(f"s_lshr_b32 s{sH}, 0x8d, s{sH}")
        E(f"s_and_b32 s{sH}, s{sH}, 3")
        E(f"s_and_b32 s{sB}, s2, 1")
        E(f"s_lshl_b32 s{sB}, s{sB}, 4")
        E(f"s_add_u32 s{sH}, s{sH}, s{sB}")
        E(f"s_bfe_u32 s{sB}, s2, 0x20003")
        E(f"s_lshl_b32 s{sB}, s{sB}, 2")
        E(f"s_add_u32 s{sH}, s{sH}, s{sB}")
    elif a.hmap:
        E(f"s_and_b32 s{sH}, s2, 7")
        E(f"s_lshl_b32 s{sH}, s{sH}, 2")
        E(f"s_bfe_u32 s{sB}, s2, 0x20003")
        E(f"s_add_u32 s{sH}, s{sH}, s{sB}")
    else:
        E(f"s_and_b32 s{sH}, s2, 31")
    E(f"s_lshr_b32 s{sB}, s2, 5")
    E(f"v_lshlrev_b32 v{vL16}, 4, v{vL}")
    E(f"v_lshrrev_b32 v{vJ}, 4, v{vL}")
    E(f"v_and_b32 v{vN}, 15, v{vL}")
    E(f"v_mul_u32_u24 v{vWQ}, 81920, v{vJ}")
    E(f"v_lshl_add_u32 v{vWQ}, v{vN}, 4, v{vWQ}")
    vXS, vXC = vT + 2, vT + 3
    E(f"v_mul_u32_u24 v{vXS}, 20, v{vL}")
    E(f"v_lshrrev_b32 v{vXC}, 3, v{vN}")
    E(f"v_lshl_add_u32 v{vXC}, v{vXC}, 2, v{vJ}")
    t0, t1, t2, t3 = 64, 65, 66, 67
    E(f"s_lshl_b32 s{t0}, s{sW}, 3")
    E(f"v_add_u32 v{vXC}, s{t0}, v{vXC}")
    E(f"v_mul_u32_u24 v{vXC}, 20, v{vXC}")
    E(f"s_lshl_b32 s{t0}, s{sB}, 5")
    E(f"s_add_u32 s{t0}, s{t0}, s{sH}")
    E(f"s_lshl_b32 s{t0}, s{t0}, 20")
    E(f"s_add_u32 s{t0}, s{t0}, 0xc0000")
    E(f"s_lshl_b32 s{t1}, s{sH}, 8")
    E(f"s_mul_i32 s{t2}, s{sH}, {128*1280}")
    E(f"s_mul_i32 s{t3}, s{sB}, 1280")
    E(f"s_mov_b32 s{sROLE}, 0")
    E(f"s_lshl_b32 s{sTILE}, s{sW}, 10")
    if a.pf:
        E(f"s_getpc_b64 s[{sWF}:{sWF+1}]")
        E.label("L_pc")
        E(f"s_and_b32 s{sWF+1}, s{sWF+1}, 0xffff")
        E(f"s_mov_b32 s{sWF+2}, L_codeend-L_pc")
        E(f"s_mov_b32 s{sWF+3}, 0x20000")
        E(f"v_lshlrev_b32 v{vB0}, 7, v{vL}")
        E(f"s_lshl_b32 s{sOUT}, s{sW}, 13")
        E(f"s_cmp_gt_u32 s{sW}, {a.pf - 1}")
        E("s_cbranch_scc1 L_nopf")
        E(f"buffer_load_dword v{vS+15}, v{vB0}, {S4(sWF)}, s{sOUT} offen", tag="extra")
        E.label("L_nopf")
    E("s_waitcnt lgkmcnt(0)")
    srd_off(E, sK, 6, f"s{t0}", 0x40000)
    slot_of = {}
    free = deque(range(52))
    def alloc(tag):
        s = free.popleft(); slot_of[tag] = vF + 4 * s; return slot_of[tag]
    def release(tag):
        free.append((slot_of[tag] - vF) // 4)
    E(f"buffer_load_dwordx4 {r4(alloc('k0'))}, v{vL16}, {S4(sK)}, s{sTILE} offen{nt}", tag="k0")
    srd(E, sX, 4, 5, 10240)
    xs_raw, xc_raw = vS, vS + 6
    E(f"buffer_load_dwordx4 {r4(xs_raw)}, v{vXS}, {S4(sX)}, s{t3} offen", tag="xs")
    E(f"buffer_load_dword v{xs_raw+4}, v{vXS}, {S4(sX)}, s{t3} offen offset:16", tag="xs")
    E(f"buffer_load_dwordx4 {r4(xc_raw)}, v{vXC}, {S4(sX)}, s{t3} offen", tag="xc")
    E(f"buffer_load_dword v{xc_raw+4}, v{vXC}, {S4(sX)}, s{t3} offen offset:16", tag="xc")
    E(f"s_add_u32 s{sTILE}, s{sTILE}, 8192")
    E(f"buffer_load_dwordx4 {r4(alloc('k1'))}, v{vL16}, {S4(sK)}, s{sTILE} offen{nt}", tag="k1")
    E(f"s_add_u32 s{sTILE}, s{sTILE}, 8192")
    E(f"buffer_load_dwordx4 {r4(alloc('k2'))}, v{vL16}, {S4(sK)}, s{sTILE} offen{nt}", tag="k2")
    srd_off(E, sWQ, 10, f"s{t1}", 639 * 8192 + 256)
    srd_off(E, sV, 8, f"s{t0}", 0x40000)
    srd_off(E, sWO, 12, f"s{t2}", 128 * 1280)
    srd(E, sWS, 24, 25, 1 << 22)
    srd(E, sDB, 22, 23, 256)
    srd(E, sOUT, 20, 21, 10240)
    srd_off(E, sH1, 24, H1_BASE, 108 * 256)
    E(f"s_add_u32 s{sKO}, s{sTILE}, 8192")
    E(f"s_lshl_b32 s{sVO}, s{sW}, 10")
    E(f"s_mul_i32 s{sQ0}, s{sW}, 655360")
    E(f"s_add_u32 s{sQ1}, s{sQ0}, 327680")
    E(f"s_mul_i32 s{sOO}, s{sW}, 1280")

    if a.tlb:
        E(f"s_cmp_lg_u32 s{sW}, 1")
        E("s_cbranch_scc1 L_notlb")
        E(f"buffer_load_dword v{vS+14}, off, {S4(sV)}, 0 nt", tag="extra")
        E(f"buffer_load_dword v{vS+14}, off, {S4(sWO)}, 0 nt", tag="extra")
        if a.tlb > 1:
            E(f"s_mov_b32 s{sWF+2}, {640*3456}")
            E(f"s_mov_b32 s{sWF+3}, 0x20000")
            E(f"s_mov_b32 s{sT0}, {640*3456-4}")
            for p in (16, 18):
                E(f"s_mov_b32 s{sWF}, s{p}")
                E(f"s_and_b32 s{sWF+1}, s{p+1}, 0xffff")
                E(f"buffer_load_dword v{vS+14}, off, {S4(sWF)}, 0 nt", tag="extra")
                E(f"buffer_load_dword v{vS+14}, off, {S4(sWF)}, s{sT0} nt", tag="extra")
            E(f"s_mov_b32 s{sT0}, 0x20000")
            E(f"buffer_load_dword v{vS+14}, off, {S4(sWS)}, s{sT0} nt", tag="extra")
            E(f"buffer_load_dword v{vS+14}, off, {S4(sOUT)}, 0 nt", tag="extra")
        E.label("L_notlb")
    if a.skew >= 0:
        E("s_cmp_ge_u32 s2, 8")
        E("s_cbranch_scc1 L_noskew")
        E("s_waitcnt lgkmcnt(0)")
        E(f"v_mov_b32 v{vS+12}, s{sTS}")
        E(f"s_lshl_b32 s{sT0}, s2, 2")
        E(f"s_add_u32 s{sT0}, s{sT0}, 0x30000")
        E(f"buffer_store_dword v{vS+12}, off, {S4(sWS)}, s{sT0} sc1", tag="extra")
        E.label("L_noskew")
    def t_init():
        E(f"s_cmp_lg_u32 s{sW}, 7")
        E("s_cbranch_scc1 L_nosent")
        E(f"v_mov_b32 v{vB0}, -1")
        E(f"v_lshlrev_b32 v{vB0+1}, 2, v{vL}")
        E(f"s_lshl_b32 s{sT0}, s2, 8")
        E(f"buffer_store_dword v{vB0}, v{vB0+1}, {S4(sH1)}, s{sT0} offen sc1", tag="extra")
        E.label("L_nosent")
        z = [alloc("z0"), alloc("z1"), alloc("z2"), alloc("z3")]
        zr = [z[0], z[0] + 2, z[1], z[1] + 2, z[2], z[2] + 2]
        init_seen.update(issued)
        E(f"s_cmp_lg_u32 s{sW}, 6")
        E("s_cbranch_scc1 L_noinit")
        E(f"s_and_b32 s{sT0}, s2, 31")
        E(f"s_cmp_lg_u32 s{sT0}, {a.zwg}")
        E("s_cbranch_scc1 L_noinit")
        for q in z[:3]:
            for i in range(4): E(f"v_mov_b32 v{q+i}, 0")
        E(f"v_lshlrev_b32 v{z[3]}, 3, v{vL}")
        E(f"v_lshlrev_b32 v{z[3]+1}, 8, v{vL}")
        E(f"s_mul_i32 s{sT0}, s{sB}, 2560")
        for i in range(5):
            E(f"buffer_atomic_swap_x2 {r2(zr[i])}, v{z[3]}, {S4(sWS)}, s{sT0} offen offset:{512*i} sc0", tag="extra")
        E(f"s_lshl_b32 s{sT0}, s{sB}, 11")
        E(f"s_add_u32 s{sT0}, s{sT0}, {CNT_BASE}")
        E("s_mov_b64 exec, 0xff")
        E(f"buffer_atomic_swap v{zr[5]}, v{z[3]+1}, {S4(sWS)}, s{sT0} offen sc0", tag="extra")
        E("s_mov_b64 exec, -1")
        E.label("L_noinit")
    init_seen = set()
    def t_flagset():
        assert "wq11" not in init_seen
        E(f"s_cmp_lg_u32 s{sW}, 6")
        E("s_cbranch_scc1 L_noflag")
        E(f"s_and_b32 s{sT0}, s2, 31")
        E(f"s_cmp_lg_u32 s{sT0}, {a.zwg}")
        E("s_cbranch_scc1 L_noflag")
        E(f"v_mov_b32 v{slot_of['z3']}, 1")
        E(f"s_lshl_b32 s{sT0}, s{sB}, 2")
        E("s_mov_b64 exec, 1")
        E(f"buffer_store_dword v{slot_of['z3']}, off, {S4(sDB)}, s{sT0} sc1", tag="extra")
        E("s_mov_b64 exec, -1")
        E.label("L_noflag")

    def kload(f):
        def fn():
            E(f"buffer_load_dwordx4 {r4(alloc(f'k{f}'))}, v{vL16}, {S4(sK)}, s{sKO} offen{nt}", tag=f"k{f}")
            if f < 31: E(f"s_add_u32 s{sKO}, s{sKO}, 8192")
        return (f"k{f}", fn, True)
    def vload(f):
        def fn():
            E(f"buffer_load_dwordx4 {r4(alloc(f'v{f}'))}, v{vL16}, {S4(sV)}, s{sVO} offen{nt}", tag=f"v{f}")
            if f < 31: E(f"s_add_u32 s{sVO}, s{sVO}, 8192")
        return (f"v{f}", fn, True)
    def qload(f):
        def fn():
            s = sQ0 if f % 2 == 0 else sQ1
            E(f"buffer_load_dwordx4 {r4(alloc(f'wq{f}'))}, v{vWQ}, {S4(sWQ)}, s{s} offen{wnt}", tag=f"wq{f}")
            if f < 18: E(f"s_add_u32 s{s}, s{s}, 8192")
        return (f"wq{f}", fn, True)
    def oload(f):
        def fn():
            fp, cg = divmod(f, 5)
            E(f"buffer_load_dwordx4 {r4(alloc(f'wo{f}'))}, v{vWO}, {S4(sWO)}, s{sOO} offen offset:{cg*256}{wnt}", tag=f"wo{f}")
            if cg == 4 and fp < 3: E(f"s_add_u32 s{sOO}, s{sOO}, {8*1280}")
        return (f"wo{f}", fn, True)
    vFL = vWQ
    vTK = vQ + 3
    def fload():
        def fn():
            E(f"v_and_b32 v{vFL}, 7, v{vL}")
            E(f"v_lshlrev_b32 v{vFL}, 2, v{vFL}")
            E(f"buffer_load_dword v{vFL}, v{vFL}, {S4(sDB)}, 0 offen sc1", tag="flag")
        return ("flag", fn, False)
    def ticket():
        def fn():
            E(f"s_cmp_lg_u32 s{sW}, 0")
            E("s_cbranch_scc1 L_notk")
            E(f"v_mov_b32 v{vTK}, 1")
            E("s_mov_b64 exec, 1")
            E(f"buffer_atomic_add v{vTK}, off, {S4(sDB)}, 0 offset:128 sc0", tag="extra")
            E("s_mov_b64 exec, -1")
            E.label("L_notk")
        return ("tk", fn, False)
    def l2pf_outer():
        def fn():
            vPF = vS + 13
            E(f"s_and_b32 s{sT0}, s2, 7")
            E(f"s_lshl_b32 s{sT0}, s{sT0}, 2")
            E(f"s_lshr_b32 s{sT0}, {a.rtab}, s{sT0}")
            E(f"s_and_b32 s{sT0}, s{sT0}, 15")
            E(f"s_lshr_b32 s{sT1}, s2, 3")
            E(f"s_mov_b32 s{sWF+2}, {640*3456}")
            E(f"s_mov_b32 s{sWF+3}, 0x20000")
            E(f"s_cmp_ge_u32 s{sT0}, 8")
            E("s_cbranch_scc1 L_l2b")
            E(f"s_cmp_ge_u32 s{sW}, 3")
            E("s_cbranch_scc1 L_nol2")
            E(f"s_mov_b32 s{sWF}, s16")
            E(f"s_and_b32 s{sWF+1}, s17, 0xffff")
            E(f"s_mul_i32 s{sT2}, s{sT0}, {9*128}")
            E(f"s_mul_i32 s{sT0}, s{sW}, {3*128}")
            E(f"s_add_u32 s{sT2}, s{sT2}, s{sT0}")
            E(f"s_mul_i32 s{sT1}, s{sT1}, {20*3456}")
            E(f"s_add_u32 s{sT2}, s{sT2}, s{sT1}")
            E(f"v_mul_u32_u24 v{vPF}, 43, v{vL}")
            E(f"v_lshrrev_b32 v{vPF}, 7, v{vPF}")
            E(f"v_mul_u32_u24 v{vPF}, {3456-384}, v{vPF}")
            E(f"v_lshl_add_u32 v{vPF}, v{vL}, 7, v{vPF}")
            E(f"s_mov_b32 exec_hi, 0xfffffff")
            E("s_branch L_l2go")
            E.label("L_l2b")
            E(f"s_cmp_ge_u32 s{sW}, 2")
            E("s_cbranch_scc1 L_nol2")
            E(f"s_mov_b32 s{sWF}, s18")
            E(f"s_and_b32 s{sWF+1}, s19, 0xffff")
            E(f"s_sub_u32 s{sT0}, s{sT0}, 8")
            E(f"s_lshl_b32 s{sT0}, s{sT0}, 1")
            E(f"s_add_u32 s{sT2}, s{sT0}, s{sW}")
            E(f"s_lshl_b32 s{sT2}, s{sT2}, 7")
            E(f"s_mul_i32 s{sT1}, s{sT1}, {54*1280}")
            E(f"s_add_u32 s{sT2}, s{sT2}, s{sT1}")
            E(f"v_mul_u32_u24 v{vPF}, 1280, v{vL}")
            E(f"s_mov_b32 exec_hi, 0x3fffff")
            E.label("L_l2go")
            E(f"buffer_load_dword v{vPF}, v{vPF}, {S4(sWF)}, s{sT2} offen", tag="extra")
            E("s_mov_b64 exec, -1")
            E.label("L_nol2")
        return fn
    t_l2pf = l2pf_outer()
    sPO, sPC, sPD = 21, 24, 25
    def t_spf0():
        E(f"s_and_b32 s{sT0}, s2, 7")
        E(f"s_lshl_b32 s{sT0}, s{sT0}, 2")
        E(f"s_lshr_b32 s{sT0}, {a.rtab}, s{sT0}")
        E(f"s_and_b32 s{sPC}, s{sT0}, 15")
        E(f"s_lshr_b32 s{sT1}, s2, 3")
        E(f"s_mov_b32 s{sWF+2}, {640*3456}")
        E(f"s_mov_b32 s{sWF+3}, 0x20000")
        E(f"s_mul_i32 s{sT2}, s{sT1}, 20")
        E(f"s_add_u32 s{sT2}, s{sT2}, s{sW}")
        E(f"s_mul_i32 s{sT2}, s{sT2}, 3456")
        E(f"s_mul_i32 s{sT0}, s{sPC}, 1152")
        E(f"s_add_u32 s{sT2}, s{sT2}, s{sT0}")
        E(f"s_mul_i32 s{sT3}, s{sT1}, 54")
        E(f"s_add_u32 s{sT3}, s{sT3}, s{sW}")
        E(f"s_mul_i32 s{sT3}, s{sT3}, 1280")
        E(f"s_sub_u32 s{sT0}, s{sPC}, 8")
        E(f"s_lshl_b32 s{sT0}, s{sT0}, 8")
        E(f"s_add_u32 s{sT3}, s{sT3}, s{sT0}")
        E(f"s_cmp_lt_u32 s{sPC}, 8")
        E(f"s_cselect_b32 s{sPO}, s{sT2}, s{sT3}")
        E(f"s_cselect_b32 s{sWF}, s16, s18")
        E(f"s_cselect_b32 s{sWF+1}, s17, s19")
        E(f"s_and_b32 s{sWF+1}, s{sWF+1}, 0xffff")
    def t_spf(part):
        def fn():
            E(f"s_cmp_lt_u32 s{sPC}, 8")
            E(f"s_cbranch_scc0 L_spb{part}")
            if part == 2:
                E(f"s_cmp_ge_u32 s{sW}, 4")
                E(f"s_cbranch_scc1 L_spe{part}")
            for ln in range(9):
                for hf in range(a.sphalf):
                    E(f"s_buffer_load_dword s{sPD}, {S4(sWF)}, s{sPO} offset:{part*8*3456 + ln*128 + hf*64}")
            E(f"s_branch L_spe{part}")
            E.label(f"L_spb{part}")
            for k in ([0, 1, 2], [3, 4], [5, 6])[part]:
                for ln in range(2):
                    for hf in range(a.sphalf):
                        E(f"s_buffer_load_dword s{sPD}, {S4(sWF)}, s{sPO} offset:{k*8*1280 + ln*128 + hf*64}")
            E.label(f"L_spe{part}")
        return fn
    loads = []
    qi = 0
    for f in range(3, 32):
        want = min(20, (f - 2) * 20 // (a.qspan - 2) + 1)
        while qi < want:
            loads.append(qload(qi)); qi += 1
        loads.append(kload(f))
    while qi < 20:
        loads.append(qload(qi)); qi += 1
    nmid = 20 - a.otail
    oi = 0
    for f in range(32):
        loads.append(vload(f))
        if f == 16: loads.append(fload())
        want = max(0, (f + 1 - a.ostart)) * nmid // (32 - a.ostart)
        while oi < want:
            loads.append(oload(oi)); oi += 1
    while oi < 20:
        loads.append(oload(oi)); oi += 1

    vRW, vRR = vXS, vXC
    def t_setup():
        E(f"s_mov_b32 s{sSPIN}, 0x40000")
        E(f"s_mov_b32 s{sLO8}, 0x00ff00ff")
        E(f"s_mov_b32 s{sLO8+1}, 0x00ff00ff")
        E(f"v_mul_u32_u24 v{vWO}, 40960, v{vJ}")
        E(f"v_and_b32 v{vB0}, 1, v{vN}")
        E(f"v_lshl_add_u32 v{vWO}, v{vB0}, 7, v{vWO}")
        E(f"v_lshrrev_b32 v{vB0+1}, 1, v{vN}")
        E(f"v_lshl_add_u32 v{vWO}, v{vB0+1}, 4, v{vWO}")
        E(f"v_lshlrev_b32 v{vB0}, 4, v{vB0}")
        E(f"v_mov_b32 v{vB0+2}, 0xffff")
        E(f"v_lshlrev_b32 v{vB0}, v{vB0}, v{vB0+2}")
        E(f"v_and_b32 v{vB0+1}, 3, v{vB0+1}")
        for w in range(4):
            E(f"v_cmp_eq_u32 vcc, {w}, v{vB0+1}")
            E(f"v_cndmask_b32 v{vM+w}, 0, v{vB0}, vcc")
        E(f"v_lshrrev_b32 v{vB0}, 3, v{vN}")
        E(f"s_lshl_b32 s{sT0}, s{sW}, 1")
        E(f"v_add_u32 v{vB0}, s{sT0}, v{vB0}")
        E(f"v_mul_u32_u24 v{vRW}, 528, v{vB0}")
        E(f"v_and_b32 v{vB0}, 7, v{vN}")
        E(f"v_lshl_add_u32 v{vRW}, v{vB0}, 6, v{vRW}")
        E(f"v_lshl_add_u32 v{vRW}, v{vJ}, 4, v{vRW}")
        E(f"v_mul_u32_u24 v{vRR}, 528, v{vN}")
        E(f"v_lshl_add_u32 v{vRR}, v{vJ}, 4, v{vRR}")
        E(f"s_lshl_b32 s{sT0}, s{sW}, 6")
        E(f"v_add_u32 v{vRR}, s{sT0}, v{vRR}")
    f0 = 8
    vMEAN, vRCP = 18, 19
    def t_ln1a():
        stamp(1)
        unpack10(E, xs_raw, f0)
        ln_stats(E, f0, 20, 21, 22, vMEAN, vRCP)
    def t_ln1b():
        unpack10(E, xc_raw, f0)
        for i in range(10): E(f"v_sub_f32 v{f0+i}, v{f0+i}, v{vMEAN}")
        bf16r_many(E, range(f0, f0 + 10))
        for i in range(10): E(f"v_mul_f32 v{f0+i}, v{f0+i}, v{vRCP}")
        for i in range(10): E(f"v_cvt_pk_bf16_f32 v{vS+i}, v{f0+i}, v{f0+i}")
    def bfrag(dst, src):
        for w in range(4): E(f"v_and_b32 v{dst+w}, v{src}, v{vM+w}")
    def t_pair(t, pre):
        def fn():
            B = vB0 if t % 2 == 0 else vB1
            bfrag(B, vS + t)
            c1 = "0" if t == 0 else r4(vD1)
            c2 = "0" if t == 0 else r4(vD2)
            E(f"v_mfma_f32_16x16x32_bf16 {r4(vD1)}, {r4(slot_of[f'{pre}{2*t}'])}, {r4(B)}, {c1}")
            E(f"v_mfma_f32_16x16x32_bf16 {r4(vD2)}, {r4(slot_of[f'{pre}{2*t+1}'])}, {r4(B)}, {c2}")
        return fn
    def red_a():
        for r in range(4):
            E(f"v_cndmask_b32 v{vD1+r}, v{vD2+r}, v{vD1+r}, s[{sLO8}:{sLO8+1}]")
        E(f"ds_write_b128 v{vRW}, {r4(vD1)} offset:{RED}")
    def t_bar():
        E("s_waitcnt lgkmcnt(0)")
        E("s_barrier")
    def red_b(dst):
        E(f"ds_read_b128 {r4(dst)}, v{vRR} offset:{RED}")
        E("s_waitcnt lgkmcnt(0)")
        row_reduce(E, [dst + i for i in range(4)])
        for i in range(4): E(f"v_cvt_pk_bf16_f32 v{dst+i}, v{dst+i}, v{dst+i}")
    def t_qr2():
        E(f"v_lshlrev_b32 v{vB1}, 6, v{vJ}")
        E(f"s_lshl_b32 s{sT0}, s{sW}, 1")
        E(f"v_add_u32 v{vB1}, s{sT0}, v{vB1}")
        red_b(vB0)
        E(f"s_mov_b32 exec_lo, 0x00010001")
        E(f"s_mov_b32 exec_hi, 0x00010001")
        for i in range(4): E(f"ds_write_b16 v{vB1}, v{vB0+i} offset:{QF+16*i}")
        E("s_mov_b64 exec, -1")
        E(f"v_lshlrev_b32 v{vB1}, 4, v{vN}")
    def t_qr3():
        E(f"ds_read_b128 {r4(vQ)}, v{vB1} offset:{QF}")
        E("s_waitcnt lgkmcnt(0)")
        stamp(2)
    def t_k2(t):
        def fn():
            ks = [slot_of[f"k{2*t+i}"] for i in range(4)]
            acc = [vB0 + i for i in range(4)]
            for i in range(4):
                for u in range(4):
                    E(f"v_dot2_f32_bf16 v{acc[u]}, v{ks[u]+i}, v{vQ+i}, {'0' if i == 0 else 'v%d' % acc[u]}")
            s0, s1 = vS + t, vS + t + 1
            E(f"v_add_f32_dpp v{s0}, v{acc[0]}, v{acc[0]} row_ror:8 row_mask:0xf bank_mask:0x3")
            E(f"v_add_f32_dpp v{s0}, v{acc[1]}, v{acc[1]} row_ror:8 row_mask:0xf bank_mask:0xc")
            E(f"v_add_f32_dpp v{s1}, v{acc[2]}, v{acc[2]} row_ror:8 row_mask:0xf bank_mask:0x3")
            E(f"v_add_f32_dpp v{s1}, v{acc[3]}, v{acc[3]} row_ror:8 row_mask:0xf bank_mask:0xc")
            for mod in ("row_half_mirror", "quad_perm:[1,0,3,2]", "quad_perm:[2,3,0,1]"):
                for s in (s0, s1):
                    E(f"v_add_f32_dpp v{s}, v{s}, v{s} {mod} row_mask:0xf bank_mask:0xf")
            bf16r_many(E, [s0, s1])
            E(f"v_mul_f32 v{s0}, {SCALE:#x}, v{s0}")
            E(f"v_mul_f32 v{s1}, {SCALE:#x}, v{s1}")
            bf16r_many(E, [s0, s1])
        return fn
    m, l = vD1, vD1 + 1
    def t_sm1():
        E(f"v_max3_f32 v{m}, v{vS}, v{vS+1}, v{vS+2}")
        for i in range(3, 15, 2): E(f"v_max3_f32 v{m}, v{m}, v{vS+i}, v{vS+i+1}")
        E(f"v_max_f32 v{m}, v{m}, v{vS+15}")
        for i in range(16): E(f"v_sub_f32 v{vS+i}, v{vS+i}, v{m}")
        for i in range(16): E(f"v_mul_f32 v{vS+i}, {LOG2E:#x}, v{vS+i}")
        for i in range(16): E(f"v_exp_f32 v{vS+i}, v{vS+i}")
        E(f"v_add_f32 v{l}, v{vS}, v{vS+1}")
        E(f"v_add_f32 v{vB0}, v{vS+2}, v{vS+3}")
        for i in range(4, 16, 2):
            E(f"v_add_f32 v{l}, v{l}, v{vS+i}")
            E(f"v_add_f32 v{vB0}, v{vB0}, v{vS+i+1}")
        E(f"v_add_f32 v{l}, v{l}, v{vB0}")
        E(f"v_and_b32 v{vB0}, 56, v{vL}")
        E(f"s_lshl_b32 s{sT0}, s{sW}, 6")
        E(f"v_add_u32 v{vB0}, s{sT0}, v{vB0}")
        E(f"ds_write_b64 v{vB0}, {r2(m)} offset:{ML}")
        E(f"v_lshlrev_b32 v{vB0}, 3, v{vL}")
        stamp(3)
    def t_smb():
        E("s_waitcnt lgkmcnt(0)")
        E("s_barrier")
        stamp(4)
    def t_sm2():
        mg, lg = vD2, vD2 + 1
        E(f"ds_read_b64 {r2(mg)}, v{vB0} offset:{ML}")
        E("s_waitcnt lgkmcnt(0)")
        E(f"v_mov_b32 v{vB0}, v{mg}")
        wave_reduce(E, vB0, sT0, "v_max_f32")
        E(f"v_subrev_f32 v{mg}, s{sT0}, v{mg}")
        E(f"v_subrev_f32 v{m}, s{sT0}, v{m}")
        E(f"v_mul_f32 v{mg}, {LOG2E:#x}, v{mg}")
        E(f"v_mul_f32 v{m}, {LOG2E:#x}, v{m}")
        E(f"v_exp_f32 v{mg}, v{mg}")
        E(f"v_exp_f32 v{m}, v{m}")
        E(f"v_mul_f32 v{lg}, v{lg}, v{mg}")
        wave_reduce(E, lg, sT1)
        E(f"v_rcp_f32 v{l}, s{sT1}")
        E(f"v_mul_f32 v{m}, v{m}, v{l}")
        for i in range(16): E(f"v_mul_f32 v{vS+i}, v{vS+i}, v{m}")
        for i in range(16): E(f"v_cvt_pk_bf16_f32 v{vS+i}, v{vS+i}, v{vS+i}")
    Bs = [vB0, vB1, vD1, vD2]
    vA, vA2, vA3 = vQ, vQ + 1, vQ + 2
    def t_pre_tail():
        E(f"v_and_b32 v{vA}, 7, v{vL}")
        E(f"v_lshlrev_b32 v{vA2}, 6, v{vA}")
        E(f"v_lshl_add_u32 v{vA}, v{vJ}, 4, v{vA2}")
        E(f"s_mul_i32 s{sT0}, s{sW}, 2560")
        E(f"v_add_u32 v{vA}, s{sT0}, v{vA}")
        E(f"v_and_b32 v{vA3}, 56, v{vL}")
        E(f"v_add_u32 v{vA2}, v{vA2}, v{vA3}")
        E(f"s_lshl_b32 s{sT0}, s{sW}, 9")
        E(f"v_add_u32 v{vA2}, s{sT0}, v{vA2}")
        E(f"v_lshlrev_b32 v{vA3}, 2, v{vL}")
    sDO, sDL = 21, 24
    vDM1 = vTK
    def t_role():
        E(f"s_and_b32 s{sT0}, s2, 7")
        E(f"s_lshl_b32 s{sT0}, s{sT0}, 2")
        E(f"s_lshr_b32 s{sT0}, {a.rtab}, s{sT0}")
        E(f"s_and_b32 s{sT0}, s{sT0}, 15")
        E(f"s_lshr_b32 s{sT1}, s2, 3")
        E(f"s_mul_i32 s{sT2}, s{sT0}, 9")
        E(f"s_add_u32 s{sT2}, s{sT2}, s{sT1}")
        E(f"s_add_u32 s{sT2}, s{sT2}, {NF2}")
        E(f"s_cmp_lt_u32 s{sT1}, 9")
        E(f"s_cselect_b32 s{sT2}, s{sT2}, 255")
        E(f"s_sub_u32 s{sT3}, s{sT0}, 8")
        E(f"s_lshl_b32 s{sT3}, s{sT3}, 2")
        E(f"s_add_u32 s{sT3}, s{sT3}, s{sT1}")
        E(f"s_cmp_lt_u32 s{sT1}, 4")
        E(f"s_cselect_b32 s{sT3}, s{sT3}, 255")
        E(f"s_cmp_lt_u32 s{sT0}, 8")
        E(f"s_cselect_b32 s{sTILE}, s{sT2}, s{sT3}")
        E(f"s_mov_b32 s{sWF}, s16")
        E(f"s_and_b32 s{sWF+1}, s17, 0xffff")
        E(f"s_mov_b32 s{sWF+2}, {640*3456}")
        E(f"s_mov_b32 s{sWF+3}, 0x20000")
        E(f"v_lshrrev_b32 v{vDM1}, 3, v{vL}")
        E(f"v_mul_u32_u24 v{vDM1}, {3456-128}, v{vDM1}")
        E(f"v_add_u32 v{vDM1}, v{vL16}, v{vDM1}")
        E(f"s_mul_i32 s{sDO}, s{sW}, {80*3456}")
        E(f"s_sub_u32 s{sT1}, s{sTILE}, {NF2}")
        E(f"s_lshl_b32 s{sT1}, s{sT1}, 7")
        E(f"s_add_u32 s{sDO}, s{sDO}, s{sT1}")
        E(f"s_mul_i32 s{sDL}, s{sW}, {10*1024}")
        E(f"s_add_u32 s{sDL}, s{sDL}, {WT}")
    def t_flag():
        E(f"v_cmp_eq_u32 vcc, 0, v{vFL}")
        E.flush()
        E("s_cbranch_vccz L_flagok")
        E.label("L_flag")
        E("s_sleep 2")
        E(f"v_and_b32 v{vFL}, 7, v{vL}")
        E(f"v_lshlrev_b32 v{vFL}, 2, v{vFL}")
        E(f"buffer_load_dword v{vFL}, v{vFL}, {S4(sDB)}, 0 offen sc1", tag="extra")
        E("s_waitcnt vmcnt(0)")
        E(f"v_cmp_eq_u32 vcc, 0, v{vFL}")
        E.flush()
        E("s_cbranch_vccz L_flagok")
        spin("L_flagok")
        E("s_branch L_flag")
        E.label("L_flagok")
    def t_or1():
        stamp(5)
        red_a()
        t_bar()
        stamp(6)
    def t_or2():
        red_b(vS)
        for fp in range(4): bfrag(Bs[fp], vS + fp)
        for cg in range(5): alloc(f"y{cg}")
    def t_y(f):
        def fn():
            fp, cg = divmod(f, 5)
            y = slot_of[f"y{cg}"]
            c = "0" if fp == 0 else r4(y)
            E(f"v_mfma_f32_16x16x32_bf16 {r4(y)}, {r4(slot_of[f'wo{f}'])}, {r4(Bs[fp])}, {c}")
        return fn
    tasks = []
    tasks.append(Task(t_setup))
    tasks.append(Task(t_ln1a, ["xs"], cost=3))
    tasks.append(Task(t_ln1b, ["xc"], cost=2))
    for t in range(10):
        tasks.append(Task(t_pair(t, "wq"), [f"wq{2*t+1}"], frees=[f"wq{2*t}", f"wq{2*t+1}"]))
        if t == 1: tasks.append(Task(t_init, atomic=True))
        if t == 5: tasks.append(Task(t_flagset, ["wq11"], frees=["z0", "z1", "z2", "z3"], atomic=True))
        if t == a.l2pf and not a.spf: tasks.append(Task(t_l2pf, atomic=True))
        if a.spf:
            if t == 0: tasks.append(Task(t_spf0, atomic=True))
            if t in (2, 4, 6): tasks.append(Task(t_spf(t // 2 - 1), atomic=True))
    tasks.append(Task(red_a))
    tasks.append(Task(t_bar, barrier=a.bd1))
    tasks.append(Task(t_qr2))
    tasks.append(Task(t_bar, barrier=a.bd2))
    tasks.append(Task(t_qr3))
    for t in range(0, 16, 2):
        tasks.append(Task(t_k2(t), [f"k{2*t+3}"], frees=[f"k{2*t+i}" for i in range(4)], cost=2))
    tasks.append(Task(t_sm1, cost=2))
    tasks.append(Task(t_smb, barrier=a.bd3))
    tasks.append(Task(t_sm2, cost=2))
    tasks.append(Task(t_pre_tail))
    tasks.append(Task(t_role, atomic=True))
    for t in range(16):
        tasks.append(Task(t_pair(t, "v"), [f"v{2*t+1}"], frees=[f"v{2*t}", f"v{2*t+1}"], cost=0.5))
        if t == 9: tasks.append(Task(t_flag, ["flag"], atomic=True))
    tasks.append(Task(t_or1, barrier=99))
    tasks.append(Task(t_or2))
    for f in range(20): tasks.append(Task(t_y(f), [f"wo{f}"], cost=0.25))

    issued = {"xs", "xc", "k0", "k1", "k2"}
    pend = deque(tasks)
    def ready(t): return all(n in issued and n not in E.vm for n in t.needs)
    def start(t):
        if t.q is None:
            for n in t.needs:
                assert n in issued, n
                if n in E.vm: E.wait_vm(n)
            t.q = E.record(t.fn)
    def step(t, budget):
        start(t)
        n = 0
        masked = False
        while t.q and (t.atomic or masked or n < budget):
            it = t.q.popleft(); E.play(it); n += 1
            if it[0] == "i" and "exec" in it[1].split(",")[0]:
                masked = not it[1].endswith("exec, -1")
        if not t.q:
            for x in t.frees: release(x)
        return n
    def run(t):
        step(t, 10**9)
    D = a.depth
    for i, (tag, fn, needs_slot) in enumerate(loads):
        while needs_slot and not free:
            run(pend.popleft())
        if tag == "tk":
            while any(t.fn is t_sm1 for t in pend): run(pend.popleft())
        lim = 63 if i < a.first else D
        if len(E.vm) >= lim:
            E(f"s_waitcnt vmcnt({lim-1})")
            E.vm = E.vm[len(E.vm) - (lim - 1):]
        fn(); issued.add(tag)
        if i + 1 < a.first: continue
        budget = a.budget
        while pend and budget > 0 and (pend[0].q is not None or ready(pend[0])):
            if pend[0].barrier > 0:
                pend[0].barrier -= 1
                break
            budget -= step(pend[0], budget)
            if not pend[0].q: pend.popleft()
    while pend: run(pend.popleft())
    assert not E.vm, E.vm
    stamp(7)

    E(f"s_mov_b64 exec, s[{sLO8}:{sLO8+1}]")
    for cg in range(5):
        E(f"ds_write_b128 v{vA}, {r4(slot_of[f'y{cg}'])} offset:{YP+cg*512}")
    E("s_mov_b64 exec, -1")
    E(f"s_mul_i32 s{sT0}, s{sB}, 2560")
    E(f"s_lshl_b32 s{sT1}, s{sW}, 9")
    E(f"s_add_u32 s{sT0}, s{sT0}, s{sT1}")
    E("s_waitcnt lgkmcnt(0)")
    E("s_barrier")
    stamp(8)
    E(f"s_cmp_ge_u32 s{sW}, 5")
    E("s_cbranch_scc1 L_arr")
    vP = vS
    for p in range(8):
        E(f"ds_read_b64 {r2(vP+2*p)}, v{vA2} offset:{YP+p*2560}")
    E("s_waitcnt lgkmcnt(0)")
    for st in (4, 2, 1):
        for p in range(st):
            E(f"v_add_f32 v{vP+2*p}, v{vP+2*p}, v{vP+2*(p+st)}")
            E(f"v_add_f32 v{vP+2*p+1}, v{vP+2*p+1}, v{vP+2*(p+st)+1}")
    E(f"buffer_atomic_add_f32 v{vP}, v{vA3}, {S4(sWS)}, s{sT0} offen", tag="extra")
    E(f"buffer_atomic_add_f32 v{vP+1}, v{vA3}, {S4(sWS)}, s{sT0} offen offset:256", tag="extra")
    E.label("L_arr")
    E(f"v_mov_b32 v{vB0}, 1")
    E(f"v_lshlrev_b32 v{vB0+1}, 8, v{vL}")
    E(f"s_lshl_b32 s{sT0}, s{sB}, 11")
    E(f"s_add_u32 s{sT0}, s{sT0}, {CNT_BASE}")
    E("s_waitcnt vmcnt(0)")
    stamp(9)
    E("s_barrier")
    stamp(10)
    E(f"s_cmp_lg_u32 s{sW}, 0")
    E("s_cbranch_scc1 L_noarr")
    E(f"s_mov_b64 exec, {(1 << a.nrep) - 1}")
    E(f"buffer_atomic_add v{vB0}, v{vB0+1}, {S4(sWS)}, s{sT0} offen", tag="extra")
    E("s_mov_b64 exec, -1")
    E.label("L_noarr")
    E(f"s_cmp_ge_u32 s{sTILE}, {NF2 + NF1}")
    E("s_cbranch_scc1 L_fin")
    E(f"s_mov_b32 s{sWF+2}, {640*3456}")
    E(f"s_mov_b32 s{sWF+3}, 0x20000")
    E("s_barrier")
    E(f"s_cmp_lt_u32 s{sTILE}, {NF2}")
    E("s_cbranch_scc1 L_ffn2")
    for t in range(10):
        E(f"s_mov_b32 m0, s{sDL}")
        E(f"buffer_load_dwordx4 v{vDM1}, {S4(sWF)}, s{sDO} offen{fnt} lds", tag="extra")
        if t < 9:
            E(f"s_add_u32 s{sDO}, s{sDO}, {8*3456}")
            E(f"s_add_u32 s{sDL}, s{sDL}, 1024")

    vW = vF
    E(f"s_mov_b64 s[{sDRY}:{sDRY+1}], {0 if a.dry & 1 else -1}")
    E(f"s_mov_b32 s{sROLE}, 1")
    E(f"s_sub_u32 s{sTILE}, s{sTILE}, {NF2}")
    E(f"s_mov_b32 s{sWF}, s16")
    E(f"s_and_b32 s{sWF+1}, s17, 0xffff")
    vA = vB1
    vDM = vB0
    xr = vS
    ac = vF + 160
    hx = vF + 176
    hb = vF + 80
    E(f"v_mul_u32_u24 v{vA}, 20, v{vL}")
    E(f"s_mul_i32 s{sT0}, s{sW}, 1280")
    E(f"buffer_load_dwordx4 {r4(xr)}, v{vA}, {S4(sX)}, s{sT0} offen", tag="extra")
    E(f"buffer_load_dword v{xr+4}, v{vA}, {S4(sX)}, s{sT0} offen offset:16", tag="extra")
    E(f"v_lshlrev_b32 v{vA+1}, 1, v{vA}")
    E(f"s_mul_i32 s{sT1}, s{sW}, {HNS}")
    E(f"v_add_u32 v{vA+2}, s{sT1}, v{vA}")
    vTR1 = vQ
    E(f"v_lshlrev_b32 v{vTR1}, 10, v{vJ}")
    E(f"v_lshrrev_b32 v{vDM}, 2, v{vN}")
    E(f"v_lshl_add_u32 v{vTR1}, v{vDM}, 7, v{vTR1}")
    E(f"v_and_b32 v{vDM}, 3, v{vN}")
    E(f"v_lshl_add_u32 v{vTR1}, v{vDM}, 3, v{vTR1}")
    E(f"s_and_b32 s{sT0}, s{sW}, 3")
    E(f"s_lshl_b32 s{sT0}, s{sT0}, 5")
    E(f"s_add_u32 s{sT0}, s{sT0}, {WT}")
    E(f"v_add_u32 v{vTR1}, s{sT0}, v{vTR1}")
    E(f"v_add_u32 v{vTR1+1}, {10*4096}, v{vTR1}")
    E(f"v_and_b32 v{vA+3}, 7, v{vL}")
    E(f"v_mul_u32_u24 v{vA+3}, {HNS}, v{vA+3}")
    E(f"v_lshl_add_u32 v{vA+3}, v{vJ}, 4, v{vA+3}")
    E(f"v_lshrrev_b32 v{vDM}, 3, v{vN}")
    E(f"v_lshl_add_u32 v{vA+3}, v{vDM}, 6, v{vA+3}")
    E(f"v_lshlrev_b32 v{vA}, 5, v{vN}")
    E(f"v_lshl_add_u32 v{vA}, v{vJ}, 3, v{vA}")
    E(f"s_lshl_b32 s{sT3}, s{sTILE}, 2")
    E(f"s_add_u32 s{sT3}, s{sT3}, s{sW}")
    E(f"s_lshl_b32 s{sT3}, s{sT3}, 8")
    E(f"s_mul_i32 s{sT2}, s{sW}, 2560")
    E(f"s_and_b32 s{sT4}, s{sTILE}, {a.nrep-1}")
    E(f"s_lshl_b32 s{sT4}, s{sT4}, 8")
    E(f"s_lshl_b32 s{sT1}, s{sW}, 11")
    E(f"s_add_u32 s{sT4}, s{sT4}, s{sT1}")
    E(f"s_add_u32 s{sT4}, s{sT4}, {CNT_BASE}")
    xk = vF + 192
    E.label("L_f1_top")
    E(f"s_mov_b64 exec, s[{sDRY}:{sDRY+1}]")
    E("s_cbranch_execz L_f1_go")
    E("s_waitcnt vmcnt(0)")
    E("s_barrier")
    E(f"s_cmp_ge_u32 s{sW}, 4")
    E("s_cbranch_scc1 L_f1_notr")
    for t in range(20):
        o = (t % 10) * 4096
        E(f"ds_read_b64_tr_b16 {r2(vW+4*t)}, v{vTR1 + t//10} offset:{o}")
        E(f"ds_read_b64_tr_b16 {r2(vW+4*t+2)}, v{vTR1 + t//10} offset:{o+512}")
    E.label("L_f1_notr")
    unpack10(E, xr, xk)
    stamp(11)
    P = a.npoll
    for i in range(P):
        E(f"buffer_load_dword v{vB0+i}, off, {S4(sWS)}, s{sT4} sc1", tag="extra")
        if i < P - 1: E(f"s_sleep {a.stag}")
    E.label("L_f1_poll")
    for i in range(P):
        E(f"s_waitcnt vmcnt({P-1})")
        E(f"v_readfirstlane_b32 s{sT0}, v{vB0+i}")
        E(f"s_cmp_ge_u32 s{sT0}, 32")
        E("s_cbranch_scc1 L_f1_ld")
        if a.sleep: E(f"s_sleep {a.sleep}")
        E(f"buffer_load_dword v{vB0+i}, off, {S4(sWS)}, s{sT4} sc1", tag="extra")
    spin("L_f1_ld")
    E("s_branch L_f1_poll")
    E.label("L_f1_ld")
    E(f"buffer_load_dwordx4 {r4(ac)}, v{vA+1}, {S4(sWS)}, s{sT2} offen sc1", tag="extra")
    E(f"buffer_load_dwordx4 {r4(ac+4)}, v{vA+1}, {S4(sWS)}, s{sT2} offen offset:16 sc1", tag="extra")
    E(f"buffer_load_dwordx2 {r2(ac+8)}, v{vA+1}, {S4(sWS)}, s{sT2} offen offset:32 sc1", tag="extra")
    stamp(12)
    E("s_waitcnt vmcnt(0)")
    E.label("L_f1_go")
    bf16r_many(E, range(ac, ac + 10))
    for i in range(10): E(f"v_add_f32 v{hx+i}, v{xk+i}, v{ac+i}")
    bf16r_many(E, range(hx, hx + 10))
    ln_stats(E, hx, vD1, vD1 + 1, vD1 + 2, vD2, vD2 + 1)
    for i in range(10): E(f"v_sub_f32 v{hx+i}, v{hx+i}, v{vD2}")
    bf16r_many(E, range(hx, hx + 10))
    for i in range(10): E(f"v_mul_f32 v{hx+i}, v{hx+i}, v{vD2+1}")
    for i in range(5): E(f"v_cvt_pk_bf16_f32 v{ac+i}, v{hx+2*i}, v{hx+2*i+1}")
    for i in range(5): E(f"ds_write_b32 v{vA+2}, v{ac+i} offset:{HN+4*i}")
    E("s_waitcnt lgkmcnt(0)")
    E("s_barrier")
    E(f"s_cmp_ge_u32 s{sW}, 4")
    E("s_cbranch_scc1 L_f1_next")
    if a.ts:
        stamp(13); E("s_waitcnt lgkmcnt(0)")
    for u in range(10):
        E(f"ds_read_b128 {r4(hb+4*u)}, v{vA+3} offset:{HN+128*u}")
    for u in range(10):
        E(f"s_waitcnt lgkmcnt({9-u})")
        c1 = "0" if u == 0 else r4(vD1)
        c2 = "0" if u == 0 else r4(vD2)
        E(f"v_mfma_f32_16x16x32_bf16 {r4(vD1)}, {r4(vW+8*u)}, {r4(hb+4*u)}, {c1}")
        E(f"v_mfma_f32_16x16x32_bf16 {r4(vD2)}, {r4(vW+8*u+4)}, {r4(hb+4*u)}, {c2}")
    for i in range(4):
        E(f"v_add_f32_dpp v{vD1+i}, v{vD2+i}, v{vD1+i} row_ror:8 row_mask:0xf bank_mask:0xf")
    for i in range(4): E(f"v_max_f32 v{vD1+i}, 0, v{vD1+i}")
    E(f"v_cvt_pk_bf16_f32 v{vD2}, v{vD1}, v{vD1+1}")
    E(f"v_cvt_pk_bf16_f32 v{vD2+1}, v{vD1+2}, v{vD1+3}")
    E(f"s_and_b64 exec, exec, s[{sLO8}:{sLO8+1}]")
    E("s_cbranch_execz L_f1_next")
    if a.pub == "swap":
        E(f"buffer_atomic_swap_x2 {r2(vD2)}, v{vA}, {S4(sH1)}, s{sT3} offen", tag="extra")
    else:
        E(f"buffer_store_dwordx2 {r2(vD2)}, v{vA}, {S4(sH1)}, s{sT3} offen {a.pub}", tag="extra")
    stamp(14)
    E.label("L_f1_next")
    E(f"s_cmp_lg_u32 s{sDRY}, 0")
    E("s_cbranch_scc1 L_fin")
    E(f"s_mov_b64 s[{sDRY}:{sDRY+1}], -1")
    E.flush()
    E("s_branch L_f1_top")

    E.label("L_ffn2")
    E(f"s_mov_b64 s[{sDRY}:{sDRY+1}], {0 if a.dry & 2 else -1}")
    E(f"s_mov_b32 s{sROLE}, 2")
    E(f"s_mov_b32 s{sWF}, s18")
    E(f"s_and_b32 s{sWF+1}, s19, 0xffff")
    vA = vQ
    E(f"v_lshrrev_b32 v{vA}, 2, v{vL}")
    E(f"v_mul_u32_u24 v{vA}, 1280, v{vA}")
    E(f"v_and_b32 v{vA+1}, 3, v{vL}")
    E(f"v_lshl_add_u32 v{vA}, v{vA+1}, 4, v{vA}")
    E(f"s_mul_i32 s{sT0}, s{sW}, {7*32*1280}")
    E(f"s_lshl_b32 s{sT1}, s{sTILE}, 6")
    E(f"s_add_u32 s{sT0}, s{sT0}, s{sT1}")
    E(f"s_mul_i32 s{sT3}, s{sW}, {14*1024}")
    E(f"s_add_u32 s{sT3}, s{sT3}, {WT}")
    E(f"s_mov_b32 s{sT2}, s{sT3}")
    for t in range(14):
        E(f"s_mov_b32 m0, s{sT2}")
        E(f"buffer_load_dwordx4 v{vA}, {S4(sWF)}, s{sT0} offen{fnt} lds", tag="extra")
        if t < 13:
            E(f"s_add_u32 s{sT0}, s{sT0}, {16*1280}")
            E(f"s_add_u32 s{sT2}, s{sT2}, 1024")
    vXO = vA + 2
    E(f"v_and_b32 v{vA+1}, 7, v{vL}")
    E(f"v_mul_u32_u24 v{vXO}, 1280, v{vA+1}")
    E(f"v_lshl_add_u32 v{vXO}, v{vJ}, 3, v{vXO}")
    E(f"s_and_b32 s{sT4}, s{sW}, 1")
    E(f"s_lshl_b32 s{sT4}, s{sT4}, 5")
    E(f"s_add_u32 s{sT1}, s{sT1}, s{sT4}")
    xr = vS
    E(f"buffer_load_dwordx2 {r2(xr)}, v{vXO}, {S4(sX)}, s{sT1} offen", tag="extra")
    vCO = vA + 3
    E(f"v_lshlrev_b32 v{vCO}, 11, v{vA+1}")
    sCN = 21
    E(f"s_add_u32 s{sCN}, s{sTILE}, 3")
    E(f"s_and_b32 s{sCN}, s{sCN}, {a.nrep-1}")
    E(f"s_lshl_b32 s{sCN}, s{sCN}, 8")
    E(f"s_add_u32 s{sCN}, s{sCN}, {CNT_BASE}")
    vHO = vB1
    E(f"v_mul_u32_u24 v{vHO}, 2560, v{vA+1}")
    E(f"v_lshl_add_u32 v{vHO}, v{vJ}, 4, v{vHO}")
    vH1 = vB1 + 1
    E(f"v_lshrrev_b32 v{vH1}, 1, v{vJ}")
    E(f"v_lshlrev_b32 v{vH1}, 8, v{vH1}")
    E(f"v_lshl_add_u32 v{vH1}, v{vA+1}, 5, v{vH1}")
    E(f"v_and_b32 v{vB1+2}, 1, v{vJ}")
    E(f"v_lshl_add_u32 v{vH1}, v{vB1+2}, 4, v{vH1}")
    E(f"v_lshrrev_b32 v{vB1+2}, 3, v{vN}")
    E(f"v_lshl_add_u32 v{vH1}, v{vB1+2}, 9, v{vH1}")
    vTR = vB1 + 2
    E(f"v_lshlrev_b32 v{vTR}, 9, v{vJ}")
    E(f"v_lshrrev_b32 v{vB1+3}, 2, v{vN}")
    E(f"v_lshl_add_u32 v{vTR}, v{vB1+3}, 6, v{vTR}")
    E(f"v_and_b32 v{vB1+3}, 3, v{vN}")
    E(f"v_lshl_add_u32 v{vTR}, v{vB1+3}, 3, v{vTR}")
    E(f"v_add_u32 v{vTR}, s{sT3}, v{vTR}")
    vRWp, vRRp = vB0, vB0 + 1
    E(f"s_lshl_b32 s{sT0}, s{sW}, 11")
    E(f"v_add_u32 v{vRWp}, s{sT0}, v{vL16}")
    E(f"s_lshl_b32 s{sT0}, s{sT4}, 5")
    E(f"v_add_u32 v{vRRp}, s{sT0}, v{vL16}")
    E(f"s_mul_i32 s{sT2}, s{sW}, {7*512}")
    E(f"s_lshl_b32 s{sT3}, s{sT1}, 1")
    hb = vF + 64
    acc = [vF + 96 + 4 * i for i in range(4)]
    ac = vS + 4
    hx = vS + 12
    hxk = vS + 8
    E.label("L_f2_top")
    E(f"s_mov_b64 exec, s[{sDRY}:{sDRY+1}]")
    E("s_cbranch_execz L_f2_got")
    E("s_waitcnt vmcnt(0)")
    for t in range(7):
        for c in range(2):
            E(f"ds_read_b64_tr_b16 {r2(vW+8*t+4*c)}, v{vTR} offset:{t*2048+c*32}")
            E(f"ds_read_b64_tr_b16 {r2(vW+8*t+4*c+2)}, v{vTR} offset:{t*2048+c*32+256}")
    for i in range(2):
        E(f"v_lshlrev_b32 v{hxk+2*i}, 16, v{xr+i}")
        E(f"v_and_b32 v{hxk+2*i+1}, 0xffff0000, v{xr+i}")
    E("s_waitcnt lgkmcnt(0)")
    stamp(11)
    E(f"s_cmp_ge_u32 s{sW}, 1")
    E("s_cbranch_scc1 L_f2_go")
    E.label("L_f2_poll")
    E(f"buffer_load_dword v{vD1}, v{vCO}, {S4(sWS)}, s{sCN} offen sc1", tag="extra")
    E("s_waitcnt vmcnt(0)")
    E(f"v_cmp_gt_u32 vcc, 32, v{vD1}")
    E("s_cbranch_vccz L_f2_go")
    spin("L_f2_go")
    E(f"s_sleep {a.sleep3}")
    E("s_branch L_f2_poll")
    E.label("L_f2_go")
    E("s_barrier")
    E(f"s_cmp_ge_u32 s{sW}, 2")
    E("s_cbranch_scc1 L_f2_noac")
    E(f"buffer_load_dwordx4 {r4(ac)}, v{vHO}, {S4(sWS)}, s{sT3} offen sc1", tag="extra")
    E.label("L_f2_noac")
    if a.h1wait: E(f"s_sleep {a.h1wait}")
    stamp(12)
    P2 = a.npoll2
    sets = [vF + 144 + 16 * i for i in range(P2)]
    def h1load(hb):
        for u in range(4):
            E(f"buffer_load_dwordx4 {r4(hb+4*u)}, v{vH1}, {S4(sH1)}, s{sT2} offen offset:{1024*u} {a.sub}", tag="extra")
    for i in range(P2):
        h1load(sets[i])
        if i < P2 - 1: E(f"s_sleep {a.stag2}")
    E.label("L_f2_poll2")
    for i in range(P2):
        hb = sets[i]
        E(f"s_waitcnt vmcnt({4*(P2-1)})")
        E(f"v_max3_u32 v{vD1}, v{hb}, v{hb+1}, v{hb+2}")
        E(f"v_max3_u32 v{vD1+1}, v{hb+3}, v{hb+4}, v{hb+5}")
        for k in range(6, 16, 2):
            tgt = vD1 + ((k // 2) % 2)
            E(f"v_max3_u32 v{tgt}, v{tgt}, v{hb+k}, v{hb+k+1}")
        E(f"v_max_u32 v{vD1}, v{vD1}, v{vD1+1}")
        E(f"v_cmp_eq_u32 vcc, -1, v{vD1}")
        E(f"s_cbranch_vccz L_f2_got{i}")
        if a.sleep2: E(f"s_sleep {a.sleep2}")
        h1load(hb)
    spin("L_f2_got0")
    E("s_branch L_f2_poll2")
    E.label("L_f2_got")
    for i in range(P2):
        hb = sets[i]
        E.label(f"L_f2_got{i}")
        stamp(13)
        for t in range(7):
            u, half = divmod(t, 2)
            for c in range(2):
                d = acc[2 * c + half]
                cc = "0" if u == 0 else r4(d)
                E(f"v_mfma_f32_16x16x32_bf16 {r4(d)}, {r4(vW+8*t+4*c)}, {r4(hb+4*u)}, {cc}")
        if i < P2 - 1:
            E.raw("    s_cbranch_execnz L_f2_join")
    E.label("L_f2_join")
    bf16r_many(E, range(ac, ac + 4))
    for i in range(4): E(f"v_add_f32 v{hx+i}, v{hxk+i}, v{ac+i}")
    bf16r_many(E, range(hx, hx + 4))
    for c in range(2):
        for r in range(4):
            E(f"v_cndmask_b32 v{acc[2*c]+r}, v{acc[2*c+1]+r}, v{acc[2*c]+r}, s[{sLO8}:{sLO8+1}]")
        E(f"ds_write_b128 v{vRWp}, {r4(acc[2*c])} offset:{F2R+1024*c}")
    E("s_waitcnt lgkmcnt(0)")
    E("s_barrier")
    E(f"s_cmp_ge_u32 s{sW}, 2")
    E("s_cbranch_scc1 L_f2_next")
    pb = vF + 112
    for p in range(8):
        E(f"ds_read_b128 {r4(pb+4*p)}, v{vRRp} offset:{F2R+2048*p}")
    E("s_waitcnt lgkmcnt(0)")
    for st in (4, 2, 1):
        for p in range(st):
            for i in range(4):
                E(f"v_add_f32 v{pb+4*p+i}, v{pb+4*p+i}, v{pb+4*(p+st)+i}")
    for i in range(4):
        E(f"v_add_f32_dpp v{pb+i}, v{pb+i}, v{pb+i} row_ror:8 row_mask:0xf bank_mask:0xf")
    bf16r_many(E, range(pb, pb + 4))
    for i in range(4): E(f"v_add_f32 v{pb+i}, v{hx+i}, v{pb+i}")
    E(f"v_cvt_pk_bf16_f32 v{vD2}, v{pb}, v{pb+1}")
    E(f"v_cvt_pk_bf16_f32 v{vD2+1}, v{pb+2}, v{pb+3}")
    E(f"s_and_b64 exec, exec, s[{sLO8}:{sLO8+1}]")
    E("s_cbranch_execz L_f2_next")
    E(f"buffer_store_dwordx2 {r2(vD2)}, v{vXO}, {S4(sOUT)}, s{sT1} offen", tag="extra")
    stamp(14)
    E.label("L_f2_next")
    E(f"s_cmp_lg_u32 s{sDRY}, 0")
    E("s_cbranch_scc1 L_fin")
    E(f"s_mov_b64 s[{sDRY}:{sDRY+1}], -1")
    E.flush()
    E("s_branch L_f2_top")
    E.label("L_fin")
    if a.ts and a.echo:
        E(f"s_cmp_lg_u32 s{sROLE}, 2")
        E("s_cbranch_scc1 L_end")
        E(f"s_cmp_lg_u32 s{sW}, 0")
        E("s_cbranch_scc1 L_end")
        E("s_waitcnt vmcnt(0)")
        stamp(15)
        E("s_waitcnt lgkmcnt(0)")
        if a.skew >= 0:
            E("s_mov_b64 exec, -1")
            E(f"s_mov_b32 s{sT0}, 0x30000")
            E(f"buffer_load_dword v{vS}, off, {S4(sWS)}, s{sT0} offset:{4*a.skew} sc1", tag="extra")
            E(f"buffer_load_dword v{vS+1}, off, {S4(sWS)}, s{sT0} offset:4 sc1", tag="extra")
            E("s_waitcnt vmcnt(0)")
            E(f"v_sub_u32 v{vS}, v{vS}, v{vS+1}")
            E(f"v_readfirstlane_b32 s{sT0}, v{vS}")
            E(f"s_add_u32 s{sT0}, s{sT0}, 200")
            E(f"s_lshl_b32 s{sT0}, s{sT0}, 2")
        else:
            E(f"s_sub_u32 s{sT0}, s{sTS+2*a.echo}, s{sTS+2*a.echo0}")
        E(f"s_min_u32 s{sT0}, s{sT0}, 20000")
        E(f"s_add_u32 s{sT0}, s{sT0}, s{sTS+30}")
        E.label("L_echo")
        E(f"s_memrealtime s[{sT2}:{sT2+1}]")
        E("s_waitcnt lgkmcnt(0)")
        E(f"s_sub_u32 s{sT1}, s{sT0}, s{sT2}")
        E(f"s_cmp_gt_i32 s{sT1}, 0")
        E("s_cbranch_scc1 L_echo")
    elif a.ts:
        E("s_waitcnt vmcnt(0)")
        stamp(15)
        write_stamps()
    E.label("L_end")
    E("s_endpgm")
    E.label("L_codeend")

    out = HDR
    out += f"; @launch grid=(256,1,1) block=(512,1,1) lds={LDS_TOTAL}\n"
    out += f""".amdgcn_target "amdgcn-amd-amdhsa--gfx950"
.text
.globl {NAME}
.p2align 8
.type {NAME},@function
{NAME}:
"""
    out += E.text().replace("CODE_BYTES", f"L_codeend-{NAME}")
    out += f""".section .rodata,"a"
.p2align 6
.amdhsa_kernel {NAME}
  .amdhsa_next_free_vgpr 256
  .amdhsa_next_free_sgpr 102
  .amdhsa_accum_offset 256
  .amdhsa_group_segment_fixed_size 0
  .amdhsa_kernarg_size 88
  .amdhsa_user_sgpr_count 2
  .amdhsa_user_sgpr_kernarg_segment_ptr 1
  .amdhsa_system_sgpr_workgroup_id_x 1
  .amdhsa_float_denorm_mode_32 3
.end_amdhsa_kernel
"""
    return out

def parser():
    p = argparse.ArgumentParser()
    p.add_argument("-o", default="sequential_preLN__sliding_block_cached__dense_activation_relu__decode.s")
    p.add_argument("--fnt", type=int, default=0)
    p.add_argument("--ts", type=int, default=0)
    p.add_argument("--sleep", type=int, default=1)
    p.add_argument("--sleep2", type=int, default=1)
    p.add_argument("--depth", type=int, default=6)
    p.add_argument("--first", type=int, default=3)
    p.add_argument("--budget", type=int, default=16)
    p.add_argument("--qspan", type=int, default=30)
    p.add_argument("--ostart", type=int, default=0)
    p.add_argument("--otail", type=int, default=4)
    p.add_argument("--tkpos", type=int, default=28)
    p.add_argument("--pf", type=int, default=2)
    p.add_argument("--spf", type=int, default=1)
    p.add_argument("--skew", type=int, default=-1)
    p.add_argument("--htab", default="0x62407513")
    p.add_argument("--rtab", default="0x210cba98")
    p.add_argument("--sphalf", type=int, default=2)
    p.add_argument("--npoll2", type=int, default=1)
    p.add_argument("--stag2", type=int, default=4)
    p.add_argument("--pub", default="sc1")
    p.add_argument("--sub", default="sc1")
    p.add_argument("--zwg", type=int, default=28)
    p.add_argument("--nrep", type=int, default=8)
    p.add_argument("--sleep3", type=int, default=4)
    p.add_argument("--h1wait", type=int, default=0)
    p.add_argument("--npoll", type=int, default=1)
    p.add_argument("--stag", type=int, default=3)
    p.add_argument("--static", type=int, default=0)
    p.add_argument("--l2pf", type=int, default=6)
    p.add_argument("--echo", type=int, default=0)
    p.add_argument("--echo0", type=int, default=0)
    p.add_argument("--kvpol", default=" nt")
    p.add_argument("--wpol", default=" nt")
    p.add_argument("--bd1", type=int, default=0)
    p.add_argument("--bd2", type=int, default=0)
    p.add_argument("--bd3", type=int, default=0)
    p.add_argument("--hmap", type=int, default=3)
    p.add_argument("--tlb", type=int, default=0)
    p.add_argument("--dry", type=int, default=2)
    return p

if __name__ == "__main__":
    a = parser().parse_args()
    open(a.o, "w").write(gen(a))
```

```python
import sys, argparse
from collections import deque
from asmlib import Emitter
from gen2 import (NAME, HDR, srd, srd_off, r4, r2, S4, row_reduce, wave_reduce, bf16r, bf16r_many, unpack10, ln_stats,
                  LOG2E, SCALE, sT0, sT1, sT2, sT3, sT4)

RED = 0
QF = 8448
ML = 8704
YP = 9216
YPS = 3328
HN = 9216
HNS = 1408
F2R = 9216
WT = 35840
LDS_TOTAL = 150528
HS = 3072
H1_BASE = 32768
TS_BASE = 1 << 20
NF2, NF1 = 20, 27

sW, sH, sB = 3, 26, 27
sK, sV, sWQ, sWO, sX, sWS, sDB, sWF, sOUT, sH1 = 28, 32, 36, 40, 44, 48, 52, 56, 60, 64
sROLE, sTILE = 100, 101
sSPIN = 9
sLO8 = 10
sKO, sVO, sQ0, sQ1, sOO = 12, 13, 14, 15, 20
sDRY = 22
sEX = 24
sTS = 68
vL, vL16, vWQ, vWO = 0, 1, 2, 3
vM = 4
vQ = 8
vB0, vB1 = 12, 16
vD1, vD2 = 20, 24
vT = 28
vS = 32
vF = 48
vJ, vN = vT, vT + 1

class Task:
    def __init__(self, fn, needs=(), frees=(), barrier=0, cost=1, atomic=False):
        self.fn, self.needs, self.frees, self.barrier, self.cost = fn, list(needs), list(frees), barrier, cost
        self.atomic = atomic
        self.q = None

class RecEmitter(Emitter):
    def __init__(self):
        super().__init__(); self.rec = None
    def __call__(self, text, tag=None):
        if self.rec is not None: self.rec.append(("i", text, tag))
        else: super().__call__(text, tag)
    def label(self, name):
        if self.rec is not None: self.rec.append(("l", name, None))
        else: super().label(name)
    def flush(self, n=None):
        if self.rec is not None: self.rec.append(("f", None, None))
        else: super().flush(n)
    def record(self, fn):
        self.rec = []; fn(); r = self.rec; self.rec = None; return deque(r)
    def play(self, item):
        k, a, b = item
        if k == "i": self(a, b)
        elif k == "l": self.label(a)
        else: self.flush()

def gen(a):
    E = RecEmitter()
    nt = a.kvpol
    wnt = a.wpol
    fnt = " nt" if a.fnt else ""
    def stamp(i):
        if a.ts: E(f"s_memrealtime s[{sTS+2*i}:{sTS+2*i+1}]")
    def spin(lbl):
        E(f"s_sub_u32 s{sSPIN}, s{sSPIN}, 1")
        E(f"s_cbranch_scc1 {lbl}")
    def write_stamps():
        E("s_waitcnt lgkmcnt(0)")
        E("s_mov_b64 exec, 1")
        E(f"s_lshl_b32 s{sT0}, s2, 3")
        E(f"s_add_u32 s{sT0}, s{sT0}, s{sW}")
        E(f"s_lshl_b32 s{sT0}, s{sT0}, 8")
        E(f"s_add_u32 s{sT0}, s{sT0}, {TS_BASE}")
        for i in range(16):
            E(f"v_mov_b32 v{vT}, s{sTS+2*i}")
            E(f"v_mov_b32 v{vT+1}, s{sTS+2*i+1}")
            E(f"buffer_store_dwordx2 {r2(vT)}, off, {S4(sWS)}, s{sT0} offset:{8*i}", tag="extra")
            E("s_nop 1")
        E(f"s_getreg_b32 s{sT1}, hwreg(HW_REG_XCC_ID)")
        E(f"v_mov_b32 v{vT}, s{sT1}")
        E(f"v_mov_b32 v{vT+1}, s{sROLE}")
        E(f"buffer_store_dwordx2 {r2(vT)}, off, {S4(sWS)}, s{sT0} offset:128", tag="extra")
        E("s_nop 1")
        E(f"v_mov_b32 v{vT}, s{sSPIN}")
        E(f"v_mov_b32 v{vT+1}, 0")
        E(f"buffer_store_dwordx2 {r2(vT)}, off, {S4(sWS)}, s{sT0} offset:136", tag="extra")

    E("s_cmp_ge_u32 s2, 256")
    E("s_cbranch_scc1 L_end")
    E("s_load_dwordx16 s[4:19], s[0:1], 0")
    E("s_load_dwordx4 s[20:23], s[0:1], 64")
    E("s_load_dwordx2 s[24:25], s[0:1], 80")
    if a.ts:
        for i in range(1, 16): E(f"s_mov_b64 s[{sTS+2*i}:{sTS+2*i+1}], 0")
        stamp(0)
    E(f"v_lshrrev_b32 v{vT}, 6, v0")
    E(f"v_and_b32 v{vL}, 63, v0")
    E(f"v_readfirstlane_b32 s{sW}, v{vT}")
    if a.hmap == 3:
        E(f"s_and_b32 s{sH}, s2, 7")
        E(f"s_lshl_b32 s{sH}, s{sH}, 2")
        E(f"s_lshr_b32 s{sH}, {a.htab}, s{sH}")
        E(f"s_and_b32 s{sB}, s{sH}, 4")
        E(f"s_lshl_b32 s{sB}, s{sB}, 2")
        E(f"s_and_b32 s{sH}, s{sH}, 3")
        E(f"s_add_u32 s{sH}, s{sH}, s{sB}")
        E(f"s_bfe_u32 s{sB}, s2, 0x20003")
        E(f"s_lshl_b32 s{sB}, s{sB}, 2")
        E(f"s_add_u32 s{sH}, s{sH}, s{sB}")
    elif a.hmap == 2:
        E(f"s_and_b32 s{sH}, s2, 6")
        E(f"s_lshr_b32 s{sH}, 0x8d, s{sH}")
        E(f"s_and_b32 s{sH}, s{sH}, 3")
        E(f"s_and_b32 s{sB}, s2, 1")
        E(f"s_lshl_b32 s{sB}, s{sB}, 4")
        E(f"s_add_u32 s{sH}, s{sH}, s{sB}")
        E(f"s_bfe_u32 s{sB}, s2, 0x20003")
        E(f"s_lshl_b32 s{sB}, s{sB}, 2")
        E(f"s_add_u32 s{sH}, s{sH}, s{sB}")
    elif a.hmap:
        E(f"s_and_b32 s{sH}, s2, 7")
        E(f"s_lshl_b32 s{sH}, s{sH}, 2")
        E(f"s_bfe_u32 s{sB}, s2, 0x20003")
        E(f"s_add_u32 s{sH}, s{sH}, s{sB}")
    else:
        E(f"s_and_b32 s{sH}, s2, 31")
    E(f"s_lshr_b32 s{sB}, s2, 5")
    E(f"v_lshlrev_b32 v{vL16}, 4, v{vL}")
    E(f"v_lshrrev_b32 v{vJ}, 4, v{vL}")
    E(f"v_and_b32 v{vN}, 15, v{vL}")
    E(f"v_mul_u32_u24 v{vWQ}, 81920, v{vJ}")
    E(f"v_lshl_add_u32 v{vWQ}, v{vN}, 4, v{vWQ}")
    vXS, vXC = vT + 2, vT + 3
    E(f"v_mul_u32_u24 v{vXS}, 20, v{vL}")
    E(f"v_lshrrev_b32 v{vXC}, 3, v{vN}")
    E(f"v_lshl_add_u32 v{vXC}, v{vXC}, 2, v{vJ}")
    t0, t1, t2, t3 = 64, 65, 66, 67
    E(f"s_lshl_b32 s{t0}, s{sW}, 3")
    E(f"v_add_u32 v{vXC}, s{t0}, v{vXC}")
    E(f"v_mul_u32_u24 v{vXC}, 20, v{vXC}")
    E(f"s_lshl_b32 s{t0}, s{sB}, 5")
    E(f"s_add_u32 s{t0}, s{t0}, s{sH}")
    E(f"s_lshl_b32 s{t0}, s{t0}, 20")
    E(f"s_add_u32 s{t0}, s{t0}, 0xc0000")
    E(f"s_lshl_b32 s{t1}, s{sH}, 8")
    E(f"s_mul_i32 s{t2}, s{sH}, {128*1280}")
    E(f"s_mul_i32 s{t3}, s{sB}, 1280")
    E(f"s_mov_b32 s{sROLE}, 0")
    E(f"s_lshl_b32 s{sTILE}, s{sW}, 10")
    if a.pf:
        E(f"s_getpc_b64 s[{sWF}:{sWF+1}]")
        E.label("L_pc")
        E(f"s_and_b32 s{sWF+1}, s{sWF+1}, 0xffff")
        E(f"s_mov_b32 s{sWF+2}, L_codeend-L_pc")
        E(f"s_mov_b32 s{sWF+3}, 0x20000")
        E(f"v_lshlrev_b32 v{vB0}, 7, v{vL}")
        E(f"s_lshl_b32 s{sOUT}, s{sW}, 13")
        E(f"s_cmp_gt_u32 s{sW}, {a.pf - 1}")
        E("s_cbranch_scc1 L_nopf")
        E(f"buffer_load_dword v{vS+15}, v{vB0}, {S4(sWF)}, s{sOUT} offen", tag="extra")
        E.label("L_nopf")
    E("s_waitcnt lgkmcnt(0)")
    srd_off(E, sK, 6, f"s{t0}", 0x40000)
    slot_of = {}
    free = deque(range(52))
    def alloc(tag):
        s = free.popleft(); slot_of[tag] = vF + 4 * s; return slot_of[tag]
    def release(tag):
        free.append((slot_of[tag] - vF) // 4)
    E(f"buffer_load_dwordx4 {r4(alloc('k0'))}, v{vL16}, {S4(sK)}, s{sTILE} offen{nt}", tag="k0")
    srd(E, sX, 4, 5, 10240)
    xs_raw, xc_raw = vS, vS + 6
    E(f"buffer_load_dwordx4 {r4(xs_raw)}, v{vXS}, {S4(sX)}, s{t3} offen", tag="xs")
    E(f"buffer_load_dword v{xs_raw+4}, v{vXS}, {S4(sX)}, s{t3} offen offset:16", tag="xs")
    E(f"buffer_load_dwordx4 {r4(xc_raw)}, v{vXC}, {S4(sX)}, s{t3} offen", tag="xc")
    E(f"buffer_load_dword v{xc_raw+4}, v{vXC}, {S4(sX)}, s{t3} offen offset:16", tag="xc")
    E(f"s_add_u32 s{sTILE}, s{sTILE}, 8192")
    E(f"buffer_load_dwordx4 {r4(alloc('k1'))}, v{vL16}, {S4(sK)}, s{sTILE} offen{nt}", tag="k1")
    E(f"s_add_u32 s{sTILE}, s{sTILE}, 8192")
    E(f"buffer_load_dwordx4 {r4(alloc('k2'))}, v{vL16}, {S4(sK)}, s{sTILE} offen{nt}", tag="k2")
    srd_off(E, sWQ, 10, f"s{t1}", 639 * 8192 + 256)
    srd_off(E, sV, 8, f"s{t0}", 0x40000)
    srd_off(E, sWO, 12, f"s{t2}", 128 * 1280)
    srd(E, sWS, 24, 25, 1 << 22)
    srd(E, sDB, 22, 23, 256)
    srd(E, sOUT, 20, 21, 10240)
    srd_off(E, sH1, 24, H1_BASE, 108 * 256)
    E(f"s_add_u32 s{sKO}, s{sTILE}, 8192")
    E(f"s_lshl_b32 s{sVO}, s{sW}, 10")
    E(f"s_mul_i32 s{sQ0}, s{sW}, 655360")
    E(f"s_add_u32 s{sQ1}, s{sQ0}, 327680")
    E(f"s_mul_i32 s{sOO}, s{sW}, 1280")

    if a.tlb:
        E(f"s_cmp_lg_u32 s{sW}, 1")
        E("s_cbranch_scc1 L_notlb")
        E(f"buffer_load_dword v{vS+14}, off, {S4(sV)}, 0 nt", tag="extra")
        E(f"buffer_load_dword v{vS+14}, off, {S4(sWO)}, 0 nt", tag="extra")
        if a.tlb > 1:
            E(f"s_mov_b32 s{sWF+2}, {640*3456}")
            E(f"s_mov_b32 s{sWF+3}, 0x20000")
            E(f"s_mov_b32 s{sT0}, {640*3456-4}")
            for p in (16, 18):
                E(f"s_mov_b32 s{sWF}, s{p}")
                E(f"s_and_b32 s{sWF+1}, s{p+1}, 0xffff")
                E(f"buffer_load_dword v{vS+14}, off, {S4(sWF)}, 0 nt", tag="extra")
                E(f"buffer_load_dword v{vS+14}, off, {S4(sWF)}, s{sT0} nt", tag="extra")
            E(f"s_mov_b32 s{sT0}, 0x20000")
            E(f"buffer_load_dword v{vS+14}, off, {S4(sWS)}, s{sT0} nt", tag="extra")
            E(f"buffer_load_dword v{vS+14}, off, {S4(sOUT)}, 0 nt", tag="extra")
        E.label("L_notlb")
    if a.skew >= 0:
        E("s_cmp_ge_u32 s2, 8")
        E("s_cbranch_scc1 L_noskew")
        E("s_waitcnt lgkmcnt(0)")
        E(f"v_mov_b32 v{vS+12}, s{sTS}")
        E(f"s_lshl_b32 s{sT0}, s2, 2")
        E(f"s_add_u32 s{sT0}, s{sT0}, 0x30000")
        E(f"buffer_store_dword v{vS+12}, off, {S4(sWS)}, s{sT0} sc1", tag="extra")
        E.label("L_noskew")
    def t_init():
        z = [alloc("z0"), alloc("z1"), alloc("z2"), alloc("z3")]
        zr = [z[0], z[0] + 2, z[1], z[1] + 2, z[2], z[2] + 2]
        init_seen.update(issued)
        E(f"s_cmp_lg_u32 s{sW}, 7")
        E("s_cbranch_scc1 L_nosent")
        E(f"v_mov_b32 v{z[0]}, -1")
        E(f"v_lshlrev_b32 v{z[3]}, 2, v{vL}")
        E(f"s_lshl_b32 s{sT0}, s2, 8")
        E(f"buffer_atomic_swap v{z[0]}, v{z[3]}, {S4(sH1)}, s{sT0} offen sc0", tag="extra")
        E.label("L_nosent")
        E(f"s_cmp_lg_u32 s{sW}, 6")
        E("s_cbranch_scc1 L_noinit")
        E(f"s_and_b32 s{sT0}, s2, 31")
        E(f"s_cmp_lg_u32 s{sT0}, {a.zwg}")
        E("s_cbranch_scc1 L_noinit")
        for q in z[:3]:
            for i in range(4): E(f"v_mov_b32 v{q+i}, 0")
        E(f"v_lshlrev_b32 v{z[3]}, 3, v{vL}")
        E(f"s_mul_i32 s{sT0}, s{sB}, {HS}")
        for i in range(6):
            E(f"buffer_atomic_swap_x2 {r2(zr[i])}, v{z[3]}, {S4(sWS)}, s{sT0} offen offset:{512*i} sc0", tag="extra")
        E.label("L_noinit")
    init_seen = set()
    def t_flagset():
        assert "wq11" not in init_seen
        E(f"s_cmp_lg_u32 s{sW}, 6")
        E("s_cbranch_scc1 L_noflag")
        E(f"s_and_b32 s{sT0}, s2, 31")
        E(f"s_cmp_lg_u32 s{sT0}, {a.zwg}")
        E("s_cbranch_scc1 L_noflag")
        E(f"v_mov_b32 v{slot_of['z3']}, 1")
        E(f"s_lshl_b32 s{sT0}, s{sB}, 2")
        E("s_mov_b64 exec, 1")
        E(f"buffer_store_dword v{slot_of['z3']}, off, {S4(sDB)}, s{sT0} sc1", tag="extra")
        E("s_mov_b64 exec, -1")
        E.label("L_noflag")

    def kload(f):
        def fn():
            E(f"buffer_load_dwordx4 {r4(alloc(f'k{f}'))}, v{vL16}, {S4(sK)}, s{sKO} offen{nt}", tag=f"k{f}")
            if f < 31: E(f"s_add_u32 s{sKO}, s{sKO}, 8192")
        return (f"k{f}", fn, True)
    def vload(f):
        def fn():
            E(f"buffer_load_dwordx4 {r4(alloc(f'v{f}'))}, v{vL16}, {S4(sV)}, s{sVO} offen{nt}", tag=f"v{f}")
            if f < 31: E(f"s_add_u32 s{sVO}, s{sVO}, 8192")
        return (f"v{f}", fn, True)
    def qload(f):
        def fn():
            s = sQ0 if f % 2 == 0 else sQ1
            E(f"buffer_load_dwordx4 {r4(alloc(f'wq{f}'))}, v{vWQ}, {S4(sWQ)}, s{s} offen{wnt}", tag=f"wq{f}")
            if f < 18: E(f"s_add_u32 s{s}, s{s}, 8192")
        return (f"wq{f}", fn, True)
    def oload(f):
        def fn():
            fp, cg = divmod(f, 5)
            E(f"buffer_load_dwordx4 {r4(alloc(f'wo{f}'))}, v{vWO}, {S4(sWO)}, s{sOO} offen offset:{cg*256}{wnt}", tag=f"wo{f}")
            if cg == 4 and fp < 3: E(f"s_add_u32 s{sOO}, s{sOO}, {8*1280}")
        return (f"wo{f}", fn, True)
    vFL = vWQ
    vTK = vQ + 3
    def fload():
        def fn():
            E(f"v_and_b32 v{vFL}, 7, v{vL}")
            E(f"v_lshlrev_b32 v{vFL}, 2, v{vFL}")
            E(f"buffer_load_dword v{vFL}, v{vFL}, {S4(sDB)}, 0 offen sc1", tag="flag")
        return ("flag", fn, False)
    def ticket():
        def fn():
            E(f"s_cmp_lg_u32 s{sW}, 0")
            E("s_cbranch_scc1 L_notk")
            E(f"v_mov_b32 v{vTK}, 1")
            E("s_mov_b64 exec, 1")
            E(f"buffer_atomic_add v{vTK}, off, {S4(sDB)}, 0 offset:128 sc0", tag="extra")
            E("s_mov_b64 exec, -1")
            E.label("L_notk")
        return ("tk", fn, False)
    def l2pf_outer():
        def fn():
            vPF = vS + 13
            E(f"s_and_b32 s{sT0}, s2, 7")
            E(f"s_lshl_b32 s{sT0}, s{sT0}, 2")
            E(f"s_lshr_b32 s{sT0}, {a.rtab}, s{sT0}")
            E(f"s_and_b32 s{sT0}, s{sT0}, 15")
            E(f"s_lshr_b32 s{sT1}, s2, 3")
            E(f"s_mov_b32 s{sWF+2}, {640*3456}")
            E(f"s_mov_b32 s{sWF+3}, 0x20000")
            E(f"s_cmp_ge_u32 s{sT0}, 8")
            E("s_cbranch_scc1 L_l2b")
            E(f"s_cmp_ge_u32 s{sW}, 3")
            E("s_cbranch_scc1 L_nol2")
            E(f"s_mov_b32 s{sWF}, s16")
            E(f"s_and_b32 s{sWF+1}, s17, 0xffff")
            E(f"s_mul_i32 s{sT2}, s{sT0}, {9*128}")
            E(f"s_mul_i32 s{sT0}, s{sW}, {3*128}")
            E(f"s_add_u32 s{sT2}, s{sT2}, s{sT0}")
            E(f"s_mul_i32 s{sT1}, s{sT1}, {20*3456}")
            E(f"s_add_u32 s{sT2}, s{sT2}, s{sT1}")
            E(f"v_mul_u32_u24 v{vPF}, 43, v{vL}")
            E(f"v_lshrrev_b32 v{vPF}, 7, v{vPF}")
            E(f"v_mul_u32_u24 v{vPF}, {3456-384}, v{vPF}")
            E(f"v_lshl_add_u32 v{vPF}, v{vL}, 7, v{vPF}")
            E(f"s_mov_b32 exec_hi, 0xfffffff")
            E("s_branch L_l2go")
            E.label("L_l2b")
            E(f"s_cmp_ge_u32 s{sW}, 2")
            E("s_cbranch_scc1 L_nol2")
            E(f"s_mov_b32 s{sWF}, s18")
            E(f"s_and_b32 s{sWF+1}, s19, 0xffff")
            E(f"s_sub_u32 s{sT0}, s{sT0}, 8")
            E(f"s_lshl_b32 s{sT0}, s{sT0}, 1")
            E(f"s_add_u32 s{sT2}, s{sT0}, s{sW}")
            E(f"s_lshl_b32 s{sT2}, s{sT2}, 7")
            E(f"s_mul_i32 s{sT1}, s{sT1}, {54*1280}")
            E(f"s_add_u32 s{sT2}, s{sT2}, s{sT1}")
            E(f"v_mul_u32_u24 v{vPF}, 1280, v{vL}")
            E(f"s_mov_b32 exec_hi, 0x3fffff")
            E.label("L_l2go")
            E(f"buffer_load_dword v{vPF}, v{vPF}, {S4(sWF)}, s{sT2} offen", tag="extra")
            E("s_mov_b64 exec, -1")
            E.label("L_nol2")
        return fn
    t_l2pf = l2pf_outer()
    sPO, sPC, sPD = 21, 24, 25
    def t_spf0():
        E(f"s_and_b32 s{sT0}, s2, 7")
        E(f"s_lshl_b32 s{sT0}, s{sT0}, 2")
        E(f"s_lshr_b32 s{sT0}, {a.rtab}, s{sT0}")
        E(f"s_and_b32 s{sPC}, s{sT0}, 15")
        E(f"s_lshr_b32 s{sT1}, s2, 3")
        E(f"s_mov_b32 s{sWF+2}, {640*3456}")
        E(f"s_mov_b32 s{sWF+3}, 0x20000")
        E(f"s_mul_i32 s{sT2}, s{sT1}, 20")
        E(f"s_add_u32 s{sT2}, s{sT2}, s{sW}")
        E(f"s_mul_i32 s{sT2}, s{sT2}, 3456")
        E(f"s_mul_i32 s{sT0}, s{sPC}, 1152")
        E(f"s_add_u32 s{sT2}, s{sT2}, s{sT0}")
        E(f"s_mul_i32 s{sT3}, s{sT1}, 54")
        E(f"s_add_u32 s{sT3}, s{sT3}, s{sW}")
        E(f"s_mul_i32 s{sT3}, s{sT3}, 1280")
        E(f"s_sub_u32 s{sT0}, s{sPC}, 8")
        E(f"s_lshl_b32 s{sT0}, s{sT0}, 8")
        E(f"s_add_u32 s{sT3}, s{sT3}, s{sT0}")
        E(f"s_cmp_lt_u32 s{sPC}, 8")
        E(f"s_cselect_b32 s{sPO}, s{sT2}, s{sT3}")
        E(f"s_cselect_b32 s{sWF}, s16, s18")
        E(f"s_cselect_b32 s{sWF+1}, s17, s19")
        E(f"s_and_b32 s{sWF+1}, s{sWF+1}, 0xffff")
    def t_spf(part):
        def fn():
            E(f"s_cmp_lt_u32 s{sPC}, 8")
            E(f"s_cbranch_scc0 L_spb{part}")
            if part == 2:
                E(f"s_cmp_ge_u32 s{sW}, 4")
                E(f"s_cbranch_scc1 L_spe{part}")
            for ln in range(9):
                for hf in range(a.sphalf):
                    E(f"s_buffer_load_dword s{sPD}, {S4(sWF)}, s{sPO} offset:{part*8*3456 + ln*128 + hf*64}")
            E(f"s_branch L_spe{part}")
            E.label(f"L_spb{part}")
            for k in ([0, 1, 2], [3, 4], [5, 6])[part]:
                for ln in range(2):
                    for hf in range(a.sphalf):
                        E(f"s_buffer_load_dword s{sPD}, {S4(sWF)}, s{sPO} offset:{k*8*1280 + ln*128 + hf*64}")
            E.label(f"L_spe{part}")
        return fn
    loads = []
    qi = 0
    for f in range(3, 32):
        want = min(20, (f - 2) * 20 // (a.qspan - 2) + 1)
        while qi < want:
            loads.append(qload(qi)); qi += 1
        loads.append(kload(f))
    while qi < 20:
        loads.append(qload(qi)); qi += 1
    nmid = 20 - a.otail
    oi = 0
    for f in range(32):
        loads.append(vload(f))
        if f == 16: loads.append(fload())
        want = max(0, (f + 1 - a.ostart)) * nmid // (32 - a.ostart)
        while oi < want:
            loads.append(oload(oi)); oi += 1
    while oi < 20:
        loads.append(oload(oi)); oi += 1

    vRW, vRR = vXS, vXC
    def t_setup():
        E(f"s_mov_b32 s{sSPIN}, 0x40000")
        E(f"s_mov_b32 s{sLO8}, 0x00ff00ff")
        E(f"s_mov_b32 s{sLO8+1}, 0x00ff00ff")
        E(f"v_mul_u32_u24 v{vWO}, 40960, v{vJ}")
        E(f"v_and_b32 v{vB0}, 1, v{vN}")
        E(f"v_lshrrev_b32 v{vB0+1}, 1, v{vN}")
        E(f"v_lshl_add_u32 v{vWO}, v{vN}, 4, v{vWO}")
        E(f"v_lshlrev_b32 v{vB0}, 4, v{vB0}")
        E(f"v_mov_b32 v{vB0+2}, 0xffff")
        E(f"v_lshlrev_b32 v{vB0}, v{vB0}, v{vB0+2}")
        E(f"v_and_b32 v{vB0+1}, 3, v{vB0+1}")
        for w in range(4):
            E(f"v_cmp_eq_u32 vcc, {w}, v{vB0+1}")
            E(f"v_cndmask_b32 v{vM+w}, 0, v{vB0}, vcc")
        E(f"v_lshrrev_b32 v{vB0}, 3, v{vN}")
        E(f"s_lshl_b32 s{sT0}, s{sW}, 1")
        E(f"v_add_u32 v{vB0}, s{sT0}, v{vB0}")
        E(f"v_mul_u32_u24 v{vRW}, 528, v{vB0}")
        E(f"v_and_b32 v{vB0}, 7, v{vN}")
        E(f"v_lshl_add_u32 v{vRW}, v{vB0}, 6, v{vRW}")
        E(f"v_lshl_add_u32 v{vRW}, v{vJ}, 4, v{vRW}")
        E(f"v_mul_u32_u24 v{vRR}, 528, v{vN}")
        E(f"v_lshl_add_u32 v{vRR}, v{vJ}, 4, v{vRR}")
        E(f"s_lshl_b32 s{sT0}, s{sW}, 6")
        E(f"v_add_u32 v{vRR}, s{sT0}, v{vRR}")
    f0 = 8
    vMEAN, vRCP = 18, 19
    def t_ln1a():
        stamp(1)
        unpack10(E, xs_raw, f0)
        ln_stats(E, f0, 20, 21, 22, vMEAN, vRCP)
    def t_ln1b():
        unpack10(E, xc_raw, f0)
        for i in range(10): E(f"v_sub_f32 v{f0+i}, v{f0+i}, v{vMEAN}")
        bf16r_many(E, range(f0, f0 + 10))
        for i in range(10): E(f"v_mul_f32 v{f0+i}, v{f0+i}, v{vRCP}")
        for i in range(10): E(f"v_cvt_pk_bf16_f32 v{vS+i}, v{f0+i}, v{f0+i}")
    def bfrag(dst, src):
        for w in range(4): E(f"v_and_b32 v{dst+w}, v{src}, v{vM+w}")
    def t_pair(t, pre):
        def fn():
            B = vB0 if t % 2 == 0 else vB1
            bfrag(B, vS + t)
            c1 = "0" if t == 0 else r4(vD1)
            c2 = "0" if t == 0 else r4(vD2)
            E(f"v_mfma_f32_16x16x32_bf16 {r4(vD1)}, {r4(slot_of[f'{pre}{2*t}'])}, {r4(B)}, {c1}")
            E(f"v_mfma_f32_16x16x32_bf16 {r4(vD2)}, {r4(slot_of[f'{pre}{2*t+1}'])}, {r4(B)}, {c2}")
        return fn
    def red_a():
        for r in range(4):
            E(f"v_cndmask_b32 v{vD1+r}, v{vD2+r}, v{vD1+r}, s[{sLO8}:{sLO8+1}]")
        E(f"ds_write_b128 v{vRW}, {r4(vD1)} offset:{RED}")
    def t_bar():
        E("s_waitcnt lgkmcnt(0)")
        E("s_barrier")
    def red_b(dst):
        E(f"ds_read_b128 {r4(dst)}, v{vRR} offset:{RED}")
        E("s_waitcnt lgkmcnt(0)")
        row_reduce(E, [dst + i for i in range(4)])
        for i in range(4): E(f"v_cvt_pk_bf16_f32 v{dst+i}, v{dst+i}, v{dst+i}")
    def t_qr2():
        E(f"v_lshlrev_b32 v{vB1}, 6, v{vJ}")
        E(f"s_lshl_b32 s{sT0}, s{sW}, 1")
        E(f"v_add_u32 v{vB1}, s{sT0}, v{vB1}")
        red_b(vB0)
        E(f"s_mov_b32 exec_lo, 0x00010001")
        E(f"s_mov_b32 exec_hi, 0x00010001")
        for i in range(4): E(f"ds_write_b16 v{vB1}, v{vB0+i} offset:{QF+16*i}")
        E("s_mov_b64 exec, -1")
        E(f"v_lshlrev_b32 v{vB1}, 4, v{vN}")
    def t_qr3():
        E(f"ds_read_b128 {r4(vQ)}, v{vB1} offset:{QF}")
        E("s_waitcnt lgkmcnt(0)")
        stamp(2)
    def t_k2(t):
        def fn():
            ks = [slot_of[f"k{2*t+i}"] for i in range(4)]
            acc = [vB0 + i for i in range(4)]
            for i in range(4):
                for u in range(4):
                    E(f"v_dot2_f32_bf16 v{acc[u]}, v{ks[u]+i}, v{vQ+i}, {'0' if i == 0 else 'v%d' % acc[u]}")
            s0, s1 = vS + t, vS + t + 1
            E(f"v_add_f32_dpp v{s0}, v{acc[0]}, v{acc[0]} row_ror:8 row_mask:0xf bank_mask:0x3")
            E(f"v_add_f32_dpp v{s0}, v{acc[1]}, v{acc[1]} row_ror:8 row_mask:0xf bank_mask:0xc")
            E(f"v_add_f32_dpp v{s1}, v{acc[2]}, v{acc[2]} row_ror:8 row_mask:0xf bank_mask:0x3")
            E(f"v_add_f32_dpp v{s1}, v{acc[3]}, v{acc[3]} row_ror:8 row_mask:0xf bank_mask:0xc")
            for mod in ("row_half_mirror", "quad_perm:[1,0,3,2]", "quad_perm:[2,3,0,1]"):
                for s in (s0, s1):
                    E(f"v_add_f32_dpp v{s}, v{s}, v{s} {mod} row_mask:0xf bank_mask:0xf")
            bf16r_many(E, [s0, s1])
            E(f"v_mul_f32 v{s0}, {SCALE:#x}, v{s0}")
            E(f"v_mul_f32 v{s1}, {SCALE:#x}, v{s1}")
            bf16r_many(E, [s0, s1])
        return fn
    m, l = vD1, vD1 + 1
    def t_sm1():
        E(f"v_max3_f32 v{m}, v{vS}, v{vS+1}, v{vS+2}")
        for i in range(3, 15, 2): E(f"v_max3_f32 v{m}, v{m}, v{vS+i}, v{vS+i+1}")
        E(f"v_max_f32 v{m}, v{m}, v{vS+15}")
        for i in range(16): E(f"v_sub_f32 v{vS+i}, v{vS+i}, v{m}")
        for i in range(16): E(f"v_mul_f32 v{vS+i}, {LOG2E:#x}, v{vS+i}")
        for i in range(16): E(f"v_exp_f32 v{vS+i}, v{vS+i}")
        E(f"v_add_f32 v{l}, v{vS}, v{vS+1}")
        E(f"v_add_f32 v{vB0}, v{vS+2}, v{vS+3}")
        for i in range(4, 16, 2):
            E(f"v_add_f32 v{l}, v{l}, v{vS+i}")
            E(f"v_add_f32 v{vB0}, v{vB0}, v{vS+i+1}")
        E(f"v_add_f32 v{l}, v{l}, v{vB0}")
        E(f"v_and_b32 v{vB0}, 56, v{vL}")
        E(f"s_lshl_b32 s{sT0}, s{sW}, 6")
        E(f"v_add_u32 v{vB0}, s{sT0}, v{vB0}")
        E(f"ds_write_b64 v{vB0}, {r2(m)} offset:{ML}")
        E(f"v_lshlrev_b32 v{vB0}, 3, v{vL}")
        stamp(3)
    def t_smb():
        E("s_waitcnt lgkmcnt(0)")
        E("s_barrier")
        stamp(4)
    def t_sm2():
        mg, lg = vD2, vD2 + 1
        E(f"ds_read_b64 {r2(mg)}, v{vB0} offset:{ML}")
        E("s_waitcnt lgkmcnt(0)")
        E(f"v_mov_b32 v{vB0}, v{mg}")
        wave_reduce(E, vB0, sT0, "v_max_f32")
        E(f"v_subrev_f32 v{mg}, s{sT0}, v{mg}")
        E(f"v_subrev_f32 v{m}, s{sT0}, v{m}")
        E(f"v_mul_f32 v{mg}, {LOG2E:#x}, v{mg}")
        E(f"v_mul_f32 v{m}, {LOG2E:#x}, v{m}")
        E(f"v_exp_f32 v{mg}, v{mg}")
        E(f"v_exp_f32 v{m}, v{m}")
        E(f"v_mul_f32 v{lg}, v{lg}, v{mg}")
        wave_reduce(E, lg, sT1)
        E(f"v_rcp_f32 v{l}, s{sT1}")
        E(f"v_mul_f32 v{m}, v{m}, v{l}")
        for i in range(16): E(f"v_mul_f32 v{vS+i}, v{vS+i}, v{m}")
        for i in range(16): E(f"v_cvt_pk_bf16_f32 v{vS+i}, v{vS+i}, v{vS+i}")
    Bs = [vB0, vB1, vD1, vD2]
    vA, vA2, vA3 = vQ, vQ + 1, vQ + 2
    vFL2 = vD2 + 2
    vA4 = vQ + 3
    sVA = 22
    def t_pre_tail():
        E(f"v_and_b32 v{vA}, 7, v{vL}")
        E(f"v_mul_u32_u24 v{vA}, 80, v{vA}")
        E(f"v_lshl_add_u32 v{vA}, v{vJ}, 4, v{vA}")
        E(f"s_mul_i32 s{sT0}, s{sW}, {YPS}")
        E(f"v_add_u32 v{vA}, s{sT0}, v{vA}")
        for k, (dst, add) in enumerate(((vA2, 0), (vA3, 480))):
            E(f"s_mul_i32 s{sT0}, s{sW}, 60")
            E(f"s_add_u32 s{sT0}, s{sT0}, {add}")
            E(f"v_mul_u32_u24 v{vA4}, 15, v{vJ}")
            E(f"v_add3_u32 v{vA4}, v{vA4}, v{vN}, s{sT0}")
            if k == 1:
                E(f"s_mov_b32 s{sT1}, 640")
                E(f"v_cmp_gt_u32 s[{sVA}:{sVA+1}], s{sT1}, v{vA4}")
            E(f"v_min_u32 v{vA4}, 639, v{vA4}")
            E(f"v_lshrrev_b32 v{dst}, 7, v{vA4}")
            E(f"v_mul_u32_u24 v{dst}, 640, v{dst}")
            E(f"v_and_b32 v{vFL2}, 7, v{vA4}")
            E(f"v_mul_u32_u24 v{vFL2}, 80, v{vFL2}")
            E(f"v_add_u32 v{dst}, v{dst}, v{vFL2}")
            E(f"v_bfe_u32 v{vFL2}, v{vA4}, 3, 4")
            E(f"v_lshl_add_u32 v{dst}, v{vFL2}, 2, v{dst}")
        E(f"v_lshlrev_b32 v{vA4}, 2, v{vL}")
    def t_role():
        E(f"s_and_b32 s{sT0}, s2, 7")
        E(f"s_lshl_b32 s{sT0}, s{sT0}, 2")
        E(f"s_lshr_b32 s{sT0}, {a.rtab}, s{sT0}")
        E(f"s_and_b32 s{sT0}, s{sT0}, 15")
        E(f"s_lshr_b32 s{sT1}, s2, 3")
        E(f"s_mul_i32 s{sT2}, s{sT0}, 9")
        E(f"s_add_u32 s{sT2}, s{sT2}, s{sT1}")
        E(f"s_add_u32 s{sT2}, s{sT2}, {NF2}")
        E(f"s_cmp_lt_u32 s{sT1}, 9")
        E(f"s_cselect_b32 s{sT2}, s{sT2}, 255")
        E(f"s_sub_u32 s{sT3}, s{sT0}, 8")
        E(f"s_lshl_b32 s{sT3}, s{sT3}, 2")
        E(f"s_add_u32 s{sT3}, s{sT3}, s{sT1}")
        E(f"s_cmp_lt_u32 s{sT1}, 4")
        E(f"s_cselect_b32 s{sT3}, s{sT3}, 255")
        E(f"s_cmp_lt_u32 s{sT0}, 8")
        E(f"s_cselect_b32 s{sTILE}, s{sT2}, s{sT3}")
    def t_flag():
        E(f"v_cmp_eq_u32 vcc, 0, v{vFL}")
        E.flush()
        E("s_cbranch_vccz L_flagok")
        E.label("L_flag")
        E("s_sleep 2")
        E(f"v_and_b32 v{vFL}, 7, v{vL}")
        E(f"v_lshlrev_b32 v{vFL}, 2, v{vFL}")
        E(f"buffer_load_dword v{vFL}, v{vFL}, {S4(sDB)}, 0 offen sc1", tag="extra")
        E("s_waitcnt vmcnt(0)")
        E(f"v_cmp_eq_u32 vcc, 0, v{vFL}")
        E.flush()
        E("s_cbranch_vccz L_flagok")
        spin("L_flagok")
        E("s_branch L_flag")
        E.label("L_flagok")
    def t_or1():
        stamp(5)
        red_a()
        t_bar()
        stamp(6)
    def t_or2():
        red_b(vS)
        for fp in range(4): bfrag(Bs[fp], vS + fp)
        for cg in range(5): alloc(f"y{cg}")
    def t_y(f):
        def fn():
            fp, cg = divmod(f, 5)
            y = slot_of[f"y{cg}"]
            c = "0" if fp == 0 else r4(y)
            E(f"v_mfma_f32_16x16x32_bf16 {r4(y)}, {r4(slot_of[f'wo{f}'])}, {r4(Bs[fp])}, {c}")
        return fn
    tasks = []
    tasks.append(Task(t_setup))
    tasks.append(Task(t_ln1a, ["xs"], cost=3))
    tasks.append(Task(t_ln1b, ["xc"], cost=2))
    for t in range(10):
        tasks.append(Task(t_pair(t, "wq"), [f"wq{2*t+1}"], frees=[f"wq{2*t}", f"wq{2*t+1}"]))
        if t == 1: tasks.append(Task(t_init, atomic=True))
        if t == 5: tasks.append(Task(t_flagset, ["wq11"], frees=["z0", "z1", "z2", "z3"], atomic=True))
        if t == a.l2pf and not a.spf: tasks.append(Task(t_l2pf, atomic=True))
        if a.spf:
            if t == 0: tasks.append(Task(t_spf0, atomic=True))
            if t in (2, 4, 6): tasks.append(Task(t_spf(t // 2 - 1), atomic=True))
    tasks.append(Task(red_a))
    tasks.append(Task(t_bar, barrier=a.bd1))
    tasks.append(Task(t_qr2))
    tasks.append(Task(t_bar, barrier=a.bd2))
    tasks.append(Task(t_qr3))
    for t in range(0, 16, 2):
        tasks.append(Task(t_k2(t), [f"k{2*t+3}"], frees=[f"k{2*t+i}" for i in range(4)], cost=2))
    tasks.append(Task(t_sm1, cost=2))
    tasks.append(Task(t_smb, barrier=a.bd3))
    tasks.append(Task(t_sm2, cost=2))
    tasks.append(Task(t_pre_tail))
    tasks.append(Task(t_role, atomic=True))
    for t in range(16):
        tasks.append(Task(t_pair(t, "v"), [f"v{2*t+1}"], frees=[f"v{2*t}", f"v{2*t+1}"], cost=0.5))
        if t == 9: tasks.append(Task(t_flag, ["flag"], atomic=True))
    tasks.append(Task(t_or1, barrier=99))
    tasks.append(Task(t_or2))
    for f in range(20): tasks.append(Task(t_y(f), [f"wo{f}"], cost=0.25))

    issued = {"xs", "xc", "k0", "k1", "k2"}
    pend = deque(tasks)
    def ready(t): return all(n in issued and n not in E.vm for n in t.needs)
    def start(t):
        if t.q is None:
            for n in t.needs:
                assert n in issued, n
                if n in E.vm: E.wait_vm(n)
            t.q = E.record(t.fn)
    def step(t, budget):
        start(t)
        n = 0
        masked = False
        while t.q and (t.atomic or masked or n < budget):
            it = t.q.popleft(); E.play(it); n += 1
            if it[0] == "i" and "exec" in it[1].split(",")[0]:
                masked = not it[1].endswith("exec, -1")
        if not t.q:
            for x in t.frees: release(x)
        return n
    def run(t):
        step(t, 10**9)
    D = a.depth
    for i, (tag, fn, needs_slot) in enumerate(loads):
        while needs_slot and not free:
            run(pend.popleft())
        if tag == "tk":
            while any(t.fn is t_sm1 for t in pend): run(pend.popleft())
        lim = 63 if i < a.first else D
        if len(E.vm) >= lim:
            E(f"s_waitcnt vmcnt({lim-1})")
            E.vm = E.vm[len(E.vm) - (lim - 1):]
        fn(); issued.add(tag)
        if i + 1 < a.first: continue
        budget = a.budget
        while pend and budget > 0 and (pend[0].q is not None or ready(pend[0])):
            if pend[0].barrier > 0:
                pend[0].barrier -= 1
                break
            budget -= step(pend[0], budget)
            if not pend[0].q: pend.popleft()
    while pend: run(pend.popleft())
    assert not E.vm, E.vm
    stamp(7)
    E(f"s_mov_b64 exec, s[{sLO8}:{sLO8+1}]")
    for cg in range(5):
        E(f"ds_write_b128 v{vA}, {r4(slot_of[f'y{cg}'])} offset:{YP+cg*640}")
    E("s_mov_b64 exec, -1")
    E(f"s_mul_i32 s{sT0}, s{sB}, {HS}")
    E(f"s_lshl_b32 s{sT1}, s{sW}, 8")
    E(f"s_add_u32 s{sT0}, s{sT0}, s{sT1}")
    E(f"s_mov_b32 s{sT2}, 0x80008000")
    E(f"s_mov_b32 s{sT3}, 0x80008000")
    E("s_waitcnt lgkmcnt(0)")
    E("s_barrier")
    stamp(8)
    vP = vS
    for k, ad in enumerate((vA2, vA3)):
        for p in range(4):
            E(f"ds_read2st64_b32 {r2(vP+8*k+2*p)}, v{ad} offset0:{YP//256+26*p} offset1:{YP//256+26*p+13}")
    for k in range(2):
        b = vP + 8 * k
        if not a.ts: E(f"s_waitcnt lgkmcnt({4 if k == 0 else 0})")
        else: E("s_waitcnt lgkmcnt(0)")
        for st in (4, 2, 1):
            for p in range(st):
                E(f"v_add_f32 v{b+p}, v{b+p}, v{b+p+st}")
        if k == 1: E(f"v_cndmask_b32 v{b}, 0, v{b}, s[{sVA}:{sVA+1}]")
        E(f"v_cndmask_b32 v{b}, v{b}, 1.0, s[{sT2}:{sT3}]")
        if k == 1:
            E(f"s_cmp_ge_u32 s{sW}, 3")
            E("s_cbranch_scc1 L_arr")
        E(f"buffer_atomic_add_f32 v{b}, v{vA4}, {S4(sWS)}, s{sT0} offen offset:{2048*k}", tag="extra")
    E.label("L_arr")
    stamp(9)
    E(f"s_cmp_ge_u32 s{sTILE}, {NF2 + NF1}")
    E("s_cbranch_scc1 L_fin")
    E(f"s_mov_b32 s{sWF+2}, {640*3456}")
    E(f"s_mov_b32 s{sWF+3}, 0x20000")
    E(f"s_cmp_lt_u32 s{sTILE}, {NF2}")
    E("s_cbranch_scc1 L_ffn2")

    vW = vF
    E(f"s_mov_b32 s{sROLE}, 1")
    E(f"s_sub_u32 s{sTILE}, s{sTILE}, {NF2}")
    E(f"s_mov_b32 s{sWF}, s16")
    E(f"s_and_b32 s{sWF+1}, s17, 0xffff")
    vDM, vX0 = vB0, vB0 + 1
    E(f"v_lshrrev_b32 v{vDM}, 3, v{vL}")
    E(f"v_mul_u32_u24 v{vDM}, 3456, v{vDM}")
    E(f"v_and_b32 v{vX0}, 1, v{vJ}")
    E(f"v_lshlrev_b32 v{vX0}, 2, v{vX0}")
    E(f"s_and_b32 s{sT0}, s{sW}, 1")
    E(f"s_lshl_b32 s{sT1}, s{sT0}, 1")
    E(f"v_xor_b32 v{vX0}, s{sT1}, v{vX0}")
    E(f"v_xor_b32 v{vX0}, v{vL}, v{vX0}")
    E(f"v_and_b32 v{vX0}, 7, v{vX0}")
    E(f"v_lshl_add_u32 v{vDM}, v{vX0}, 4, v{vDM}")
    E(f"s_lshr_b32 s{sT1}, s{sW}, 1")
    E(f"s_mul_i32 s{sT1}, s{sT1}, 15")
    E(f"s_lshl_b32 s{sT0}, s{sT0}, 3")
    E(f"s_add_u32 s{sT1}, s{sT1}, s{sT0}")
    E(f"s_mul_i32 s{sT1}, s{sT1}, 3456")
    E(f"s_lshl_b32 s{sT0}, s{sTILE}, 7")
    E(f"s_add_u32 s{sT1}, s{sT1}, s{sT0}")
    E(f"s_lshl_b32 s{sT2}, s{sW}, 10")
    E(f"s_add_u32 s{sT2}, s{sT2}, {WT}")
    xr = vF + 172
    E(f"v_lshrrev_b32 v{vX0}, 2, v{vL}")
    E(f"v_mul_u32_u24 v{vX0}, 30, v{vX0}")
    E(f"v_and_b32 v{vX0+1}, 3, v{vL}")
    E(f"v_lshl_add_u32 v{vX0}, v{vX0+1}, 3, v{vX0}")
    E(f"s_mul_i32 s{sT0}, s{sW}, 1280")
    for i in range(3):
        E(f"buffer_load_dwordx2 {r2(xr+2*i)}, v{vX0}, {S4(sX)}, s{sT0} offen offset:{480*i}", tag="extra")
    E("s_barrier")
    stamp(10)
    for t in range(11):
        E(f"s_mov_b32 m0, s{sT2}")
        E(f"buffer_load_dwordx4 v{vDM}, {S4(sWF)}, s{sT1} offen{fnt} lds", tag="extra")
        if t < 10:
            E(f"s_add_u32 s{sT1}, s{sT1}, {60*3456}")
            E(f"s_add_u32 s{sT2}, s{sT2}, 8192")
    if a.ts == 2: stamp(1)
    hb = vF + 88
    ac = vF + 136
    xk = vF + 148
    hn = vF + 160
    for i in range(12): E(f"v_mov_b32 v{hn+i}, 0")
    for i in range(8, 11): E(f"v_mov_b32 v{ac+i}, 0")
    E(f"v_mov_b32 v{ac+11}, 0x42000000")
    vA = vB1
    E(f"v_lshlrev_b32 v{vA+2}, 3, v{vL}")
    E(f"s_mul_i32 s{sT1}, s{sW}, {HNS}")
    E(f"v_add_u32 v{vA+2}, s{sT1}, v{vA+2}")
    vTR1 = vQ
    E(f"v_lshlrev_b32 v{vTR1}, 10, v{vJ}")
    E(f"v_lshrrev_b32 v{vDM}, 2, v{vN}")
    E(f"v_lshl_add_u32 v{vTR1}, v{vDM}, 7, v{vTR1}")
    E(f"v_and_b32 v{vDM}, 2, v{vDM}")
    E(f"v_and_b32 v{vX0}, 1, v{vJ}")
    E(f"v_or_b32 v{vDM}, v{vDM}, v{vX0}")
    E(f"s_and_b32 s{sT0}, s{sW}, 3")
    E(f"v_xor_b32 v{vDM}, s{sT0}, v{vDM}")
    E(f"v_lshl_add_u32 v{vTR1}, v{vDM}, 5, v{vTR1}")
    E(f"v_and_b32 v{vDM}, 3, v{vN}")
    E(f"v_lshl_add_u32 v{vTR1}, v{vDM}, 3, v{vTR1}")
    E(f"v_add_u32 v{vTR1}, {WT}, v{vTR1}")
    E(f"v_add_u32 v{vTR1+1}, {11*4096}, v{vTR1}")
    E(f"v_and_b32 v{vA+3}, 7, v{vL}")
    E(f"v_mul_u32_u24 v{vA+3}, {HNS}, v{vA+3}")
    E(f"v_lshl_add_u32 v{vA+3}, v{vJ}, 4, v{vA+3}")
    E(f"v_lshrrev_b32 v{vDM}, 3, v{vN}")
    E(f"v_lshl_add_u32 v{vA+3}, v{vDM}, 6, v{vA+3}")
    E(f"v_lshlrev_b32 v{vA}, 5, v{vN}")
    E(f"v_lshl_add_u32 v{vA}, v{vJ}, 3, v{vA}")
    E(f"s_lshl_b32 s{sT3}, s{sTILE}, 2")
    E(f"s_add_u32 s{sT3}, s{sT3}, s{sW}")
    E(f"s_lshl_b32 s{sT3}, s{sT3}, 8")
    E(f"s_mul_i32 s{sT2}, s{sW}, {HS}")
    sM3, sCL = 12, 14
    E(f"s_mov_b32 s{sM3}, 0x77777777")
    E(f"s_mov_b32 s{sM3+1}, 0x77777777")
    E(f"s_mov_b32 s{sCL}, 0x88888888")
    E(f"s_mov_b32 s{sCL+1}, 0x88888888")
    def accload():
        E(f"buffer_load_dwordx4 {r4(ac)}, v{vL16}, {S4(sWS)}, s{sT2} offen sc1", tag="extra")
        E(f"buffer_load_dwordx4 {r4(ac+4)}, v{vL16}, {S4(sWS)}, s{sT2} offen offset:1024 sc1", tag="extra")
        E("s_mov_b32 exec_hi, 0xffff")
        E(f"buffer_load_dwordx4 {r4(ac+8)}, v{vL16}, {S4(sWS)}, s{sT2} offen offset:2048 sc1", tag="extra")
        E("s_mov_b32 exec_hi, -1")
    if a.ts == 2: stamp(2)
    E("s_waitcnt vmcnt(0)")
    if a.ts == 2: stamp(3)
    for i in range(6):
        E(f"v_lshlrev_b32 v{xk+2*i}, 16, v{xr+i}")
        E(f"v_and_b32 v{xk+2*i+1}, 0xffff0000, v{xr+i}")
    E("s_barrier")
    if a.ts == 2: stamp(4)
    accload()
    E(f"s_cmp_ge_u32 s{sW}, 4")
    E("s_cbranch_scc1 L_f1_poll")
    for t in range(22):
        o = (t % 11) * 4096
        E(f"ds_read_b64_tr_b16 {r2(vW+4*t)}, v{vTR1 + t//11} offset:{o}")
        E(f"ds_read_b64_tr_b16 {r2(vW+4*t+2)}, v{vTR1 + t//11} offset:{o+512}")
    stamp(11)
    E.label("L_f1_poll")
    E("s_waitcnt vmcnt(0)")
    E(f"v_min3_f32 v{vD1}, v{ac+3}, v{ac+7}, v{ac+11}")
    E(f"v_cmp_gt_f32 vcc, 0x42000000, v{vD1}")
    E(f"s_and_b64 vcc, vcc, s[{sCL}:{sCL+1}]")
    E("s_cbranch_scc0 L_f1_go")
    spin("L_f1_go")
    if a.sleep: E(f"s_sleep {a.sleep}")
    accload()
    E("s_branch L_f1_poll")
    E.label("L_f1_go")
    stamp(12)
    hx = ac
    bf16r_many(E, range(ac, ac + 12))
    for i in range(12): E(f"v_add_f32 v{hx+i}, v{xk+i}, v{ac+i}")
    bf16r_many(E, range(hx, hx + 12))
    full = [0, 1, 2, 4, 5, 6]
    def masked(fn):
        for i in full: fn(i)
        E(f"s_mov_b32 exec_hi, {(1 << 11) - 1:#x}")
        fn(8); fn(9)
        E(f"s_mov_b32 exec_hi, {(1 << 10) - 1:#x}")
        fn(10)
        E(f"s_and_b64 exec, exec, s[{sM3}:{sM3+1}]")
        fn(11)
        E(f"s_mov_b64 exec, s[{sM3}:{sM3+1}]")
        fn(3); fn(7)
        E("s_mov_b64 exec, -1")
    t0_, t1_, t2_, vMN, vRC = vD1, vD1 + 1, vD1 + 2, vD2, vD2 + 1
    def f_sum(i):
        if i == 0: E(f"v_add_f32 v{t0_}, v{hx}, v{hx+1}")
        elif i == 1: pass
        elif i == 2: E(f"v_add_f32 v{t1_}, v{hx+2}, v{hx+4}")
        elif i == 4: pass
        else:
            d = t0_ if i % 2 else t1_
            E(f"v_add_f32 v{d}, v{d}, v{hx+i}")
    masked(f_sum)
    E(f"v_add_f32 v{t0_}, v{t0_}, v{t1_}")
    E(f"v_mov_b32 v{t2_}, 0x3acccccd")
    wave_reduce(E, t0_, sT0)
    E(f"v_mul_f32 v{vMN}, s{sT0}, v{t2_}")
    for i in range(12): E(f"v_sub_f32 v{xk+i}, v{hx+i}, v{vMN}")
    def f_var(i):
        if i == 0: E(f"v_mul_f32 v{t0_}, v{xk}, v{xk}")
        elif i == 1: E(f"v_mul_f32 v{t1_}, v{xk+1}, v{xk+1}")
        else:
            d = t0_ if i % 2 == 0 else t1_
            E(f"v_fmac_f32 v{d}, v{xk+i}, v{xk+i}")
    masked(f_var)
    E(f"v_add_f32 v{t0_}, v{t0_}, v{t1_}")
    bf16r(E, vMN, vMN)
    row_reduce(E, [t0_])
    for i in range(6): E(f"v_sub_f32 v{hx+i}, v{hx+i}, v{vMN}")
    E(f"v_add_f32_dpp v{t0_}, v{t0_}, v{t0_} row_bcast:15 row_mask:0xa bank_mask:0xf")
    for i in range(6, 12): E(f"v_sub_f32 v{hx+i}, v{hx+i}, v{vMN}")
    E(f"v_add_f32_dpp v{t0_}, v{t0_}, v{t0_} row_bcast:31 row_mask:0xc bank_mask:0xf")
    bf16r_many(E, range(hx, hx + 4))
    E(f"v_readlane_b32 s{sT0}, v{t0_}, 63")
    bf16r_many(E, range(hx + 4, hx + 8))
    E(f"v_mul_f32 v{t0_}, s{sT0}, v{t2_}")
    bf16r(E, t0_, t0_)
    E(f"v_add_f32 v{t0_}, 0x3727c5ac, v{t0_}")
    bf16r(E, t0_, t0_)
    E(f"v_sqrt_f32 v{t0_}, v{t0_}")
    bf16r_many(E, range(hx + 8, hx + 12))
    bf16r(E, t0_, t0_)
    E(f"v_rcp_f32 v{vRC}, v{t0_}")
    masked(lambda i: E(f"v_mul_f32 v{hn+i}, v{hx+i}, v{vRC}"))
    for i in range(6): E(f"v_cvt_pk_bf16_f32 v{xk+i}, v{hn+2*i}, v{hn+2*i+1}")
    E(f"ds_write_b64 v{vA+2}, {r2(xk)} offset:{HN}")
    E(f"ds_write_b64 v{vA+2}, {r2(xk+2)} offset:{HN+512}")
    E("s_mov_b32 exec_hi, 0xffff")
    E(f"ds_write_b64 v{vA+2}, {r2(xk+4)} offset:{HN+1024}")
    E("s_mov_b32 exec_hi, -1")
    E("s_waitcnt lgkmcnt(0)")
    E("s_barrier")
    E(f"s_cmp_ge_u32 s{sW}, 4")
    E("s_cbranch_scc1 L_fin")
    if a.ts:
        stamp(13); E("s_waitcnt lgkmcnt(0)")
    for u in range(11):
        E(f"ds_read_b128 {r4(hb+4*u)}, v{vA+3} offset:{HN+128*u}")
    for u in range(11):
        E(f"s_waitcnt lgkmcnt({10-u})")
        c1 = "0" if u == 0 else r4(vD1)
        c2 = "0" if u == 0 else r4(vD2)
        E(f"v_mfma_f32_16x16x32_bf16 {r4(vD1)}, {r4(vW+8*u)}, {r4(hb+4*u)}, {c1}")
        E(f"v_mfma_f32_16x16x32_bf16 {r4(vD2)}, {r4(vW+8*u+4)}, {r4(hb+4*u)}, {c2}")
    for i in range(4):
        E(f"v_add_f32_dpp v{vD1+i}, v{vD2+i}, v{vD1+i} row_ror:8 row_mask:0xf bank_mask:0xf")
    for i in range(4): E(f"v_max_f32 v{vD1+i}, 0, v{vD1+i}")
    E(f"v_cvt_pk_bf16_f32 v{vD2}, v{vD1}, v{vD1+1}")
    E(f"v_cvt_pk_bf16_f32 v{vD2+1}, v{vD1+2}, v{vD1+3}")
    E(f"s_mov_b64 exec, s[{sLO8}:{sLO8+1}]")
    E(f"buffer_store_dwordx2 {r2(vD2)}, v{vA}, {S4(sH1)}, s{sT3} offen sc1", tag="extra")
    stamp(14)
    E("s_branch L_fin")

    E.label("L_ffn2")
    E(f"s_mov_b64 s[{sDRY}:{sDRY+1}], {0 if a.dry & 2 else -1}")
    E(f"s_mov_b32 s{sROLE}, 2")
    E(f"s_mov_b32 s{sWF}, s18")
    E(f"s_and_b32 s{sWF+1}, s19, 0xffff")
    vA = vD1
    E(f"v_lshrrev_b32 v{vA}, 2, v{vL}")
    E(f"v_mul_u32_u24 v{vA}, 1280, v{vA}")
    E(f"v_and_b32 v{vA+1}, 3, v{vL}")
    E(f"v_lshl_add_u32 v{vA}, v{vA+1}, 4, v{vA}")
    E(f"s_mul_i32 s{sT0}, s{sW}, {7*32*1280}")
    E(f"s_lshl_b32 s{sT1}, s{sTILE}, 6")
    E(f"s_add_u32 s{sT0}, s{sT0}, s{sT1}")
    E(f"s_mul_i32 s{sT3}, s{sW}, {14*1024}")
    E(f"s_add_u32 s{sT3}, s{sT3}, {WT}")
    E(f"s_mov_b32 s{sT2}, s{sT3}")
    E("s_barrier")
    stamp(10)
    for t in range(14):
        E(f"s_mov_b32 m0, s{sT2}")
        E(f"buffer_load_dwordx4 v{vA}, {S4(sWF)}, s{sT0} offen{fnt} lds", tag="extra")
        if t < 13:
            E(f"s_add_u32 s{sT0}, s{sT0}, {16*1280}")
            E(f"s_add_u32 s{sT2}, s{sT2}, 1024")
    vB7 = vQ
    vXO = vQ + 1
    E(f"v_and_b32 v{vB7}, 7, v{vL}")
    E(f"v_mul_u32_u24 v{vXO}, 1280, v{vB7}")
    E(f"v_lshl_add_u32 v{vXO}, v{vJ}, 3, v{vXO}")
    E(f"s_and_b32 s{sT4}, s{sW}, 1")
    E(f"s_lshl_b32 s{sT4}, s{sT4}, 5")
    E(f"s_add_u32 s{sT1}, s{sT1}, s{sT4}")
    xr = vS
    E(f"buffer_load_dwordx2 {r2(xr)}, v{vXO}, {S4(sX)}, s{sT1} offen", tag="extra")
    vHA = vF + 128
    E(f"s_lshr_b32 s{sT0}, s{sT1}, 1")
    E(f"v_lshl_add_u32 v{vA}, v{vJ}, 2, s{sT0}")
    E(f"v_mul_u32_u24 v{vA+1}, {HS}, v{vB7}")
    for r in range(4):
        E(f"v_add_u32 v{vA+2}, {r}, v{vA}")
        E(f"v_mul_u32_u24 v{vA+3}, 4370, v{vA+2}")
        E(f"v_lshrrev_b32 v{vA+3}, 16, v{vA+3}")
        E(f"v_add_u32 v{vA+2}, v{vA+2}, v{vA+3}")
        E(f"v_lshl_add_u32 v{vHA+r}, v{vA+2}, 2, v{vA+1}")
        if r in (0, 3):
            E(f"v_lshl_add_u32 v{vHA+4+r//3}, v{vA+3}, 6, v{vA+1}")
    vH1 = vB1 + 1
    E(f"v_lshrrev_b32 v{vH1}, 1, v{vJ}")
    E(f"v_lshlrev_b32 v{vH1}, 8, v{vH1}")
    E(f"v_lshl_add_u32 v{vH1}, v{vB7}, 5, v{vH1}")
    E(f"v_and_b32 v{vB1+2}, 1, v{vJ}")
    E(f"v_lshl_add_u32 v{vH1}, v{vB1+2}, 4, v{vH1}")
    E(f"v_lshrrev_b32 v{vB1+2}, 3, v{vN}")
    E(f"v_lshl_add_u32 v{vH1}, v{vB1+2}, 9, v{vH1}")
    vTR = vB1 + 2
    E(f"v_lshlrev_b32 v{vTR}, 9, v{vJ}")
    E(f"v_lshrrev_b32 v{vB1+3}, 2, v{vN}")
    E(f"v_lshl_add_u32 v{vTR}, v{vB1+3}, 6, v{vTR}")
    E(f"v_and_b32 v{vB1+3}, 3, v{vN}")
    E(f"v_lshl_add_u32 v{vTR}, v{vB1+3}, 3, v{vTR}")
    E(f"v_add_u32 v{vTR}, s{sT3}, v{vTR}")
    vRWp, vRRp = vB0, vB0 + 1
    E(f"s_lshl_b32 s{sT0}, s{sW}, 11")
    E(f"v_add_u32 v{vRWp}, s{sT0}, v{vL16}")
    E(f"s_lshl_b32 s{sT0}, s{sT4}, 5")
    E(f"v_add_u32 v{vRRp}, s{sT0}, v{vL16}")
    E(f"s_mul_i32 s{sT2}, s{sW}, {7*512}")
    acc = [vF + 96 + 4 * i for i in range(4)]
    ac = vS + 4
    hx = vS + 12
    hxk = vS + 8
    hb = vF + 64
    E.label("L_f2_top")
    E(f"s_mov_b64 exec, s[{sDRY}:{sDRY+1}]")
    E("s_cbranch_execz L_f2_got")
    E("s_waitcnt vmcnt(0)")
    for t in range(7):
        for c in range(2):
            E(f"ds_read_b64_tr_b16 {r2(vW+8*t+4*c)}, v{vTR} offset:{t*2048+c*32}")
            E(f"ds_read_b64_tr_b16 {r2(vW+8*t+4*c+2)}, v{vTR} offset:{t*2048+c*32+256}")
    for i in range(2):
        E(f"v_lshlrev_b32 v{hxk+2*i}, 16, v{xr+i}")
        E(f"v_and_b32 v{hxk+2*i+1}, 0xffff0000, v{xr+i}")
    E("s_waitcnt lgkmcnt(0)")
    stamp(11)
    E(f"s_cmp_ge_u32 s{sW}, 2")
    E("s_cbranch_scc1 L_f2_go")
    E.label("L_f2_poll")
    E(f"buffer_load_dword v{vD1}, v{vHA+4}, {S4(sWS)}, 0 offen offset:60 sc1", tag="extra")
    E(f"buffer_load_dword v{vD1+1}, v{vHA+5}, {S4(sWS)}, 0 offen offset:60 sc1", tag="extra")
    E("s_waitcnt vmcnt(0)")
    E(f"v_min_f32 v{vD1}, v{vD1}, v{vD1+1}")
    E(f"v_cmp_gt_f32 vcc, 0x42000000, v{vD1}")
    E("s_cbranch_vccz L_f2_cnt")
    spin("L_f2_cnt")
    E(f"s_sleep {a.sleep3}")
    E("s_branch L_f2_poll")
    E.label("L_f2_cnt")
    for r in range(4):
        E(f"buffer_load_dword v{ac+r}, v{vHA+r}, {S4(sWS)}, 0 offen sc1", tag="extra")
    E.label("L_f2_go")
    E("s_barrier")
    stamp(12)
    E.label("L_f2_poll2")
    for u in range(4):
        E(f"buffer_load_dwordx4 {r4(hb+4*u)}, v{vH1}, {S4(sH1)}, s{sT2} offen offset:{1024*u} sc1", tag="extra")
    E("s_waitcnt vmcnt(0)")
    E(f"v_max3_u32 v{vD1}, v{hb}, v{hb+1}, v{hb+2}")
    E(f"v_max3_u32 v{vD1+1}, v{hb+3}, v{hb+4}, v{hb+5}")
    for k in range(6, 16, 2):
        tgt = vD1 + ((k // 2) % 2)
        E(f"v_max3_u32 v{tgt}, v{tgt}, v{hb+k}, v{hb+k+1}")
    E(f"v_max_u32 v{vD1}, v{vD1}, v{vD1+1}")
    E(f"v_cmp_eq_u32 vcc, -1, v{vD1}")
    E("s_cbranch_vccz L_f2_got")
    spin("L_f2_got")
    if a.sleep2: E(f"s_sleep {a.sleep2}")
    E("s_branch L_f2_poll2")
    E.label("L_f2_got")
    stamp(13)
    for t in range(7):
        u, half = divmod(t, 2)
        for c in range(2):
            d = acc[2 * c + half]
            cc = "0" if u == 0 else r4(d)
            E(f"v_mfma_f32_16x16x32_bf16 {r4(d)}, {r4(vW+8*t+4*c)}, {r4(hb+4*u)}, {cc}")
    bf16r_many(E, range(ac, ac + 4))
    for i in range(4): E(f"v_add_f32 v{hx+i}, v{hxk+i}, v{ac+i}")
    bf16r_many(E, range(hx, hx + 4))
    for c in range(2):
        for r in range(4):
            E(f"v_cndmask_b32 v{acc[2*c]+r}, v{acc[2*c+1]+r}, v{acc[2*c]+r}, s[{sLO8}:{sLO8+1}]")
        E(f"ds_write_b128 v{vRWp}, {r4(acc[2*c])} offset:{F2R+1024*c}")
    E("s_waitcnt lgkmcnt(0)")
    E("s_barrier")
    E(f"s_cmp_ge_u32 s{sW}, 2")
    E("s_cbranch_scc1 L_f2_next")
    pb = vF + 144
    for p in range(8):
        E(f"ds_read_b128 {r4(pb+4*p)}, v{vRRp} offset:{F2R+2048*p}")
    E("s_waitcnt lgkmcnt(0)")
    for st in (4, 2, 1):
        for p in range(st):
            for i in range(4):
                E(f"v_add_f32 v{pb+4*p+i}, v{pb+4*p+i}, v{pb+4*(p+st)+i}")
    for i in range(4):
        E(f"v_add_f32_dpp v{pb+i}, v{pb+i}, v{pb+i} row_ror:8 row_mask:0xf bank_mask:0xf")
    bf16r_many(E, range(pb, pb + 4))
    for i in range(4): E(f"v_add_f32 v{pb+i}, v{hx+i}, v{pb+i}")
    E(f"v_cvt_pk_bf16_f32 v{vD2}, v{pb}, v{pb+1}")
    E(f"v_cvt_pk_bf16_f32 v{vD2+1}, v{pb+2}, v{pb+3}")
    E(f"s_and_b64 exec, exec, s[{sLO8}:{sLO8+1}]")
    E("s_cbranch_execz L_f2_next")
    E(f"buffer_store_dwordx2 {r2(vD2)}, v{vXO}, {S4(sOUT)}, s{sT1} offen{a.opol}", tag="extra")
    stamp(14)
    E.label("L_f2_next")
    E(f"s_cmp_lg_u32 s{sDRY}, 0")
    E("s_cbranch_scc1 L_fin")
    E(f"s_mov_b64 s[{sDRY}:{sDRY+1}], -1")
    E("s_branch L_f2_top")
    E.label("L_fin")
    if a.ts and a.echo:
        E(f"s_cmp_lg_u32 s{sROLE}, 2")
        E("s_cbranch_scc1 L_end")
        E(f"s_cmp_lg_u32 s{sW}, 0")
        E("s_cbranch_scc1 L_end")
        E("s_waitcnt vmcnt(0)")
        stamp(15)
        E("s_waitcnt lgkmcnt(0)")
        if a.skew >= 0:
            E("s_mov_b64 exec, -1")
            E(f"s_mov_b32 s{sT0}, 0x30000")
            E(f"buffer_load_dword v{vS}, off, {S4(sWS)}, s{sT0} offset:{4*a.skew} sc1", tag="extra")
            E(f"buffer_load_dword v{vS+1}, off, {S4(sWS)}, s{sT0} offset:4 sc1", tag="extra")
            E("s_waitcnt vmcnt(0)")
            E(f"v_sub_u32 v{vS}, v{vS}, v{vS+1}")
            E(f"v_readfirstlane_b32 s{sT0}, v{vS}")
            E(f"s_add_u32 s{sT0}, s{sT0}, 200")
            E(f"s_lshl_b32 s{sT0}, s{sT0}, 2")
        else:
            E(f"s_sub_u32 s{sT0}, s{sTS+2*a.echo}, s{sTS+2*a.echo0}")
        E(f"s_min_u32 s{sT0}, s{sT0}, 20000")
        E(f"s_add_u32 s{sT0}, s{sT0}, s{sTS+30}")
        E.label("L_echo")
        E(f"s_memrealtime s[{sT2}:{sT2+1}]")
        E("s_waitcnt lgkmcnt(0)")
        E(f"s_sub_u32 s{sT1}, s{sT0}, s{sT2}")
        E(f"s_cmp_gt_i32 s{sT1}, 0")
        E("s_cbranch_scc1 L_echo")
    elif a.ts:
        E("s_waitcnt vmcnt(0)")
        stamp(15)
        write_stamps()
    E.label("L_end")
    E("s_endpgm")
    E.label("L_codeend")

    out = HDR
    out += f"; @launch grid=(256,1,1) block=(512,1,1) lds={LDS_TOTAL}\n"
    out += f""".amdgcn_target "amdgcn-amd-amdhsa--gfx950"
.text
.globl {NAME}
.p2align 8
.type {NAME},@function
{NAME}:
"""
    out += E.text().replace("CODE_BYTES", f"L_codeend-{NAME}")
    out += f""".section .rodata,"a"
.p2align 6
.amdhsa_kernel {NAME}
  .amdhsa_next_free_vgpr 256
  .amdhsa_next_free_sgpr 102
  .amdhsa_accum_offset 256
  .amdhsa_group_segment_fixed_size 0
  .amdhsa_kernarg_size 88
  .amdhsa_user_sgpr_count 2
  .amdhsa_user_sgpr_kernarg_segment_ptr 1
  .amdhsa_system_sgpr_workgroup_id_x 1
  .amdhsa_float_denorm_mode_32 3
.end_amdhsa_kernel
"""
    return out

def parser():
    p = argparse.ArgumentParser()
    p.add_argument("-o", default="sequential_preLN__sliding_block_cached__dense_activation_relu__decode.s")
    p.add_argument("--fnt", type=int, default=0)
    p.add_argument("--ts", type=int, default=0)
    p.add_argument("--sleep", type=int, default=1)
    p.add_argument("--sleep2", type=int, default=1)
    p.add_argument("--depth", type=int, default=6)
    p.add_argument("--first", type=int, default=3)
    p.add_argument("--budget", type=int, default=16)
    p.add_argument("--qspan", type=int, default=30)
    p.add_argument("--ostart", type=int, default=0)
    p.add_argument("--otail", type=int, default=4)
    p.add_argument("--tkpos", type=int, default=28)
    p.add_argument("--pf", type=int, default=2)
    p.add_argument("--spf", type=int, default=1)
    p.add_argument("--opol", default="")
    p.add_argument("--skew", type=int, default=-1)
    p.add_argument("--htab", default="0x76325410")
    p.add_argument("--rtab", default="0x210cba98")
    p.add_argument("--sphalf", type=int, default=2)
    p.add_argument("--npoll2", type=int, default=1)
    p.add_argument("--stag2", type=int, default=4)
    p.add_argument("--pub", default="sc1")
    p.add_argument("--sub", default="sc1")
    p.add_argument("--zwg", type=int, default=28)
    p.add_argument("--nrep", type=int, default=8)
    p.add_argument("--sleep3", type=int, default=4)
    p.add_argument("--h1wait", type=int, default=0)
    p.add_argument("--npoll", type=int, default=1)
    p.add_argument("--stag", type=int, default=3)
    p.add_argument("--static", type=int, default=0)
    p.add_argument("--l2pf", type=int, default=6)
    p.add_argument("--echo", type=int, default=0)
    p.add_argument("--echo0", type=int, default=0)
    p.add_argument("--kvpol", default=" nt")
    p.add_argument("--wpol", default="")
    p.add_argument("--bd1", type=int, default=0)
    p.add_argument("--bd2", type=int, default=0)
    p.add_argument("--bd3", type=int, default=0)
    p.add_argument("--hmap", type=int, default=3)
    p.add_argument("--tlb", type=int, default=0)
    p.add_argument("--dry", type=int, default=2)
    return p

if __name__ == "__main__":
    a = parser().parse_args()
    open(a.o, "w").write(gen(a))
```

```python
import sys, argparse, struct
from collections import deque
from asmlib import Emitter
from gen2 import (NAME, HDR, srd, srd_off, r4, r2, S4, row_reduce, wave_reduce, bf16r, bf16r_many, unpack10, ln_stats,
                  LOG2E, SCALE, sT0, sT1, sT2, sT3, sT4)

RED = 0
QF = 8448
ML = 8704
YP = 9216
YPS = 3328
HN = 9216
HNS = 1408
F2R = 9216
WT = 35840
LDS_TOTAL = 150528
HS = 3072
H1_BASE = 32768
TS_BASE = 1 << 20
NF1 = 27

sW, sH, sB = 3, 26, 27
sK, sV, sWQ, sWO, sX, sWS, sDB, sWF, sOUT, sH1 = 28, 32, 36, 40, 44, 48, 52, 56, 60, 64
sROLE, sTILE = 100, 101
sSPIN = 9
sLO8 = 10
sKO, sVO, sQ0, sQ1, sOO = 12, 13, 14, 15, 20
sDRY = 22
sEX = 24
sTS = 68
vL, vL16, vWQ, vWO = 0, 1, 2, 3
vM = 4
vQ = 8
vB0, vB1 = 12, 16
vD1, vD2 = 20, 24
vT = 28
vS = 32
vF = 48
vJ, vN = vT, vT + 1

class Task:
    def __init__(self, fn, needs=(), frees=(), barrier=0, cost=1, atomic=False):
        self.fn, self.needs, self.frees, self.barrier, self.cost = fn, list(needs), list(frees), barrier, cost
        self.atomic = atomic
        self.q = None

class RecEmitter(Emitter):
    def __init__(self):
        super().__init__(); self.rec = None
    def __call__(self, text, tag=None):
        if self.rec is not None: self.rec.append(("i", text, tag))
        else: super().__call__(text, tag)
    def label(self, name):
        if self.rec is not None: self.rec.append(("l", name, None))
        else: super().label(name)
    def flush(self, n=None):
        if self.rec is not None: self.rec.append(("f", None, None))
        else: super().flush(n)
    def record(self, fn):
        self.rec = []; fn(); r = self.rec; self.rec = None; return deque(r)
    def play(self, item):
        k, a, b = item
        if k == "i": self(a, b)
        elif k == "l": self.label(a)
        else: self.flush()

def gen(a):
    E = RecEmitter()
    NC = a.nc2
    NF2 = 40 // NC
    nt = a.kvpol
    wnt = a.wpol
    fnt = " nt" if a.fnt else ""
    def stamp(i):
        if a.ts: E(f"s_memrealtime s[{sTS+2*i}:{sTS+2*i+1}]")
    def spin(lbl):
        E(f"s_sub_u32 s{sSPIN}, s{sSPIN}, 1")
        E(f"s_cbranch_scc1 {lbl}")
    def write_stamps():
        E("s_waitcnt lgkmcnt(0)")
        E("s_mov_b64 exec, 1")
        E(f"s_lshl_b32 s{sT0}, s2, 3")
        E(f"s_add_u32 s{sT0}, s{sT0}, s{sW}")
        E(f"s_lshl_b32 s{sT0}, s{sT0}, 8")
        E(f"s_add_u32 s{sT0}, s{sT0}, {TS_BASE}")
        for i in range(16):
            E(f"v_mov_b32 v{vT}, s{sTS+2*i}")
            E(f"v_mov_b32 v{vT+1}, s{sTS+2*i+1}")
            E(f"buffer_store_dwordx2 {r2(vT)}, off, {S4(sWS)}, s{sT0} offset:{8*i}", tag="extra")
            E("s_nop 1")
        E(f"s_getreg_b32 s{sT1}, hwreg(HW_REG_XCC_ID)")
        E(f"v_mov_b32 v{vT}, s{sT1}")
        E(f"v_mov_b32 v{vT+1}, s{sROLE}")
        E(f"buffer_store_dwordx2 {r2(vT)}, off, {S4(sWS)}, s{sT0} offset:128", tag="extra")
        E("s_nop 1")
        E(f"v_mov_b32 v{vT}, s{sSPIN}")
        E(f"v_mov_b32 v{vT+1}, 0")
        E(f"buffer_store_dwordx2 {r2(vT)}, off, {S4(sWS)}, s{sT0} offset:136", tag="extra")

    E("s_cmp_ge_u32 s2, 256")
    E("s_cbranch_scc1 L_end")
    E("s_load_dwordx16 s[4:19], s[0:1], 0")
    E("s_load_dwordx4 s[20:23], s[0:1], 64")
    E("s_load_dwordx2 s[24:25], s[0:1], 80")
    if a.ts:
        for i in range(1, 16): E(f"s_mov_b64 s[{sTS+2*i}:{sTS+2*i+1}], 0")
        stamp(0)
    E(f"v_lshrrev_b32 v{vT}, 6, v0")
    E(f"v_and_b32 v{vL}, 63, v0")
    E(f"v_readfirstlane_b32 s{sW}, v{vT}")
    if a.hmap == 3:
        E(f"s_and_b32 s{sH}, s2, 7")
        E(f"s_lshl_b32 s{sH}, s{sH}, 2")
        E(f"s_lshr_b32 s{sH}, {a.htab}, s{sH}")
        E(f"s_and_b32 s{sB}, s{sH}, 4")
        E(f"s_lshl_b32 s{sB}, s{sB}, 2")
        E(f"s_and_b32 s{sH}, s{sH}, 3")
        E(f"s_add_u32 s{sH}, s{sH}, s{sB}")
        E(f"s_bfe_u32 s{sB}, s2, 0x20003")
        E(f"s_lshl_b32 s{sB}, s{sB}, 2")
        E(f"s_add_u32 s{sH}, s{sH}, s{sB}")
    elif a.hmap == 2:
        E(f"s_and_b32 s{sH}, s2, 6")
        E(f"s_lshr_b32 s{sH}, 0x8d, s{sH}")
        E(f"s_and_b32 s{sH}, s{sH}, 3")
        E(f"s_and_b32 s{sB}, s2, 1")
        E(f"s_lshl_b32 s{sB}, s{sB}, 4")
        E(f"s_add_u32 s{sH}, s{sH}, s{sB}")
        E(f"s_bfe_u32 s{sB}, s2, 0x20003")
        E(f"s_lshl_b32 s{sB}, s{sB}, 2")
        E(f"s_add_u32 s{sH}, s{sH}, s{sB}")
    elif a.hmap:
        E(f"s_and_b32 s{sH}, s2, 7")
        E(f"s_lshl_b32 s{sH}, s{sH}, 2")
        E(f"s_bfe_u32 s{sB}, s2, 0x20003")
        E(f"s_add_u32 s{sH}, s{sH}, s{sB}")
    else:
        E(f"s_and_b32 s{sH}, s2, 31")
    E(f"s_lshr_b32 s{sB}, s2, 5")
    E(f"v_lshlrev_b32 v{vL16}, 4, v{vL}")
    E(f"v_lshrrev_b32 v{vJ}, 4, v{vL}")
    E(f"v_and_b32 v{vN}, 15, v{vL}")
    E(f"v_mul_u32_u24 v{vWQ}, 81920, v{vJ}")
    E(f"v_lshl_add_u32 v{vWQ}, v{vN}, 4, v{vWQ}")
    vXS, vXC = vT + 2, vT + 3
    E(f"v_mul_u32_u24 v{vXS}, 20, v{vL}")
    E(f"v_lshrrev_b32 v{vXC}, 3, v{vN}")
    E(f"v_lshl_add_u32 v{vXC}, v{vXC}, 2, v{vJ}")
    t0, t1, t2, t3 = 64, 65, 66, 67
    E(f"s_lshl_b32 s{t0}, s{sW}, 3")
    E(f"v_add_u32 v{vXC}, s{t0}, v{vXC}")
    E(f"v_mul_u32_u24 v{vXC}, 20, v{vXC}")
    E(f"s_lshl_b32 s{t0}, s{sB}, 5")
    E(f"s_add_u32 s{t0}, s{t0}, s{sH}")
    E(f"s_lshl_b32 s{t0}, s{t0}, 20")
    E(f"s_add_u32 s{t0}, s{t0}, 0xc0000")
    E(f"s_lshl_b32 s{t1}, s{sH}, 8")
    E(f"s_mul_i32 s{t2}, s{sH}, {128*1280}")
    E(f"s_mul_i32 s{t3}, s{sB}, 1280")
    E(f"s_mov_b32 s{sROLE}, 0")
    E(f"s_lshl_b32 s{sTILE}, s{sW}, 10")
    if a.pf:
        E(f"s_getpc_b64 s[{sWF}:{sWF+1}]")
        E.label("L_pc")
        E(f"s_and_b32 s{sWF+1}, s{sWF+1}, 0xffff")
        E(f"s_mov_b32 s{sWF+2}, L_codeend-L_pc")
        E(f"s_mov_b32 s{sWF+3}, 0x20000")
        E(f"v_lshlrev_b32 v{vB0}, 7, v{vL}")
        E(f"s_lshl_b32 s{sOUT}, s{sW}, 13")
        E(f"s_cmp_gt_u32 s{sW}, {a.pf - 1}")
        E("s_cbranch_scc1 L_nopf")
        E(f"s_cmp_ge_u32 s2, {a.pfwg}")
        E("s_cbranch_scc1 L_nopf")
        E(f"buffer_load_dword v{vS+15}, v{vB0}, {S4(sWF)}, s{sOUT} offen", tag="extra")
        E.label("L_nopf")
    E("s_waitcnt lgkmcnt(0)")
    srd_off(E, sK, 6, f"s{t0}", 0x40000)
    slot_of = {}
    free = deque(range(52))
    def alloc(tag):
        s = free.popleft(); slot_of[tag] = vF + 4 * s; return slot_of[tag]
    def release(tag):
        free.append((slot_of[tag] - vF) // 4)
    for f in range(a.nk0):
        if f: E(f"s_add_u32 s{sTILE}, s{sTILE}, 8192")
        E(f"buffer_load_dwordx4 {r4(alloc(f'k{f}'))}, v{vL16}, {S4(sK)}, s{sTILE} offen{nt}", tag=f"k{f}")
    srd(E, sX, 4, 5, 10240)
    xs_raw, xc_raw = vS, vS + 6
    E(f"buffer_load_dwordx4 {r4(xs_raw)}, v{vXS}, {S4(sX)}, s{t3} offen", tag="xs")
    E(f"buffer_load_dword v{xs_raw+4}, v{vXS}, {S4(sX)}, s{t3} offen offset:16", tag="xs")
    E(f"buffer_load_dwordx4 {r4(xc_raw)}, v{vXC}, {S4(sX)}, s{t3} offen", tag="xc")
    E(f"buffer_load_dword v{xc_raw+4}, v{vXC}, {S4(sX)}, s{t3} offen offset:16", tag="xc")
    srd_off(E, sWQ, 10, f"s{t1}", 639 * 8192 + 256)
    srd_off(E, sV, 8, f"s{t0}", 0x40000)
    srd_off(E, sWO, 12, f"s{t2}", 128 * 1280)
    srd(E, sWS, 24, 25, 1 << 22)
    srd(E, sDB, 22, 23, 256)
    srd(E, sOUT, 20, 21, 10240)
    srd_off(E, sH1, 24, H1_BASE, 108 * 256)
    E(f"s_add_u32 s{sKO}, s{sTILE}, 8192")
    E(f"s_lshl_b32 s{sVO}, s{sW}, 10")
    E(f"s_mul_i32 s{sQ0}, s{sW}, 655360")
    E(f"s_add_u32 s{sQ1}, s{sQ0}, 327680")
    E(f"s_mul_i32 s{sOO}, s{sW}, 1280")

    if a.tlb:
        E(f"s_cmp_lg_u32 s{sW}, 1")
        E("s_cbranch_scc1 L_notlb")
        E(f"buffer_load_dword v{vS+14}, off, {S4(sV)}, 0 nt", tag="extra")
        E(f"buffer_load_dword v{vS+14}, off, {S4(sWO)}, 0 nt", tag="extra")
        if a.tlb > 1:
            E(f"s_mov_b32 s{sWF+2}, {640*3456}")
            E(f"s_mov_b32 s{sWF+3}, 0x20000")
            E(f"s_mov_b32 s{sT0}, {640*3456-4}")
            for p in (16, 18):
                E(f"s_mov_b32 s{sWF}, s{p}")
                E(f"s_and_b32 s{sWF+1}, s{p+1}, 0xffff")
                E(f"buffer_load_dword v{vS+14}, off, {S4(sWF)}, 0 nt", tag="extra")
                E(f"buffer_load_dword v{vS+14}, off, {S4(sWF)}, s{sT0} nt", tag="extra")
            E(f"s_mov_b32 s{sT0}, 0x20000")
            E(f"buffer_load_dword v{vS+14}, off, {S4(sWS)}, s{sT0} nt", tag="extra")
            E(f"buffer_load_dword v{vS+14}, off, {S4(sOUT)}, 0 nt", tag="extra")
        E.label("L_notlb")
    if a.skew >= 0:
        E("s_cmp_ge_u32 s2, 8")
        E("s_cbranch_scc1 L_noskew")
        E("s_waitcnt lgkmcnt(0)")
        E(f"v_mov_b32 v{vS+12}, s{sTS}")
        E(f"s_lshl_b32 s{sT0}, s2, 2")
        E(f"s_add_u32 s{sT0}, s{sT0}, 0x30000")
        E(f"buffer_store_dword v{vS+12}, off, {S4(sWS)}, s{sT0} sc1", tag="extra")
        E.label("L_noskew")
    def t_init():
        z = [alloc("z0"), alloc("z1"), alloc("z2"), alloc("z3")]
        zr = [z[0], z[0] + 2, z[1], z[1] + 2, z[2], z[2] + 2]
        init_seen.update(issued)
        E(f"s_cmp_lg_u32 s{sW}, 7")
        E("s_cbranch_scc1 L_nosent")
        E(f"v_mov_b32 v{z[0]}, -1")
        E(f"v_lshlrev_b32 v{z[3]}, 2, v{vL}")
        E(f"s_lshl_b32 s{sT0}, s2, 8")
        E(f"buffer_atomic_swap v{z[0]}, v{z[3]}, {S4(sH1)}, s{sT0} offen sc0", tag="extra")
        E.label("L_nosent")
        E(f"s_cmp_lg_u32 s{sW}, 6")
        E("s_cbranch_scc1 L_noinit")
        E(f"s_and_b32 s{sT0}, s2, 31")
        E(f"s_cmp_lg_u32 s{sT0}, {a.zwg}")
        E("s_cbranch_scc1 L_noinit")
        for q in z[:3]:
            for i in range(4): E(f"v_mov_b32 v{q+i}, 0")
        E(f"v_lshlrev_b32 v{z[3]}, 3, v{vL}")
        E(f"s_mul_i32 s{sT0}, s{sB}, {HS}")
        for i in range(6):
            E(f"buffer_atomic_swap_x2 {r2(zr[i])}, v{z[3]}, {S4(sWS)}, s{sT0} offen offset:{512*i} sc0", tag="extra")
        E.label("L_noinit")
    init_seen = set()
    def t_flagset():
        assert "wq11" not in init_seen
        E(f"s_cmp_lg_u32 s{sW}, 6")
        E("s_cbranch_scc1 L_noflag")
        E(f"s_and_b32 s{sT0}, s2, 31")
        E(f"s_cmp_lg_u32 s{sT0}, {a.zwg}")
        E("s_cbranch_scc1 L_noflag")
        E(f"v_mov_b32 v{slot_of['z3']}, 1")
        E(f"s_lshl_b32 s{sT0}, s{sB}, 2")
        E("s_mov_b64 exec, 1")
        E(f"buffer_store_dword v{slot_of['z3']}, off, {S4(sDB)}, s{sT0} sc1", tag="extra")
        E("s_mov_b64 exec, -1")
        E.label("L_noflag")

    def kload(f):
        def fn():
            E(f"buffer_load_dwordx4 {r4(alloc(f'k{f}'))}, v{vL16}, {S4(sK)}, s{sKO} offen{nt}", tag=f"k{f}")
            if f < 31: E(f"s_add_u32 s{sKO}, s{sKO}, 8192")
        return (f"k{f}", fn, True)
    def vload(f):
        def fn():
            E(f"buffer_load_dwordx4 {r4(alloc(f'v{f}'))}, v{vL16}, {S4(sV)}, s{sVO} offen{nt}", tag=f"v{f}")
            if f < 31: E(f"s_add_u32 s{sVO}, s{sVO}, 8192")
        return (f"v{f}", fn, True)
    def qload(f):
        def fn():
            s = sQ0 if f % 2 == 0 else sQ1
            E(f"buffer_load_dwordx4 {r4(alloc(f'wq{f}'))}, v{vWQ}, {S4(sWQ)}, s{s} offen{wnt}", tag=f"wq{f}")
            if f < 18: E(f"s_add_u32 s{s}, s{s}, 8192")
        return (f"wq{f}", fn, True)
    def oload(f):
        def fn():
            fp, cg = divmod(f, 5)
            E(f"buffer_load_dwordx4 {r4(alloc(f'wo{f}'))}, v{vWO}, {S4(sWO)}, s{sOO} offen offset:{cg*256}{wnt}", tag=f"wo{f}")
            if cg == 4 and fp < 3: E(f"s_add_u32 s{sOO}, s{sOO}, {8*1280}")
        return (f"wo{f}", fn, True)
    vFL = vWQ
    vTK = vQ + 3
    def fload():
        def fn():
            E(f"v_and_b32 v{vFL}, 7, v{vL}")
            E(f"v_lshlrev_b32 v{vFL}, 2, v{vFL}")
            E(f"buffer_load_dword v{vFL}, v{vFL}, {S4(sDB)}, 0 offen sc1", tag="flag")
        return ("flag", fn, False)
    def ticket():
        def fn():
            E(f"s_cmp_lg_u32 s{sW}, 0")
            E("s_cbranch_scc1 L_notk")
            E(f"v_mov_b32 v{vTK}, 1")
            E("s_mov_b64 exec, 1")
            E(f"buffer_atomic_add v{vTK}, off, {S4(sDB)}, 0 offset:128 sc0", tag="extra")
            E("s_mov_b64 exec, -1")
            E.label("L_notk")
        return ("tk", fn, False)
    def l2pf_outer():
        def fn():
            vPF = vS + 13
            E(f"s_and_b32 s{sT0}, s2, 7")
            E(f"s_lshl_b32 s{sT0}, s{sT0}, 2")
            E(f"s_lshr_b32 s{sT0}, {a.rtab}, s{sT0}")
            E(f"s_and_b32 s{sT0}, s{sT0}, 15")
            E(f"s_lshr_b32 s{sT1}, s2, 3")
            E(f"s_mov_b32 s{sWF+2}, {640*3456}")
            E(f"s_mov_b32 s{sWF+3}, 0x20000")
            E(f"s_cmp_ge_u32 s{sT0}, 8")
            E("s_cbranch_scc1 L_l2b")
            E(f"s_cmp_ge_u32 s{sW}, 3")
            E("s_cbranch_scc1 L_nol2")
            E(f"s_mov_b32 s{sWF}, s16")
            E(f"s_and_b32 s{sWF+1}, s17, 0xffff")
            E(f"s_mul_i32 s{sT2}, s{sT0}, {9*128}")
            E(f"s_mul_i32 s{sT0}, s{sW}, {3*128}")
            E(f"s_add_u32 s{sT2}, s{sT2}, s{sT0}")
            E(f"s_mul_i32 s{sT1}, s{sT1}, {20*3456}")
            E(f"s_add_u32 s{sT2}, s{sT2}, s{sT1}")
            E(f"v_mul_u32_u24 v{vPF}, 43, v{vL}")
            E(f"v_lshrrev_b32 v{vPF}, 7, v{vPF}")
            E(f"v_mul_u32_u24 v{vPF}, {3456-384}, v{vPF}")
            E(f"v_lshl_add_u32 v{vPF}, v{vL}, 7, v{vPF}")
            E(f"s_mov_b32 exec_hi, 0xfffffff")
            E("s_branch L_l2go")
            E.label("L_l2b")
            E(f"s_cmp_ge_u32 s{sW}, 2")
            E("s_cbranch_scc1 L_nol2")
            E(f"s_mov_b32 s{sWF}, s18")
            E(f"s_and_b32 s{sWF+1}, s19, 0xffff")
            E(f"s_sub_u32 s{sT0}, s{sT0}, 8")
            E(f"s_lshl_b32 s{sT0}, s{sT0}, 1")
            E(f"s_add_u32 s{sT2}, s{sT0}, s{sW}")
            E(f"s_lshl_b32 s{sT2}, s{sT2}, 7")
            E(f"s_mul_i32 s{sT1}, s{sT1}, {54*1280}")
            E(f"s_add_u32 s{sT2}, s{sT2}, s{sT1}")
            E(f"v_mul_u32_u24 v{vPF}, 1280, v{vL}")
            E(f"s_mov_b32 exec_hi, 0x3fffff")
            E.label("L_l2go")
            E(f"buffer_load_dword v{vPF}, v{vPF}, {S4(sWF)}, s{sT2} offen", tag="extra")
            E("s_mov_b64 exec, -1")
            E.label("L_nol2")
        return fn
    t_l2pf = l2pf_outer()
    sPO, sPC, sPD = 21, 24, 25
    def t_spf0():
        E(f"s_and_b32 s{sT0}, s2, 7")
        E(f"s_lshl_b32 s{sT0}, s{sT0}, 2")
        E(f"s_lshr_b32 s{sT0}, {a.rtab}, s{sT0}")
        E(f"s_and_b32 s{sPC}, s{sT0}, 15")
        E(f"s_lshr_b32 s{sT1}, s2, 3")
        E(f"s_mov_b32 s{sWF+2}, {640*3456}")
        E(f"s_mov_b32 s{sWF+3}, 0x20000")
        E(f"s_mul_i32 s{sT2}, s{sT1}, 20")
        E(f"s_add_u32 s{sT2}, s{sT2}, s{sW}")
        E(f"s_mul_i32 s{sT2}, s{sT2}, 3456")
        E(f"s_mul_i32 s{sT0}, s{sPC}, 1152")
        E(f"s_add_u32 s{sT2}, s{sT2}, s{sT0}")
        E(f"s_mul_i32 s{sT3}, s{sT1}, 54")
        E(f"s_add_u32 s{sT3}, s{sT3}, s{sW}")
        E(f"s_mul_i32 s{sT3}, s{sT3}, 1280")
        E(f"s_sub_u32 s{sT0}, s{sPC}, 8")
        E(f"s_lshl_b32 s{sT0}, s{sT0}, 8")
        E(f"s_add_u32 s{sT3}, s{sT3}, s{sT0}")
        E(f"s_cmp_lt_u32 s{sPC}, 8")
        E(f"s_cselect_b32 s{sPO}, s{sT2}, s{sT3}")
        E(f"s_cselect_b32 s{sWF}, s16, s18")
        E(f"s_cselect_b32 s{sWF+1}, s17, s19")
        E(f"s_and_b32 s{sWF+1}, s{sWF+1}, 0xffff")
    def t_spf(part):
        def fn():
            E(f"s_cmp_lt_u32 s{sPC}, 8")
            E(f"s_cbranch_scc0 L_spb{part}")
            if part == 2:
                E(f"s_cmp_ge_u32 s{sW}, 4")
                E(f"s_cbranch_scc1 L_spe{part}")
            for ln in range(9 if not a.endpf & 1 else 0):
                for hf in range(a.sphalf):
                    E(f"s_buffer_load_dword s{sPD}, {S4(sWF)}, s{sPO} offset:{part*8*3456 + ln*128 + hf*64}")
            E(f"s_branch L_spe{part}")
            E.label(f"L_spb{part}")
            for k in (([0, 1, 2], [3, 4], [5, 6])[part] if not a.endpf & 2 else []):
                for ln in range(2):
                    for hf in range(a.sphalf):
                        E(f"s_buffer_load_dword s{sPD}, {S4(sWF)}, s{sPO} offset:{k*8*1280 + ln*128 + hf*64}")
            E.label(f"L_spe{part}")
        return fn
    sEO, sEM = 14, 15
    sES = 36
    def t_epf_prep():
        v = alloc("epf")
        E(f"s_and_b32 s{sT0}, s2, 7")
        E(f"s_lshl_b32 s{sT0}, s{sT0}, 2")
        E(f"s_lshr_b32 s{sT0}, {a.rtab}, s{sT0}")
        E(f"s_and_b32 s{sT0}, s{sT0}, 15")
        E(f"s_lshr_b32 s{sT1}, s2, 3")
        E(f"s_mul_i32 s{sT2}, s{sT1}, {20*3456}")
        E(f"s_mul_i32 s{sT3}, s{sT0}, 1152")
        E(f"s_add_u32 s{sT2}, s{sT2}, s{sT3}")
        E(f"s_mul_i32 s{sT3}, s{sT1}, {54*1280}")
        E(f"s_sub_u32 s{sT1}, s{sT0}, 8")
        E(f"s_lshl_b32 s{sT1}, s{sT1}, 8")
        E(f"s_add_u32 s{sT3}, s{sT3}, s{sT1}")
        E(f"s_mul_i32 s{sT1}, s{sW}, 23")
        E(f"v_add_u32 v{v}, s{sT1}, v{vL}")
        E(f"v_mul_u32_u24 v{v+1}, 7282, v{v}")
        E(f"v_lshrrev_b32 v{v+1}, 16, v{v+1}")
        E(f"v_mul_u32_u24 v{v+1}, {3456-1152}, v{v+1}")
        E(f"v_lshl_add_u32 v{v+1}, v{v}, 7, v{v+1}")
        E(f"s_mul_i32 s{sT1}, s{sW}, 14")
        E(f"v_add_u32 v{v}, s{sT1}, v{vL}")
        E(f"v_lshrrev_b32 v{v+2}, 1, v{v}")
        E(f"v_mul_u32_u24 v{v+2}, {1280-256}, v{v+2}")
        E(f"v_lshl_add_u32 v{v+2}, v{v}, 7, v{v+2}")
        E(f"s_cmp_lt_u32 s{sT0}, 8")
        E(f"s_cselect_b32 s{sEO}, s{sT2}, s{sT3}")
        E(f"s_mov_b32 s{sEM}, {(1 << 14) - 1 if a.endpf & 2 else 1}")
        E(f"s_cselect_b32 s{sEM}, {(1 << 23) - 1 if a.endpf & 1 else 1}, s{sEM}")
        E(f"s_cselect_b32 s{sES}, s16, s18")
        E(f"s_cselect_b32 s{sES+1}, s17, s19")
        E(f"s_cselect_b64 vcc, -1, 0")
        E(f"s_and_b32 s{sES+1}, s{sES+1}, 0xffff")
        E(f"s_mov_b32 s{sES+2}, {640*3456}")
        E(f"s_mov_b32 s{sES+3}, 0x20000")
        E(f"v_cndmask_b32 v{v}, v{v+2}, v{v+1}, vcc")
    def epf():
        def fn():
            v = slot_of["epf"]
            E(f"s_mov_b32 exec_lo, s{sEM}")
            E(f"s_mov_b32 exec_hi, 0")
            E(f"buffer_load_dword v{v+3}, v{v}, {S4(sES)}, s{sEO} offen", tag="epf")
            E("s_mov_b64 exec, -1")
        return ("epf", fn, False)
    loads = []
    qi = 0
    for f in range(a.nk0, 32):
        want = min(20, (f - a.nk0 + 1) * 20 // (a.qspan - a.nk0 + 1) + 1)
        while qi < want:
            loads.append(qload(qi)); qi += 1
        loads.append(kload(f))
    while qi < 20:
        loads.append(qload(qi)); qi += 1
    nmid = 20 - a.otail
    oi = 0
    for f in range(32):
        loads.append(vload(f))
        if f == 16: loads.append(fload())
        want = max(0, (f + 1 - a.ostart)) * nmid // (32 - a.ostart)
        while oi < want:
            loads.append(oload(oi)); oi += 1
    while oi < 20:
        loads.append(oload(oi)); oi += 1
    if a.endpf and a.epos >= 0: loads.insert(len(loads) - a.epos, epf())

    vRW, vRR = vXS, vXC
    def t_setup():
        E(f"s_mov_b32 s{sSPIN}, 0x40000")
        E(f"s_mov_b32 s{sLO8}, 0x00ff00ff")
        E(f"s_mov_b32 s{sLO8+1}, 0x00ff00ff")
        E(f"v_mul_u32_u24 v{vWO}, 40960, v{vJ}")
        E(f"v_and_b32 v{vB0}, 1, v{vN}")
        E(f"v_lshrrev_b32 v{vB0+1}, 1, v{vN}")
        E(f"v_lshl_add_u32 v{vWO}, v{vN}, 4, v{vWO}")
        E(f"v_lshlrev_b32 v{vB0}, 4, v{vB0}")
        E(f"v_mov_b32 v{vB0+2}, 0xffff")
        E(f"v_lshlrev_b32 v{vB0}, v{vB0}, v{vB0+2}")
        E(f"v_and_b32 v{vB0+1}, 3, v{vB0+1}")
        for w in range(4):
            E(f"v_cmp_eq_u32 vcc, {w}, v{vB0+1}")
            E(f"v_cndmask_b32 v{vM+w}, 0, v{vB0}, vcc")
        E(f"v_lshrrev_b32 v{vB0}, 3, v{vN}")
        E(f"s_lshl_b32 s{sT0}, s{sW}, 1")
        E(f"v_add_u32 v{vB0}, s{sT0}, v{vB0}")
        E(f"v_mul_u32_u24 v{vRW}, 528, v{vB0}")
        E(f"v_and_b32 v{vB0}, 7, v{vN}")
        E(f"v_lshl_add_u32 v{vRW}, v{vB0}, 6, v{vRW}")
        E(f"v_lshl_add_u32 v{vRW}, v{vJ}, 4, v{vRW}")
        E(f"v_mul_u32_u24 v{vRR}, 528, v{vN}")
        E(f"v_lshl_add_u32 v{vRR}, v{vJ}, 4, v{vRR}")
        E(f"s_lshl_b32 s{sT0}, s{sW}, 6")
        E(f"v_add_u32 v{vRR}, s{sT0}, v{vRR}")
    f0 = 8
    vMEAN, vRCP = 18, 19
    def t_ln1a():
        stamp(1)
        unpack10(E, xs_raw, f0)
        ln_stats(E, f0, 20, 21, 22, vMEAN, vRCP)
    def t_ln1b():
        unpack10(E, xc_raw, f0)
        for i in range(10): E(f"v_sub_f32 v{f0+i}, v{f0+i}, v{vMEAN}")
        bf16r_many(E, range(f0, f0 + 10))
        for i in range(10): E(f"v_mul_f32 v{f0+i}, v{f0+i}, v{vRCP}")
        for i in range(10): E(f"v_cvt_pk_bf16_f32 v{vS+i}, v{f0+i}, v{f0+i}")
    def bfrag(dst, src):
        for w in range(4): E(f"v_and_b32 v{dst+w}, v{src}, v{vM+w}")
    def t_pair(t, pre):
        def fn():
            B = vB0 if t % 2 == 0 else vB1
            bfrag(B, vS + t)
            c1 = "0" if t == 0 else r4(vD1)
            c2 = "0" if t == 0 else r4(vD2)
            E(f"v_mfma_f32_16x16x32_bf16 {r4(vD1)}, {r4(slot_of[f'{pre}{2*t}'])}, {r4(B)}, {c1}")
            E(f"v_mfma_f32_16x16x32_bf16 {r4(vD2)}, {r4(slot_of[f'{pre}{2*t+1}'])}, {r4(B)}, {c2}")
        return fn
    def red_a():
        for r in range(4):
            E(f"v_cndmask_b32 v{vD1+r}, v{vD2+r}, v{vD1+r}, s[{sLO8}:{sLO8+1}]")
        E(f"ds_write_b128 v{vRW}, {r4(vD1)} offset:{RED}")
    def t_bar():
        E("s_waitcnt lgkmcnt(0)")
        E("s_barrier")
    def red_b(dst):
        E(f"ds_read_b128 {r4(dst)}, v{vRR} offset:{RED}")
        E("s_waitcnt lgkmcnt(0)")
        row_reduce(E, [dst + i for i in range(4)])
        for i in range(4): E(f"v_cvt_pk_bf16_f32 v{dst+i}, v{dst+i}, v{dst+i}")
    def t_qr2():
        E(f"v_lshlrev_b32 v{vB1}, 6, v{vJ}")
        E(f"s_lshl_b32 s{sT0}, s{sW}, 1")
        E(f"v_add_u32 v{vB1}, s{sT0}, v{vB1}")
        red_b(vB0)
        E(f"s_mov_b32 exec_lo, 0x00010001")
        E(f"s_mov_b32 exec_hi, 0x00010001")
        for i in range(4): E(f"ds_write_b16 v{vB1}, v{vB0+i} offset:{QF+16*i}")
        E("s_mov_b64 exec, -1")
        E(f"v_lshlrev_b32 v{vB1}, 4, v{vN}")
    def t_qr3():
        E(f"ds_read_b128 {r4(vQ)}, v{vB1} offset:{QF}")
        E("s_waitcnt lgkmcnt(0)")
        stamp(2)
    def t_k2(t):
        def fn():
            ks = [slot_of[f"k{2*t+i}"] for i in range(4)]
            acc = [vB0 + i for i in range(4)]
            for i in range(4):
                for u in range(4):
                    E(f"v_dot2_f32_bf16 v{acc[u]}, v{ks[u]+i}, v{vQ+i}, {'0' if i == 0 else 'v%d' % acc[u]}")
            s0, s1 = vS + t, vS + t + 1
            E(f"v_add_f32_dpp v{s0}, v{acc[0]}, v{acc[0]} row_ror:8 row_mask:0xf bank_mask:0x3")
            E(f"v_add_f32_dpp v{s0}, v{acc[1]}, v{acc[1]} row_ror:8 row_mask:0xf bank_mask:0xc")
            E(f"v_add_f32_dpp v{s1}, v{acc[2]}, v{acc[2]} row_ror:8 row_mask:0xf bank_mask:0x3")
            E(f"v_add_f32_dpp v{s1}, v{acc[3]}, v{acc[3]} row_ror:8 row_mask:0xf bank_mask:0xc")
            for mod in ("row_half_mirror", "quad_perm:[1,0,3,2]", "quad_perm:[2,3,0,1]"):
                for s in (s0, s1):
                    E(f"v_add_f32_dpp v{s}, v{s}, v{s} {mod} row_mask:0xf bank_mask:0xf")
            bf16r_many(E, [s0, s1])
            E(f"v_mul_f32 v{s0}, {SCALE:#x}, v{s0}")
            E(f"v_mul_f32 v{s1}, {SCALE:#x}, v{s1}")
            bf16r_many(E, [s0, s1])
        return fn
    m, l = vD1, vD1 + 1
    def t_sm1():
        E(f"v_max3_f32 v{m}, v{vS}, v{vS+1}, v{vS+2}")
        for i in range(3, 15, 2): E(f"v_max3_f32 v{m}, v{m}, v{vS+i}, v{vS+i+1}")
        E(f"v_max_f32 v{m}, v{m}, v{vS+15}")
        for i in range(16): E(f"v_sub_f32 v{vS+i}, v{vS+i}, v{m}")
        for i in range(16): E(f"v_mul_f32 v{vS+i}, {LOG2E:#x}, v{vS+i}")
        for i in range(16): E(f"v_exp_f32 v{vS+i}, v{vS+i}")
        E(f"v_add_f32 v{l}, v{vS}, v{vS+1}")
        E(f"v_add_f32 v{vB0}, v{vS+2}, v{vS+3}")
        for i in range(4, 16, 2):
            E(f"v_add_f32 v{l}, v{l}, v{vS+i}")
            E(f"v_add_f32 v{vB0}, v{vB0}, v{vS+i+1}")
        E(f"v_add_f32 v{l}, v{l}, v{vB0}")
        E(f"v_and_b32 v{vB0}, 56, v{vL}")
        E(f"s_lshl_b32 s{sT0}, s{sW}, 6")
        E(f"v_add_u32 v{vB0}, s{sT0}, v{vB0}")
        E(f"ds_write_b64 v{vB0}, {r2(m)} offset:{ML}")
        E(f"v_lshlrev_b32 v{vB0}, 3, v{vL}")
        stamp(3)
    def t_smb():
        E("s_waitcnt lgkmcnt(0)")
        E("s_barrier")
        stamp(4)
    def t_sm2():
        mg, lg = vD2, vD2 + 1
        E(f"ds_read_b64 {r2(mg)}, v{vB0} offset:{ML}")
        E("s_waitcnt lgkmcnt(0)")
        E(f"v_mov_b32 v{vB0}, v{mg}")
        wave_reduce(E, vB0, sT0, "v_max_f32")
        E(f"v_subrev_f32 v{mg}, s{sT0}, v{mg}")
        E(f"v_subrev_f32 v{m}, s{sT0}, v{m}")
        E(f"v_mul_f32 v{mg}, {LOG2E:#x}, v{mg}")
        E(f"v_mul_f32 v{m}, {LOG2E:#x}, v{m}")
        E(f"v_exp_f32 v{mg}, v{mg}")
        E(f"v_exp_f32 v{m}, v{m}")
        E(f"v_mul_f32 v{lg}, v{lg}, v{mg}")
        wave_reduce(E, lg, sT1)
        E(f"v_rcp_f32 v{l}, s{sT1}")
        E(f"v_mul_f32 v{m}, v{m}, v{l}")
        for i in range(16): E(f"v_mul_f32 v{vS+i}, v{vS+i}, v{m}")
        for i in range(16): E(f"v_cvt_pk_bf16_f32 v{vS+i}, v{vS+i}, v{vS+i}")
    Bs = [vB0, vB1, vD1, vD2]
    vA, vA2, vA3 = vQ, vQ + 1, vQ + 2
    vFL2 = vD2 + 2
    vA4 = vQ + 3
    sVA = 22
    def t_pre_tail():
        E(f"v_and_b32 v{vA}, 7, v{vL}")
        E(f"v_mul_u32_u24 v{vA}, 80, v{vA}")
        E(f"v_lshl_add_u32 v{vA}, v{vJ}, 4, v{vA}")
        E(f"s_mul_i32 s{sT0}, s{sW}, {YPS}")
        E(f"v_add_u32 v{vA}, s{sT0}, v{vA}")
        for k, (dst, add) in enumerate(((vA2, 0), (vA3, 480))):
            E(f"s_mul_i32 s{sT0}, s{sW}, 60")
            E(f"s_add_u32 s{sT0}, s{sT0}, {add}")
            E(f"v_mul_u32_u24 v{vA4}, 15, v{vJ}")
            E(f"v_add3_u32 v{vA4}, v{vA4}, v{vN}, s{sT0}")
            if k == 1:
                E(f"s_mov_b32 s{sT1}, 640")
                E(f"v_cmp_gt_u32 s[{sVA}:{sVA+1}], s{sT1}, v{vA4}")
            E(f"v_min_u32 v{vA4}, 639, v{vA4}")
            E(f"v_lshrrev_b32 v{dst}, 7, v{vA4}")
            E(f"v_mul_u32_u24 v{dst}, 640, v{dst}")
            E(f"v_and_b32 v{vFL2}, 7, v{vA4}")
            E(f"v_mul_u32_u24 v{vFL2}, 80, v{vFL2}")
            E(f"v_add_u32 v{dst}, v{dst}, v{vFL2}")
            E(f"v_bfe_u32 v{vFL2}, v{vA4}, 3, 4")
            E(f"v_lshl_add_u32 v{dst}, v{vFL2}, 2, v{dst}")
        E(f"v_lshlrev_b32 v{vA4}, 2, v{vL}")
    def t_role():
        E(f"s_and_b32 s{sT0}, s2, 7")
        E(f"s_lshl_b32 s{sT0}, s{sT0}, 2")
        E(f"s_lshr_b32 s{sT0}, {a.rtab}, s{sT0}")
        E(f"s_and_b32 s{sT0}, s{sT0}, 15")
        E(f"s_lshr_b32 s{sT1}, s2, 3")
        E(f"s_mul_i32 s{sT2}, s{sT0}, 9")
        E(f"s_add_u32 s{sT2}, s{sT2}, s{sT1}")
        E(f"s_add_u32 s{sT2}, s{sT2}, {NF2}")
        E(f"s_cmp_lt_u32 s{sT1}, 9")
        E(f"s_cselect_b32 s{sT2}, s{sT2}, 255")
        E(f"s_sub_u32 s{sT3}, s{sT0}, 8")
        E(f"s_mul_i32 s{sT3}, s{sT3}, {8 // NC}")
        E(f"s_add_u32 s{sT3}, s{sT3}, s{sT1}")
        E(f"s_cmp_lt_u32 s{sT1}, {8 // NC}")
        E(f"s_cselect_b32 s{sT3}, s{sT3}, 255")
        E(f"s_cmp_lt_u32 s{sT0}, 8")
        E(f"s_cselect_b32 s{sTILE}, s{sT2}, s{sT3}")
    def t_flag():
        E(f"v_cmp_eq_u32 vcc, 0, v{vFL}")
        E.flush()
        E("s_cbranch_vccz L_flagok")
        E.label("L_flag")
        E("s_sleep 2")
        E(f"v_and_b32 v{vFL}, 7, v{vL}")
        E(f"v_lshlrev_b32 v{vFL}, 2, v{vFL}")
        E(f"buffer_load_dword v{vFL}, v{vFL}, {S4(sDB)}, 0 offen sc1", tag="extra")
        E("s_waitcnt vmcnt(0)")
        E(f"v_cmp_eq_u32 vcc, 0, v{vFL}")
        E.flush()
        E("s_cbranch_vccz L_flagok")
        spin("L_flagok")
        E("s_branch L_flag")
        E.label("L_flagok")
    sDO, sDL = 21, 24
    vDM1 = vFL
    def t_dmaprep():
        tmp = alloc("tmpd")
        E(f"s_mov_b32 s{sWF}, s16")
        E(f"s_and_b32 s{sWF+1}, s17, 0xffff")
        E(f"s_mov_b32 s{sWF+2}, {640*3456}")
        E(f"s_mov_b32 s{sWF+3}, 0x20000")
        E(f"v_lshrrev_b32 v{vDM1}, 3, v{vL}")
        E(f"v_mul_u32_u24 v{vDM1}, 3456, v{vDM1}")
        E(f"v_and_b32 v{tmp}, 1, v{vJ}")
        E(f"v_lshlrev_b32 v{tmp}, 2, v{tmp}")
        E(f"s_and_b32 s{sT0}, s{sW}, 1")
        E(f"s_lshl_b32 s{sT1}, s{sT0}, 1")
        E(f"v_xor_b32 v{tmp}, s{sT1}, v{tmp}")
        E(f"v_xor_b32 v{tmp}, v{vL}, v{tmp}")
        E(f"v_and_b32 v{tmp}, 7, v{tmp}")
        E(f"v_lshl_add_u32 v{vDM1}, v{tmp}, 4, v{vDM1}")
        E(f"s_lshr_b32 s{sT1}, s{sW}, 1")
        E(f"s_mul_i32 s{sT1}, s{sT1}, 15")
        E(f"s_lshl_b32 s{sT0}, s{sT0}, 3")
        E(f"s_add_u32 s{sT1}, s{sT1}, s{sT0}")
        E(f"s_mul_i32 s{sT1}, s{sT1}, 3456")
        E(f"s_sub_u32 s{sT0}, s{sTILE}, {NF2}")
        E(f"s_lshl_b32 s{sT0}, s{sT0}, 7")
        E(f"s_add_u32 s{sDO}, s{sT1}, s{sT0}")
        E(f"s_lshl_b32 s{sDL}, s{sW}, 10")
        E(f"s_add_u32 s{sDL}, s{sDL}, {WT}")
    def t_ypw():
        stamp(7)
        E(f"s_mov_b64 exec, s[{sLO8}:{sLO8+1}]")
        for cg in range(5):
            E(f"ds_write_b128 v{vA}, {r4(slot_of[f'y{cg}'])} offset:{YP+cg*640}")
        E("s_mov_b64 exec, -1")
    def t_or1():
        stamp(5)
        red_a()
        t_bar()
        stamp(6)
    def t_or2():
        red_b(vS)
        bfrag(Bs[0], vS)
        for cg in range(5): alloc(f"y{cg}")
    def t_y(f):
        def fn():
            fp, cg = divmod(f, 5)
            y = slot_of[f"y{cg}"]
            c = "0" if fp == 0 else r4(y)
            E(f"v_mfma_f32_16x16x32_bf16 {r4(y)}, {r4(slot_of[f'wo{f}'])}, {r4(Bs[fp])}, {c}")
            if fp < 3 and cg < 4: E(f"v_and_b32 v{Bs[fp+1]+cg}, v{vS+fp+1}, v{vM+cg}")
        return fn
    tasks = []
    tasks.append(Task(t_setup))
    tasks.append(Task(t_ln1a, ["xs"], cost=3))
    tasks.append(Task(t_ln1b, ["xc"], cost=2))
    for t in range(10):
        tasks.append(Task(t_pair(t, "wq"), [f"wq{2*t+1}"], frees=[f"wq{2*t}", f"wq{2*t+1}"]))
        if t == 1: tasks.append(Task(t_init, atomic=True))
        if t == 5: tasks.append(Task(t_flagset, ["wq11"], frees=["z0", "z1", "z2", "z3"], atomic=True))
        if t == a.l2pf and not a.spf and not a.nodma: tasks.append(Task(t_l2pf, atomic=True))
        if a.spf and a.nodma < 2:
            if t == 0: tasks.append(Task(t_spf0, atomic=True))
            if t in (2, 4, 6): tasks.append(Task(t_spf(t // 2 - 1), atomic=True))
    tasks.append(Task(red_a))
    tasks.append(Task(t_bar, barrier=a.bd1))
    tasks.append(Task(t_qr2))
    tasks.append(Task(t_bar, barrier=a.bd2))
    tasks.append(Task(t_qr3))
    for t in range(0, 16, 2):
        tasks.append(Task(t_k2(t), [f"k{2*t+3}"], frees=[f"k{2*t+i}" for i in range(4)], cost=2))
    tasks.append(Task(t_sm1, cost=2))
    tasks.append(Task(t_smb, barrier=a.bd3))
    tasks.append(Task(t_sm2, cost=2))
    tasks.append(Task(t_pre_tail))
    tasks.append(Task(t_role, atomic=True))
    if a.endpf: tasks.append(Task(t_epf_prep, atomic=True))
    for t in range(16):
        tasks.append(Task(t_pair(t, "v"), [f"v{2*t+1}"], frees=[f"v{2*t}", f"v{2*t+1}"], cost=0.5))
        if t == 9:
            tasks.append(Task(t_flag, ["flag"], atomic=True))
            tasks.append(Task(t_dmaprep, frees=["tmpd"]))
    tasks.append(Task(t_or1, barrier=99))
    tasks.append(Task(t_or2))
    for f in range(20): tasks.append(Task(t_y(f), [f"wo{f}"], cost=0.25))
    tasks.append(Task(t_ypw))

    issued = {"xs", "xc"} | {f"k{f}" for f in range(a.nk0)}
    pend = deque(tasks)
    def ready(t): return all(n in issued and n not in E.vm for n in t.needs)
    def start(t):
        if t.q is None:
            for n in t.needs:
                assert n in issued, n
                if n in E.vm: E.wait_vm(n)
            t.q = E.record(t.fn)
    def step(t, budget):
        start(t)
        n = 0
        masked = False
        while t.q and (t.atomic or masked or n < budget):
            it = t.q.popleft(); E.play(it); n += 1
            if it[0] == "i" and "exec" in it[1].split(",")[0]:
                masked = not it[1].endswith("exec, -1")
        if not t.q:
            for x in t.frees: release(x)
        return n
    def run(t):
        step(t, 10**9)
    D = a.depth
    for i, (tag, fn, needs_slot) in enumerate(loads):
        while needs_slot and not free:
            run(pend.popleft())
        if tag == "epf":
            while any(t.fn is t_epf_prep for t in pend): run(pend.popleft())
            while pend[0].q is not None: run(pend.popleft())
        if tag == "tk":
            while any(t.fn is t_sm1 for t in pend): run(pend.popleft())
        lim = 63 if i < a.first else D
        if len(E.vm) >= lim:
            E(f"s_waitcnt vmcnt({lim-1})")
            E.vm = E.vm[len(E.vm) - (lim - 1):]
        fn(); issued.add(tag)
        if i + 1 < a.first: continue
        budget = a.budget
        while pend and budget > 0 and (pend[0].q is not None or ready(pend[0])):
            if pend[0].barrier > 0:
                pend[0].barrier -= 1
                break
            budget -= step(pend[0], budget)
            if not pend[0].q: pend.popleft()
    while pend[0].fn is not t_or1: run(pend.popleft())
    rest = list(pend)
    cache = {}
    ndma = [0]
    def dma(n):
        for _ in range(n):
            if a.nodma: ndma[0] = 11
            if ndma[0] >= 11: return
            E(f"s_mov_b32 m0, s{sDL}")
            E(f"buffer_load_dwordx4 v{vDM1}, {S4(sWF)}, s{sDO} offen{fnt} lds", tag="dma")
            ndma[0] += 1
            if ndma[0] < 11:
                E(f"s_add_u32 s{sDO}, s{sDO}, {60*3456}")
                E(f"s_add_u32 s{sDL}, s{sDL}, 8192")
    plan = [int(c) for c in a.dplan]
    def emit_rest(with_dma):
        nm = 0
        for k, t in enumerate(rest):
            for n in t.needs:
                if n in E.vm: E.wait_vm(n)
            if k not in cache:
                cache[k] = list(E.record(t.fn))
            for it in cache[k]:
                assert it[0] != "l"
                E.play(it)
                if with_dma and it[0] == "i":
                    if t.fn is t_or1 and it[1].startswith("ds_write"): dma(plan[0])
                    if t.fn is t_or2 and it[1].startswith("ds_read"): dma(plan[1])
                    if it[1].startswith("v_mfma"):
                        nm += 1
                        if nm % 4 == 1: dma(plan[2])
            if with_dma and t.fn is t_ypw: dma(plan[3])
    vm0 = list(E.vm)
    E(f"s_sub_u32 s{sT0}, s{sTILE}, {NF2}")
    E(f"s_cmp_lt_u32 s{sT0}, {NF1}")
    E("s_cbranch_scc1 L_restA")
    emit_rest(False)
    assert set(E.vm) <= {"epf"}, E.vm
    E("s_branch L_restJ")
    E.label("L_restA")
    E.vm = list(vm0)
    xs_ = [k for k in free if not (136 - 4 < 4 * k < 172)][:2]
    for k in xs_: free.remove(k)
    xq = [vF + 4 * xs_[0], vF + 4 * xs_[0] + 2, vF + 4 * xs_[1]]
    vX0 = vF + 4 * xs_[1] + 2
    E(f"v_lshrrev_b32 v{vX0}, 2, v{vL}")
    E(f"v_mul_u32_u24 v{vX0}, 30, v{vX0}")
    E(f"v_and_b32 v{vX0+1}, 3, v{vL}")
    E(f"v_lshl_add_u32 v{vX0}, v{vX0+1}, 3, v{vX0}")
    E(f"s_mul_i32 s{sT0}, s{sW}, 1280")
    for i in range(3):
        E(f"buffer_load_dwordx2 {r2(xq[i])}, v{vX0}, {S4(sX)}, s{sT0} offen offset:{480*i}", tag="x2")
    emit_rest(True)
    E.vm = []
    E.label("L_restJ")
    E(f"s_mul_i32 s{sT0}, s{sB}, {HS}")
    E(f"s_lshl_b32 s{sT1}, s{sW}, 8")
    E(f"s_add_u32 s{sT0}, s{sT0}, s{sT1}")
    E(f"s_mov_b32 s{sT2}, 0x80008000")
    E(f"s_mov_b32 s{sT3}, 0x80008000")
    E("s_waitcnt lgkmcnt(0)")
    E("s_barrier")
    stamp(8)
    vP = vS
    for k, ad in enumerate((vA2, vA3)):
        for p in range(4):
            E(f"ds_read2st64_b32 {r2(vP+8*k+2*p)}, v{ad} offset0:{YP//256+26*p} offset1:{YP//256+26*p+13}")
    for k in range(2):
        b = vP + 8 * k
        if not a.ts: E(f"s_waitcnt lgkmcnt({4 if k == 0 else 0})")
        else: E("s_waitcnt lgkmcnt(0)")
        for st in (4, 2, 1):
            for p in range(st):
                E(f"v_add_f32 v{b+p}, v{b+p}, v{b+p+st}")
        if k == 1: E(f"v_cndmask_b32 v{b}, 0, v{b}, s[{sVA}:{sVA+1}]")
        E(f"v_cndmask_b32 v{b}, v{b}, 1.0, s[{sT2}:{sT3}]")
        if k == 1:
            E(f"s_cmp_ge_u32 s{sW}, 3")
            E("s_cbranch_scc1 L_arr")
        E(f"buffer_atomic_add_f32 v{b}, v{vA4}, {S4(sWS)}, s{sT0} offen offset:{2048*k}", tag="extra")
    E.label("L_arr")
    stamp(9)
    if a.endpf and a.epos < 0: epf()[1]()
    if a.endpf: assert not (128 <= slot_of["epf"] - vF + 3 < 172), slot_of["epf"]
    E(f"s_cmp_ge_u32 s{sTILE}, {NF2 + NF1}")
    E("s_cbranch_scc1 L_fin")
    E(f"s_mov_b32 s{sWF+2}, {640*3456}")
    E(f"s_mov_b32 s{sWF+3}, 0x20000")
    E(f"s_cmp_lt_u32 s{sTILE}, {NF2}")
    E("s_cbranch_scc1 L_ffn2")

    vW = vF
    E(f"s_mov_b32 s{sROLE}, 1")
    E(f"s_sub_u32 s{sTILE}, s{sTILE}, {NF2}")
    E(f"s_mov_b32 s{sWF}, s16")
    E(f"s_and_b32 s{sWF+1}, s17, 0xffff")
    vDM, vX0 = vB0, vB0 + 1
    stamp(10)
    late = ndma[0] < 11
    dma(11)
    if a.ts == 2: stamp(1)
    hb = vF + 88
    ac = vF + 136
    xk = vF + 148
    hn = vF + 160
    for i in range(12): E(f"v_mov_b32 v{hn+i}, 0")
    for i in range(8, 11): E(f"v_mov_b32 v{ac+i}, 0")
    E(f"v_mov_b32 v{ac+11}, 0x42000000")
    vA = vB1
    E(f"v_lshlrev_b32 v{vA+2}, 3, v{vL}")
    E(f"s_mul_i32 s{sT1}, s{sW}, {HNS}")
    E(f"v_add_u32 v{vA+2}, s{sT1}, v{vA+2}")
    vTR1 = vQ
    E(f"v_lshlrev_b32 v{vTR1}, 10, v{vJ}")
    E(f"v_lshrrev_b32 v{vDM}, 2, v{vN}")
    E(f"v_lshl_add_u32 v{vTR1}, v{vDM}, 7, v{vTR1}")
    E(f"v_and_b32 v{vDM}, 2, v{vDM}")
    E(f"v_and_b32 v{vX0}, 1, v{vJ}")
    E(f"v_or_b32 v{vDM}, v{vDM}, v{vX0}")
    E(f"s_and_b32 s{sT0}, s{sW}, 3")
    E(f"v_xor_b32 v{vDM}, s{sT0}, v{vDM}")
    E(f"v_lshl_add_u32 v{vTR1}, v{vDM}, 5, v{vTR1}")
    E(f"v_and_b32 v{vDM}, 3, v{vN}")
    E(f"v_lshl_add_u32 v{vTR1}, v{vDM}, 3, v{vTR1}")
    E(f"v_add_u32 v{vTR1}, {WT}, v{vTR1}")
    E(f"v_add_u32 v{vTR1+1}, {11*4096}, v{vTR1}")
    E(f"v_and_b32 v{vA+3}, 7, v{vL}")
    E(f"v_mul_u32_u24 v{vA+3}, {HNS}, v{vA+3}")
    E(f"v_lshl_add_u32 v{vA+3}, v{vJ}, 4, v{vA+3}")
    E(f"v_lshrrev_b32 v{vDM}, 3, v{vN}")
    E(f"v_lshl_add_u32 v{vA+3}, v{vDM}, 6, v{vA+3}")
    E(f"v_lshlrev_b32 v{vA}, 5, v{vN}")
    E(f"v_lshl_add_u32 v{vA}, v{vJ}, 3, v{vA}")
    E(f"s_lshl_b32 s{sT3}, s{sTILE}, 2")
    E(f"s_add_u32 s{sT3}, s{sT3}, s{sW}")
    E(f"s_lshl_b32 s{sT3}, s{sT3}, 8")
    E(f"s_mul_i32 s{sT2}, s{sW}, {HS}")
    sM3, sCL = 12, 14
    E(f"s_mov_b32 s{sM3}, 0x77777777")
    E(f"s_mov_b32 s{sM3+1}, 0x77777777")
    E(f"s_mov_b32 s{sCL}, 0x88888888")
    E(f"s_mov_b32 s{sCL+1}, 0x88888888")
    def accload():
        E(f"buffer_load_dwordx4 {r4(ac)}, v{vL16}, {S4(sWS)}, s{sT2} offen sc1", tag="extra")
        E(f"buffer_load_dwordx4 {r4(ac+4)}, v{vL16}, {S4(sWS)}, s{sT2} offen offset:1024 sc1", tag="extra")
        E("s_mov_b32 exec_hi, 0xffff")
        E(f"buffer_load_dwordx4 {r4(ac+8)}, v{vL16}, {S4(sWS)}, s{sT2} offen offset:2048 sc1", tag="extra")
        E("s_mov_b32 exec_hi, -1")
    if a.ts == 2: stamp(2)
    E("s_waitcnt vmcnt(%d)" % (0 if late else (2 if a.endpf and a.epos < 0 else 1)))
    if a.ts == 2: stamp(3)
    for i in range(6):
        E(f"v_lshlrev_b32 v{xk+2*i}, 16, v{xq[i//2]+i%2}")
        E(f"v_and_b32 v{xk+2*i+1}, 0xffff0000, v{xq[i//2]+i%2}")
    sLO_, sHI_, sONE = 20, 21, 24
    vNI, vKM = hn + 6, hn + 7
    if a.ln2:
        E(f"s_mov_b32 s{sLO_}, 0x00003f80")
        E(f"s_mov_b32 s{sHI_}, 0x3f800000")
        E(f"s_mov_b32 s{sONE}, 0x3f803f80")
        E(f"v_mov_b32 v{vNI}, 0xbacccccd")
        E(f"v_mov_b32 v{vKM}, -1")
        E(f"v_mov_b32 v{vKM+1}, -1")
        E(f"v_mov_b32 v{vKM+2}, -1")
        E("s_mov_b32 exec_lo, 0")
        E(f"s_mov_b32 exec_hi, {0xffffffff ^ ((1 << 11) - 1):#x}")
        E(f"v_mov_b32 v{xk+8}, 0"); E(f"v_mov_b32 v{xk+9}, 0"); E(f"v_mov_b32 v{vKM+1}, 0")
        E(f"s_mov_b32 exec_hi, {0xffffffff ^ ((1 << 10) - 1):#x}")
        E(f"v_mov_b32 v{xk+10}, 0"); E(f"v_mov_b32 v{xk+11}, 0"); E(f"v_mov_b32 v{vKM+2}, 0")
        E(f"s_mov_b64 exec, s[{sCL}:{sCL+1}]")
        for i in (3, 7, 11): E(f"v_mov_b32 v{xk+i}, 0xc2000000")
        E(f"v_mov_b32 v{vKM}, 0xffff")
        E(f"v_and_b32 v{vKM+2}, 0xffff, v{vKM+2}")
        E("s_mov_b32 exec_lo, 0")
        E("s_mov_b32 exec_hi, 0xffff0000")
        E(f"v_mov_b32 v{xk+11}, 0xc2000000")
        E("s_mov_b64 exec, -1")
    E("s_barrier")
    if a.ts == 2: stamp(4)
    thr = struct.unpack("<I", struct.pack("<f", float(a.gate)))[0]
    E(f"s_mul_i32 s{sT4}, s{sTILE}, {a.gstep}")
    E(f"s_and_b32 s{sT4}, s{sT4}, 0xffffffc0")
    E(f"s_add_u32 s{sT4}, s{sT4}, s{sT2}")
    E(f"buffer_load_dword v{vD2}, off, {S4(sWS)}, s{sT4} offset:60 sc1", tag="extra")
    E(f"s_cmp_ge_u32 s{sW}, 4")
    E("s_cbranch_scc1 L_f1_gate")
    for t in range(22):
        o = (t % 11) * 4096
        E(f"ds_read_b64_tr_b16 {r2(vW+4*t)}, v{vTR1 + t//11} offset:{o}")
        E(f"ds_read_b64_tr_b16 {r2(vW+4*t+2)}, v{vTR1 + t//11} offset:{o+512}")
    stamp(11)
    E.label("L_f1_gate")
    E("s_waitcnt vmcnt(0)")
    E(f"v_readfirstlane_b32 s{sT0}, v{vD2}")
    E(f"s_cmp_ge_u32 s{sT0}, {thr:#x}")
    E("s_cbranch_scc1 L_f1_full")
    spin("L_f1_full")
    if a.sleep: E(f"s_sleep {a.sleep}")
    E(f"buffer_load_dword v{vD2}, off, {S4(sWS)}, s{sT4} offset:60 sc1", tag="extra")
    E("s_branch L_f1_gate")
    E.label("L_f1_full")
    accload()
    E.label("L_f1_poll")
    E("s_waitcnt vmcnt(0)")
    E(f"v_min3_f32 v{vD1}, v{ac+3}, v{ac+7}, v{ac+11}")
    E(f"v_cmp_gt_f32 vcc, 0x42000000, v{vD1}")
    E(f"s_and_b64 vcc, vcc, s[{sCL}:{sCL+1}]")
    E("s_cbranch_scc0 L_f1_go")
    spin("L_f1_go")
    if a.sleep: E(f"s_sleep {a.sleep}")
    accload()
    E("s_branch L_f1_poll")
    E.label("L_f1_go")
    stamp(12)
    t0_, t1_, t2_, vMN, vRC = vD1, vD1 + 1, vD1 + 2, vD2, vD2 + 1
    if a.ln2 == 0:
        hx = ac
        bf16r_many(E, range(ac, ac + 12))
        for i in range(12): E(f"v_add_f32 v{hx+i}, v{xk+i}, v{ac+i}")
        bf16r_many(E, range(hx, hx + 12))
        full = [0, 1, 2, 4, 5, 6]
        def masked(fn):
            for i in full: fn(i)
            E(f"s_mov_b32 exec_hi, {(1 << 11) - 1:#x}")
            fn(8); fn(9)
            E(f"s_mov_b32 exec_hi, {(1 << 10) - 1:#x}")
            fn(10)
            E(f"s_and_b64 exec, exec, s[{sM3}:{sM3+1}]")
            fn(11)
            E(f"s_mov_b64 exec, s[{sM3}:{sM3+1}]")
            fn(3); fn(7)
            E("s_mov_b64 exec, -1")
        t0_, t1_, t2_, vMN, vRC = vD1, vD1 + 1, vD1 + 2, vD2, vD2 + 1
        def f_sum(i):
            if i == 0: E(f"v_add_f32 v{t0_}, v{hx}, v{hx+1}")
            elif i == 1: pass
            elif i == 2: E(f"v_add_f32 v{t1_}, v{hx+2}, v{hx+4}")
            elif i == 4: pass
            else:
                d = t0_ if i % 2 else t1_
                E(f"v_add_f32 v{d}, v{d}, v{hx+i}")
        masked(f_sum)
        E(f"v_add_f32 v{t0_}, v{t0_}, v{t1_}")
        E(f"v_mov_b32 v{t2_}, 0x3acccccd")
        wave_reduce(E, t0_, sT0)
        E(f"v_mul_f32 v{vMN}, s{sT0}, v{t2_}")
        for i in range(12): E(f"v_sub_f32 v{xk+i}, v{hx+i}, v{vMN}")
        def f_var(i):
            if i == 0: E(f"v_mul_f32 v{t0_}, v{xk}, v{xk}")
            elif i == 1: E(f"v_mul_f32 v{t1_}, v{xk+1}, v{xk+1}")
            else:
                d = t0_ if i % 2 == 0 else t1_
                E(f"v_fmac_f32 v{d}, v{xk+i}, v{xk+i}")
        masked(f_var)
        E(f"v_add_f32 v{t0_}, v{t0_}, v{t1_}")
        bf16r(E, vMN, vMN)
        row_reduce(E, [t0_])
        for i in range(6): E(f"v_sub_f32 v{hx+i}, v{hx+i}, v{vMN}")
        E(f"v_add_f32_dpp v{t0_}, v{t0_}, v{t0_} row_bcast:15 row_mask:0xa bank_mask:0xf")
        for i in range(6, 12): E(f"v_sub_f32 v{hx+i}, v{hx+i}, v{vMN}")
        E(f"v_add_f32_dpp v{t0_}, v{t0_}, v{t0_} row_bcast:31 row_mask:0xc bank_mask:0xf")
        bf16r_many(E, range(hx, hx + 4))
        E(f"v_readlane_b32 s{sT0}, v{t0_}, 63")
        bf16r_many(E, range(hx + 4, hx + 8))
        E(f"v_mul_f32 v{t0_}, s{sT0}, v{t2_}")
        bf16r(E, t0_, t0_)
        E(f"v_add_f32 v{t0_}, 0x3727c5ac, v{t0_}")
        bf16r(E, t0_, t0_)
        E(f"v_sqrt_f32 v{t0_}, v{t0_}")
        bf16r_many(E, range(hx + 8, hx + 12))
        bf16r(E, t0_, t0_)
        E(f"v_rcp_f32 v{vRC}, v{t0_}")
        masked(lambda i: E(f"v_mul_f32 v{hn+i}, v{hx+i}, v{vRC}"))
        for i in range(6): E(f"v_cvt_pk_bf16_f32 v{xk+i}, v{hn+2*i}, v{hn+2*i+1}")
    else:
        pk = hn
        sel = (sLO_, sHI_)
        for i in range(6): E(f"v_cvt_pk_bf16_f32 v{pk+i}, v{ac+2*i}, v{ac+2*i+1}")
        for i in range(12): E(f"v_dot2_f32_bf16 v{ac+i}, v{pk+i//2}, s{sel[i%2]}, v{xk+i}")
        for i in range(6): E(f"v_cvt_pk_bf16_f32 v{pk+i}, v{ac+2*i}, v{ac+2*i+1}")
        for i in range(6):
            d = t0_ if i % 2 == 0 else t1_
            E(f"v_dot2_f32_bf16 v{d}, v{pk+i}, s{sONE}, {'0' if i < 2 else 'v%d' % d}")
        fill = []
        for i in range(6):
            fill.append(f"v_lshlrev_b32 v{xk+2*i}, 16, v{pk+i}")
            fill.append(f"v_and_b32 v{xk+2*i+1}, 0xffff0000, v{pk+i}")
        chain = [f"v_add_f32 v{t0_}, v{t0_}, v{t1_}"]
        chain += [f"v_add_f32_dpp v{t0_}, v{t0_}, v{t0_} row_ror:{sh} row_mask:0xf bank_mask:0xf" for sh in (8, 4, 2, 1)]
        chain += [f"v_add_f32_dpp v{t0_}, v{t0_}, v{t0_} row_bcast:15 row_mask:0xa bank_mask:0xf",
                  f"v_add_f32_dpp v{t0_}, v{t0_}, v{t0_} row_bcast:31 row_mask:0xc bank_mask:0xf",
                  f"v_readlane_b32 s{sT0}, v{t0_}, 63"]
        for c in chain:
            for _ in range(2):
                if fill: E(fill.pop(0))
            E(c)
        E(f"v_mul_f32 v{vMN}, s{sT0}, v{vNI}")
        for i in range(12): E(f"v_add_f32 v{ac+i}, v{xk+i}, v{vMN}")
        full = [0, 1, 2, 4, 5, 6]
        def masked(fn):
            for i in full: fn(i)
            E(f"s_mov_b32 exec_hi, {(1 << 11) - 1:#x}")
            fn(8); fn(9)
            E(f"s_mov_b32 exec_hi, {(1 << 10) - 1:#x}")
            fn(10)
            E(f"s_and_b64 exec, exec, s[{sM3}:{sM3+1}]")
            fn(11)
            E(f"s_mov_b64 exec, s[{sM3}:{sM3+1}]")
            fn(3); fn(7)
            E("s_mov_b64 exec, -1")
        def f_var(i):
            if i == 0: E(f"v_mul_f32 v{t0_}, v{ac}, v{ac}")
            elif i == 1: E(f"v_mul_f32 v{t1_}, v{ac+1}, v{ac+1}")
            else:
                d = t0_ if i % 2 == 0 else t1_
                E(f"v_fmac_f32 v{d}, v{ac+i}, v{ac+i}")
        masked(f_var)
        E(f"v_add_f32 v{t0_}, v{t0_}, v{t1_}")
        bf16r(E, vMN, vMN)
        fill = [f"v_add_f32 v{ac+i}, v{xk+i}, v{vMN}" for i in range(12)]
        fill += [f"v_cvt_pk_bf16_f32 v{pk+i}, v{ac+2*i}, v{ac+2*i+1}" for i in range(6)]
        for i in (1, 3, 4, 5): fill.append(f"v_and_b32 v{pk+i}, v{pk+i}, v{vKM + (0 if i < 4 else i - 3)}")
        for i in range(6):
            fill.append(f"v_lshlrev_b32 v{ac+2*i}, 16, v{pk+i}")
            fill.append(f"v_and_b32 v{ac+2*i+1}, 0xffff0000, v{pk+i}")
        chain = [f"v_add_f32_dpp v{t0_}, v{t0_}, v{t0_} row_ror:{sh} row_mask:0xf bank_mask:0xf" for sh in (8, 4, 2, 1)]
        chain += [f"v_add_f32_dpp v{t0_}, v{t0_}, v{t0_} row_bcast:15 row_mask:0xa bank_mask:0xf",
                  f"v_add_f32_dpp v{t0_}, v{t0_}, v{t0_} row_bcast:31 row_mask:0xc bank_mask:0xf",
                  f"v_readlane_b32 s{sT0}, v{t0_}, 63",
                  f"v_mul_f32 v{t0_}, s{sT0}, -v{vNI}",
                  f"v_cvt_pk_bf16_f32 v{t0_}, v{t0_}, v{t0_}", f"v_and_b32 v{t0_}, 0xffff0000, v{t0_}",
                  f"v_add_f32 v{t0_}, 0x3727c5ac, v{t0_}",
                  f"v_cvt_pk_bf16_f32 v{t0_}, v{t0_}, v{t0_}", f"v_and_b32 v{t0_}, 0xffff0000, v{t0_}",
                  f"v_sqrt_f32 v{t0_}, v{t0_}",
                  f"v_cvt_pk_bf16_f32 v{t0_}, v{t0_}, v{t0_}", f"v_and_b32 v{t0_}, 0xffff0000, v{t0_}",
                  f"v_rcp_f32 v{vRC}, v{t0_}"]
        for c in chain:
            E(c)
            for _ in range(2):
                if fill: E(fill.pop(0))
        for c in fill: E(c)
        for i in range(12): E(f"v_mul_f32 v{ac+i}, v{ac+i}, v{vRC}")
        for i in range(6): E(f"v_cvt_pk_bf16_f32 v{xk+i}, v{ac+2*i}, v{ac+2*i+1}")
    E(f"ds_write_b64 v{vA+2}, {r2(xk)} offset:{HN}")
    E(f"ds_write_b64 v{vA+2}, {r2(xk+2)} offset:{HN+512}")
    E("s_mov_b32 exec_hi, 0xffff")
    E(f"ds_write_b64 v{vA+2}, {r2(xk+4)} offset:{HN+1024}")
    E("s_mov_b32 exec_hi, -1")
    E("s_waitcnt lgkmcnt(0)")
    E("s_barrier")
    E(f"s_cmp_ge_u32 s{sW}, 4")
    E("s_cbranch_scc1 L_fin")
    if a.ts:
        stamp(13); E("s_waitcnt lgkmcnt(0)")
    for u in range(11):
        E(f"ds_read_b128 {r4(hb+4*u)}, v{vA+3} offset:{HN+128*u}")
    for u in range(11):
        E(f"s_waitcnt lgkmcnt({10-u})")
        c1 = "0" if u == 0 else r4(vD1)
        c2 = "0" if u == 0 else r4(vD2)
        E(f"v_mfma_f32_16x16x32_bf16 {r4(vD1)}, {r4(vW+8*u)}, {r4(hb+4*u)}, {c1}")
        E(f"v_mfma_f32_16x16x32_bf16 {r4(vD2)}, {r4(vW+8*u+4)}, {r4(hb+4*u)}, {c2}")
    for i in range(4):
        E(f"v_add_f32_dpp v{vD1+i}, v{vD2+i}, v{vD1+i} row_ror:8 row_mask:0xf bank_mask:0xf")
    for i in range(4): E(f"v_max_f32 v{vD1+i}, 0, v{vD1+i}")
    E(f"v_cvt_pk_bf16_f32 v{vD2}, v{vD1}, v{vD1+1}")
    E(f"v_cvt_pk_bf16_f32 v{vD2+1}, v{vD1+2}, v{vD1+3}")
    E(f"s_mov_b64 exec, s[{sLO8}:{sLO8+1}]")
    E(f"buffer_store_dwordx2 {r2(vD2)}, v{vA}, {S4(sH1)}, s{sT3} offen sc1", tag="extra")
    stamp(14)
    E("s_branch L_fin")

    E.label("L_ffn2")
    E.comment("FFN2: %d columns of w2" % (16 * NC))
    E(f"s_mov_b64 s[{sDRY}:{sDRY+1}], {0 if a.dry & 2 else -1}")
    E(f"s_mov_b32 s{sROLE}, 2")
    E(f"s_mov_b32 s{sWF}, s18")
    E(f"s_and_b32 s{sWF+1}, s19, 0xffff")
    vDA = vQ + 2
    vA = vD1
    lpr = 2 * NC
    rpi = 64 // lpr
    nd2 = 7 * NC
    E(f"v_lshrrev_b32 v{vDA}, {NC}, v{vL}")
    E(f"v_mul_u32_u24 v{vDA}, 1280, v{vDA}")
    E(f"v_and_b32 v{vA+1}, {lpr-1}, v{vL}")
    E(f"v_lshl_add_u32 v{vDA}, v{vA+1}, 4, v{vDA}")
    sD0, sD2 = 12, 13
    E(f"s_mul_i32 s{sD0}, s{sW}, {7*32*1280}")
    E(f"s_mul_i32 s{sT1}, s{sTILE}, {32*NC}")
    E(f"s_add_u32 s{sD0}, s{sD0}, s{sT1}")
    E(f"s_mul_i32 s{sT3}, s{sW}, {nd2*1024}")
    E(f"s_add_u32 s{sT3}, s{sT3}, {WT}")
    E(f"s_mov_b32 s{sD2}, s{sT3}")
    def dma2():
        for t in range(nd2 if not a.nodma else 0):
            E(f"s_mov_b32 m0, s{sD2}")
            E(f"buffer_load_dwordx4 v{vDA}, {S4(sWF)}, s{sD0} offen{fnt} lds", tag="extra")
            if t < nd2 - 1:
                E(f"s_add_u32 s{sD0}, s{sD0}, {rpi*1280}")
                E(f"s_add_u32 s{sD2}, s{sD2}, 1024")
    E("s_barrier")
    stamp(10)
    if not a.late2: dma2()
    vB7 = vQ
    vXO = vQ + 1
    E(f"v_and_b32 v{vB7}, 7, v{vL}")
    E(f"v_mul_u32_u24 v{vXO}, 1280, v{vB7}")
    E(f"v_lshl_add_u32 v{vXO}, v{vJ}, 3, v{vXO}")
    E(f"s_and_b32 s{sT4}, s{sW}, {NC-1}")
    E(f"s_lshl_b32 s{sT4}, s{sT4}, 5")
    E(f"s_add_u32 s{sT1}, s{sT1}, s{sT4}")
    xr = vS
    E(f"buffer_load_dwordx2 {r2(xr)}, v{vXO}, {S4(sX)}, s{sT1} offen", tag="extra")
    vHA = vF + 128
    E(f"s_lshr_b32 s{sT0}, s{sT1}, 1")
    E(f"v_lshl_add_u32 v{vA}, v{vJ}, 2, s{sT0}")
    E(f"v_mul_u32_u24 v{vA+1}, {HS}, v{vB7}")
    for r in range(4):
        E(f"v_add_u32 v{vA+2}, {r}, v{vA}")
        E(f"v_mul_u32_u24 v{vA+3}, 4370, v{vA+2}")
        E(f"v_lshrrev_b32 v{vA+3}, 16, v{vA+3}")
        E(f"v_add_u32 v{vA+2}, v{vA+2}, v{vA+3}")
        E(f"v_lshl_add_u32 v{vHA+r}, v{vA+2}, 2, v{vA+1}")
        if r in (0, 3):
            E(f"v_lshl_add_u32 v{vHA+4+r//3}, v{vA+3}, 6, v{vA+1}")
    vH1 = vB1 + 1
    E(f"v_lshrrev_b32 v{vH1}, 1, v{vJ}")
    E(f"v_lshlrev_b32 v{vH1}, 8, v{vH1}")
    E(f"v_lshl_add_u32 v{vH1}, v{vB7}, 5, v{vH1}")
    E(f"v_and_b32 v{vB1+2}, 1, v{vJ}")
    E(f"v_lshl_add_u32 v{vH1}, v{vB1+2}, 4, v{vH1}")
    E(f"v_lshrrev_b32 v{vB1+2}, 3, v{vN}")
    E(f"v_lshl_add_u32 v{vH1}, v{vB1+2}, 9, v{vH1}")
    rb = 32 * NC
    vTR = vB1 + 2
    E(f"v_mul_u32_u24 v{vTR}, {8*rb}, v{vJ}")
    E(f"v_lshrrev_b32 v{vB1+3}, 2, v{vN}")
    E(f"v_lshl_add_u32 v{vTR}, v{vB1+3}, {4+NC}, v{vTR}")
    E(f"v_and_b32 v{vB1+3}, 3, v{vN}")
    E(f"v_lshl_add_u32 v{vTR}, v{vB1+3}, 3, v{vTR}")
    E(f"v_add_u32 v{vTR}, s{sT3}, v{vTR}")
    vRWp, vRRp = vB0, vB0 + 1
    E(f"s_lshl_b32 s{sT0}, s{sW}, 11")
    E(f"v_add_u32 v{vRWp}, s{sT0}, v{vL16}")
    E(f"s_lshl_b32 s{sT0}, s{sT4}, 5")
    E(f"v_add_u32 v{vRRp}, s{sT0}, v{vL16}")
    E(f"s_mul_i32 s{sT2}, s{sW}, {7*512}")
    acc = [vF + 96 + 4 * i for i in range(4)]
    ac = vS + 4
    hx = vS + 12
    hxk = vS + 8
    hb = vF + 64
    def trs():
        E("s_waitcnt vmcnt(0)")
        for t in range(7):
            for c in range(NC):
                E(f"ds_read_b64_tr_b16 {r2(vW+8*t+4*c)}, v{vTR} offset:{t*32*rb+c*32}")
                E(f"ds_read_b64_tr_b16 {r2(vW+8*t+4*c+2)}, v{vTR} offset:{t*32*rb+c*32+4*rb}")
        for i in range(2):
            E(f"v_lshlrev_b32 v{hxk+2*i}, 16, v{xr+i}")
            E(f"v_and_b32 v{hxk+2*i+1}, 0xffff0000, v{xr+i}")
        E("s_waitcnt lgkmcnt(0)")
        stamp(11)
    def cpoll(lbl, thr_):
        E.label(lbl)
        E(f"buffer_load_dword v{vD1}, v{vHA+4}, {S4(sWS)}, 0 offen offset:60 sc1", tag="extra")
        E(f"buffer_load_dword v{vD1+1}, v{vHA+5}, {S4(sWS)}, 0 offen offset:60 sc1", tag="extra")
        E("s_waitcnt vmcnt(0)")
        E(f"v_min_f32 v{vD1}, v{vD1}, v{vD1+1}")
        E(f"v_cmp_gt_f32 vcc, {thr_:#x}, v{vD1}")
        E(f"s_cbranch_vccz {lbl}_ok")
        spin(f"{lbl}_ok")
        E(f"s_sleep {a.sleep3}")
        E(f"s_branch {lbl}")
        E.label(f"{lbl}_ok")
    E.label("L_f2_top")
    E(f"s_mov_b64 exec, s[{sDRY}:{sDRY+1}]")
    E("s_cbranch_execz L_f2_got")
    if a.late2:
        E(f"s_cmp_ge_u32 s{sW}, 1")
        E("s_cbranch_scc1 L_f2_g_ok")
        cpoll("L_f2_g", struct.unpack("<I", struct.pack("<f", float(a.late2)))[0])
        E("s_barrier")
        dma2()
    trs()
    E(f"s_cmp_ge_u32 s{sW}, {NC}")
    E("s_cbranch_scc1 L_f2_go")
    cpoll("L_f2_c", 0x42000000)
    for r in range(4):
        E(f"buffer_load_dword v{ac+r}, v{vHA+r}, {S4(sWS)}, 0 offen sc1", tag="extra")
    E.label("L_f2_go")
    E("s_barrier")
    stamp(12)
    E.label("L_f2_poll2")
    for u in range(4):
        E(f"buffer_load_dwordx4 {r4(hb+4*u)}, v{vH1}, {S4(sH1)}, s{sT2} offen offset:{1024*u} sc1", tag="extra")
    E("s_waitcnt vmcnt(0)")
    E(f"v_max3_u32 v{vD1}, v{hb}, v{hb+1}, v{hb+2}")
    E(f"v_max3_u32 v{vD1+1}, v{hb+3}, v{hb+4}, v{hb+5}")
    for k in range(6, 16, 2):
        tgt = vD1 + ((k // 2) % 2)
        E(f"v_max3_u32 v{tgt}, v{tgt}, v{hb+k}, v{hb+k+1}")
    E(f"v_max_u32 v{vD1}, v{vD1}, v{vD1+1}")
    E(f"v_cmp_eq_u32 vcc, -1, v{vD1}")
    E("s_cbranch_vccz L_f2_got")
    spin("L_f2_got")
    if a.sleep2: E(f"s_sleep {a.sleep2}")
    E("s_branch L_f2_poll2")
    E.label("L_f2_got")
    stamp(13)
    for t in range(7):
        u, half = divmod(t, 2)
        for c in range(NC):
            d = acc[2 * c + half]
            cc = "0" if u == 0 else r4(d)
            E(f"v_mfma_f32_16x16x32_bf16 {r4(d)}, {r4(vW+8*t+4*c)}, {r4(hb+4*u)}, {cc}")
    bf16r_many(E, range(ac, ac + 4))
    for i in range(4): E(f"v_add_f32 v{hx+i}, v{hxk+i}, v{ac+i}")
    bf16r_many(E, range(hx, hx + 4))
    for c in range(NC):
        for r in range(4):
            E(f"v_cndmask_b32 v{acc[2*c]+r}, v{acc[2*c+1]+r}, v{acc[2*c]+r}, s[{sLO8}:{sLO8+1}]")
        E(f"ds_write_b128 v{vRWp}, {r4(acc[2*c])} offset:{F2R+1024*c}")
    E("s_waitcnt lgkmcnt(0)")
    E("s_barrier")
    E(f"s_cmp_ge_u32 s{sW}, {NC}")
    E("s_cbranch_scc1 L_f2_next")
    pb = vF + 144
    for p in range(8):
        E(f"ds_read_b128 {r4(pb+4*p)}, v{vRRp} offset:{F2R+2048*p}")
    if a.ts: E("s_waitcnt lgkmcnt(0)")
    for p in range(4):
        if not a.ts: E(f"s_waitcnt lgkmcnt({6-2*p})")
        for i in range(4): E(f"v_add_f32 v{pb+8*p+i}, v{pb+8*p+i}, v{pb+8*p+4+i}")
        if p % 2 == 1:
            for i in range(4): E(f"v_add_f32 v{pb+8*p-8+i}, v{pb+8*p-8+i}, v{pb+8*p+i}")
    for i in range(4): E(f"v_add_f32 v{pb+i}, v{pb+i}, v{pb+16+i}")
    for i in range(4):
        E(f"v_add_f32_dpp v{pb+i}, v{pb+i}, v{pb+i} row_ror:8 row_mask:0xf bank_mask:0xf")
    bf16r_many(E, range(pb, pb + 4))
    for i in range(4): E(f"v_add_f32 v{pb+i}, v{hx+i}, v{pb+i}")
    E(f"v_cvt_pk_bf16_f32 v{vD2}, v{pb}, v{pb+1}")
    E(f"v_cvt_pk_bf16_f32 v{vD2+1}, v{pb+2}, v{pb+3}")
    E(f"s_and_b64 exec, exec, s[{sLO8}:{sLO8+1}]")
    E("s_cbranch_execz L_f2_next")
    E(f"buffer_store_dwordx2 {r2(vD2)}, v{vXO}, {S4(sOUT)}, s{sT1} offen{a.opol}", tag="extra")
    stamp(14)
    E.label("L_f2_next")
    E(f"s_cmp_lg_u32 s{sDRY}, 0")
    E("s_cbranch_scc1 L_fin")
    E(f"s_mov_b64 s[{sDRY}:{sDRY+1}], -1")
    E("s_branch L_f2_top")
    E.label("L_fin")
    if a.ts and a.echo:
        E(f"s_cmp_lg_u32 s{sROLE}, 2")
        E("s_cbranch_scc1 L_end")
        E(f"s_cmp_lg_u32 s{sW}, 0")
        E("s_cbranch_scc1 L_end")
        E("s_waitcnt vmcnt(0)")
        stamp(15)
        E("s_waitcnt lgkmcnt(0)")
        if a.skew >= 0:
            E("s_mov_b64 exec, -1")
            E(f"s_mov_b32 s{sT0}, 0x30000")
            E(f"buffer_load_dword v{vS}, off, {S4(sWS)}, s{sT0} offset:{4*a.skew} sc1", tag="extra")
            E(f"buffer_load_dword v{vS+1}, off, {S4(sWS)}, s{sT0} offset:4 sc1", tag="extra")
            E("s_waitcnt vmcnt(0)")
            E(f"v_sub_u32 v{vS}, v{vS}, v{vS+1}")
            E(f"v_readfirstlane_b32 s{sT0}, v{vS}")
            E(f"s_add_u32 s{sT0}, s{sT0}, 200")
            E(f"s_lshl_b32 s{sT0}, s{sT0}, 2")
        else:
            E(f"s_sub_u32 s{sT0}, s{sTS+2*a.echo}, s{sTS+2*a.echo0}")
        E(f"s_min_u32 s{sT0}, s{sT0}, 20000")
        E(f"s_add_u32 s{sT0}, s{sT0}, s{sTS+30}")
        E.label("L_echo")
        E(f"s_memrealtime s[{sT2}:{sT2+1}]")
        E("s_waitcnt lgkmcnt(0)")
        E(f"s_sub_u32 s{sT1}, s{sT0}, s{sT2}")
        E(f"s_cmp_gt_i32 s{sT1}, 0")
        E("s_cbranch_scc1 L_echo")
    elif a.ts:
        E("s_waitcnt vmcnt(0)")
        stamp(15)
        write_stamps()
    E.label("L_end")
    E("s_endpgm")
    E.label("L_codeend")

    out = HDR
    out += f"; @launch grid=(256,1,1) block=(512,1,1) lds={LDS_TOTAL}\n"
    out += f""".amdgcn_target "amdgcn-amd-amdhsa--gfx950"
.text
.globl {NAME}
.p2align 8
.type {NAME},@function
{NAME}:
"""
    out += E.text().replace("CODE_BYTES", f"L_codeend-{NAME}")
    out += f""".section .rodata,"a"
.p2align 6
.amdhsa_kernel {NAME}
  .amdhsa_next_free_vgpr 256
  .amdhsa_next_free_sgpr 102
  .amdhsa_accum_offset 256
  .amdhsa_group_segment_fixed_size 0
  .amdhsa_kernarg_size 88
  .amdhsa_user_sgpr_count 2
  .amdhsa_user_sgpr_kernarg_segment_ptr 1
  .amdhsa_system_sgpr_workgroup_id_x 1
  .amdhsa_float_denorm_mode_32 3
.end_amdhsa_kernel
"""
    return out

def parser():
    p = argparse.ArgumentParser()
    p.add_argument("-o", default="sequential_preLN__sliding_block_cached__dense_activation_relu__decode.s")
    p.add_argument("--fnt", type=int, default=0)
    p.add_argument("--ts", type=int, default=0)
    p.add_argument("--sleep", type=int, default=1)
    p.add_argument("--sleep2", type=int, default=1)
    p.add_argument("--depth", type=int, default=6)
    p.add_argument("--first", type=int, default=2)
    p.add_argument("--budget", type=int, default=16)
    p.add_argument("--qspan", type=int, default=32)
    p.add_argument("--ostart", type=int, default=0)
    p.add_argument("--otail", type=int, default=4)
    p.add_argument("--tkpos", type=int, default=28)
    p.add_argument("--pf", type=int, default=2)
    p.add_argument("--spf", type=int, default=1)
    p.add_argument("--nc2", type=int, default=2)
    p.add_argument("--late2", type=int, default=0)
    p.add_argument("--nk0", type=int, default=4)
    p.add_argument("--pfwg", type=int, default=16)
    p.add_argument("--ln2", type=int, default=1)
    p.add_argument("--endpf", type=int, default=2)
    p.add_argument("--epos", type=int, default=0)
    p.add_argument("--nodma", type=int, default=0)
    p.add_argument("--gate", type=float, default=31)
    p.add_argument("--gstep", type=int, default=104)
    p.add_argument("--dplan", default="0000")
    p.add_argument("--opol", default="")
    p.add_argument("--skew", type=int, default=-1)
    p.add_argument("--htab", default="0x76325410")
    p.add_argument("--rtab", default="0x210cba98")
    p.add_argument("--sphalf", type=int, default=2)
    p.add_argument("--npoll2", type=int, default=1)
    p.add_argument("--stag2", type=int, default=4)
    p.add_argument("--pub", default="sc1")
    p.add_argument("--sub", default="sc1")
    p.add_argument("--zwg", type=int, default=28)
    p.add_argument("--nrep", type=int, default=8)
    p.add_argument("--sleep3", type=int, default=4)
    p.add_argument("--h1wait", type=int, default=0)
    p.add_argument("--npoll", type=int, default=1)
    p.add_argument("--stag", type=int, default=3)
    p.add_argument("--static", type=int, default=0)
    p.add_argument("--l2pf", type=int, default=6)
    p.add_argument("--echo", type=int, default=0)
    p.add_argument("--echo0", type=int, default=0)
    p.add_argument("--kvpol", default=" nt")
    p.add_argument("--wpol", default="")
    p.add_argument("--bd1", type=int, default=0)
    p.add_argument("--bd2", type=int, default=0)
    p.add_argument("--bd3", type=int, default=0)
    p.add_argument("--hmap", type=int, default=3)
    p.add_argument("--tlb", type=int, default=0)
    p.add_argument("--dry", type=int, default=2)
    return p

if __name__ == "__main__":
    a = parser().parse_args()
    open(a.o, "w").write(gen(a))
```

```python
import sys, argparse, struct
from collections import deque
from asmlib import Emitter
from gen2 import (NAME, HDR, srd, srd_off, r4, r2, S4, row_reduce, wave_reduce, bf16r, bf16r_many, unpack10, ln_stats,
                  LOG2E, SCALE, sT0, sT1, sT2, sT3, sT4)

RED = 0
QF = 8448
ML = 8704
YP = 9216
YPS = 3328
HN = 9216
HNS = 1408
F2R = 9216
WT = 35840
LDS_TOTAL = 150528
HS = 3072
H1_BASE = 32768
TS_BASE = 1 << 20
NF1 = 27

sW, sH, sB = 3, 26, 27
sK, sV, sWQ, sWO, sX, sWS, sDB, sWF, sOUT, sH1 = 28, 32, 36, 40, 44, 48, 52, 56, 60, 64
sROLE, sTILE = 100, 101
sSPIN = 9
sLO8 = 10
sKO, sVO, sQ0, sQ1, sOO = 12, 13, 14, 15, 20
sDRY = 22
sEX = 24
sTKO = 25
sTS = 68
vL, vL16, vWQ, vWO = 0, 1, 2, 3
vM = 4
vQ = 8
vB0, vB1 = 12, 16
vD1, vD2 = 20, 24
vT = 28
vS = 32
vF = 48
vJ, vN = vT, vT + 1

class Task:
    def __init__(self, fn, needs=(), frees=(), barrier=0, cost=1, atomic=False):
        self.fn, self.needs, self.frees, self.barrier, self.cost = fn, list(needs), list(frees), barrier, cost
        self.atomic = atomic
        self.q = None

class RecEmitter(Emitter):
    def __init__(self):
        super().__init__(); self.rec = None
    def __call__(self, text, tag=None):
        if self.rec is not None: self.rec.append(("i", text, tag))
        else: super().__call__(text, tag)
    def label(self, name):
        if self.rec is not None: self.rec.append(("l", name, None))
        else: super().label(name)
    def flush(self, n=None):
        if self.rec is not None: self.rec.append(("f", None, None))
        else: super().flush(n)
    def record(self, fn):
        self.rec = []; fn(); r = self.rec; self.rec = None; return deque(r)
    def play(self, item):
        k, a, b = item
        if k == "i": self(a, b)
        elif k == "l": self.label(a)
        else: self.flush()

def gen(a):
    E = RecEmitter()
    NC = a.nc2
    NF2 = 40 // NC
    nt = a.kvpol
    wnt = a.wpol
    fnt = " nt" if a.fnt else ""
    def stamp(i):
        if a.ts: E(f"s_memrealtime s[{sTS+2*i}:{sTS+2*i+1}]")
    def spin(lbl):
        E(f"s_sub_u32 s{sSPIN}, s{sSPIN}, 1")
        E(f"s_cmp_lt_i32 s{sSPIN}, 0")
        E(f"s_cbranch_scc1 {lbl}")
    def write_stamps():
        E("s_waitcnt lgkmcnt(0)")
        E("s_mov_b64 exec, 1")
        E(f"s_lshl_b32 s{sT0}, s2, 3")
        E(f"s_add_u32 s{sT0}, s{sT0}, s{sW}")
        E(f"s_lshl_b32 s{sT0}, s{sT0}, 8")
        E(f"s_add_u32 s{sT0}, s{sT0}, {TS_BASE}")
        for i in range(16):
            E(f"v_mov_b32 v{vT}, s{sTS+2*i}")
            E(f"v_mov_b32 v{vT+1}, s{sTS+2*i+1}")
            E(f"buffer_store_dwordx2 {r2(vT)}, off, {S4(sWS)}, s{sT0} offset:{8*i}", tag="extra")
            E("s_nop 1")
        E(f"s_getreg_b32 s{sT1}, hwreg(HW_REG_XCC_ID)")
        E(f"v_mov_b32 v{vT}, s{sT1}")
        E(f"v_mov_b32 v{vT+1}, s{sROLE}")
        E(f"buffer_store_dwordx2 {r2(vT)}, off, {S4(sWS)}, s{sT0} offset:128", tag="extra")
        E("s_nop 1")
        E(f"v_mov_b32 v{vT}, s{sSPIN}")
        E(f"v_mov_b32 v{vT+1}, 0")
        E(f"buffer_store_dwordx2 {r2(vT)}, off, {S4(sWS)}, s{sT0} offset:136", tag="extra")

    E("s_cmp_ge_u32 s2, 256")
    E("s_cbranch_scc1 L_end")
    E("s_load_dwordx16 s[4:19], s[0:1], 0")
    E("s_load_dwordx4 s[20:23], s[0:1], 64")
    E("s_load_dwordx2 s[24:25], s[0:1], 80")
    if a.ts:
        for i in range(1, 16): E(f"s_mov_b64 s[{sTS+2*i}:{sTS+2*i+1}], 0")
        stamp(0)
    E(f"v_lshrrev_b32 v{vT}, 6, v0")
    E(f"v_and_b32 v{vL}, 63, v0")
    E(f"v_readfirstlane_b32 s{sW}, v{vT}")
    if a.hmap == 3:
        E(f"s_and_b32 s{sH}, s2, 7")
        E(f"s_lshl_b32 s{sH}, s{sH}, 2")
        E(f"s_lshr_b32 s{sH}, {a.htab}, s{sH}")
        E(f"s_and_b32 s{sB}, s{sH}, 4")
        E(f"s_lshl_b32 s{sB}, s{sB}, 2")
        E(f"s_and_b32 s{sH}, s{sH}, 3")
        E(f"s_add_u32 s{sH}, s{sH}, s{sB}")
        E(f"s_bfe_u32 s{sB}, s2, 0x20003")
        E(f"s_lshl_b32 s{sB}, s{sB}, 2")
        E(f"s_add_u32 s{sH}, s{sH}, s{sB}")
    elif a.hmap == 2:
        E(f"s_and_b32 s{sH}, s2, 6")
        E(f"s_lshr_b32 s{sH}, 0x8d, s{sH}")
        E(f"s_and_b32 s{sH}, s{sH}, 3")
        E(f"s_and_b32 s{sB}, s2, 1")
        E(f"s_lshl_b32 s{sB}, s{sB}, 4")
        E(f"s_add_u32 s{sH}, s{sH}, s{sB}")
        E(f"s_bfe_u32 s{sB}, s2, 0x20003")
        E(f"s_lshl_b32 s{sB}, s{sB}, 2")
        E(f"s_add_u32 s{sH}, s{sH}, s{sB}")
    elif a.hmap:
        E(f"s_and_b32 s{sH}, s2, 7")
        E(f"s_lshl_b32 s{sH}, s{sH}, 2")
        E(f"s_bfe_u32 s{sB}, s2, 0x20003")
        E(f"s_add_u32 s{sH}, s{sH}, s{sB}")
    else:
        E(f"s_and_b32 s{sH}, s2, 31")
    E(f"s_lshr_b32 s{sB}, s2, 5")
    E(f"v_lshlrev_b32 v{vL16}, 4, v{vL}")
    E(f"v_lshrrev_b32 v{vJ}, 4, v{vL}")
    E(f"v_and_b32 v{vN}, 15, v{vL}")
    E(f"v_mul_u32_u24 v{vWQ}, {8192 if a.qp2 else 81920}, v{vJ}")
    E(f"v_lshl_add_u32 v{vWQ}, v{vN}, 4, v{vWQ}")
    vXS, vXC = vT + 2, vT + 3
    E(f"v_mul_u32_u24 v{vXS}, 20, v{vL}")
    t0, t1, t2, t3 = 64, 65, 66, 67
    if not a.qp2:
        E(f"v_lshrrev_b32 v{vXC}, 3, v{vN}")
        E(f"v_lshl_add_u32 v{vXC}, v{vXC}, 2, v{vJ}")
        E(f"s_lshl_b32 s{t0}, s{sW}, 3")
        E(f"v_add_u32 v{vXC}, s{t0}, v{vXC}")
        E(f"v_mul_u32_u24 v{vXC}, 20, v{vXC}")
    E(f"s_lshl_b32 s{t0}, s{sB}, 5")
    E(f"s_add_u32 s{t0}, s{t0}, s{sH}")
    E(f"s_lshl_b32 s{t0}, s{t0}, 20")
    E(f"s_add_u32 s{t0}, s{t0}, 0xc0000")
    E(f"s_lshl_b32 s{t1}, s{sH}, 8")
    E(f"s_mul_i32 s{t2}, s{sH}, {128*1280}")
    E(f"s_mul_i32 s{t3}, s{sB}, 1280")
    E(f"s_mov_b32 s{sROLE}, 0")
    E(f"s_lshl_b32 s{sTILE}, s{sW}, 10")
    if a.pf:
        E(f"s_getpc_b64 s[{sWF}:{sWF+1}]")
        E.label("L_pc")
        E(f"s_and_b32 s{sWF+1}, s{sWF+1}, 0xffff")
        E(f"s_mov_b32 s{sWF+2}, L_codeend-L_pc")
        E(f"s_mov_b32 s{sWF+3}, 0x20000")
        E(f"v_lshlrev_b32 v{vB0}, 7, v{vL}")
        E(f"s_lshl_b32 s{sOUT}, s{sW}, 13")
        E(f"s_cmp_gt_u32 s{sW}, {a.pf - 1}")
        E("s_cbranch_scc1 L_nopf")
        E(f"s_cmp_ge_u32 s2, {a.pfwg}")
        E("s_cbranch_scc1 L_nopf")
        E(f"buffer_load_dword v{vS+15}, v{vB0}, {S4(sWF)}, s{sOUT} offen", tag="extra")
        E.label("L_nopf")
    E("s_waitcnt lgkmcnt(0)")
    srd_off(E, sK, 6, f"s{t0}", 0x40000)
    slot_of = {}
    free = deque(range(52))
    def alloc(tag):
        s = free.popleft(); slot_of[tag] = vF + 4 * s; return slot_of[tag]
    def release(tag):
        free.append((slot_of[tag] - vF) // 4)
    for f in range(a.nk0):
        if f: E(f"s_add_u32 s{sTILE}, s{sTILE}, 8192")
        E(f"buffer_load_dwordx4 {r4(alloc(f'k{f}'))}, v{vL16}, {S4(sK)}, s{sTILE} offen{nt}", tag=f"k{f}")
    srd(E, sX, 4, 5, 10240)
    xs_raw, xc_raw = vS, vS + 6
    E(f"buffer_load_dwordx4 {r4(xs_raw)}, v{vXS}, {S4(sX)}, s{t3} offen", tag="xs")
    E(f"buffer_load_dword v{xs_raw+4}, v{vXS}, {S4(sX)}, s{t3} offen offset:16", tag="xs")
    if not a.qp2:
        E(f"buffer_load_dwordx4 {r4(xc_raw)}, v{vXC}, {S4(sX)}, s{t3} offen", tag="xc")
        E(f"buffer_load_dword v{xc_raw+4}, v{vXC}, {S4(sX)}, s{t3} offen offset:16", tag="xc")
    srd_off(E, sWQ, 10, f"s{t1}", 639 * 8192 + 256)
    srd_off(E, sV, 8, f"s{t0}", 0x40000)
    srd_off(E, sWO, 12, f"s{t2}", 128 * 1280)
    srd(E, sWS, 24, 25, 1 << 22)
    srd(E, sDB, 22, 23, 256)
    srd(E, sOUT, 20, 21, 10240)
    srd_off(E, sH1, 24, H1_BASE, 108 * 256)
    E(f"s_add_u32 s{sKO}, s{sTILE}, 8192")
    E(f"s_lshl_b32 s{sVO}, s{sW}, 10")
    if a.qp2:
        E(f"s_lshl_b32 s{sQ0}, s{sW}, 15")
    else:
        E(f"s_mul_i32 s{sQ0}, s{sW}, 655360")
        E(f"s_add_u32 s{sQ1}, s{sQ0}, 327680")
    E(f"s_mul_i32 s{sOO}, s{sW}, 1280")

    if a.tlb:
        E(f"s_cmp_lg_u32 s{sW}, 1")
        E("s_cbranch_scc1 L_notlb")
        E(f"buffer_load_dword v{vS+14}, off, {S4(sV)}, 0 nt", tag="extra")
        E(f"buffer_load_dword v{vS+14}, off, {S4(sWO)}, 0 nt", tag="extra")
        if a.tlb > 1:
            E(f"s_mov_b32 s{sWF+2}, {640*3456}")
            E(f"s_mov_b32 s{sWF+3}, 0x20000")
            E(f"s_mov_b32 s{sT0}, {640*3456-4}")
            for p in (16, 18):
                E(f"s_mov_b32 s{sWF}, s{p}")
                E(f"s_and_b32 s{sWF+1}, s{p+1}, 0xffff")
                E(f"buffer_load_dword v{vS+14}, off, {S4(sWF)}, 0 nt", tag="extra")
                E(f"buffer_load_dword v{vS+14}, off, {S4(sWF)}, s{sT0} nt", tag="extra")
            E(f"s_mov_b32 s{sT0}, 0x20000")
            E(f"buffer_load_dword v{vS+14}, off, {S4(sWS)}, s{sT0} nt", tag="extra")
            E(f"buffer_load_dword v{vS+14}, off, {S4(sOUT)}, 0 nt", tag="extra")
        E.label("L_notlb")
    if a.skew >= 0:
        E("s_cmp_ge_u32 s2, 8")
        E("s_cbranch_scc1 L_noskew")
        E("s_waitcnt lgkmcnt(0)")
        E(f"v_mov_b32 v{vS+12}, s{sTS}")
        E(f"s_lshl_b32 s{sT0}, s2, 2")
        E(f"s_add_u32 s{sT0}, s{sT0}, 0x30000")
        E(f"buffer_store_dword v{vS+12}, off, {S4(sWS)}, s{sT0} sc1", tag="extra")
        E.label("L_noskew")
    def t_init():
        z = [alloc("z0"), alloc("z1"), alloc("z2"), alloc("z3")]
        zr = [z[0], z[0] + 2, z[1], z[1] + 2, z[2], z[2] + 2]
        init_seen.update(issued)
        E(f"s_cmp_lg_u32 s{sW}, 7")
        E("s_cbranch_scc1 L_nosent")
        E(f"v_mov_b32 v{z[0]}, -1")
        E(f"v_lshlrev_b32 v{z[3]}, 2, v{vL}")
        E(f"s_lshl_b32 s{sT0}, s2, 8")
        E(f"buffer_atomic_swap v{z[0]}, v{z[3]}, {S4(sH1)}, s{sT0} offen sc0", tag="extra")
        E.label("L_nosent")
        E(f"s_cmp_lg_u32 s{sW}, 6")
        E("s_cbranch_scc1 L_noinit")
        E(f"s_and_b32 s{sT0}, s2, 31")
        E(f"s_cmp_lg_u32 s{sT0}, {a.zwg}")
        E("s_cbranch_scc1 L_noinit")
        for q in z[:3]:
            for i in range(4): E(f"v_mov_b32 v{q+i}, 0")
        E(f"v_lshlrev_b32 v{z[3]}, 3, v{vL}")
        E(f"s_mul_i32 s{sT0}, s{sB}, {HS}")
        for i in range(6):
            E(f"buffer_atomic_swap_x2 {r2(zr[i])}, v{z[3]}, {S4(sWS)}, s{sT0} offen offset:{512*i} sc0", tag="extra")
        E.label("L_noinit")
    init_seen = set()
    def t_flagset():
        assert "wq11" not in init_seen
        E(f"s_cmp_lg_u32 s{sW}, 6")
        E("s_cbranch_scc1 L_noflag")
        E(f"s_and_b32 s{sT0}, s2, 31")
        E(f"s_cmp_lg_u32 s{sT0}, {a.zwg}")
        E("s_cbranch_scc1 L_noflag")
        E(f"v_mov_b32 v{slot_of['z3']}, 1")
        E(f"s_lshl_b32 s{sT0}, s{sB}, 2")
        E("s_mov_b64 exec, 1")
        E(f"buffer_store_dword v{slot_of['z3']}, off, {S4(sDB)}, s{sT0} sc1", tag="extra")
        E("s_mov_b64 exec, -1")
        E.label("L_noflag")

    def kload(f):
        def fn():
            E(f"buffer_load_dwordx4 {r4(alloc(f'k{f}'))}, v{vL16}, {S4(sK)}, s{sKO} offen{nt}", tag=f"k{f}")
            if f < 31: E(f"s_add_u32 s{sKO}, s{sKO}, 8192")
        return (f"k{f}", fn, True)
    def vload(f):
        def fn():
            E(f"buffer_load_dwordx4 {r4(alloc(f'v{f}'))}, v{vL16}, {S4(sV)}, s{sVO} offen{nt}", tag=f"v{f}")
            if f < 31: E(f"s_add_u32 s{sVO}, s{sVO}, 8192")
        return (f"v{f}", fn, True)
    def qload(f):
        def fn():
            s = sQ0 if (f % 2 == 0 or a.qp2) else sQ1
            E(f"buffer_load_dwordx4 {r4(alloc(f'wq{f}'))}, v{vWQ}, {S4(sWQ)}, s{s} offen{wnt}", tag=f"wq{f}")
            if a.qp2:
                if f < 19: E(f"s_add_u32 s{s}, s{s}, {32*8192}")
            elif f < 18: E(f"s_add_u32 s{s}, s{s}, 8192")
        return (f"wq{f}", fn, True)
    def oload(f):
        def fn():
            fp, cg = divmod(f, 5)
            E(f"buffer_load_dwordx4 {r4(alloc(f'wo{f}'))}, v{vWO}, {S4(sWO)}, s{sOO} offen offset:{cg*256}{wnt}", tag=f"wo{f}")
            if cg == 4 and fp < 3: E(f"s_add_u32 s{sOO}, s{sOO}, {8*1280}")
        return (f"wo{f}", fn, True)
    vFL = vWQ
    vTK = vQ + 3
    def fload():
        def fn():
            E(f"v_and_b32 v{vFL}, 7, v{vL}")
            E(f"v_lshlrev_b32 v{vFL}, 2, v{vFL}")
            E(f"buffer_load_dword v{vFL}, v{vFL}, {S4(sDB)}, 0 offen sc1", tag="flag")
        return ("flag", fn, False)
    TKL = QF
    def ticket():
        def fn():
            v = alloc("tk")
            E(f"v_mov_b32 v{v+1}, {TKL}")
            E(f"s_cmp_lg_u32 s{sW}, 0")
            E("s_cbranch_scc1 L_notk")
            E(f"v_mov_b32 v{v}, 1")
            E(f"s_and_b32 s{sTKO}, s2, 7")
            E(f"s_lshl_b32 s{sTKO}, s{sTKO}, 4")
            E("s_mov_b64 exec, 1")
            E(f"buffer_atomic_add v{v}, off, {S4(sDB)}, s{sTKO} offset:128 sc0", tag="extra")
            E("s_mov_b64 exec, -1")
            E.label("L_notk")
        return ("tk", fn, True)
    def l2pf_outer():
        def fn():
            vPF = vS + 13
            E(f"s_and_b32 s{sT0}, s2, 7")
            E(f"s_lshl_b32 s{sT0}, s{sT0}, 2")
            E(f"s_lshr_b32 s{sT0}, {a.rtab}, s{sT0}")
            E(f"s_and_b32 s{sT0}, s{sT0}, 15")
            E(f"s_lshr_b32 s{sT1}, s2, 3")
            E(f"s_mov_b32 s{sWF+2}, {640*3456}")
            E(f"s_mov_b32 s{sWF+3}, 0x20000")
            E(f"s_cmp_ge_u32 s{sT0}, 8")
            E("s_cbranch_scc1 L_l2b")
            E(f"s_cmp_ge_u32 s{sW}, 3")
            E("s_cbranch_scc1 L_nol2")
            E(f"s_mov_b32 s{sWF}, s16")
            E(f"s_and_b32 s{sWF+1}, s17, 0xffff")
            E(f"s_mul_i32 s{sT2}, s{sT0}, {9*128}")
            E(f"s_mul_i32 s{sT0}, s{sW}, {3*128}")
            E(f"s_add_u32 s{sT2}, s{sT2}, s{sT0}")
            E(f"s_mul_i32 s{sT1}, s{sT1}, {20*3456}")
            E(f"s_add_u32 s{sT2}, s{sT2}, s{sT1}")
            E(f"v_mul_u32_u24 v{vPF}, 43, v{vL}")
            E(f"v_lshrrev_b32 v{vPF}, 7, v{vPF}")
            E(f"v_mul_u32_u24 v{vPF}, {3456-384}, v{vPF}")
            E(f"v_lshl_add_u32 v{vPF}, v{vL}, 7, v{vPF}")
            E(f"s_mov_b32 exec_hi, 0xfffffff")
            E("s_branch L_l2go")
            E.label("L_l2b")
            E(f"s_cmp_ge_u32 s{sW}, 2")
            E("s_cbranch_scc1 L_nol2")
            E(f"s_mov_b32 s{sWF}, s18")
            E(f"s_and_b32 s{sWF+1}, s19, 0xffff")
            E(f"s_sub_u32 s{sT0}, s{sT0}, 8")
            E(f"s_lshl_b32 s{sT0}, s{sT0}, 1")
            E(f"s_add_u32 s{sT2}, s{sT0}, s{sW}")
            E(f"s_lshl_b32 s{sT2}, s{sT2}, 7")
            E(f"s_mul_i32 s{sT1}, s{sT1}, {54*1280}")
            E(f"s_add_u32 s{sT2}, s{sT2}, s{sT1}")
            E(f"v_mul_u32_u24 v{vPF}, 1280, v{vL}")
            E(f"s_mov_b32 exec_hi, 0x3fffff")
            E.label("L_l2go")
            E(f"buffer_load_dword v{vPF}, v{vPF}, {S4(sWF)}, s{sT2} offen", tag="extra")
            E("s_mov_b64 exec, -1")
            E.label("L_nol2")
        return fn
    t_l2pf = l2pf_outer()
    sPO, sPC, sPD = 21, 24, 25
    def t_spf0():
        E(f"s_and_b32 s{sT0}, s2, 7")
        E(f"s_lshl_b32 s{sT0}, s{sT0}, 2")
        E(f"s_lshr_b32 s{sT0}, {a.rtab}, s{sT0}")
        E(f"s_and_b32 s{sPC}, s{sT0}, 15")
        E(f"s_lshr_b32 s{sT1}, s2, 3")
        E(f"s_mov_b32 s{sWF+2}, {640*3456}")
        E(f"s_mov_b32 s{sWF+3}, 0x20000")
        E(f"s_mul_i32 s{sT2}, s{sT1}, 20")
        E(f"s_add_u32 s{sT2}, s{sT2}, s{sW}")
        E(f"s_mul_i32 s{sT2}, s{sT2}, 3456")
        E(f"s_mul_i32 s{sT0}, s{sPC}, 1152")
        E(f"s_add_u32 s{sT2}, s{sT2}, s{sT0}")
        E(f"s_mul_i32 s{sT3}, s{sT1}, 54")
        E(f"s_add_u32 s{sT3}, s{sT3}, s{sW}")
        E(f"s_mul_i32 s{sT3}, s{sT3}, 1280")
        E(f"s_sub_u32 s{sT0}, s{sPC}, 8")
        E(f"s_lshl_b32 s{sT0}, s{sT0}, 8")
        E(f"s_add_u32 s{sT3}, s{sT3}, s{sT0}")
        E(f"s_cmp_lt_u32 s{sPC}, 8")
        E(f"s_cselect_b32 s{sPO}, s{sT2}, s{sT3}")
        E(f"s_cselect_b32 s{sWF}, s16, s18")
        E(f"s_cselect_b32 s{sWF+1}, s17, s19")
        E(f"s_and_b32 s{sWF+1}, s{sWF+1}, 0xffff")
    def t_spf(part):
        def fn():
            E(f"s_cmp_lt_u32 s{sPC}, 8")
            E(f"s_cbranch_scc0 L_spb{part}")
            if part == 2:
                E(f"s_cmp_ge_u32 s{sW}, 4")
                E(f"s_cbranch_scc1 L_spe{part}")
            for ln in range(9 if not a.endpf & 1 else 0):
                for hf in range(a.sphalf):
                    E(f"s_buffer_load_dword s{sPD}, {S4(sWF)}, s{sPO} offset:{part*8*3456 + ln*128 + hf*64}")
            E(f"s_branch L_spe{part}")
            E.label(f"L_spb{part}")
            for k in (([0, 1, 2], [3, 4], [5, 6])[part] if not a.endpf & 2 else []):
                for ln in range(2):
                    for hf in range(a.sphalf):
                        E(f"s_buffer_load_dword s{sPD}, {S4(sWF)}, s{sPO} offset:{k*8*1280 + ln*128 + hf*64}")
            E.label(f"L_spe{part}")
        return fn
    sEO, sEM = 14, 15
    sES = 36
    def t_epf_prep():
        v = alloc("epf")
        E(f"s_and_b32 s{sT0}, s2, 7")
        E(f"s_lshl_b32 s{sT0}, s{sT0}, 2")
        E(f"s_lshr_b32 s{sT0}, {a.rtab}, s{sT0}")
        E(f"s_and_b32 s{sT0}, s{sT0}, 15")
        E(f"s_lshr_b32 s{sT1}, s2, 3")
        E(f"s_mul_i32 s{sT2}, s{sT1}, {20*3456}")
        E(f"s_mul_i32 s{sT3}, s{sT0}, 1152")
        E(f"s_add_u32 s{sT2}, s{sT2}, s{sT3}")
        E(f"s_mul_i32 s{sT3}, s{sT1}, {54*1280}")
        E(f"s_sub_u32 s{sT1}, s{sT0}, 8")
        E(f"s_lshl_b32 s{sT1}, s{sT1}, 8")
        E(f"s_add_u32 s{sT3}, s{sT3}, s{sT1}")
        E(f"s_mul_i32 s{sT1}, s{sW}, 23")
        E(f"v_add_u32 v{v}, s{sT1}, v{vL}")
        E(f"v_mul_u32_u24 v{v+1}, 7282, v{v}")
        E(f"v_lshrrev_b32 v{v+1}, 16, v{v+1}")
        E(f"v_mul_u32_u24 v{v+1}, {3456-1152}, v{v+1}")
        E(f"v_lshl_add_u32 v{v+1}, v{v}, 7, v{v+1}")
        E(f"s_mul_i32 s{sT1}, s{sW}, 14")
        E(f"v_add_u32 v{v}, s{sT1}, v{vL}")
        E(f"v_lshrrev_b32 v{v+2}, 1, v{v}")
        E(f"v_mul_u32_u24 v{v+2}, {1280-256}, v{v+2}")
        E(f"v_lshl_add_u32 v{v+2}, v{v}, 7, v{v+2}")
        E(f"s_cmp_lt_u32 s{sT0}, 8")
        E(f"s_cselect_b32 s{sEO}, s{sT2}, s{sT3}")
        E(f"s_mov_b32 s{sEM}, {(1 << 14) - 1 if a.endpf & 2 else 1}")
        E(f"s_cselect_b32 s{sEM}, {(1 << 23) - 1 if a.endpf & 1 else 1}, s{sEM}")
        E(f"s_cselect_b32 s{sES}, s16, s18")
        E(f"s_cselect_b32 s{sES+1}, s17, s19")
        E(f"s_cselect_b64 vcc, -1, 0")
        E(f"s_and_b32 s{sES+1}, s{sES+1}, 0xffff")
        E(f"s_mov_b32 s{sES+2}, {640*3456}")
        E(f"s_mov_b32 s{sES+3}, 0x20000")
        E(f"v_cndmask_b32 v{v}, v{v+2}, v{v+1}, vcc")
    def epf():
        def fn():
            v = slot_of["epf"]
            E(f"s_mov_b32 exec_lo, s{sEM}")
            E(f"s_mov_b32 exec_hi, 0")
            E(f"buffer_load_dword v{v+3}, v{v}, {S4(sES)}, s{sEO} offen", tag="epf")
            E("s_mov_b64 exec, -1")
        return ("epf", fn, False)
    loads = []
    qi = 0
    for f in range(a.nk0, 32):
        want = min(20, (f - a.nk0 + 1) * 20 // (a.qspan - a.nk0 + 1) + 1)
        while qi < want:
            loads.append(qload(qi)); qi += 1
        loads.append(kload(f))
    while qi < 20:
        loads.append(qload(qi)); qi += 1
    nmid = 20 - a.otail
    oi = 0
    for f in range(32):
        loads.append(vload(f))
        if f == 16: loads.append(fload())
        if f == a.tkpos and a.dyn: loads.append(ticket())
        want = max(0, (f + 1 - a.ostart)) * nmid // (32 - a.ostart)
        while oi < want:
            loads.append(oload(oi)); oi += 1
    while oi < 20:
        loads.append(oload(oi)); oi += 1
    if a.endpf and a.epos >= 0: loads.insert(len(loads) - a.epos, epf())

    vRW, vRR = vXS, vXC
    def t_setup():
        E(f"s_mov_b32 s{sSPIN}, 0x40000")
        E(f"s_mov_b32 s{sLO8}, 0x00ff00ff")
        E(f"s_mov_b32 s{sLO8+1}, 0x00ff00ff")
        E(f"v_mul_u32_u24 v{vWO}, 40960, v{vJ}")
        E(f"v_and_b32 v{vB0}, 1, v{vN}")
        E(f"v_lshrrev_b32 v{vB0+1}, 1, v{vN}")
        E(f"v_lshl_add_u32 v{vWO}, v{vN}, 4, v{vWO}")
        E(f"v_lshlrev_b32 v{vB0}, 4, v{vB0}")
        E(f"v_mov_b32 v{vB0+2}, 0xffff")
        E(f"v_lshlrev_b32 v{vB0}, v{vB0}, v{vB0+2}")
        E(f"v_and_b32 v{vB0+1}, 3, v{vB0+1}")
        for w in range(4):
            E(f"v_cmp_eq_u32 vcc, {w}, v{vB0+1}")
            E(f"v_cndmask_b32 v{vM+w}, 0, v{vB0}, vcc")
        E(f"v_lshrrev_b32 v{vB0}, 3, v{vN}")
        E(f"s_lshl_b32 s{sT0}, s{sW}, 1")
        E(f"v_add_u32 v{vB0}, s{sT0}, v{vB0}")
        E(f"v_mul_u32_u24 v{vRW}, 528, v{vB0}")
        E(f"v_and_b32 v{vB0}, 7, v{vN}")
        E(f"v_lshl_add_u32 v{vRW}, v{vB0}, 6, v{vRW}")
        E(f"v_lshl_add_u32 v{vRW}, v{vJ}, 4, v{vRW}")
        E(f"v_mul_u32_u24 v{vRR}, 528, v{vN}")
        E(f"v_lshl_add_u32 v{vRR}, v{vJ}, 4, v{vRR}")
        E(f"s_lshl_b32 s{sT0}, s{sW}, 6")
        E(f"v_add_u32 v{vRR}, s{sT0}, v{vRR}")
    f0 = 8
    vMEAN, vRCP = 18, 19
    def t_ln1a():
        stamp(1)
        unpack10(E, xs_raw, f0)
        ln_stats(E, f0, 20, 21, 22, vMEAN, vRCP)
    def t_ln1b():
        if not a.qp2: unpack10(E, xc_raw, f0)
        for i in range(10): E(f"v_sub_f32 v{f0+i}, v{f0+i}, v{vMEAN}")
        bf16r_many(E, range(f0, f0 + 10))
        for i in range(10): E(f"v_mul_f32 v{f0+i}, v{f0+i}, v{vRCP}")
        if not a.qp2:
            for i in range(10): E(f"v_cvt_pk_bf16_f32 v{vS+i}, v{f0+i}, v{f0+i}")
            return
        for i in range(5): E(f"v_cvt_pk_bf16_f32 v{vS+i}, v{f0+2*i}, v{f0+2*i+1}")
        E(f"s_mul_i32 s{sT0}, s{sW}, 1536")
        E(f"v_mul_u32_u24 v20, 20, v{vL}")
        E(f"v_add_u32 v20, s{sT0}, v20")
        for i in range(5): E(f"ds_write_b32 v20, v{vS+i} offset:{WT+4*i}")
        E(f"v_lshrrev_b32 v21, 3, v{vN}")
        E(f"v_lshlrev_b32 v21, 6, v21")
        E(f"v_lshl_add_u32 v21, v{vJ}, 1, v21")
        E(f"s_mul_i32 s{sT0}, s{sW}, 1544")
        E(f"v_add_u32 v21, s{sT0}, v21")
        E("s_waitcnt lgkmcnt(0)")
        for i in range(10): E(f"ds_read_u16 v{vS+i}, v21 offset:{WT+128*i}")
        E("s_waitcnt lgkmcnt(0)")
        for i in range(10): E(f"v_lshl_or_b32 v{vS+i}, v{vS+i}, 16, v{vS+i}")
    def bfrag(dst, src):
        for w in range(4): E(f"v_and_b32 v{dst+w}, v{src}, v{vM+w}")
    def t_pair(t, pre):
        def fn():
            B = vB0 if t % 2 == 0 else vB1
            bfrag(B, vS + t)
            c1 = "0" if t == 0 else r4(vD1)
            c2 = "0" if t == 0 else r4(vD2)
            E(f"v_mfma_f32_16x16x32_bf16 {r4(vD1)}, {r4(slot_of[f'{pre}{2*t}'])}, {r4(B)}, {c1}")
            E(f"v_mfma_f32_16x16x32_bf16 {r4(vD2)}, {r4(slot_of[f'{pre}{2*t+1}'])}, {r4(B)}, {c2}")
        return fn
    def red_a():
        for r in range(4):
            E(f"v_cndmask_b32 v{vD1+r}, v{vD2+r}, v{vD1+r}, s[{sLO8}:{sLO8+1}]")
        E(f"ds_write_b128 v{vRW}, {r4(vD1)} offset:{RED}")
    def t_bar():
        E("s_waitcnt lgkmcnt(0)")
        E("s_barrier")
    def red_b(dst):
        E(f"ds_read_b128 {r4(dst)}, v{vRR} offset:{RED}")
        E("s_waitcnt lgkmcnt(0)")
        row_reduce(E, [dst + i for i in range(4)])
        for i in range(4): E(f"v_cvt_pk_bf16_f32 v{dst+i}, v{dst+i}, v{dst+i}")
    def t_qr2():
        E(f"v_lshlrev_b32 v{vB1}, 6, v{vJ}")
        E(f"s_lshl_b32 s{sT0}, s{sW}, 1")
        E(f"v_add_u32 v{vB1}, s{sT0}, v{vB1}")
        red_b(vB0)
        E(f"s_mov_b32 exec_lo, 0x00010001")
        E(f"s_mov_b32 exec_hi, 0x00010001")
        for i in range(4): E(f"ds_write_b16 v{vB1}, v{vB0+i} offset:{QF+16*i}")
        E("s_mov_b64 exec, -1")
        E(f"v_lshlrev_b32 v{vB1}, 4, v{vN}")
    def t_qr3():
        E(f"ds_read_b128 {r4(vQ)}, v{vB1} offset:{QF}")
        E("s_waitcnt lgkmcnt(0)")
        stamp(2)
    def t_k2(t):
        def fn():
            ks = [slot_of[f"k{2*t+i}"] for i in range(4)]
            acc = [vB0 + i for i in range(4)]
            for i in range(4):
                for u in range(4):
                    E(f"v_dot2_f32_bf16 v{acc[u]}, v{ks[u]+i}, v{vQ+i}, {'0' if i == 0 else 'v%d' % acc[u]}")
            s0, s1 = vS + t, vS + t + 1
            E(f"v_add_f32_dpp v{s0}, v{acc[0]}, v{acc[0]} row_ror:8 row_mask:0xf bank_mask:0x3")
            E(f"v_add_f32_dpp v{s0}, v{acc[1]}, v{acc[1]} row_ror:8 row_mask:0xf bank_mask:0xc")
            E(f"v_add_f32_dpp v{s1}, v{acc[2]}, v{acc[2]} row_ror:8 row_mask:0xf bank_mask:0x3")
            E(f"v_add_f32_dpp v{s1}, v{acc[3]}, v{acc[3]} row_ror:8 row_mask:0xf bank_mask:0xc")
            for mod in ("row_half_mirror", "quad_perm:[1,0,3,2]", "quad_perm:[2,3,0,1]"):
                for s in (s0, s1):
                    E(f"v_add_f32_dpp v{s}, v{s}, v{s} {mod} row_mask:0xf bank_mask:0xf")
            bf16r_many(E, [s0, s1])
            E(f"v_mul_f32 v{s0}, {SCALE:#x}, v{s0}")
            E(f"v_mul_f32 v{s1}, {SCALE:#x}, v{s1}")
            bf16r_many(E, [s0, s1])
        return fn
    m, l = vD1, vD1 + 1
    def t_sm1():
        E(f"v_max3_f32 v{m}, v{vS}, v{vS+1}, v{vS+2}")
        for i in range(3, 15, 2): E(f"v_max3_f32 v{m}, v{m}, v{vS+i}, v{vS+i+1}")
        E(f"v_max_f32 v{m}, v{m}, v{vS+15}")
        for i in range(16): E(f"v_sub_f32 v{vS+i}, v{vS+i}, v{m}")
        for i in range(16): E(f"v_mul_f32 v{vS+i}, {LOG2E:#x}, v{vS+i}")
        for i in range(16): E(f"v_exp_f32 v{vS+i}, v{vS+i}")
        E(f"v_add_f32 v{l}, v{vS}, v{vS+1}")
        E(f"v_add_f32 v{vB0}, v{vS+2}, v{vS+3}")
        for i in range(4, 16, 2):
            E(f"v_add_f32 v{l}, v{l}, v{vS+i}")
            E(f"v_add_f32 v{vB0}, v{vB0}, v{vS+i+1}")
        E(f"v_add_f32 v{l}, v{l}, v{vB0}")
        E(f"v_and_b32 v{vB0}, 56, v{vL}")
        E(f"s_lshl_b32 s{sT0}, s{sW}, 6")
        E(f"v_add_u32 v{vB0}, s{sT0}, v{vB0}")
        E(f"ds_write_b64 v{vB0}, {r2(m)} offset:{ML}")
        E(f"v_lshlrev_b32 v{vB0}, 3, v{vL}")
        stamp(3)
    def t_smb():
        E("s_waitcnt lgkmcnt(0)")
        E("s_barrier")
        stamp(4)
    def t_sm2():
        mg, lg = vD2, vD2 + 1
        E(f"ds_read_b64 {r2(mg)}, v{vB0} offset:{ML}")
        E("s_waitcnt lgkmcnt(0)")
        E(f"v_mov_b32 v{vB0}, v{mg}")
        wave_reduce(E, vB0, sT0, "v_max_f32")
        E(f"v_subrev_f32 v{mg}, s{sT0}, v{mg}")
        E(f"v_subrev_f32 v{m}, s{sT0}, v{m}")
        E(f"v_mul_f32 v{mg}, {LOG2E:#x}, v{mg}")
        E(f"v_mul_f32 v{m}, {LOG2E:#x}, v{m}")
        E(f"v_exp_f32 v{mg}, v{mg}")
        E(f"v_exp_f32 v{m}, v{m}")
        E(f"v_mul_f32 v{lg}, v{lg}, v{mg}")
        wave_reduce(E, lg, sT1)
        E(f"v_rcp_f32 v{l}, s{sT1}")
        E(f"v_mul_f32 v{m}, v{m}, v{l}")
        for i in range(16): E(f"v_mul_f32 v{vS+i}, v{vS+i}, v{m}")
        for i in range(16): E(f"v_cvt_pk_bf16_f32 v{vS+i}, v{vS+i}, v{vS+i}")
    Bs = [vB0, vB1, vD1, vD2]
    vA, vA2, vA3 = vQ, vQ + 1, vQ + 2
    vFL2 = vD2 + 2
    vA4 = vQ + 3
    sVA = 22
    def t_pre_tail():
        E(f"v_and_b32 v{vA}, 7, v{vL}")
        E(f"v_mul_u32_u24 v{vA}, 80, v{vA}")
        E(f"v_lshl_add_u32 v{vA}, v{vJ}, 4, v{vA}")
        E(f"s_mul_i32 s{sT0}, s{sW}, {YPS}")
        E(f"v_add_u32 v{vA}, s{sT0}, v{vA}")
        for k, (dst, add) in enumerate(((vA2, 0), (vA3, 480))):
            E(f"s_mul_i32 s{sT0}, s{sW}, 60")
            E(f"s_add_u32 s{sT0}, s{sT0}, {add}")
            E(f"v_mul_u32_u24 v{vA4}, 15, v{vJ}")
            E(f"v_add3_u32 v{vA4}, v{vA4}, v{vN}, s{sT0}")
            if k == 1:
                E(f"s_mov_b32 s{sT1}, 640")
                E(f"v_cmp_gt_u32 s[{sVA}:{sVA+1}], s{sT1}, v{vA4}")
            E(f"v_min_u32 v{vA4}, 639, v{vA4}")
            E(f"v_lshrrev_b32 v{dst}, 7, v{vA4}")
            E(f"v_mul_u32_u24 v{dst}, 640, v{dst}")
            E(f"v_and_b32 v{vFL2}, 7, v{vA4}")
            E(f"v_mul_u32_u24 v{vFL2}, 80, v{vFL2}")
            E(f"v_add_u32 v{dst}, v{dst}, v{vFL2}")
            E(f"v_bfe_u32 v{vFL2}, v{vA4}, 3, 4")
            E(f"v_lshl_add_u32 v{dst}, v{vFL2}, 2, v{dst}")
        E(f"v_lshlrev_b32 v{vA4}, 2, v{vL}")
    def t_role():
        E(f"s_and_b32 s{sT0}, s2, 7")
        E(f"s_lshl_b32 s{sT0}, s{sT0}, 2")
        E(f"s_lshr_b32 s{sT0}, {a.rtab}, s{sT0}")
        E(f"s_and_b32 s{sT0}, s{sT0}, 15")
        if a.dyn: E(f"s_mov_b32 s{sT1}, s{sTKO}")
        else: E(f"s_lshr_b32 s{sT1}, s2, 3")
        E(f"s_mul_i32 s{sT2}, s{sT0}, 9")
        E(f"s_add_u32 s{sT2}, s{sT2}, s{sT1}")
        E(f"s_add_u32 s{sT2}, s{sT2}, {NF2}")
        E(f"s_cmp_lt_u32 s{sT1}, 9")
        E(f"s_cselect_b32 s{sT2}, s{sT2}, 255")
        E(f"s_sub_u32 s{sT3}, s{sT0}, 8")
        E(f"s_mul_i32 s{sT3}, s{sT3}, {8 // NC}")
        E(f"s_add_u32 s{sT3}, s{sT3}, s{sT1}")
        E(f"s_cmp_lt_u32 s{sT1}, {8 // NC}")
        E(f"s_cselect_b32 s{sT3}, s{sT3}, 255")
        E(f"s_cmp_lt_u32 s{sT0}, 8")
        E(f"s_cselect_b32 s{sTILE}, s{sT2}, s{sT3}")
    def t_flag():
        E(f"v_cmp_eq_u32 vcc, 0, v{vFL}")
        E.flush()
        E("s_cbranch_vccz L_flagok")
        E.label("L_flag")
        E("s_sleep 2")
        E(f"v_and_b32 v{vFL}, 7, v{vL}")
        E(f"v_lshlrev_b32 v{vFL}, 2, v{vFL}")
        E(f"buffer_load_dword v{vFL}, v{vFL}, {S4(sDB)}, 0 offen sc1", tag="extra")
        E("s_waitcnt vmcnt(0)")
        E(f"v_cmp_eq_u32 vcc, 0, v{vFL}")
        E.flush()
        E("s_cbranch_vccz L_flagok")
        spin("L_flagok")
        E("s_branch L_flag")
        E.label("L_flagok")
    sDO, sDL = 21, 24
    vDM1 = vFL
    def t_dmaprep():
        tmp = alloc("tmpd")
        E(f"s_mov_b32 s{sWF}, s16")
        E(f"s_and_b32 s{sWF+1}, s17, 0xffff")
        E(f"s_mov_b32 s{sWF+2}, {640*3456}")
        E(f"s_mov_b32 s{sWF+3}, 0x20000")
        E(f"v_lshrrev_b32 v{vDM1}, 3, v{vL}")
        E(f"v_mul_u32_u24 v{vDM1}, 3456, v{vDM1}")
        E(f"v_and_b32 v{tmp}, 1, v{vJ}")
        E(f"v_lshlrev_b32 v{tmp}, 2, v{tmp}")
        E(f"s_and_b32 s{sT0}, s{sW}, 1")
        E(f"s_lshl_b32 s{sT1}, s{sT0}, 1")
        E(f"v_xor_b32 v{tmp}, s{sT1}, v{tmp}")
        E(f"v_xor_b32 v{tmp}, v{vL}, v{tmp}")
        E(f"v_and_b32 v{tmp}, 7, v{tmp}")
        E(f"v_lshl_add_u32 v{vDM1}, v{tmp}, 4, v{vDM1}")
        E(f"s_lshr_b32 s{sT1}, s{sW}, 1")
        E(f"s_mul_i32 s{sT1}, s{sT1}, 15")
        E(f"s_lshl_b32 s{sT0}, s{sT0}, 3")
        E(f"s_add_u32 s{sT1}, s{sT1}, s{sT0}")
        E(f"s_mul_i32 s{sT1}, s{sT1}, 3456")
        E(f"s_mov_b32 s{sDO}, s{sT1}")
        E(f"s_lshl_b32 s{sDL}, s{sW}, 10")
        E(f"s_add_u32 s{sDL}, s{sDL}, {WT}")
    def t_ypw():
        stamp(7)
        E(f"s_mov_b64 exec, s[{sLO8}:{sLO8+1}]")
        for cg in range(5):
            E(f"ds_write_b128 v{vA}, {r4(slot_of[f'y{cg}'])} offset:{YP+cg*640}")
        E("s_mov_b64 exec, -1")
    def t_or1():
        stamp(5)
        red_a()
        if a.dyn:
            E(f"s_cmp_eq_u32 s{sW}, 0")
            E("s_cselect_b32 exec_lo, 1, 0")
            E("s_mov_b32 exec_hi, 0")
            E(f"ds_write_b32 v{slot_of['tk']+1}, v{slot_of['tk']}")
            E("s_mov_b64 exec, -1")
        t_bar()
        stamp(6)
    def t_or2():
        if a.dyn: E(f"ds_read_b32 v{slot_of['tk']}, v{slot_of['tk']+1}")
        red_b(vS)
        bfrag(Bs[0], vS)
        for cg in range(5): alloc(f"y{cg}")
    def t_y(f):
        def fn():
            fp, cg = divmod(f, 5)
            y = slot_of[f"y{cg}"]
            c = "0" if fp == 0 else r4(y)
            E(f"v_mfma_f32_16x16x32_bf16 {r4(y)}, {r4(slot_of[f'wo{f}'])}, {r4(Bs[fp])}, {c}")
            if fp < 3 and cg < 4: E(f"v_and_b32 v{Bs[fp+1]+cg}, v{vS+fp+1}, v{vM+cg}")
            if a.dyn and f == 4: E(f"v_readfirstlane_b32 s{sTKO}, v{slot_of['tk']}")
            if a.dyn and f == 9: t_role()
        return fn
    tasks = []
    tasks.append(Task(t_setup))
    tasks.append(Task(t_ln1a, ["xs"], cost=3))
    tasks.append(Task(t_ln1b, [] if a.qp2 else ["xc"], cost=2))
    for t in range(10):
        tasks.append(Task(t_pair(t, "wq"), [f"wq{2*t+1}"], frees=[f"wq{2*t}", f"wq{2*t+1}"]))
        if t == 1: tasks.append(Task(t_init, atomic=True))
        if t == 5: tasks.append(Task(t_flagset, ["wq11"], frees=["z0", "z1", "z2", "z3"], atomic=True))
        if t == a.l2pf and not a.spf and not a.nodma: tasks.append(Task(t_l2pf, atomic=True))
        if a.spf and a.nodma < 2:
            if t == 0: tasks.append(Task(t_spf0, atomic=True))
            if t in (2, 4, 6): tasks.append(Task(t_spf(t // 2 - 1), atomic=True))
    tasks.append(Task(red_a))
    tasks.append(Task(t_bar, barrier=a.bd1))
    tasks.append(Task(t_qr2))
    tasks.append(Task(t_bar, barrier=a.bd2))
    tasks.append(Task(t_qr3))
    for t in range(0, 16, 2):
        tasks.append(Task(t_k2(t), [f"k{2*t+3}"], frees=[f"k{2*t+i}" for i in range(4)], cost=2))
    tasks.append(Task(t_sm1, cost=2))
    tasks.append(Task(t_smb, barrier=a.bd3))
    tasks.append(Task(t_sm2, cost=2))
    tasks.append(Task(t_pre_tail))
    if not a.dyn: tasks.append(Task(t_role, atomic=True))
    if a.endpf: tasks.append(Task(t_epf_prep, atomic=True))
    for t in range(16):
        tasks.append(Task(t_pair(t, "v"), [f"v{2*t+1}"], frees=[f"v{2*t}", f"v{2*t+1}"], cost=0.5))
        if t == 9:
            tasks.append(Task(t_flag, ["flag"], atomic=True))
            tasks.append(Task(t_dmaprep, frees=["tmpd"]))
    tasks.append(Task(t_or1, barrier=99))
    tasks.append(Task(t_or2))
    for f in range(20): tasks.append(Task(t_y(f), [f"wo{f}"], cost=0.25))
    tasks.append(Task(t_ypw))

    issued = {"xs", "xc"} | {f"k{f}" for f in range(a.nk0)}
    pend = deque(tasks)
    def ready(t): return all(n in issued and n not in E.vm for n in t.needs)
    def start(t):
        if t.q is None:
            for n in t.needs:
                assert n in issued, n
                if n in E.vm: E.wait_vm(n)
            t.q = E.record(t.fn)
    def step(t, budget):
        start(t)
        n = 0
        masked = False
        while t.q and (t.atomic or masked or n < budget):
            it = t.q.popleft(); E.play(it); n += 1
            if it[0] == "i" and "exec" in it[1].split(",")[0]:
                masked = not it[1].endswith("exec, -1")
        if not t.q:
            for x in t.frees: release(x)
        return n
    def run(t):
        step(t, 10**9)
    D = a.depth
    for i, (tag, fn, needs_slot) in enumerate(loads):
        while needs_slot and not free:
            run(pend.popleft())
        if tag == "epf":
            while any(t.fn is t_epf_prep for t in pend): run(pend.popleft())
            while pend[0].q is not None: run(pend.popleft())
        if tag == "tk":
            while pend[0].q is not None: run(pend.popleft())
        lim = 63 if i < a.first else D
        if len(E.vm) >= lim:
            E(f"s_waitcnt vmcnt({lim-1})")
            E.vm = E.vm[len(E.vm) - (lim - 1):]
        fn(); issued.add(tag)
        if i + 1 < a.first: continue
        budget = a.budget
        while pend and budget > 0 and (pend[0].q is not None or ready(pend[0])):
            if pend[0].barrier > 0:
                pend[0].barrier -= 1
                break
            budget -= step(pend[0], budget)
            if not pend[0].q: pend.popleft()
    while pend: run(pend.popleft())
    assert set(E.vm) <= {"epf"}, E.vm
    E.vm = []
    E(f"s_mul_i32 s{sT0}, s{sB}, {HS}")
    E(f"s_lshl_b32 s{sT1}, s{sW}, 8")
    E(f"s_add_u32 s{sT0}, s{sT0}, s{sT1}")
    E(f"s_mov_b32 s{sT2}, 0x80008000")
    E(f"s_mov_b32 s{sT3}, 0x80008000")
    E("s_waitcnt lgkmcnt(0)")
    E("s_barrier")
    stamp(8)
    vP = vS
    for k, ad in enumerate((vA2, vA3)):
        for p in range(4):
            E(f"ds_read2st64_b32 {r2(vP+8*k+2*p)}, v{ad} offset0:{YP//256+26*p} offset1:{YP//256+26*p+13}")
    for k in range(2):
        b = vP + 8 * k
        if not a.ts: E(f"s_waitcnt lgkmcnt({4 if k == 0 else 0})")
        else: E("s_waitcnt lgkmcnt(0)")
        for st in (4, 2, 1):
            for p in range(st):
                E(f"v_add_f32 v{b+p}, v{b+p}, v{b+p+st}")
        if k == 1: E(f"v_cndmask_b32 v{b}, 0, v{b}, s[{sVA}:{sVA+1}]")
        E(f"v_cndmask_b32 v{b}, v{b}, 1.0, s[{sT2}:{sT3}]")
        if k == 1:
            E(f"s_cmp_ge_u32 s{sW}, 3")
            E("s_cbranch_scc1 L_arr")
        E(f"buffer_atomic_add_f32 v{b}, v{vA4}, {S4(sWS)}, s{sT0} offen offset:{2048*k}", tag="extra")
    E.label("L_arr")
    stamp(9)
    if a.endpf and a.epos < 0: epf()[1]()
    if a.endpf: assert not (128 <= slot_of["epf"] - vF + 3 < 172), slot_of["epf"]
    E(f"s_cmp_ge_u32 s{sTILE}, {NF2 + NF1}")
    E("s_cbranch_scc1 L_fin")
    E(f"s_mov_b32 s{sWF+2}, {640*3456}")
    E(f"s_mov_b32 s{sWF+3}, 0x20000")
    E(f"s_cmp_lt_u32 s{sTILE}, {NF2}")
    E("s_cbranch_scc1 L_ffn2")

    vW = vF
    E(f"s_mov_b32 s{sROLE}, 1")
    E(f"s_sub_u32 s{sTILE}, s{sTILE}, {NF2}")
    E(f"s_mov_b32 s{sWF}, s16")
    E(f"s_and_b32 s{sWF+1}, s17, 0xffff")
    vDM, vX0 = vB0, vB0 + 1
    E(f"s_lshl_b32 s{sT0}, s{sTILE}, 7")
    E(f"s_add_u32 s{sDO}, s{sDO}, s{sT0}")
    xq = [vF + 172, vF + 174, vF + 176]
    if a.endpf: assert not (172 <= slot_of["epf"] - vF + 3 < 180)
    E(f"v_lshrrev_b32 v{vX0}, 2, v{vL}")
    E(f"v_mul_u32_u24 v{vX0}, 30, v{vX0}")
    E(f"v_and_b32 v{vX0+1}, 3, v{vL}")
    E(f"v_lshl_add_u32 v{vX0}, v{vX0+1}, 3, v{vX0}")
    E(f"s_mul_i32 s{sT0}, s{sW}, 1280")
    for i in range(3):
        E(f"buffer_load_dwordx2 {r2(xq[i])}, v{vX0}, {S4(sX)}, s{sT0} offen offset:{480*i}", tag="extra")
    if a.abar: E("s_barrier")
    stamp(10)
    late = True
    for t in range(11 if not a.nodma else 0):
        E(f"s_mov_b32 m0, s{sDL}")
        E(f"buffer_load_dwordx4 v{vDM1}, {S4(sWF)}, s{sDO} offen{fnt} lds", tag="extra")
        if t < 10:
            E(f"s_add_u32 s{sDO}, s{sDO}, {60*3456}")
            E(f"s_add_u32 s{sDL}, s{sDL}, 8192")
    if a.ts == 2: stamp(1)
    hb = vF + 88
    ac = vF + 136
    xk = vF + 148
    hn = vF + 160
    for i in range(12): E(f"v_mov_b32 v{hn+i}, 0")
    for i in range(8, 11): E(f"v_mov_b32 v{ac+i}, 0")
    E(f"v_mov_b32 v{ac+11}, 0x42000000")
    vA = vB1
    E(f"v_lshlrev_b32 v{vA+2}, 3, v{vL}")
    E(f"s_mul_i32 s{sT1}, s{sW}, {HNS}")
    E(f"v_add_u32 v{vA+2}, s{sT1}, v{vA+2}")
    vTR1 = vQ
    E(f"v_lshlrev_b32 v{vTR1}, 10, v{vJ}")
    E(f"v_lshrrev_b32 v{vDM}, 2, v{vN}")
    E(f"v_lshl_add_u32 v{vTR1}, v{vDM}, 7, v{vTR1}")
    E(f"v_and_b32 v{vDM}, 2, v{vDM}")
    E(f"v_and_b32 v{vX0}, 1, v{vJ}")
    E(f"v_or_b32 v{vDM}, v{vDM}, v{vX0}")
    E(f"s_and_b32 s{sT0}, s{sW}, 3")
    E(f"v_xor_b32 v{vDM}, s{sT0}, v{vDM}")
    E(f"v_lshl_add_u32 v{vTR1}, v{vDM}, 5, v{vTR1}")
    E(f"v_and_b32 v{vDM}, 3, v{vN}")
    E(f"v_lshl_add_u32 v{vTR1}, v{vDM}, 3, v{vTR1}")
    E(f"v_add_u32 v{vTR1}, {WT}, v{vTR1}")
    E(f"v_add_u32 v{vTR1+1}, {11*4096}, v{vTR1}")
    E(f"v_and_b32 v{vA+3}, 7, v{vL}")
    E(f"v_mul_u32_u24 v{vA+3}, {HNS}, v{vA+3}")
    E(f"v_lshl_add_u32 v{vA+3}, v{vJ}, 4, v{vA+3}")
    E(f"v_lshrrev_b32 v{vDM}, 3, v{vN}")
    E(f"v_lshl_add_u32 v{vA+3}, v{vDM}, 6, v{vA+3}")
    E(f"v_lshlrev_b32 v{vA}, 5, v{vN}")
    E(f"v_lshl_add_u32 v{vA}, v{vJ}, 3, v{vA}")
    E(f"s_lshl_b32 s{sT3}, s{sTILE}, 2")
    E(f"s_add_u32 s{sT3}, s{sT3}, s{sW}")
    E(f"s_lshl_b32 s{sT3}, s{sT3}, 8")
    E(f"s_mul_i32 s{sT2}, s{sW}, {HS}")
    sM3, sCL = 12, 14
    E(f"s_mov_b32 s{sM3}, 0x77777777")
    E(f"s_mov_b32 s{sM3+1}, 0x77777777")
    E(f"s_mov_b32 s{sCL}, 0x88888888")
    E(f"s_mov_b32 s{sCL+1}, 0x88888888")
    def accload():
        E(f"buffer_load_dwordx4 {r4(ac)}, v{vL16}, {S4(sWS)}, s{sT2} offen sc1", tag="extra")
        E(f"buffer_load_dwordx4 {r4(ac+4)}, v{vL16}, {S4(sWS)}, s{sT2} offen offset:1024 sc1", tag="extra")
        E("s_mov_b32 exec_hi, 0xffff")
        E(f"buffer_load_dwordx4 {r4(ac+8)}, v{vL16}, {S4(sWS)}, s{sT2} offen offset:2048 sc1", tag="extra")
        E("s_mov_b32 exec_hi, -1")
    if a.ts == 2: stamp(2)
    E("s_waitcnt vmcnt(%d)" % (0 if late else (2 if a.endpf and a.epos < 0 else 1)))
    if a.ts == 2: stamp(3)
    for i in range(6):
        E(f"v_lshlrev_b32 v{xk+2*i}, 16, v{xq[i//2]+i%2}")
        E(f"v_and_b32 v{xk+2*i+1}, 0xffff0000, v{xq[i//2]+i%2}")
    sLO_, sHI_, sONE = 20, 21, 24
    vNI, vKM = hn + 6, hn + 7
    if a.ln2:
        E(f"s_mov_b32 s{sLO_}, 0x00003f80")
        E(f"s_mov_b32 s{sHI_}, 0x3f800000")
        E(f"s_mov_b32 s{sONE}, 0x3f803f80")
        E(f"v_mov_b32 v{vNI}, 0xbacccccd")
        E(f"v_mov_b32 v{vKM}, -1")
        E(f"v_mov_b32 v{vKM+1}, -1")
        E(f"v_mov_b32 v{vKM+2}, -1")
        E("s_mov_b32 exec_lo, 0")
        E(f"s_mov_b32 exec_hi, {0xffffffff ^ ((1 << 11) - 1):#x}")
        E(f"v_mov_b32 v{xk+8}, 0"); E(f"v_mov_b32 v{xk+9}, 0"); E(f"v_mov_b32 v{vKM+1}, 0")
        E(f"s_mov_b32 exec_hi, {0xffffffff ^ ((1 << 10) - 1):#x}")
        E(f"v_mov_b32 v{xk+10}, 0"); E(f"v_mov_b32 v{xk+11}, 0"); E(f"v_mov_b32 v{vKM+2}, 0")
        E(f"s_mov_b64 exec, s[{sCL}:{sCL+1}]")
        for i in (3, 7, 11): E(f"v_mov_b32 v{xk+i}, 0xc2000000")
        E(f"v_mov_b32 v{vKM}, 0xffff")
        E(f"v_and_b32 v{vKM+2}, 0xffff, v{vKM+2}")
        E("s_mov_b32 exec_lo, 0")
        E("s_mov_b32 exec_hi, 0xffff0000")
        E(f"v_mov_b32 v{xk+11}, 0xc2000000")
        E("s_mov_b64 exec, -1")
    E("s_barrier")
    if a.ts == 2: stamp(4)
    thr = struct.unpack("<I", struct.pack("<f", float(a.gate)))[0]
    E(f"s_mul_i32 s{sT4}, s{sTILE}, {a.gstep}")
    E(f"s_and_b32 s{sT4}, s{sT4}, 0xffffffc0")
    E(f"s_add_u32 s{sT4}, s{sT4}, s{sT2}")
    if a.spec: accload()
    else: E(f"buffer_load_dword v{vD2}, off, {S4(sWS)}, s{sT4} offset:60 sc1", tag="extra")
    E(f"s_cmp_ge_u32 s{sW}, 4")
    E("s_cbranch_scc1 L_f1_notr")
    for t in range(22):
        o = (t % 11) * 4096
        E(f"ds_read_b64_tr_b16 {r2(vW+4*t)}, v{vTR1 + t//11} offset:{o}")
        E(f"ds_read_b64_tr_b16 {r2(vW+4*t+2)}, v{vTR1 + t//11} offset:{o+512}")
    stamp(11)
    E.label("L_f1_notr")
    if not a.spec: E("s_branch L_f1_gate")
    E.label("L_f1_poll")
    E("s_waitcnt vmcnt(0)")
    E(f"v_min3_f32 v{vD1}, v{ac+3}, v{ac+7}, v{ac+11}")
    E(f"v_cmp_gt_f32 vcc, 0x42000000, v{vD1}")
    E(f"s_and_b64 vcc, vcc, s[{sCL}:{sCL+1}]")
    E("s_cbranch_scc0 L_f1_go")
    spin("L_f1_go")
    E(f"v_readlane_b32 s{sT0}, v{ac+3}, 3")
    E(f"s_cmp_ge_u32 s{sT0}, {thr:#x}")
    E("s_cbranch_scc1 L_f1_full")
    E.label("L_f1_regate")
    if a.sleep: E(f"s_sleep {a.sleep}")
    E(f"buffer_load_dword v{vD2}, off, {S4(sWS)}, s{sT4} offset:60 sc1", tag="extra")
    E.label("L_f1_gate")
    E("s_waitcnt vmcnt(0)")
    E(f"v_readfirstlane_b32 s{sT0}, v{vD2}")
    E(f"s_cmp_ge_u32 s{sT0}, {thr:#x}")
    E("s_cbranch_scc1 L_f1_full")
    spin("L_f1_full")
    E("s_branch L_f1_regate")
    E.label("L_f1_full")
    accload()
    E("s_branch L_f1_poll")
    E.label("L_f1_go")
    stamp(12)
    t0_, t1_, t2_, vMN, vRC = vD1, vD1 + 1, vD1 + 2, vD2, vD2 + 1
    if a.ln2 == 0:
        hx = ac
        bf16r_many(E, range(ac, ac + 12))
        for i in range(12): E(f"v_add_f32 v{hx+i}, v{xk+i}, v{ac+i}")
        bf16r_many(E, range(hx, hx + 12))
        full = [0, 1, 2, 4, 5, 6]
        def masked(fn):
            for i in full: fn(i)
            E(f"s_mov_b32 exec_hi, {(1 << 11) - 1:#x}")
            fn(8); fn(9)
            E(f"s_mov_b32 exec_hi, {(1 << 10) - 1:#x}")
            fn(10)
            E(f"s_and_b64 exec, exec, s[{sM3}:{sM3+1}]")
            fn(11)
            E(f"s_mov_b64 exec, s[{sM3}:{sM3+1}]")
            fn(3); fn(7)
            E("s_mov_b64 exec, -1")
        t0_, t1_, t2_, vMN, vRC = vD1, vD1 + 1, vD1 + 2, vD2, vD2 + 1
        def f_sum(i):
            if i == 0: E(f"v_add_f32 v{t0_}, v{hx}, v{hx+1}")
            elif i == 1: pass
            elif i == 2: E(f"v_add_f32 v{t1_}, v{hx+2}, v{hx+4}")
            elif i == 4: pass
            else:
                d = t0_ if i % 2 else t1_
                E(f"v_add_f32 v{d}, v{d}, v{hx+i}")
        masked(f_sum)
        E(f"v_add_f32 v{t0_}, v{t0_}, v{t1_}")
        E(f"v_mov_b32 v{t2_}, 0x3acccccd")
        wave_reduce(E, t0_, sT0)
        E(f"v_mul_f32 v{vMN}, s{sT0}, v{t2_}")
        for i in range(12): E(f"v_sub_f32 v{xk+i}, v{hx+i}, v{vMN}")
        def f_var(i):
            if i == 0: E(f"v_mul_f32 v{t0_}, v{xk}, v{xk}")
            elif i == 1: E(f"v_mul_f32 v{t1_}, v{xk+1}, v{xk+1}")
            else:
                d = t0_ if i % 2 == 0 else t1_
                E(f"v_fmac_f32 v{d}, v{xk+i}, v{xk+i}")
        masked(f_var)
        E(f"v_add_f32 v{t0_}, v{t0_}, v{t1_}")
        bf16r(E, vMN, vMN)
        row_reduce(E, [t0_])
        for i in range(6): E(f"v_sub_f32 v{hx+i}, v{hx+i}, v{vMN}")
        E(f"v_add_f32_dpp v{t0_}, v{t0_}, v{t0_} row_bcast:15 row_mask:0xa bank_mask:0xf")
        for i in range(6, 12): E(f"v_sub_f32 v{hx+i}, v{hx+i}, v{vMN}")
        E(f"v_add_f32_dpp v{t0_}, v{t0_}, v{t0_} row_bcast:31 row_mask:0xc bank_mask:0xf")
        bf16r_many(E, range(hx, hx + 4))
        E(f"v_readlane_b32 s{sT0}, v{t0_}, 63")
        bf16r_many(E, range(hx + 4, hx + 8))
        E(f"v_mul_f32 v{t0_}, s{sT0}, v{t2_}")
        bf16r(E, t0_, t0_)
        E(f"v_add_f32 v{t0_}, 0x3727c5ac, v{t0_}")
        bf16r(E, t0_, t0_)
        E(f"v_sqrt_f32 v{t0_}, v{t0_}")
        bf16r_many(E, range(hx + 8, hx + 12))
        bf16r(E, t0_, t0_)
        E(f"v_rcp_f32 v{vRC}, v{t0_}")
        masked(lambda i: E(f"v_mul_f32 v{hn+i}, v{hx+i}, v{vRC}"))
        for i in range(6): E(f"v_cvt_pk_bf16_f32 v{xk+i}, v{hn+2*i}, v{hn+2*i+1}")
    else:
        pk = hn
        sel = (sLO_, sHI_)
        for i in range(6): E(f"v_cvt_pk_bf16_f32 v{pk+i}, v{ac+2*i}, v{ac+2*i+1}")
        for i in range(12): E(f"v_dot2_f32_bf16 v{ac+i}, v{pk+i//2}, s{sel[i%2]}, v{xk+i}")
        for i in range(6): E(f"v_cvt_pk_bf16_f32 v{pk+i}, v{ac+2*i}, v{ac+2*i+1}")
        for i in range(6):
            d = t0_ if i % 2 == 0 else t1_
            E(f"v_dot2_f32_bf16 v{d}, v{pk+i}, s{sONE}, {'0' if i < 2 else 'v%d' % d}")
        fill = []
        for i in range(6):
            fill.append(f"v_lshlrev_b32 v{xk+2*i}, 16, v{pk+i}")
            fill.append(f"v_and_b32 v{xk+2*i+1}, 0xffff0000, v{pk+i}")
        chain = [f"v_add_f32 v{t0_}, v{t0_}, v{t1_}"]
        chain += [f"v_add_f32_dpp v{t0_}, v{t0_}, v{t0_} row_ror:{sh} row_mask:0xf bank_mask:0xf" for sh in (8, 4, 2, 1)]
        chain += [f"v_add_f32_dpp v{t0_}, v{t0_}, v{t0_} row_bcast:15 row_mask:0xa bank_mask:0xf",
                  f"v_add_f32_dpp v{t0_}, v{t0_}, v{t0_} row_bcast:31 row_mask:0xc bank_mask:0xf",
                  f"v_readlane_b32 s{sT0}, v{t0_}, 63"]
        for c in chain:
            for _ in range(2):
                if fill: E(fill.pop(0))
            E(c)
        E(f"v_mul_f32 v{vMN}, s{sT0}, v{vNI}")
        for i in range(12): E(f"v_add_f32 v{ac+i}, v{xk+i}, v{vMN}")
        full = [0, 1, 2, 4, 5, 6]
        def masked(fn):
            for i in full: fn(i)
            E(f"s_mov_b32 exec_hi, {(1 << 11) - 1:#x}")
            fn(8); fn(9)
            E(f"s_mov_b32 exec_hi, {(1 << 10) - 1:#x}")
            fn(10)
            E(f"s_and_b64 exec, exec, s[{sM3}:{sM3+1}]")
            fn(11)
            E(f"s_mov_b64 exec, s[{sM3}:{sM3+1}]")
            fn(3); fn(7)
            E("s_mov_b64 exec, -1")
        def f_var(i):
            if i == 0: E(f"v_mul_f32 v{t0_}, v{ac}, v{ac}")
            elif i == 1: E(f"v_mul_f32 v{t1_}, v{ac+1}, v{ac+1}")
            else:
                d = t0_ if i % 2 == 0 else t1_
                E(f"v_fmac_f32 v{d}, v{ac+i}, v{ac+i}")
        masked(f_var)
        E(f"v_add_f32 v{t0_}, v{t0_}, v{t1_}")
        bf16r(E, vMN, vMN)
        fill = [f"v_add_f32 v{ac+i}, v{xk+i}, v{vMN}" for i in range(12)]
        fill += [f"v_cvt_pk_bf16_f32 v{pk+i}, v{ac+2*i}, v{ac+2*i+1}" for i in range(6)]
        for i in (1, 3, 4, 5): fill.append(f"v_and_b32 v{pk+i}, v{pk+i}, v{vKM + (0 if i < 4 else i - 3)}")
        for i in range(6):
            fill.append(f"v_lshlrev_b32 v{ac+2*i}, 16, v{pk+i}")
            fill.append(f"v_and_b32 v{ac+2*i+1}, 0xffff0000, v{pk+i}")
        chain = [f"v_add_f32_dpp v{t0_}, v{t0_}, v{t0_} row_ror:{sh} row_mask:0xf bank_mask:0xf" for sh in (8, 4, 2, 1)]
        chain += [f"v_add_f32_dpp v{t0_}, v{t0_}, v{t0_} row_bcast:15 row_mask:0xa bank_mask:0xf",
                  f"v_add_f32_dpp v{t0_}, v{t0_}, v{t0_} row_bcast:31 row_mask:0xc bank_mask:0xf",
                  f"v_readlane_b32 s{sT0}, v{t0_}, 63",
                  f"v_mul_f32 v{t0_}, s{sT0}, -v{vNI}",
                  f"v_cvt_pk_bf16_f32 v{t0_}, v{t0_}, v{t0_}", f"v_and_b32 v{t0_}, 0xffff0000, v{t0_}",
                  f"v_add_f32 v{t0_}, 0x3727c5ac, v{t0_}",
                  f"v_cvt_pk_bf16_f32 v{t0_}, v{t0_}, v{t0_}", f"v_and_b32 v{t0_}, 0xffff0000, v{t0_}",
                  f"v_sqrt_f32 v{t0_}, v{t0_}",
                  f"v_cvt_pk_bf16_f32 v{t0_}, v{t0_}, v{t0_}", f"v_and_b32 v{t0_}, 0xffff0000, v{t0_}",
                  f"v_rcp_f32 v{vRC}, v{t0_}"]
        for c in chain:
            E(c)
            for _ in range(2):
                if fill: E(fill.pop(0))
        for c in fill: E(c)
        for i in range(12): E(f"v_mul_f32 v{ac+i}, v{ac+i}, v{vRC}")
        for i in range(6): E(f"v_cvt_pk_bf16_f32 v{xk+i}, v{ac+2*i}, v{ac+2*i+1}")
    E(f"ds_write_b64 v{vA+2}, {r2(xk)} offset:{HN}")
    E(f"ds_write_b64 v{vA+2}, {r2(xk+2)} offset:{HN+512}")
    E("s_mov_b32 exec_hi, 0xffff")
    E(f"ds_write_b64 v{vA+2}, {r2(xk+4)} offset:{HN+1024}")
    E("s_mov_b32 exec_hi, -1")
    E("s_waitcnt lgkmcnt(0)")
    E("s_barrier")
    E(f"s_cmp_ge_u32 s{sW}, 4")
    E("s_cbranch_scc1 L_fin")
    if a.ts:
        stamp(13); E("s_waitcnt lgkmcnt(0)")
    for u in range(11):
        E(f"ds_read_b128 {r4(hb+4*u)}, v{vA+3} offset:{HN+128*u}")
    for u in range(11):
        E(f"s_waitcnt lgkmcnt({10-u})")
        c1 = "0" if u == 0 else r4(vD1)
        c2 = "0" if u == 0 else r4(vD2)
        E(f"v_mfma_f32_16x16x32_bf16 {r4(vD1)}, {r4(vW+8*u)}, {r4(hb+4*u)}, {c1}")
        E(f"v_mfma_f32_16x16x32_bf16 {r4(vD2)}, {r4(vW+8*u+4)}, {r4(hb+4*u)}, {c2}")
    for i in range(4):
        E(f"v_add_f32_dpp v{vD1+i}, v{vD2+i}, v{vD1+i} row_ror:8 row_mask:0xf bank_mask:0xf")
    for i in range(4): E(f"v_max_f32 v{vD1+i}, 0, v{vD1+i}")
    E(f"v_cvt_pk_bf16_f32 v{vD2}, v{vD1}, v{vD1+1}")
    E(f"v_cvt_pk_bf16_f32 v{vD2+1}, v{vD1+2}, v{vD1+3}")
    E(f"s_mov_b64 exec, s[{sLO8}:{sLO8+1}]")
    E(f"buffer_store_dwordx2 {r2(vD2)}, v{vA}, {S4(sH1)}, s{sT3} offen sc1", tag="extra")
    stamp(14)
    E("s_branch L_fin")

    E.label("L_ffn2")
    E.comment("FFN2: %d columns of w2" % (16 * NC))
    E(f"s_mov_b64 s[{sDRY}:{sDRY+1}], {0 if a.dry & 2 else -1}")
    E(f"s_mov_b32 s{sROLE}, 2")
    E(f"s_mov_b32 s{sWF}, s18")
    E(f"s_and_b32 s{sWF+1}, s19, 0xffff")
    vDA = vQ + 2
    vA = vD1
    lpr = 2 * NC
    rpi = 64 // lpr
    nd2 = 7 * NC
    E(f"v_lshrrev_b32 v{vDA}, {NC}, v{vL}")
    E(f"v_mul_u32_u24 v{vDA}, 1280, v{vDA}")
    E(f"v_and_b32 v{vA+1}, {lpr-1}, v{vL}")
    E(f"v_lshl_add_u32 v{vDA}, v{vA+1}, 4, v{vDA}")
    sD0, sD2 = 12, 13
    E(f"s_mul_i32 s{sD0}, s{sW}, {7*32*1280}")
    E(f"s_mul_i32 s{sT1}, s{sTILE}, {32*NC}")
    E(f"s_add_u32 s{sD0}, s{sD0}, s{sT1}")
    E(f"s_mul_i32 s{sT3}, s{sW}, {nd2*1024}")
    E(f"s_add_u32 s{sT3}, s{sT3}, {WT}")
    E(f"s_mov_b32 s{sD2}, s{sT3}")
    def dma2():
        for t in range(nd2 if not a.nodma else 0):
            E(f"s_mov_b32 m0, s{sD2}")
            E(f"buffer_load_dwordx4 v{vDA}, {S4(sWF)}, s{sD0} offen{fnt} lds", tag="extra")
            if t < nd2 - 1:
                E(f"s_add_u32 s{sD0}, s{sD0}, {rpi*1280}")
                E(f"s_add_u32 s{sD2}, s{sD2}, 1024")
    E("s_barrier")
    stamp(10)
    if not a.late2: dma2()
    vB7 = vQ
    vXO = vQ + 1
    E(f"v_and_b32 v{vB7}, 7, v{vL}")
    E(f"v_mul_u32_u24 v{vXO}, 1280, v{vB7}")
    E(f"v_lshl_add_u32 v{vXO}, v{vJ}, 3, v{vXO}")
    E(f"s_and_b32 s{sT4}, s{sW}, {NC-1}")
    E(f"s_lshl_b32 s{sT4}, s{sT4}, 5")
    E(f"s_add_u32 s{sT1}, s{sT1}, s{sT4}")
    xr = vS
    E(f"buffer_load_dwordx2 {r2(xr)}, v{vXO}, {S4(sX)}, s{sT1} offen", tag="extra")
    vHA = vF + 128
    E(f"s_lshr_b32 s{sT0}, s{sT1}, 1")
    E(f"v_lshl_add_u32 v{vA}, v{vJ}, 2, s{sT0}")
    E(f"v_mul_u32_u24 v{vA+1}, {HS}, v{vB7}")
    for r in range(4):
        E(f"v_add_u32 v{vA+2}, {r}, v{vA}")
        E(f"v_mul_u32_u24 v{vA+3}, 4370, v{vA+2}")
        E(f"v_lshrrev_b32 v{vA+3}, 16, v{vA+3}")
        E(f"v_add_u32 v{vA+2}, v{vA+2}, v{vA+3}")
        E(f"v_lshl_add_u32 v{vHA+r}, v{vA+2}, 2, v{vA+1}")
        if r in (0, 3):
            E(f"v_lshl_add_u32 v{vHA+4+r//3}, v{vA+3}, 6, v{vA+1}")
    vH1 = vB1 + 1
    E(f"v_lshrrev_b32 v{vH1}, 1, v{vJ}")
    E(f"v_lshlrev_b32 v{vH1}, 8, v{vH1}")
    E(f"v_lshl_add_u32 v{vH1}, v{vB7}, 5, v{vH1}")
    E(f"v_and_b32 v{vB1+2}, 1, v{vJ}")
    E(f"v_lshl_add_u32 v{vH1}, v{vB1+2}, 4, v{vH1}")
    E(f"v_lshrrev_b32 v{vB1+2}, 3, v{vN}")
    E(f"v_lshl_add_u32 v{vH1}, v{vB1+2}, 9, v{vH1}")
    rb = 32 * NC
    vTR = vB1 + 2
    E(f"v_mul_u32_u24 v{vTR}, {8*rb}, v{vJ}")
    E(f"v_lshrrev_b32 v{vB1+3}, 2, v{vN}")
    E(f"v_lshl_add_u32 v{vTR}, v{vB1+3}, {4+NC}, v{vTR}")
    E(f"v_and_b32 v{vB1+3}, 3, v{vN}")
    E(f"v_lshl_add_u32 v{vTR}, v{vB1+3}, 3, v{vTR}")
    E(f"v_add_u32 v{vTR}, s{sT3}, v{vTR}")
    vRWp, vRRp = vB0, vB0 + 1
    E(f"s_lshl_b32 s{sT0}, s{sW}, 11")
    E(f"v_add_u32 v{vRWp}, s{sT0}, v{vL16}")
    E(f"s_lshl_b32 s{sT0}, s{sT4}, 5")
    E(f"v_add_u32 v{vRRp}, s{sT0}, v{vL16}")
    E(f"s_mul_i32 s{sT2}, s{sW}, {7*512}")
    acc = [vF + 96 + 4 * i for i in range(4)]
    ac = vS + 4
    hx = vS + 12
    hxk = vS + 8
    hb = vF + 64
    def trs():
        E("s_waitcnt vmcnt(0)")
        for t in range(7):
            for c in range(NC):
                E(f"ds_read_b64_tr_b16 {r2(vW+8*t+4*c)}, v{vTR} offset:{t*32*rb+c*32}")
                E(f"ds_read_b64_tr_b16 {r2(vW+8*t+4*c+2)}, v{vTR} offset:{t*32*rb+c*32+4*rb}")
        for i in range(2):
            E(f"v_lshlrev_b32 v{hxk+2*i}, 16, v{xr+i}")
            E(f"v_and_b32 v{hxk+2*i+1}, 0xffff0000, v{xr+i}")
        E("s_waitcnt lgkmcnt(0)")
        stamp(11)
    def cpoll(lbl, thr_):
        E.label(lbl)
        E(f"buffer_load_dword v{vD1}, v{vHA+4}, {S4(sWS)}, 0 offen offset:60 sc1", tag="extra")
        E(f"buffer_load_dword v{vD1+1}, v{vHA+5}, {S4(sWS)}, 0 offen offset:60 sc1", tag="extra")
        E("s_waitcnt vmcnt(0)")
        E(f"v_min_f32 v{vD1}, v{vD1}, v{vD1+1}")
        E(f"v_cmp_gt_f32 vcc, {thr_:#x}, v{vD1}")
        E(f"s_cbranch_vccz {lbl}_ok")
        spin(f"{lbl}_ok")
        E(f"s_sleep {a.sleep3}")
        E(f"s_branch {lbl}")
        E.label(f"{lbl}_ok")
    E.label("L_f2_top")
    E(f"s_mov_b64 exec, s[{sDRY}:{sDRY+1}]")
    E("s_cbranch_execz L_f2_got")
    if a.late2:
        E(f"s_cmp_ge_u32 s{sW}, 1")
        E("s_cbranch_scc1 L_f2_g_ok")
        cpoll("L_f2_g", struct.unpack("<I", struct.pack("<f", float(a.late2)))[0])
        E("s_barrier")
        dma2()
    trs()
    E(f"s_cmp_ge_u32 s{sW}, {NC}")
    E("s_cbranch_scc1 L_f2_go")
    cpoll("L_f2_c", 0x42000000)
    for r in range(4):
        E(f"buffer_load_dword v{ac+r}, v{vHA+r}, {S4(sWS)}, 0 offen sc1", tag="extra")
    E.label("L_f2_go")
    E("s_barrier")
    stamp(12)
    E.label("L_f2_poll2")
    for u in range(4):
        E(f"buffer_load_dwordx4 {r4(hb+4*u)}, v{vH1}, {S4(sH1)}, s{sT2} offen offset:{1024*u} sc1", tag="extra")
    E("s_waitcnt vmcnt(0)")
    E(f"v_max3_u32 v{vD1}, v{hb}, v{hb+1}, v{hb+2}")
    E(f"v_max3_u32 v{vD1+1}, v{hb+3}, v{hb+4}, v{hb+5}")
    for k in range(6, 16, 2):
        tgt = vD1 + ((k // 2) % 2)
        E(f"v_max3_u32 v{tgt}, v{tgt}, v{hb+k}, v{hb+k+1}")
    E(f"v_max_u32 v{vD1}, v{vD1}, v{vD1+1}")
    E(f"v_cmp_eq_u32 vcc, -1, v{vD1}")
    E("s_cbranch_vccz L_f2_got")
    spin("L_f2_got")
    if a.sleep2: E(f"s_sleep {a.sleep2}")
    E("s_branch L_f2_poll2")
    E.label("L_f2_got")
    stamp(13)
    for t in range(7):
        u, half = divmod(t, 2)
        for c in range(NC):
            d = acc[2 * c + half]
            cc = "0" if u == 0 else r4(d)
            E(f"v_mfma_f32_16x16x32_bf16 {r4(d)}, {r4(vW+8*t+4*c)}, {r4(hb+4*u)}, {cc}")
    bf16r_many(E, range(ac, ac + 4))
    for i in range(4): E(f"v_add_f32 v{hx+i}, v{hxk+i}, v{ac+i}")
    bf16r_many(E, range(hx, hx + 4))
    for c in range(NC):
        for r in range(4):
            E(f"v_cndmask_b32 v{acc[2*c]+r}, v{acc[2*c+1]+r}, v{acc[2*c]+r}, s[{sLO8}:{sLO8+1}]")
        E(f"ds_write_b128 v{vRWp}, {r4(acc[2*c])} offset:{F2R+1024*c}")
    E("s_waitcnt lgkmcnt(0)")
    E("s_barrier")
    E(f"s_cmp_ge_u32 s{sW}, {NC}")
    E("s_cbranch_scc1 L_f2_next")
    pb = vF + 144
    for p in range(8):
        E(f"ds_read_b128 {r4(pb+4*p)}, v{vRRp} offset:{F2R+2048*p}")
    if a.ts: E("s_waitcnt lgkmcnt(0)")
    for p in range(4):
        if not a.ts: E(f"s_waitcnt lgkmcnt({6-2*p})")
        for i in range(4): E(f"v_add_f32 v{pb+8*p+i}, v{pb+8*p+i}, v{pb+8*p+4+i}")
        if p % 2 == 1:
            for i in range(4): E(f"v_add_f32 v{pb+8*p-8+i}, v{pb+8*p-8+i}, v{pb+8*p+i}")
    for i in range(4): E(f"v_add_f32 v{pb+i}, v{pb+i}, v{pb+16+i}")
    for i in range(4):
        E(f"v_add_f32_dpp v{pb+i}, v{pb+i}, v{pb+i} row_ror:8 row_mask:0xf bank_mask:0xf")
    bf16r_many(E, range(pb, pb + 4))
    for i in range(4): E(f"v_add_f32 v{pb+i}, v{hx+i}, v{pb+i}")
    E(f"v_cvt_pk_bf16_f32 v{vD2}, v{pb}, v{pb+1}")
    E(f"v_cvt_pk_bf16_f32 v{vD2+1}, v{pb+2}, v{pb+3}")
    E(f"s_and_b64 exec, exec, s[{sLO8}:{sLO8+1}]")
    E("s_cbranch_execz L_f2_next")
    E(f"buffer_store_dwordx2 {r2(vD2)}, v{vXO}, {S4(sOUT)}, s{sT1} offen{a.opol}", tag="extra")
    stamp(14)
    E.label("L_f2_next")
    E(f"s_cmp_lg_u32 s{sDRY}, 0")
    E("s_cbranch_scc1 L_fin")
    E(f"s_mov_b64 s[{sDRY}:{sDRY+1}], -1")
    E("s_branch L_f2_top")
    E.label("L_fin")
    if a.ts and a.echo:
        E(f"s_cmp_lg_u32 s{sROLE}, 2")
        E("s_cbranch_scc1 L_end")
        E(f"s_cmp_lg_u32 s{sW}, 0")
        E("s_cbranch_scc1 L_end")
        E("s_waitcnt vmcnt(0)")
        stamp(15)
        E("s_waitcnt lgkmcnt(0)")
        if a.skew >= 0:
            E("s_mov_b64 exec, -1")
            E(f"s_mov_b32 s{sT0}, 0x30000")
            E(f"buffer_load_dword v{vS}, off, {S4(sWS)}, s{sT0} offset:{4*a.skew} sc1", tag="extra")
            E(f"buffer_load_dword v{vS+1}, off, {S4(sWS)}, s{sT0} offset:4 sc1", tag="extra")
            E("s_waitcnt vmcnt(0)")
            E(f"v_sub_u32 v{vS}, v{vS}, v{vS+1}")
            E(f"v_readfirstlane_b32 s{sT0}, v{vS}")
            E(f"s_add_u32 s{sT0}, s{sT0}, 200")
            E(f"s_lshl_b32 s{sT0}, s{sT0}, 2")
        else:
            E(f"s_sub_u32 s{sT0}, s{sTS+2*a.echo}, s{sTS+2*a.echo0}")
            E(f"s_mul_i32 s{sT0}, s{sT0}, {a.emul}")
        E(f"s_min_u32 s{sT0}, s{sT0}, 20000")
        E(f"s_add_u32 s{sT0}, s{sT0}, s{sTS+30}")
        E.label("L_echo")
        E(f"s_memrealtime s[{sT2}:{sT2+1}]")
        E("s_waitcnt lgkmcnt(0)")
        E(f"s_sub_u32 s{sT1}, s{sT0}, s{sT2}")
        E(f"s_cmp_gt_i32 s{sT1}, 0")
        E("s_cbranch_scc1 L_echo")
    elif a.ts:
        E("s_waitcnt vmcnt(0)")
        stamp(15)
        write_stamps()
    E.label("L_end")
    E("s_endpgm")
    E.label("L_codeend")

    out = HDR
    out += f"; @launch grid=(256,1,1) block=(512,1,1) lds={LDS_TOTAL}\n"
    out += f""".amdgcn_target "amdgcn-amd-amdhsa--gfx950"
.text
.globl {NAME}
.p2align 8
.type {NAME},@function
{NAME}:
"""
    out += E.text().replace("CODE_BYTES", f"L_codeend-{NAME}")
    out += f""".section .rodata,"a"
.p2align 6
.amdhsa_kernel {NAME}
  .amdhsa_next_free_vgpr 256
  .amdhsa_next_free_sgpr 102
  .amdhsa_accum_offset 256
  .amdhsa_group_segment_fixed_size 0
  .amdhsa_kernarg_size 88
  .amdhsa_user_sgpr_count 2
  .amdhsa_user_sgpr_kernarg_segment_ptr 1
  .amdhsa_system_sgpr_workgroup_id_x 1
  .amdhsa_float_denorm_mode_32 3
.end_amdhsa_kernel
"""
    return out

def parser():
    p = argparse.ArgumentParser()
    p.add_argument("-o", default="sequential_preLN__sliding_block_cached__dense_activation_relu__decode.s")
    p.add_argument("--fnt", type=int, default=0)
    p.add_argument("--ts", type=int, default=0)
    p.add_argument("--sleep", type=int, default=1)
    p.add_argument("--sleep2", type=int, default=1)
    p.add_argument("--depth", type=int, default=6)
    p.add_argument("--first", type=int, default=2)
    p.add_argument("--budget", type=int, default=16)
    p.add_argument("--qspan", type=int, default=32)
    p.add_argument("--ostart", type=int, default=0)
    p.add_argument("--otail", type=int, default=4)
    p.add_argument("--tkpos", type=int, default=28)
    p.add_argument("--pf", type=int, default=2)
    p.add_argument("--spf", type=int, default=1)
    p.add_argument("--emul", type=int, default=1)
    p.add_argument("--dyn", type=int, default=0)
    p.add_argument("--abar", type=int, default=0)
    p.add_argument("--spec", type=int, default=0)
    p.add_argument("--qp2", type=int, default=1)
    p.add_argument("--nc2", type=int, default=2)
    p.add_argument("--late2", type=int, default=0)
    p.add_argument("--nk0", type=int, default=5)
    p.add_argument("--pfwg", type=int, default=16)
    p.add_argument("--ln2", type=int, default=1)
    p.add_argument("--endpf", type=int, default=2)
    p.add_argument("--epos", type=int, default=0)
    p.add_argument("--nodma", type=int, default=0)
    p.add_argument("--gate", type=float, default=31)
    p.add_argument("--gstep", type=int, default=104)
    p.add_argument("--dplan", default="0000")
    p.add_argument("--opol", default="")
    p.add_argument("--skew", type=int, default=-1)
    p.add_argument("--htab", default="0x76325410")
    p.add_argument("--rtab", default="0x210cba98")
    p.add_argument("--sphalf", type=int, default=2)
    p.add_argument("--npoll2", type=int, default=1)
    p.add_argument("--stag2", type=int, default=4)
    p.add_argument("--pub", default="sc1")
    p.add_argument("--sub", default="sc1")
    p.add_argument("--zwg", type=int, default=28)
    p.add_argument("--nrep", type=int, default=8)
    p.add_argument("--sleep3", type=int, default=4)
    p.add_argument("--h1wait", type=int, default=0)
    p.add_argument("--npoll", type=int, default=1)
    p.add_argument("--stag", type=int, default=3)
    p.add_argument("--static", type=int, default=0)
    p.add_argument("--l2pf", type=int, default=6)
    p.add_argument("--echo", type=int, default=0)
    p.add_argument("--echo0", type=int, default=0)
    p.add_argument("--kvpol", default=" nt")
    p.add_argument("--wpol", default="")
    p.add_argument("--bd1", type=int, default=0)
    p.add_argument("--bd2", type=int, default=0)
    p.add_argument("--bd3", type=int, default=0)
    p.add_argument("--hmap", type=int, default=3)
    p.add_argument("--tlb", type=int, default=0)
    p.add_argument("--dry", type=int, default=2)
    return p

if __name__ == "__main__":
    a = parser().parse_args()
    open(a.o, "w").write(gen(a))
```

```python
import sys, argparse, struct
from collections import deque
from asmlib import Emitter
from gen2 import (NAME, HDR, srd, srd_off, r4, r2, S4, row_reduce, wave_reduce, bf16r, bf16r_many, unpack10, ln_stats,
                  LOG2E, SCALE, sT0, sT1, sT2, sT3, sT4)

RED = 0
QF = 8448
ML = 8704
YP = 9216
YPS = 3328
HN = 9216
HNS = 1408
F2R = 9216
WT = 35840
LDS_TOTAL = 150528
HS = 3072
H1_BASE = 32768
TS_BASE = 1 << 20
NF1 = 27

sW, sH, sB = 3, 26, 27
sK, sV, sWQ, sWO, sX, sWS, sDB, sWF, sOUT, sH1 = 28, 32, 36, 40, 44, 48, 52, 56, 60, 64
sROLE, sTILE = 100, 101
sSPIN = 9
sLO8 = 10
sKO, sVO, sQ0, sQ1, sOO = 12, 13, 14, 15, 20
sDRY = 22
sEX = 24
sTKO = 25
sTS = 68
vL, vL16, vWQ, vWO = 0, 1, 2, 3
vM = 4
vQ = 8
vB0, vB1 = 12, 16
vD1, vD2 = 20, 24
vT = 28
vS = 32
vF = 48
vJ, vN = vT, vT + 1

class Task:
    def __init__(self, fn, needs=(), frees=(), barrier=0, cost=1, atomic=False):
        self.fn, self.needs, self.frees, self.barrier, self.cost = fn, list(needs), list(frees), barrier, cost
        self.atomic = atomic
        self.q = None

class RecEmitter(Emitter):
    def __init__(self):
        super().__init__(); self.rec = None
    def __call__(self, text, tag=None):
        if self.rec is not None: self.rec.append(("i", text, tag))
        else: super().__call__(text, tag)
    def label(self, name):
        if self.rec is not None: self.rec.append(("l", name, None))
        else: super().label(name)
    def flush(self, n=None):
        if self.rec is not None: self.rec.append(("f", None, None))
        else: super().flush(n)
    def record(self, fn):
        self.rec = []; fn(); r = self.rec; self.rec = None; return deque(r)
    def play(self, item):
        k, a, b = item
        if k == "i": self(a, b)
        elif k == "l": self.label(a)
        else: self.flush()

def gen(a):
    E = RecEmitter()
    NC = a.nc2
    NF2 = 40 // NC
    nt = a.kvpol
    wnt = a.wpol
    fnt = " nt" if a.fnt else ""
    def stamp(i):
        if a.ts: E(f"s_memrealtime s[{sTS+2*i}:{sTS+2*i+1}]")
    def spin(lbl):
        E(f"s_sub_u32 s{sSPIN}, s{sSPIN}, 1")
        E(f"s_cmp_lt_i32 s{sSPIN}, 0")
        E(f"s_cbranch_scc1 {lbl}")
    def write_stamps():
        E("s_waitcnt lgkmcnt(0)")
        E("s_mov_b64 exec, 1")
        E(f"s_lshl_b32 s{sT0}, s2, 3")
        E(f"s_add_u32 s{sT0}, s{sT0}, s{sW}")
        E(f"s_lshl_b32 s{sT0}, s{sT0}, 8")
        E(f"s_add_u32 s{sT0}, s{sT0}, {TS_BASE}")
        for i in range(16):
            E(f"v_mov_b32 v{vT}, s{sTS+2*i}")
            E(f"v_mov_b32 v{vT+1}, s{sTS+2*i+1}")
            E(f"buffer_store_dwordx2 {r2(vT)}, off, {S4(sWS)}, s{sT0} offset:{8*i}", tag="extra")
            E("s_nop 1")
        E(f"s_getreg_b32 s{sT1}, hwreg(HW_REG_XCC_ID)")
        E(f"v_mov_b32 v{vT}, s{sT1}")
        E(f"v_mov_b32 v{vT+1}, s{sROLE}")
        E(f"buffer_store_dwordx2 {r2(vT)}, off, {S4(sWS)}, s{sT0} offset:128", tag="extra")
        E("s_nop 1")
        E(f"v_mov_b32 v{vT}, s{sSPIN}")
        E(f"v_mov_b32 v{vT+1}, 0")
        E(f"buffer_store_dwordx2 {r2(vT)}, off, {S4(sWS)}, s{sT0} offset:136", tag="extra")

    E("s_cmp_ge_u32 s2, 256")
    E("s_cbranch_scc1 L_end")
    E("s_load_dwordx16 s[4:19], s[0:1], 0")
    E("s_load_dwordx4 s[20:23], s[0:1], 64")
    E("s_load_dwordx2 s[24:25], s[0:1], 80")
    if a.ts:
        for i in range(1, 16): E(f"s_mov_b64 s[{sTS+2*i}:{sTS+2*i+1}], 0")
        stamp(0)
    E(f"v_lshrrev_b32 v{vT}, 6, v0")
    E(f"v_and_b32 v{vL}, 63, v0")
    E(f"v_readfirstlane_b32 s{sW}, v{vT}")
    if a.hmap == 3:
        E(f"s_and_b32 s{sH}, s2, 7")
        E(f"s_lshl_b32 s{sH}, s{sH}, 2")
        E(f"s_lshr_b32 s{sH}, {a.htab}, s{sH}")
        E(f"s_and_b32 s{sB}, s{sH}, 4")
        E(f"s_lshl_b32 s{sB}, s{sB}, 2")
        E(f"s_and_b32 s{sH}, s{sH}, 3")
        E(f"s_add_u32 s{sH}, s{sH}, s{sB}")
        E(f"s_bfe_u32 s{sB}, s2, 0x20003")
        E(f"s_lshl_b32 s{sB}, s{sB}, 2")
        E(f"s_add_u32 s{sH}, s{sH}, s{sB}")
    elif a.hmap == 2:
        E(f"s_and_b32 s{sH}, s2, 6")
        E(f"s_lshr_b32 s{sH}, 0x8d, s{sH}")
        E(f"s_and_b32 s{sH}, s{sH}, 3")
        E(f"s_and_b32 s{sB}, s2, 1")
        E(f"s_lshl_b32 s{sB}, s{sB}, 4")
        E(f"s_add_u32 s{sH}, s{sH}, s{sB}")
        E(f"s_bfe_u32 s{sB}, s2, 0x20003")
        E(f"s_lshl_b32 s{sB}, s{sB}, 2")
        E(f"s_add_u32 s{sH}, s{sH}, s{sB}")
    elif a.hmap:
        E(f"s_and_b32 s{sH}, s2, 7")
        E(f"s_lshl_b32 s{sH}, s{sH}, 2")
        E(f"s_bfe_u32 s{sB}, s2, 0x20003")
        E(f"s_add_u32 s{sH}, s{sH}, s{sB}")
    else:
        E(f"s_and_b32 s{sH}, s2, 31")
    E(f"s_lshr_b32 s{sB}, s2, 5")
    E(f"v_lshlrev_b32 v{vL16}, 4, v{vL}")
    E(f"v_lshrrev_b32 v{vJ}, 4, v{vL}")
    E(f"v_and_b32 v{vN}, 15, v{vL}")
    E(f"v_mul_u32_u24 v{vWQ}, {8192 if a.qp2 else 81920}, v{vJ}")
    E(f"v_lshl_add_u32 v{vWQ}, v{vN}, 4, v{vWQ}")
    vXS, vXC = vT + 2, vT + 3
    E(f"v_mul_u32_u24 v{vXS}, 20, v{vL}")
    t0, t1, t2, t3 = 64, 65, 66, 67
    if not a.qp2:
        E(f"v_lshrrev_b32 v{vXC}, 3, v{vN}")
        E(f"v_lshl_add_u32 v{vXC}, v{vXC}, 2, v{vJ}")
        E(f"s_lshl_b32 s{t0}, s{sW}, 3")
        E(f"v_add_u32 v{vXC}, s{t0}, v{vXC}")
        E(f"v_mul_u32_u24 v{vXC}, 20, v{vXC}")
    E(f"s_lshl_b32 s{t0}, s{sB}, 5")
    E(f"s_add_u32 s{t0}, s{t0}, s{sH}")
    E(f"s_lshl_b32 s{t0}, s{t0}, 20")
    E(f"s_add_u32 s{t0}, s{t0}, 0xc0000")
    E(f"s_lshl_b32 s{t1}, s{sH}, 8")
    E(f"s_mul_i32 s{t2}, s{sH}, {128*1280}")
    E(f"s_mul_i32 s{t3}, s{sB}, 1280")
    E(f"s_mov_b32 s{sROLE}, 0")
    E(f"s_lshl_b32 s{sTILE}, s{sW}, 10")
    if a.pf:
        E(f"s_cmp_gt_u32 s{sW}, {a.pf - 1}")
        E("s_cbranch_scc1 L_nopf")
        E(f"s_cmp_ge_u32 s2, {a.pfwg}")
        E("s_cbranch_scc1 L_nopf")
        E(f"s_getpc_b64 s[{sWF}:{sWF+1}]")
        E.label("L_pc")
        E(f"s_lshl_b32 s{sOUT}, s{sW}, 13")
        E(f"v_lshlrev_b32 v{vB0}, 7, v{vL}")
        E(f"v_add_u32 v{vB0}, s{sOUT}, v{vB0}")
        E(f"v_min_u32 v{vB0}, L_codeend-L_pc-4, v{vB0}")
        E(f"v_mov_b32 v{vB0+3}, s{sWF+1}")
        E(f"v_add_co_u32 v{vB0+2}, vcc, s{sWF}, v{vB0}")
        E(f"v_addc_co_u32 v{vB0+3}, vcc, 0, v{vB0+3}, vcc")
        E(f"global_load_dword v{vS+15}, v[{vB0+2}:{vB0+3}], off", tag="extra")
        E.label("L_nopf")
    E("s_waitcnt lgkmcnt(0)")
    srd_off(E, sK, 6, f"s{t0}", 0x40000)
    slot_of = {}
    free = deque(range(52))
    def alloc(tag):
        s = free.popleft(); slot_of[tag] = vF + 4 * s; return slot_of[tag]
    def release(tag):
        free.append((slot_of[tag] - vF) // 4)
    for f in range(a.nk0):
        if f: E(f"s_add_u32 s{sTILE}, s{sTILE}, 8192")
        E(f"buffer_load_dwordx4 {r4(alloc(f'k{f}'))}, v{vL16}, {S4(sK)}, s{sTILE} offen{nt}", tag=f"k{f}")
    srd(E, sX, 4, 5, 10240)
    xs_raw, xc_raw = vS, vS + 6
    E(f"buffer_load_dwordx4 {r4(xs_raw)}, v{vXS}, {S4(sX)}, s{t3} offen", tag="xs")
    E(f"buffer_load_dword v{xs_raw+4}, v{vXS}, {S4(sX)}, s{t3} offen offset:16", tag="xs")
    if not a.qp2:
        E(f"buffer_load_dwordx4 {r4(xc_raw)}, v{vXC}, {S4(sX)}, s{t3} offen", tag="xc")
        E(f"buffer_load_dword v{xc_raw+4}, v{vXC}, {S4(sX)}, s{t3} offen offset:16", tag="xc")
    srd_off(E, sWQ, 10, f"s{t1}", 639 * 8192 + 256)
    srd_off(E, sV, 8, f"s{t0}", 0x40000)
    srd_off(E, sWO, 12, f"s{t2}", 128 * 1280)
    srd(E, sWS, 24, 25, 1 << 22)
    srd(E, sDB, 22, 23, 256)
    srd(E, sOUT, 20, 21, 10240)
    srd_off(E, sH1, 24, H1_BASE, 108 * 256)
    E(f"s_add_u32 s{sKO}, s{sTILE}, 8192")
    E(f"s_lshl_b32 s{sVO}, s{sW}, 10")
    if a.qp2:
        E(f"s_lshl_b32 s{sQ0}, s{sW}, 15")
    else:
        E(f"s_mul_i32 s{sQ0}, s{sW}, 655360")
        E(f"s_add_u32 s{sQ1}, s{sQ0}, 327680")
    E(f"s_mul_i32 s{sOO}, s{sW}, 1280")

    if a.tlb:
        E(f"s_cmp_lg_u32 s{sW}, 1")
        E("s_cbranch_scc1 L_notlb")
        E(f"buffer_load_dword v{vS+14}, off, {S4(sV)}, 0 nt", tag="extra")
        E(f"buffer_load_dword v{vS+14}, off, {S4(sWO)}, 0 nt", tag="extra")
        if a.tlb > 1:
            E(f"s_mov_b32 s{sWF+2}, {640*3456}")
            E(f"s_mov_b32 s{sWF+3}, 0x20000")
            E(f"s_mov_b32 s{sT0}, {640*3456-4}")
            for p in (16, 18):
                E(f"s_mov_b32 s{sWF}, s{p}")
                E(f"s_and_b32 s{sWF+1}, s{p+1}, 0xffff")
                E(f"buffer_load_dword v{vS+14}, off, {S4(sWF)}, 0 nt", tag="extra")
                E(f"buffer_load_dword v{vS+14}, off, {S4(sWF)}, s{sT0} nt", tag="extra")
            E(f"s_mov_b32 s{sT0}, 0x20000")
            E(f"buffer_load_dword v{vS+14}, off, {S4(sWS)}, s{sT0} nt", tag="extra")
            E(f"buffer_load_dword v{vS+14}, off, {S4(sOUT)}, 0 nt", tag="extra")
        E.label("L_notlb")
    if a.skew >= 0:
        E("s_cmp_ge_u32 s2, 8")
        E("s_cbranch_scc1 L_noskew")
        E("s_waitcnt lgkmcnt(0)")
        E(f"v_mov_b32 v{vS+12}, s{sTS}")
        E(f"s_lshl_b32 s{sT0}, s2, 2")
        E(f"s_add_u32 s{sT0}, s{sT0}, 0x30000")
        E(f"buffer_store_dword v{vS+12}, off, {S4(sWS)}, s{sT0} sc1", tag="extra")
        E.label("L_noskew")
    def t_init():
        z = [alloc("z0"), alloc("z1"), alloc("z2"), alloc("z3")]
        zr = [z[0], z[0] + 2, z[1], z[1] + 2, z[2], z[2] + 2]
        init_seen.update(issued)
        E(f"s_cmp_lg_u32 s{sW}, 7")
        E("s_cbranch_scc1 L_nosent")
        E(f"v_mov_b32 v{z[0]}, -1")
        E(f"v_lshlrev_b32 v{z[3]}, 2, v{vL}")
        E(f"s_lshl_b32 s{sT0}, s2, 8")
        E(f"buffer_atomic_swap v{z[0]}, v{z[3]}, {S4(sH1)}, s{sT0} offen sc0", tag="extra")
        E.label("L_nosent")
        E(f"s_cmp_lg_u32 s{sW}, 6")
        E("s_cbranch_scc1 L_noinit")
        E(f"s_and_b32 s{sT0}, s2, 31")
        E(f"s_cmp_lg_u32 s{sT0}, {a.zwg}")
        E("s_cbranch_scc1 L_noinit")
        for q in z[:3]:
            for i in range(4): E(f"v_mov_b32 v{q+i}, 0")
        E(f"v_lshlrev_b32 v{z[3]}, 3, v{vL}")
        E(f"s_mul_i32 s{sT0}, s{sB}, {HS}")
        for i in range(6):
            E(f"buffer_atomic_swap_x2 {r2(zr[i])}, v{z[3]}, {S4(sWS)}, s{sT0} offen offset:{512*i} sc0", tag="extra")
        E.label("L_noinit")
    init_seen = set()
    def t_flagset():
        assert "wq11" not in init_seen
        E(f"s_cmp_lg_u32 s{sW}, 6")
        E("s_cbranch_scc1 L_noflag")
        E(f"s_and_b32 s{sT0}, s2, 31")
        E(f"s_cmp_lg_u32 s{sT0}, {a.zwg}")
        E("s_cbranch_scc1 L_noflag")
        E(f"v_mov_b32 v{slot_of['z3']}, 1")
        E(f"s_lshl_b32 s{sT0}, s{sB}, 2")
        E("s_mov_b64 exec, 1")
        E(f"buffer_store_dword v{slot_of['z3']}, off, {S4(sDB)}, s{sT0} sc1", tag="extra")
        E("s_mov_b64 exec, -1")
        E.label("L_noflag")

    def kload(f):
        def fn():
            E(f"buffer_load_dwordx4 {r4(alloc(f'k{f}'))}, v{vL16}, {S4(sK)}, s{sKO} offen{nt}", tag=f"k{f}")
            if f < 31: E(f"s_add_u32 s{sKO}, s{sKO}, 8192")
        return (f"k{f}", fn, True)
    def vload(f):
        def fn():
            E(f"buffer_load_dwordx4 {r4(alloc(f'v{f}'))}, v{vL16}, {S4(sV)}, s{sVO} offen{nt}", tag=f"v{f}")
            if f < 31: E(f"s_add_u32 s{sVO}, s{sVO}, 8192")
        return (f"v{f}", fn, True)
    def qload(f):
        def fn():
            s = sQ0 if (f % 2 == 0 or a.qp2) else sQ1
            E(f"buffer_load_dwordx4 {r4(alloc(f'wq{f}'))}, v{vWQ}, {S4(sWQ)}, s{s} offen{wnt}", tag=f"wq{f}")
            if a.qp2:
                if f < 19: E(f"s_add_u32 s{s}, s{s}, {32*8192}")
            elif f < 18: E(f"s_add_u32 s{s}, s{s}, 8192")
        return (f"wq{f}", fn, True)
    def oload(f):
        def fn():
            fp, cg = divmod(f, 5)
            E(f"buffer_load_dwordx4 {r4(alloc(f'wo{f}'))}, v{vWO}, {S4(sWO)}, s{sOO} offen offset:{cg*256}{wnt}", tag=f"wo{f}")
            if cg == 4 and fp < 3: E(f"s_add_u32 s{sOO}, s{sOO}, {8*1280}")
        return (f"wo{f}", fn, True)
    vFL = vWQ
    vTK = vQ + 3
    def fload():
        def fn():
            E(f"v_and_b32 v{vFL}, 7, v{vL}")
            E(f"v_lshlrev_b32 v{vFL}, 2, v{vFL}")
            E(f"buffer_load_dword v{vFL}, v{vFL}, {S4(sDB)}, 0 offen sc1", tag="flag")
        return ("flag", fn, False)
    TKL = QF
    def ticket():
        def fn():
            v = alloc("tk")
            E(f"v_mov_b32 v{v+1}, {TKL}")
            E(f"s_cmp_lg_u32 s{sW}, 0")
            E("s_cbranch_scc1 L_notk")
            E(f"v_mov_b32 v{v}, 1")
            E(f"s_and_b32 s{sTKO}, s2, 7")
            E(f"s_lshl_b32 s{sTKO}, s{sTKO}, 4")
            E("s_mov_b64 exec, 1")
            E(f"buffer_atomic_add v{v}, off, {S4(sDB)}, s{sTKO} offset:128 sc0", tag="extra")
            E("s_mov_b64 exec, -1")
            E.label("L_notk")
        return ("tk", fn, True)
    def l2pf_outer():
        def fn():
            vPF = vS + 13
            E(f"s_and_b32 s{sT0}, s2, 7")
            E(f"s_lshl_b32 s{sT0}, s{sT0}, 2")
            E(f"s_lshr_b32 s{sT0}, {a.rtab}, s{sT0}")
            E(f"s_and_b32 s{sT0}, s{sT0}, 15")
            E(f"s_lshr_b32 s{sT1}, s2, 3")
            E(f"s_mov_b32 s{sWF+2}, {640*3456}")
            E(f"s_mov_b32 s{sWF+3}, 0x20000")
            E(f"s_cmp_ge_u32 s{sT0}, 8")
            E("s_cbranch_scc1 L_l2b")
            E(f"s_cmp_ge_u32 s{sW}, 3")
            E("s_cbranch_scc1 L_nol2")
            E(f"s_mov_b32 s{sWF}, s16")
            E(f"s_and_b32 s{sWF+1}, s17, 0xffff")
            E(f"s_mul_i32 s{sT2}, s{sT0}, {9*128}")
            E(f"s_mul_i32 s{sT0}, s{sW}, {3*128}")
            E(f"s_add_u32 s{sT2}, s{sT2}, s{sT0}")
            E(f"s_mul_i32 s{sT1}, s{sT1}, {20*3456}")
            E(f"s_add_u32 s{sT2}, s{sT2}, s{sT1}")
            E(f"v_mul_u32_u24 v{vPF}, 43, v{vL}")
            E(f"v_lshrrev_b32 v{vPF}, 7, v{vPF}")
            E(f"v_mul_u32_u24 v{vPF}, {3456-384}, v{vPF}")
            E(f"v_lshl_add_u32 v{vPF}, v{vL}, 7, v{vPF}")
            E(f"s_mov_b32 exec_hi, 0xfffffff")
            E("s_branch L_l2go")
            E.label("L_l2b")
            E(f"s_cmp_ge_u32 s{sW}, 2")
            E("s_cbranch_scc1 L_nol2")
            E(f"s_mov_b32 s{sWF}, s18")
            E(f"s_and_b32 s{sWF+1}, s19, 0xffff")
            E(f"s_sub_u32 s{sT0}, s{sT0}, 8")
            E(f"s_lshl_b32 s{sT0}, s{sT0}, 1")
            E(f"s_add_u32 s{sT2}, s{sT0}, s{sW}")
            E(f"s_lshl_b32 s{sT2}, s{sT2}, 7")
            E(f"s_mul_i32 s{sT1}, s{sT1}, {54*1280}")
            E(f"s_add_u32 s{sT2}, s{sT2}, s{sT1}")
            E(f"v_mul_u32_u24 v{vPF}, 1280, v{vL}")
            E(f"s_mov_b32 exec_hi, 0x3fffff")
            E.label("L_l2go")
            E(f"buffer_load_dword v{vPF}, v{vPF}, {S4(sWF)}, s{sT2} offen", tag="extra")
            E("s_mov_b64 exec, -1")
            E.label("L_nol2")
        return fn
    t_l2pf = l2pf_outer()
    sPO, sPC, sPD = 21, 24, 25
    def t_spf0():
        E(f"s_and_b32 s{sT0}, s2, 7")
        E(f"s_lshl_b32 s{sT0}, s{sT0}, 2")
        E(f"s_lshr_b32 s{sT0}, {a.rtab}, s{sT0}")
        E(f"s_and_b32 s{sPC}, s{sT0}, 15")
        E(f"s_lshr_b32 s{sT1}, s2, 3")
        E(f"s_mov_b32 s{sWF+2}, {640*3456}")
        E(f"s_mov_b32 s{sWF+3}, 0x20000")
        E(f"s_mul_i32 s{sT2}, s{sT1}, 20")
        E(f"s_add_u32 s{sT2}, s{sT2}, s{sW}")
        E(f"s_mul_i32 s{sT2}, s{sT2}, 3456")
        E(f"s_mul_i32 s{sT0}, s{sPC}, 1152")
        E(f"s_add_u32 s{sT2}, s{sT2}, s{sT0}")
        E(f"s_mul_i32 s{sT3}, s{sT1}, 54")
        E(f"s_add_u32 s{sT3}, s{sT3}, s{sW}")
        E(f"s_mul_i32 s{sT3}, s{sT3}, 1280")
        E(f"s_sub_u32 s{sT0}, s{sPC}, 8")
        E(f"s_lshl_b32 s{sT0}, s{sT0}, 8")
        E(f"s_add_u32 s{sT3}, s{sT3}, s{sT0}")
        E(f"s_cmp_lt_u32 s{sPC}, 8")
        E(f"s_cselect_b32 s{sPO}, s{sT2}, s{sT3}")
        E(f"s_cselect_b32 s{sWF}, s16, s18")
        E(f"s_cselect_b32 s{sWF+1}, s17, s19")
        E(f"s_and_b32 s{sWF+1}, s{sWF+1}, 0xffff")
    def t_spf(part):
        def fn():
            E(f"s_cmp_lt_u32 s{sPC}, 8")
            E(f"s_cbranch_scc0 L_spb{part}")
            if part == 2:
                E(f"s_cmp_ge_u32 s{sW}, 4")
                E(f"s_cbranch_scc1 L_spe{part}")
            for ln in range(9 if not a.endpf & 1 else 0):
                for hf in range(a.sphalf):
                    E(f"s_buffer_load_dword s{sPD}, {S4(sWF)}, s{sPO} offset:{part*8*3456 + ln*128 + hf*64}")
            E(f"s_branch L_spe{part}")
            E.label(f"L_spb{part}")
            for k in (([0, 1, 2], [3, 4], [5, 6])[part] if not a.endpf & 2 else []):
                for ln in range(2):
                    for hf in range(a.sphalf):
                        E(f"s_buffer_load_dword s{sPD}, {S4(sWF)}, s{sPO} offset:{k*8*1280 + ln*128 + hf*64}")
            E.label(f"L_spe{part}")
        return fn
    sEO, sEM = 14, 15
    sES = 36
    def t_epf_prep():
        v = alloc("epf")
        E(f"s_and_b32 s{sT0}, s2, 7")
        E(f"s_lshl_b32 s{sT0}, s{sT0}, 2")
        E(f"s_lshr_b32 s{sT0}, {a.rtab}, s{sT0}")
        E(f"s_and_b32 s{sT0}, s{sT0}, 15")
        E(f"s_lshr_b32 s{sT1}, s2, 3")
        E(f"s_mul_i32 s{sT2}, s{sT1}, {20*3456}")
        E(f"s_mul_i32 s{sT3}, s{sT0}, 1152")
        E(f"s_add_u32 s{sT2}, s{sT2}, s{sT3}")
        E(f"s_mul_i32 s{sT3}, s{sT1}, {54*1280}")
        E(f"s_sub_u32 s{sT1}, s{sT0}, 8")
        E(f"s_lshl_b32 s{sT1}, s{sT1}, 8")
        E(f"s_add_u32 s{sT3}, s{sT3}, s{sT1}")
        E(f"s_mul_i32 s{sT1}, s{sW}, 23")
        E(f"v_add_u32 v{v}, s{sT1}, v{vL}")
        E(f"v_mul_u32_u24 v{v+1}, 7282, v{v}")
        E(f"v_lshrrev_b32 v{v+1}, 16, v{v+1}")
        E(f"v_mul_u32_u24 v{v+1}, {3456-1152}, v{v+1}")
        E(f"v_lshl_add_u32 v{v+1}, v{v}, 7, v{v+1}")
        E(f"s_mul_i32 s{sT1}, s{sW}, 14")
        E(f"v_add_u32 v{v}, s{sT1}, v{vL}")
        E(f"v_lshrrev_b32 v{v+2}, 1, v{v}")
        E(f"v_mul_u32_u24 v{v+2}, {1280-256}, v{v+2}")
        E(f"v_lshl_add_u32 v{v+2}, v{v}, 7, v{v+2}")
        E(f"s_cmp_lt_u32 s{sT0}, 8")
        E(f"s_cselect_b32 s{sEO}, s{sT2}, s{sT3}")
        E(f"s_mov_b32 s{sEM}, {(1 << 14) - 1 if a.endpf & 2 else 1}")
        E(f"s_cselect_b32 s{sEM}, {(1 << 23) - 1 if a.endpf & 1 else 1}, s{sEM}")
        E(f"s_cselect_b32 s{sES}, s16, s18")
        E(f"s_cselect_b32 s{sES+1}, s17, s19")
        E(f"s_cselect_b64 vcc, -1, 0")
        E(f"s_and_b32 s{sES+1}, s{sES+1}, 0xffff")
        E(f"s_mov_b32 s{sES+2}, {640*3456}")
        E(f"s_mov_b32 s{sES+3}, 0x20000")
        E(f"v_cndmask_b32 v{v}, v{v+2}, v{v+1}, vcc")
    def epf():
        def fn():
            v = slot_of["epf"]
            E(f"s_mov_b32 exec_lo, s{sEM}")
            E(f"s_mov_b32 exec_hi, 0")
            E(f"buffer_load_dword v{v+3}, v{v}, {S4(sES)}, s{sEO} offen", tag="epf")
            E("s_mov_b64 exec, -1")
        return ("epf", fn, False)
    def prio(k, lo, hi):
        def fn():
            E(f"s_cmp_ge_u32 s{sW}, 4")
            E(f"s_cbranch_scc1 L_pr{k}a")
            E(f"s_setprio {lo}")
            E(f"s_branch L_pr{k}b")
            E.label(f"L_pr{k}a")
            E(f"s_setprio {hi}")
            E.label(f"L_pr{k}b")
        return ("tk", fn, False)
    loads = []
    qi = 0
    for f in range(a.nk0, 32):
        want = min(20, (f - a.nk0 + 1) * 20 // (a.qspan - a.nk0 + 1) + 1)
        while qi < want:
            loads.append(qload(qi)); qi += 1
        loads.append(kload(f))
    while qi < 20:
        loads.append(qload(qi)); qi += 1
    nmid = 20 - a.otail
    oi = 0
    for f in range(32):
        loads.append(vload(f))
        if f == 16: loads.append(fload())
        if f == a.prio: loads.append(prio(0, 0, 1))
        if f == a.tkpos and a.dyn: loads.append(ticket())
        want = max(0, (f + 1 - a.ostart)) * nmid // (32 - a.ostart)
        while oi < want:
            loads.append(oload(oi)); oi += 1
    while oi < 20:
        loads.append(oload(oi)); oi += 1
    if a.endpf and a.epos >= 0: loads.insert(len(loads) - a.epos, epf())

    vRW, vRR = vXS, vXC
    def t_setup():
        E(f"s_mov_b32 s{sSPIN}, 0x40000")
        E(f"s_mov_b32 s{sLO8}, 0x00ff00ff")
        E(f"s_mov_b32 s{sLO8+1}, 0x00ff00ff")
        E(f"v_mul_u32_u24 v{vWO}, 40960, v{vJ}")
        E(f"v_and_b32 v{vB0}, 1, v{vN}")
        E(f"v_lshrrev_b32 v{vB0+1}, 1, v{vN}")
        E(f"v_lshl_add_u32 v{vWO}, v{vN}, 4, v{vWO}")
        E(f"v_lshlrev_b32 v{vB0}, 4, v{vB0}")
        E(f"v_mov_b32 v{vB0+2}, 0xffff")
        E(f"v_lshlrev_b32 v{vB0}, v{vB0}, v{vB0+2}")
        E(f"v_and_b32 v{vB0+1}, 3, v{vB0+1}")
        for w in range(4):
            E(f"v_cmp_eq_u32 vcc, {w}, v{vB0+1}")
            E(f"v_cndmask_b32 v{vM+w}, 0, v{vB0}, vcc")
        E(f"v_lshrrev_b32 v{vB0}, 3, v{vN}")
        E(f"s_lshl_b32 s{sT0}, s{sW}, 1")
        E(f"v_add_u32 v{vB0}, s{sT0}, v{vB0}")
        E(f"v_mul_u32_u24 v{vRW}, 528, v{vB0}")
        E(f"v_and_b32 v{vB0}, 7, v{vN}")
        E(f"v_lshl_add_u32 v{vRW}, v{vB0}, 6, v{vRW}")
        E(f"v_lshl_add_u32 v{vRW}, v{vJ}, 4, v{vRW}")
        E(f"v_mul_u32_u24 v{vRR}, 528, v{vN}")
        E(f"v_lshl_add_u32 v{vRR}, v{vJ}, 4, v{vRR}")
        E(f"s_lshl_b32 s{sT0}, s{sW}, 6")
        E(f"v_add_u32 v{vRR}, s{sT0}, v{vRR}")
    f0 = 8
    vMEAN, vRCP = 18, 19
    def t_ln1a():
        stamp(1)
        unpack10(E, xs_raw, f0)
        ln_stats(E, f0, 20, 21, 22, vMEAN, vRCP)
    def t_ln1b():
        if not a.qp2: unpack10(E, xc_raw, f0)
        for i in range(10): E(f"v_sub_f32 v{f0+i}, v{f0+i}, v{vMEAN}")
        bf16r_many(E, range(f0, f0 + 10))
        for i in range(10): E(f"v_mul_f32 v{f0+i}, v{f0+i}, v{vRCP}")
        if not a.qp2:
            for i in range(10): E(f"v_cvt_pk_bf16_f32 v{vS+i}, v{f0+i}, v{f0+i}")
            return
        for i in range(5): E(f"v_cvt_pk_bf16_f32 v{vS+i}, v{f0+2*i}, v{f0+2*i+1}")
        E(f"s_mul_i32 s{sT0}, s{sW}, 1536")
        E(f"v_mul_u32_u24 v20, 20, v{vL}")
        E(f"v_add_u32 v20, s{sT0}, v20")
        for i in range(5): E(f"ds_write_b32 v20, v{vS+i} offset:{WT+4*i}")
        E(f"v_lshrrev_b32 v21, 3, v{vN}")
        E(f"v_lshlrev_b32 v21, 6, v21")
        E(f"v_lshl_add_u32 v21, v{vJ}, 1, v21")
        E(f"s_mul_i32 s{sT0}, s{sW}, 1544")
        E(f"v_add_u32 v21, s{sT0}, v21")
        E("s_waitcnt lgkmcnt(0)")
        for i in range(10): E(f"ds_read_u16 v{vS+i}, v21 offset:{WT+128*i}")
        E("s_waitcnt lgkmcnt(0)")
        for i in range(10): E(f"v_lshl_or_b32 v{vS+i}, v{vS+i}, 16, v{vS+i}")
    def bfrag(dst, src):
        for w in range(4): E(f"v_and_b32 v{dst+w}, v{src}, v{vM+w}")
    def t_pair(t, pre):
        def fn():
            B = vB0 if t % 2 == 0 else vB1
            bfrag(B, vS + t)
            c1 = "0" if t == 0 else r4(vD1)
            c2 = "0" if t == 0 else r4(vD2)
            E(f"v_mfma_f32_16x16x32_bf16 {r4(vD1)}, {r4(slot_of[f'{pre}{2*t}'])}, {r4(B)}, {c1}")
            E(f"v_mfma_f32_16x16x32_bf16 {r4(vD2)}, {r4(slot_of[f'{pre}{2*t+1}'])}, {r4(B)}, {c2}")
        return fn
    def red_a():
        for r in range(4):
            E(f"v_cndmask_b32 v{vD1+r}, v{vD2+r}, v{vD1+r}, s[{sLO8}:{sLO8+1}]")
        E(f"ds_write_b128 v{vRW}, {r4(vD1)} offset:{RED}")
    def t_bar():
        E("s_waitcnt lgkmcnt(0)")
        E("s_barrier")
    def red_b(dst):
        E(f"ds_read_b128 {r4(dst)}, v{vRR} offset:{RED}")
        E("s_waitcnt lgkmcnt(0)")
        row_reduce(E, [dst + i for i in range(4)])
        for i in range(4): E(f"v_cvt_pk_bf16_f32 v{dst+i}, v{dst+i}, v{dst+i}")
    def t_qr2():
        E(f"v_lshlrev_b32 v{vB1}, 6, v{vJ}")
        E(f"s_lshl_b32 s{sT0}, s{sW}, 1")
        E(f"v_add_u32 v{vB1}, s{sT0}, v{vB1}")
        red_b(vB0)
        E(f"s_mov_b32 exec_lo, 0x00010001")
        E(f"s_mov_b32 exec_hi, 0x00010001")
        for i in range(4): E(f"ds_write_b16 v{vB1}, v{vB0+i} offset:{QF+16*i}")
        E("s_mov_b64 exec, -1")
        E(f"v_lshlrev_b32 v{vB1}, 4, v{vN}")
    def t_qr3():
        E(f"ds_read_b128 {r4(vQ)}, v{vB1} offset:{QF}")
        E("s_waitcnt lgkmcnt(0)")
        stamp(2)
    def t_k2(t):
        def fn():
            ks = [slot_of[f"k{2*t+i}"] for i in range(4)]
            acc = [vB0 + i for i in range(4)]
            for i in range(4):
                for u in range(4):
                    E(f"v_dot2_f32_bf16 v{acc[u]}, v{ks[u]+i}, v{vQ+i}, {'0' if i == 0 else 'v%d' % acc[u]}")
            s0, s1 = vS + t, vS + t + 1
            E(f"v_add_f32_dpp v{s0}, v{acc[0]}, v{acc[0]} row_ror:8 row_mask:0xf bank_mask:0x3")
            E(f"v_add_f32_dpp v{s0}, v{acc[1]}, v{acc[1]} row_ror:8 row_mask:0xf bank_mask:0xc")
            E(f"v_add_f32_dpp v{s1}, v{acc[2]}, v{acc[2]} row_ror:8 row_mask:0xf bank_mask:0x3")
            E(f"v_add_f32_dpp v{s1}, v{acc[3]}, v{acc[3]} row_ror:8 row_mask:0xf bank_mask:0xc")
            for mod in ("row_half_mirror", "quad_perm:[1,0,3,2]", "quad_perm:[2,3,0,1]"):
                for s in (s0, s1):
                    E(f"v_add_f32_dpp v{s}, v{s}, v{s} {mod} row_mask:0xf bank_mask:0xf")
            bf16r_many(E, [s0, s1])
            E(f"v_mul_f32 v{s0}, {SCALE:#x}, v{s0}")
            E(f"v_mul_f32 v{s1}, {SCALE:#x}, v{s1}")
            bf16r_many(E, [s0, s1])
        return fn
    m, l = vD1, vD1 + 1
    def t_sm1():
        E(f"v_max3_f32 v{m}, v{vS}, v{vS+1}, v{vS+2}")
        for i in range(3, 15, 2): E(f"v_max3_f32 v{m}, v{m}, v{vS+i}, v{vS+i+1}")
        E(f"v_max_f32 v{m}, v{m}, v{vS+15}")
        for i in range(16): E(f"v_sub_f32 v{vS+i}, v{vS+i}, v{m}")
        for i in range(16): E(f"v_mul_f32 v{vS+i}, {LOG2E:#x}, v{vS+i}")
        for i in range(16): E(f"v_exp_f32 v{vS+i}, v{vS+i}")
        E(f"v_add_f32 v{l}, v{vS}, v{vS+1}")
        E(f"v_add_f32 v{vB0}, v{vS+2}, v{vS+3}")
        for i in range(4, 16, 2):
            E(f"v_add_f32 v{l}, v{l}, v{vS+i}")
            E(f"v_add_f32 v{vB0}, v{vB0}, v{vS+i+1}")
        E(f"v_add_f32 v{l}, v{l}, v{vB0}")
        E(f"v_and_b32 v{vB0}, 56, v{vL}")
        E(f"s_lshl_b32 s{sT0}, s{sW}, 6")
        E(f"v_add_u32 v{vB0}, s{sT0}, v{vB0}")
        E(f"ds_write_b64 v{vB0}, {r2(m)} offset:{ML}")
        E(f"v_lshlrev_b32 v{vB0}, 3, v{vL}")
        stamp(3)
    def t_smb():
        E("s_waitcnt lgkmcnt(0)")
        E("s_barrier")
        stamp(4)
    def t_sm2():
        mg, lg = vD2, vD2 + 1
        E(f"ds_read_b64 {r2(mg)}, v{vB0} offset:{ML}")
        E("s_waitcnt lgkmcnt(0)")
        E(f"v_mov_b32 v{vB0}, v{mg}")
        wave_reduce(E, vB0, sT0, "v_max_f32")
        E(f"v_subrev_f32 v{mg}, s{sT0}, v{mg}")
        E(f"v_subrev_f32 v{m}, s{sT0}, v{m}")
        E(f"v_mul_f32 v{mg}, {LOG2E:#x}, v{mg}")
        E(f"v_mul_f32 v{m}, {LOG2E:#x}, v{m}")
        E(f"v_exp_f32 v{mg}, v{mg}")
        E(f"v_exp_f32 v{m}, v{m}")
        E(f"v_mul_f32 v{lg}, v{lg}, v{mg}")
        wave_reduce(E, lg, sT1)
        E(f"v_rcp_f32 v{l}, s{sT1}")
        E(f"v_mul_f32 v{m}, v{m}, v{l}")
        for i in range(16): E(f"v_mul_f32 v{vS+i}, v{vS+i}, v{m}")
        for i in range(16): E(f"v_cvt_pk_bf16_f32 v{vS+i}, v{vS+i}, v{vS+i}")
    Bs = [vB0, vB1, vD1, vD2]
    vA, vA2, vA3 = vQ, vQ + 1, vQ + 2
    vFL2 = vD2 + 2
    vA4 = vQ + 3
    sVA = 22
    def t_pre_tail():
        E(f"v_and_b32 v{vA}, 7, v{vL}")
        E(f"v_mul_u32_u24 v{vA}, 80, v{vA}")
        E(f"v_lshl_add_u32 v{vA}, v{vJ}, 4, v{vA}")
        E(f"s_mul_i32 s{sT0}, s{sW}, {YPS}")
        E(f"v_add_u32 v{vA}, s{sT0}, v{vA}")
        for k, (dst, add) in enumerate(((vA2, 0), (vA3, 480))):
            E(f"s_mul_i32 s{sT0}, s{sW}, 60")
            E(f"s_add_u32 s{sT0}, s{sT0}, {add}")
            E(f"v_mul_u32_u24 v{vA4}, 15, v{vJ}")
            E(f"v_add3_u32 v{vA4}, v{vA4}, v{vN}, s{sT0}")
            if k == 1:
                E(f"s_mov_b32 s{sT1}, 640")
                E(f"v_cmp_gt_u32 s[{sVA}:{sVA+1}], s{sT1}, v{vA4}")
            E(f"v_min_u32 v{vA4}, 639, v{vA4}")
            E(f"v_lshrrev_b32 v{dst}, 7, v{vA4}")
            E(f"v_mul_u32_u24 v{dst}, 640, v{dst}")
            E(f"v_and_b32 v{vFL2}, 7, v{vA4}")
            E(f"v_mul_u32_u24 v{vFL2}, 80, v{vFL2}")
            E(f"v_add_u32 v{dst}, v{dst}, v{vFL2}")
            E(f"v_bfe_u32 v{vFL2}, v{vA4}, 3, 4")
            E(f"v_lshl_add_u32 v{dst}, v{vFL2}, 2, v{dst}")
        E(f"v_lshlrev_b32 v{vA4}, 2, v{vL}")
    def t_role():
        E(f"s_and_b32 s{sT0}, s2, 7")
        E(f"s_lshl_b32 s{sT0}, s{sT0}, 2")
        E(f"s_lshr_b32 s{sT0}, {a.rtab}, s{sT0}")
        E(f"s_and_b32 s{sT0}, s{sT0}, 15")
        if a.dyn: E(f"s_mov_b32 s{sT1}, s{sTKO}")
        else: E(f"s_lshr_b32 s{sT1}, s2, 3")
        E(f"s_mul_i32 s{sT2}, s{sT0}, 9")
        E(f"s_add_u32 s{sT2}, s{sT2}, s{sT1}")
        E(f"s_add_u32 s{sT2}, s{sT2}, {NF2}")
        E(f"s_cmp_lt_u32 s{sT1}, 9")
        E(f"s_cselect_b32 s{sT2}, s{sT2}, 255")
        E(f"s_sub_u32 s{sT3}, s{sT0}, 8")
        E(f"s_mul_i32 s{sT3}, s{sT3}, {8 // NC}")
        E(f"s_add_u32 s{sT3}, s{sT3}, s{sT1}")
        E(f"s_cmp_lt_u32 s{sT1}, {8 // NC}")
        E(f"s_cselect_b32 s{sT3}, s{sT3}, 255")
        E(f"s_cmp_lt_u32 s{sT0}, 8")
        E(f"s_cselect_b32 s{sTILE}, s{sT2}, s{sT3}")
    def t_flag():
        E(f"v_cmp_eq_u32 vcc, 0, v{vFL}")
        E.flush()
        E("s_cbranch_vccz L_flagok")
        E.label("L_flag")
        E("s_sleep 2")
        E(f"v_and_b32 v{vFL}, 7, v{vL}")
        E(f"v_lshlrev_b32 v{vFL}, 2, v{vFL}")
        E(f"buffer_load_dword v{vFL}, v{vFL}, {S4(sDB)}, 0 offen sc1", tag="extra")
        E("s_waitcnt vmcnt(0)")
        E(f"v_cmp_eq_u32 vcc, 0, v{vFL}")
        E.flush()
        E("s_cbranch_vccz L_flagok")
        spin("L_flagok")
        E("s_branch L_flag")
        E.label("L_flagok")
    sDO, sDL = 21, 24
    vDM1 = vFL
    def t_dmaprep():
        tmp = alloc("tmpd")
        E(f"s_mov_b32 s{sWF}, s16")
        E(f"s_and_b32 s{sWF+1}, s17, 0xffff")
        E(f"s_mov_b32 s{sWF+2}, {640*3456}")
        E(f"s_mov_b32 s{sWF+3}, 0x20000")
        E(f"v_lshrrev_b32 v{vDM1}, 3, v{vL}")
        E(f"v_mul_u32_u24 v{vDM1}, 3456, v{vDM1}")
        E(f"v_and_b32 v{tmp}, 1, v{vJ}")
        E(f"v_lshlrev_b32 v{tmp}, 2, v{tmp}")
        E(f"s_and_b32 s{sT0}, s{sW}, 1")
        E(f"s_lshl_b32 s{sT1}, s{sT0}, 1")
        E(f"v_xor_b32 v{tmp}, s{sT1}, v{tmp}")
        E(f"v_xor_b32 v{tmp}, v{vL}, v{tmp}")
        E(f"v_and_b32 v{tmp}, 7, v{tmp}")
        E(f"v_lshl_add_u32 v{vDM1}, v{tmp}, 4, v{vDM1}")
        E(f"s_lshr_b32 s{sT1}, s{sW}, 1")
        E(f"s_mul_i32 s{sT1}, s{sT1}, 15")
        E(f"s_lshl_b32 s{sT0}, s{sT0}, 3")
        E(f"s_add_u32 s{sT1}, s{sT1}, s{sT0}")
        E(f"s_mul_i32 s{sT1}, s{sT1}, 3456")
        E(f"s_mov_b32 s{sDO}, s{sT1}")
        E(f"s_lshl_b32 s{sDL}, s{sW}, 10")
        E(f"s_add_u32 s{sDL}, s{sDL}, {WT}")
    def t_ypw():
        stamp(7)
        E(f"s_mov_b64 exec, s[{sLO8}:{sLO8+1}]")
        for cg in range(5):
            E(f"ds_write_b128 v{vA}, {r4(slot_of[f'y{cg}'])} offset:{YP+cg*640}")
        E("s_mov_b64 exec, -1")
    def t_or1():
        stamp(5)
        red_a()
        if a.dyn:
            E(f"s_cmp_eq_u32 s{sW}, 0")
            E("s_cselect_b32 exec_lo, 1, 0")
            E("s_mov_b32 exec_hi, 0")
            E(f"ds_write_b32 v{slot_of['tk']+1}, v{slot_of['tk']}")
            E("s_mov_b64 exec, -1")
        t_bar()
        stamp(6)
    def t_or2():
        if a.dyn: E(f"ds_read_b32 v{slot_of['tk']}, v{slot_of['tk']+1}")
        red_b(vS)
        bfrag(Bs[0], vS)
        for cg in range(5): alloc(f"y{cg}")
    def t_y(f):
        def fn():
            fp, cg = divmod(f, 5)
            y = slot_of[f"y{cg}"]
            c = "0" if fp == 0 else r4(y)
            E(f"v_mfma_f32_16x16x32_bf16 {r4(y)}, {r4(slot_of[f'wo{f}'])}, {r4(Bs[fp])}, {c}")
            if fp < 3 and cg < 4: E(f"v_and_b32 v{Bs[fp+1]+cg}, v{vS+fp+1}, v{vM+cg}")
            if a.dyn and f == 4: E(f"v_readfirstlane_b32 s{sTKO}, v{slot_of['tk']}")
            if a.dyn and f == 9: t_role()
        return fn
    tasks = []
    tasks.append(Task(t_setup))
    tasks.append(Task(t_ln1a, ["xs"], cost=3))
    tasks.append(Task(t_ln1b, [] if a.qp2 else ["xc"], cost=2))
    for t in range(10):
        tasks.append(Task(t_pair(t, "wq"), [f"wq{2*t+1}"], frees=[f"wq{2*t}", f"wq{2*t+1}"]))
        if t == 1: tasks.append(Task(t_init, atomic=True))
        if t == 5: tasks.append(Task(t_flagset, ["wq11"], frees=["z0", "z1", "z2", "z3"], atomic=True))
        if t == a.l2pf and not a.spf and not a.nodma: tasks.append(Task(t_l2pf, atomic=True))
        if a.spf and a.nodma < 2 and a.endpf != 3:
            if t == 0: tasks.append(Task(t_spf0, atomic=True))
            if t in (2, 4, 6): tasks.append(Task(t_spf(t // 2 - 1), atomic=True))
    tasks.append(Task(red_a))
    tasks.append(Task(t_bar, barrier=a.bd1))
    tasks.append(Task(t_qr2))
    tasks.append(Task(t_bar, barrier=a.bd2))
    tasks.append(Task(t_qr3))
    for t in range(0, 16, 2):
        tasks.append(Task(t_k2(t), [f"k{2*t+3}"], frees=[f"k{2*t+i}" for i in range(4)], cost=2))
    tasks.append(Task(t_sm1, cost=2))
    tasks.append(Task(t_smb, barrier=a.bd3))
    tasks.append(Task(t_sm2, cost=2))
    tasks.append(Task(t_pre_tail))
    if not a.dyn: tasks.append(Task(t_role, atomic=True))
    if a.endpf: tasks.append(Task(t_epf_prep, atomic=True))
    for t in range(16):
        tasks.append(Task(t_pair(t, "v"), [f"v{2*t+1}"], frees=[f"v{2*t}", f"v{2*t+1}"], cost=0.5))
        if t == 9:
            tasks.append(Task(t_flag, ["flag"], atomic=True))
            tasks.append(Task(t_dmaprep, frees=["tmpd"]))
    tasks.append(Task(t_or1, barrier=99))
    tasks.append(Task(t_or2))
    for f in range(20): tasks.append(Task(t_y(f), [f"wo{f}"], cost=0.25))
    tasks.append(Task(t_ypw))

    issued = {"xs", "xc"} | {f"k{f}" for f in range(a.nk0)}
    pend = deque(tasks)
    def ready(t): return all(n in issued and n not in E.vm for n in t.needs)
    def start(t):
        if t.q is None:
            for n in t.needs:
                assert n in issued, n
                if n in E.vm: E.wait_vm(n)
            t.q = E.record(t.fn)
    def step(t, budget):
        start(t)
        n = 0
        masked = False
        while t.q and (t.atomic or masked or n < budget):
            it = t.q.popleft(); E.play(it); n += 1
            if it[0] == "i" and "exec" in it[1].split(",")[0]:
                masked = not it[1].endswith("exec, -1")
        if not t.q:
            for x in t.frees: release(x)
        return n
    def run(t):
        step(t, 10**9)
    D = a.depth
    for i, (tag, fn, needs_slot) in enumerate(loads):
        while needs_slot and not free:
            run(pend.popleft())
        if tag == "epf":
            while any(t.fn is t_epf_prep for t in pend): run(pend.popleft())
            while pend[0].q is not None: run(pend.popleft())
        if tag == "tk":
            while pend[0].q is not None: run(pend.popleft())
        lim = 63 if i < a.first else D
        if len(E.vm) >= lim:
            E(f"s_waitcnt vmcnt({lim-1})")
            E.vm = E.vm[len(E.vm) - (lim - 1):]
        fn(); issued.add(tag)
        if i + 1 < a.first: continue
        budget = a.budget
        while pend and budget > 0 and (pend[0].q is not None or ready(pend[0])):
            if pend[0].barrier > 0:
                pend[0].barrier -= 1
                break
            budget -= step(pend[0], budget)
            if not pend[0].q: pend.popleft()
    while pend: run(pend.popleft())
    assert set(E.vm) <= {"epf"}, E.vm
    E.vm = []
    E(f"s_mul_i32 s{sT0}, s{sB}, {HS}")
    E(f"s_lshl_b32 s{sT1}, s{sW}, 8")
    E(f"s_add_u32 s{sT0}, s{sT0}, s{sT1}")
    E(f"s_mov_b32 s{sT2}, 0x80008000")
    E(f"s_mov_b32 s{sT3}, 0x80008000")
    E("s_waitcnt lgkmcnt(0)")
    E("s_barrier")
    stamp(8)
    vP = vS
    for k, ad in enumerate((vA2, vA3)):
        for p in range(4):
            E(f"ds_read2st64_b32 {r2(vP+8*k+2*p)}, v{ad} offset0:{YP//256+26*p} offset1:{YP//256+26*p+13}")
    for k in range(2):
        b = vP + 8 * k
        if not a.ts: E(f"s_waitcnt lgkmcnt({4 if k == 0 else 0})")
        else: E("s_waitcnt lgkmcnt(0)")
        for st in (4, 2, 1):
            for p in range(st):
                E(f"v_add_f32 v{b+p}, v{b+p}, v{b+p+st}")
        if k == 1: E(f"v_cndmask_b32 v{b}, 0, v{b}, s[{sVA}:{sVA+1}]")
        E(f"v_cndmask_b32 v{b}, v{b}, 1.0, s[{sT2}:{sT3}]")
        if k == 1:
            E(f"s_cmp_ge_u32 s{sW}, 3")
            E("s_cbranch_scc1 L_arr")
        E(f"buffer_atomic_add_f32 v{b}, v{vA4}, {S4(sWS)}, s{sT0} offen offset:{2048*k}", tag="extra")
    E.label("L_arr")
    stamp(9)
    if a.endpf and a.epos < 0: epf()[1]()
    if a.endpf: assert not (128 <= slot_of["epf"] - vF + 3 < 172), slot_of["epf"]
    E(f"s_cmp_ge_u32 s{sTILE}, {NF2 + NF1}")
    E("s_cbranch_scc1 L_fin")
    E(f"s_mov_b32 s{sWF+2}, {640*3456}")
    E(f"s_mov_b32 s{sWF+3}, 0x20000")
    E(f"s_cmp_lt_u32 s{sTILE}, {NF2}")
    E("s_cbranch_scc1 L_ffn2")

    vW = vF
    E(f"s_mov_b32 s{sROLE}, 1")
    E(f"s_sub_u32 s{sTILE}, s{sTILE}, {NF2}")
    E(f"s_mov_b32 s{sWF}, s16")
    E(f"s_and_b32 s{sWF+1}, s17, 0xffff")
    vDM, vX0 = vB0, vB0 + 1
    E(f"s_lshl_b32 s{sT0}, s{sTILE}, 7")
    E(f"s_add_u32 s{sDO}, s{sDO}, s{sT0}")
    xq = [vF + 172, vF + 174, vF + 176]
    if a.endpf: assert not (172 <= slot_of["epf"] - vF + 3 < 180)
    E(f"v_lshrrev_b32 v{vX0}, 2, v{vL}")
    E(f"v_mul_u32_u24 v{vX0}, 30, v{vX0}")
    E(f"v_and_b32 v{vX0+1}, 3, v{vL}")
    E(f"v_lshl_add_u32 v{vX0}, v{vX0+1}, 3, v{vX0}")
    E(f"s_mul_i32 s{sT0}, s{sW}, 1280")
    for i in range(3):
        E(f"buffer_load_dwordx2 {r2(xq[i])}, v{vX0}, {S4(sX)}, s{sT0} offen offset:{480*i}", tag="extra")
    if a.abar: E("s_barrier")
    stamp(10)
    late = True
    for t in range(11 if not a.nodma else 0):
        E(f"s_mov_b32 m0, s{sDL}")
        E(f"buffer_load_dwordx4 v{vDM1}, {S4(sWF)}, s{sDO} offen{fnt} lds", tag="extra")
        if t < 10:
            E(f"s_add_u32 s{sDO}, s{sDO}, {60*3456}")
            E(f"s_add_u32 s{sDL}, s{sDL}, 8192")
    if a.ts == 2: stamp(1)
    hb = vF + 88
    ac = vF + 136
    xk = vF + 148
    hn = vF + 160
    for i in range(12): E(f"v_mov_b32 v{hn+i}, 0")
    for i in range(8, 11): E(f"v_mov_b32 v{ac+i}, 0")
    E(f"v_mov_b32 v{ac+11}, 0x42000000")
    vA = vB1
    E(f"v_lshlrev_b32 v{vA+2}, 3, v{vL}")
    E(f"s_mul_i32 s{sT1}, s{sW}, {HNS}")
    E(f"v_add_u32 v{vA+2}, s{sT1}, v{vA+2}")
    vTR1 = vQ
    E(f"v_lshlrev_b32 v{vTR1}, 10, v{vJ}")
    E(f"v_lshrrev_b32 v{vDM}, 2, v{vN}")
    E(f"v_lshl_add_u32 v{vTR1}, v{vDM}, 7, v{vTR1}")
    E(f"v_and_b32 v{vDM}, 2, v{vDM}")
    E(f"v_and_b32 v{vX0}, 1, v{vJ}")
    E(f"v_or_b32 v{vDM}, v{vDM}, v{vX0}")
    E(f"s_and_b32 s{sT0}, s{sW}, 3")
    E(f"v_xor_b32 v{vDM}, s{sT0}, v{vDM}")
    E(f"v_lshl_add_u32 v{vTR1}, v{vDM}, 5, v{vTR1}")
    E(f"v_and_b32 v{vDM}, 3, v{vN}")
    E(f"v_lshl_add_u32 v{vTR1}, v{vDM}, 3, v{vTR1}")
    E(f"v_add_u32 v{vTR1}, {WT}, v{vTR1}")
    E(f"v_add_u32 v{vTR1+1}, {11*4096}, v{vTR1}")
    E(f"v_and_b32 v{vA+3}, 7, v{vL}")
    E(f"v_mul_u32_u24 v{vA+3}, {HNS}, v{vA+3}")
    E(f"v_lshl_add_u32 v{vA+3}, v{vJ}, 4, v{vA+3}")
    E(f"v_lshrrev_b32 v{vDM}, 3, v{vN}")
    E(f"v_lshl_add_u32 v{vA+3}, v{vDM}, 6, v{vA+3}")
    E(f"v_lshlrev_b32 v{vA}, 5, v{vN}")
    E(f"v_lshl_add_u32 v{vA}, v{vJ}, 3, v{vA}")
    E(f"s_lshl_b32 s{sT3}, s{sTILE}, 2")
    E(f"s_add_u32 s{sT3}, s{sT3}, s{sW}")
    E(f"s_lshl_b32 s{sT3}, s{sT3}, 8")
    E(f"s_mul_i32 s{sT2}, s{sW}, {HS}")
    sM3, sCL = 12, 14
    E(f"s_mov_b32 s{sM3}, 0x77777777")
    E(f"s_mov_b32 s{sM3+1}, 0x77777777")
    E(f"s_mov_b32 s{sCL}, 0x88888888")
    E(f"s_mov_b32 s{sCL+1}, 0x88888888")
    def accload():
        E(f"buffer_load_dwordx4 {r4(ac)}, v{vL16}, {S4(sWS)}, s{sT2} offen sc1", tag="extra")
        E(f"buffer_load_dwordx4 {r4(ac+4)}, v{vL16}, {S4(sWS)}, s{sT2} offen offset:1024 sc1", tag="extra")
        E("s_mov_b32 exec_hi, 0xffff")
        E(f"buffer_load_dwordx4 {r4(ac+8)}, v{vL16}, {S4(sWS)}, s{sT2} offen offset:2048 sc1", tag="extra")
        E("s_mov_b32 exec_hi, -1")
    if a.ts == 2: stamp(2)
    E("s_waitcnt vmcnt(%d)" % (0 if late else (2 if a.endpf and a.epos < 0 else 1)))
    if a.ts == 2: stamp(3)
    for i in range(6):
        E(f"v_lshlrev_b32 v{xk+2*i}, 16, v{xq[i//2]+i%2}")
        E(f"v_and_b32 v{xk+2*i+1}, 0xffff0000, v{xq[i//2]+i%2}")
    sLO_, sHI_, sONE = 20, 21, 24
    vNI, vKM = hn + 6, hn + 7
    if a.ln2:
        E(f"s_mov_b32 s{sLO_}, 0x00003f80")
        E(f"s_mov_b32 s{sHI_}, 0x3f800000")
        E(f"s_mov_b32 s{sONE}, 0x3f803f80")
        E(f"v_mov_b32 v{vNI}, 0xbacccccd")
        E(f"v_mov_b32 v{vKM}, -1")
        E(f"v_mov_b32 v{vKM+1}, -1")
        E(f"v_mov_b32 v{vKM+2}, -1")
        E("s_mov_b32 exec_lo, 0")
        E(f"s_mov_b32 exec_hi, {0xffffffff ^ ((1 << 11) - 1):#x}")
        E(f"v_mov_b32 v{xk+8}, 0"); E(f"v_mov_b32 v{xk+9}, 0"); E(f"v_mov_b32 v{vKM+1}, 0")
        E(f"s_mov_b32 exec_hi, {0xffffffff ^ ((1 << 10) - 1):#x}")
        E(f"v_mov_b32 v{xk+10}, 0"); E(f"v_mov_b32 v{xk+11}, 0"); E(f"v_mov_b32 v{vKM+2}, 0")
        E(f"s_mov_b64 exec, s[{sCL}:{sCL+1}]")
        for i in (3, 7, 11): E(f"v_mov_b32 v{xk+i}, 0xc2000000")
        E(f"v_mov_b32 v{vKM}, 0xffff")
        E(f"v_and_b32 v{vKM+2}, 0xffff, v{vKM+2}")
        E("s_mov_b32 exec_lo, 0")
        E("s_mov_b32 exec_hi, 0xffff0000")
        E(f"v_mov_b32 v{xk+11}, 0xc2000000")
        E("s_mov_b64 exec, -1")
    E("s_barrier")
    if a.ts == 2: stamp(4)
    thr = struct.unpack("<I", struct.pack("<f", float(a.gate)))[0]
    E(f"s_mul_i32 s{sT4}, s{sTILE}, {a.gstep}")
    E(f"s_and_b32 s{sT4}, s{sT4}, 0xffffffc0")
    E(f"s_add_u32 s{sT4}, s{sT4}, s{sT2}")
    if a.spec: accload()
    else: E(f"buffer_load_dword v{vD2}, off, {S4(sWS)}, s{sT4} offset:60 sc1", tag="extra")
    E(f"s_cmp_ge_u32 s{sW}, 4")
    E("s_cbranch_scc1 L_f1_notr")
    for t in range(22):
        o = (t % 11) * 4096
        E(f"ds_read_b64_tr_b16 {r2(vW+4*t)}, v{vTR1 + t//11} offset:{o}")
        E(f"ds_read_b64_tr_b16 {r2(vW+4*t+2)}, v{vTR1 + t//11} offset:{o+512}")
    stamp(11)
    E.label("L_f1_notr")
    if not a.spec: E("s_branch L_f1_gate")
    E.label("L_f1_poll")
    E("s_waitcnt vmcnt(0)")
    E(f"v_min3_f32 v{vD1}, v{ac+3}, v{ac+7}, v{ac+11}")
    E(f"v_cmp_gt_f32 vcc, 0x42000000, v{vD1}")
    E(f"s_and_b64 vcc, vcc, s[{sCL}:{sCL+1}]")
    E("s_cbranch_scc0 L_f1_go")
    spin("L_f1_go")
    E(f"v_readlane_b32 s{sT0}, v{ac+3}, 3")
    E(f"s_cmp_ge_u32 s{sT0}, {thr:#x}")
    E("s_cbranch_scc1 L_f1_full")
    E.label("L_f1_regate")
    if a.sleep: E(f"s_sleep {a.sleep}")
    E(f"buffer_load_dword v{vD2}, off, {S4(sWS)}, s{sT4} offset:60 sc1", tag="extra")
    E.label("L_f1_gate")
    E("s_waitcnt vmcnt(0)")
    E(f"v_readfirstlane_b32 s{sT0}, v{vD2}")
    E(f"s_cmp_ge_u32 s{sT0}, {thr:#x}")
    E("s_cbranch_scc1 L_f1_full")
    spin("L_f1_full")
    E("s_branch L_f1_regate")
    E.label("L_f1_full")
    accload()
    E("s_branch L_f1_poll")
    E.label("L_f1_go")
    if a.tprio: E("s_setprio 2")
    stamp(12)
    t0_, t1_, t2_, vMN, vRC = vD1, vD1 + 1, vD1 + 2, vD2, vD2 + 1
    if a.ln2 == 0:
        hx = ac
        bf16r_many(E, range(ac, ac + 12))
        for i in range(12): E(f"v_add_f32 v{hx+i}, v{xk+i}, v{ac+i}")
        bf16r_many(E, range(hx, hx + 12))
        full = [0, 1, 2, 4, 5, 6]
        def masked(fn):
            for i in full: fn(i)
            E(f"s_mov_b32 exec_hi, {(1 << 11) - 1:#x}")
            fn(8); fn(9)
            E(f"s_mov_b32 exec_hi, {(1 << 10) - 1:#x}")
            fn(10)
            E(f"s_and_b64 exec, exec, s[{sM3}:{sM3+1}]")
            fn(11)
            E(f"s_mov_b64 exec, s[{sM3}:{sM3+1}]")
            fn(3); fn(7)
            E("s_mov_b64 exec, -1")
        t0_, t1_, t2_, vMN, vRC = vD1, vD1 + 1, vD1 + 2, vD2, vD2 + 1
        def f_sum(i):
            if i == 0: E(f"v_add_f32 v{t0_}, v{hx}, v{hx+1}")
            elif i == 1: pass
            elif i == 2: E(f"v_add_f32 v{t1_}, v{hx+2}, v{hx+4}")
            elif i == 4: pass
            else:
                d = t0_ if i % 2 else t1_
                E(f"v_add_f32 v{d}, v{d}, v{hx+i}")
        masked(f_sum)
        E(f"v_add_f32 v{t0_}, v{t0_}, v{t1_}")
        E(f"v_mov_b32 v{t2_}, 0x3acccccd")
        wave_reduce(E, t0_, sT0)
        E(f"v_mul_f32 v{vMN}, s{sT0}, v{t2_}")
        for i in range(12): E(f"v_sub_f32 v{xk+i}, v{hx+i}, v{vMN}")
        def f_var(i):
            if i == 0: E(f"v_mul_f32 v{t0_}, v{xk}, v{xk}")
            elif i == 1: E(f"v_mul_f32 v{t1_}, v{xk+1}, v{xk+1}")
            else:
                d = t0_ if i % 2 == 0 else t1_
                E(f"v_fmac_f32 v{d}, v{xk+i}, v{xk+i}")
        masked(f_var)
        E(f"v_add_f32 v{t0_}, v{t0_}, v{t1_}")
        bf16r(E, vMN, vMN)
        row_reduce(E, [t0_])
        for i in range(6): E(f"v_sub_f32 v{hx+i}, v{hx+i}, v{vMN}")
        E(f"v_add_f32_dpp v{t0_}, v{t0_}, v{t0_} row_bcast:15 row_mask:0xa bank_mask:0xf")
        for i in range(6, 12): E(f"v_sub_f32 v{hx+i}, v{hx+i}, v{vMN}")
        E(f"v_add_f32_dpp v{t0_}, v{t0_}, v{t0_} row_bcast:31 row_mask:0xc bank_mask:0xf")
        bf16r_many(E, range(hx, hx + 4))
        E(f"v_readlane_b32 s{sT0}, v{t0_}, 63")
        bf16r_many(E, range(hx + 4, hx + 8))
        E(f"v_mul_f32 v{t0_}, s{sT0}, v{t2_}")
        bf16r(E, t0_, t0_)
        E(f"v_add_f32 v{t0_}, 0x3727c5ac, v{t0_}")
        bf16r(E, t0_, t0_)
        E(f"v_sqrt_f32 v{t0_}, v{t0_}")
        bf16r_many(E, range(hx + 8, hx + 12))
        bf16r(E, t0_, t0_)
        E(f"v_rcp_f32 v{vRC}, v{t0_}")
        masked(lambda i: E(f"v_mul_f32 v{hn+i}, v{hx+i}, v{vRC}"))
        for i in range(6): E(f"v_cvt_pk_bf16_f32 v{xk+i}, v{hn+2*i}, v{hn+2*i+1}")
    else:
        pk = hn
        sel = (sLO_, sHI_)
        for i in range(6): E(f"v_cvt_pk_bf16_f32 v{pk+i}, v{ac+2*i}, v{ac+2*i+1}")
        for i in range(12): E(f"v_dot2_f32_bf16 v{ac+i}, v{pk+i//2}, s{sel[i%2]}, v{xk+i}")
        for i in range(6): E(f"v_cvt_pk_bf16_f32 v{pk+i}, v{ac+2*i}, v{ac+2*i+1}")
        for i in range(6):
            d = t0_ if i % 2 == 0 else t1_
            E(f"v_dot2_f32_bf16 v{d}, v{pk+i}, s{sONE}, {'0' if i < 2 else 'v%d' % d}")
        fill = []
        for i in range(6):
            fill.append(f"v_lshlrev_b32 v{xk+2*i}, 16, v{pk+i}")
            fill.append(f"v_and_b32 v{xk+2*i+1}, 0xffff0000, v{pk+i}")
        chain = [f"v_add_f32 v{t0_}, v{t0_}, v{t1_}"]
        chain += [f"v_add_f32_dpp v{t0_}, v{t0_}, v{t0_} row_ror:{sh} row_mask:0xf bank_mask:0xf" for sh in (8, 4, 2, 1)]
        chain += [f"v_add_f32_dpp v{t0_}, v{t0_}, v{t0_} row_bcast:15 row_mask:0xa bank_mask:0xf",
                  f"v_add_f32_dpp v{t0_}, v{t0_}, v{t0_} row_bcast:31 row_mask:0xc bank_mask:0xf",
                  f"v_readlane_b32 s{sT0}, v{t0_}, 63"]
        for c in chain:
            for _ in range(2):
                if fill: E(fill.pop(0))
            E(c)
        E(f"v_mul_f32 v{vMN}, s{sT0}, v{vNI}")
        for i in range(12): E(f"v_add_f32 v{ac+i}, v{xk+i}, v{vMN}")
        full = [0, 1, 2, 4, 5, 6]
        def masked(fn):
            for i in full: fn(i)
            E(f"s_mov_b32 exec_hi, {(1 << 11) - 1:#x}")
            fn(8); fn(9)
            E(f"s_mov_b32 exec_hi, {(1 << 10) - 1:#x}")
            fn(10)
            E(f"s_and_b64 exec, exec, s[{sM3}:{sM3+1}]")
            fn(11)
            E(f"s_mov_b64 exec, s[{sM3}:{sM3+1}]")
            fn(3); fn(7)
            E("s_mov_b64 exec, -1")
        def f_var(i):
            if i == 0: E(f"v_mul_f32 v{t0_}, v{ac}, v{ac}")
            elif i == 1: E(f"v_mul_f32 v{t1_}, v{ac+1}, v{ac+1}")
            else:
                d = t0_ if i % 2 == 0 else t1_
                E(f"v_fmac_f32 v{d}, v{ac+i}, v{ac+i}")
        masked(f_var)
        E(f"v_add_f32 v{t0_}, v{t0_}, v{t1_}")
        bf16r(E, vMN, vMN)
        fill = [f"v_add_f32 v{ac+i}, v{xk+i}, v{vMN}" for i in range(12)]
        fill += [f"v_cvt_pk_bf16_f32 v{pk+i}, v{ac+2*i}, v{ac+2*i+1}" for i in range(6)]
        for i in (1, 3, 4, 5): fill.append(f"v_and_b32 v{pk+i}, v{pk+i}, v{vKM + (0 if i < 4 else i - 3)}")
        for i in range(6):
            fill.append(f"v_lshlrev_b32 v{ac+2*i}, 16, v{pk+i}")
            fill.append(f"v_and_b32 v{ac+2*i+1}, 0xffff0000, v{pk+i}")
        chain = [f"v_add_f32_dpp v{t0_}, v{t0_}, v{t0_} row_ror:{sh} row_mask:0xf bank_mask:0xf" for sh in (8, 4, 2, 1)]
        chain += [f"v_add_f32_dpp v{t0_}, v{t0_}, v{t0_} row_bcast:15 row_mask:0xa bank_mask:0xf",
                  f"v_add_f32_dpp v{t0_}, v{t0_}, v{t0_} row_bcast:31 row_mask:0xc bank_mask:0xf",
                  f"v_readlane_b32 s{sT0}, v{t0_}, 63",
                  f"v_mul_f32 v{t0_}, s{sT0}, -v{vNI}",
                  f"v_cvt_pk_bf16_f32 v{t0_}, v{t0_}, v{t0_}", f"v_and_b32 v{t0_}, 0xffff0000, v{t0_}",
                  f"v_add_f32 v{t0_}, 0x3727c5ac, v{t0_}",
                  f"v_cvt_pk_bf16_f32 v{t0_}, v{t0_}, v{t0_}", f"v_and_b32 v{t0_}, 0xffff0000, v{t0_}",
                  f"v_sqrt_f32 v{t0_}, v{t0_}",
                  f"v_cvt_pk_bf16_f32 v{t0_}, v{t0_}, v{t0_}", f"v_and_b32 v{t0_}, 0xffff0000, v{t0_}",
                  f"v_rcp_f32 v{vRC}, v{t0_}"]
        for c in chain:
            E(c)
            for _ in range(2):
                if fill: E(fill.pop(0))
        for c in fill: E(c)
        for i in range(12): E(f"v_mul_f32 v{ac+i}, v{ac+i}, v{vRC}")
        for i in range(6): E(f"v_cvt_pk_bf16_f32 v{xk+i}, v{ac+2*i}, v{ac+2*i+1}")
    E(f"ds_write_b64 v{vA+2}, {r2(xk)} offset:{HN}")
    E(f"ds_write_b64 v{vA+2}, {r2(xk+2)} offset:{HN+512}")
    E("s_mov_b32 exec_hi, 0xffff")
    E(f"ds_write_b64 v{vA+2}, {r2(xk+4)} offset:{HN+1024}")
    E("s_mov_b32 exec_hi, -1")
    E("s_waitcnt lgkmcnt(0)")
    E("s_barrier")
    E(f"s_cmp_ge_u32 s{sW}, 4")
    E("s_cbranch_scc1 L_fin")
    if a.ts:
        stamp(13); E("s_waitcnt lgkmcnt(0)")
    for u in range(11):
        E(f"ds_read_b128 {r4(hb+4*u)}, v{vA+3} offset:{HN+128*u}")
    for u in range(11):
        E(f"s_waitcnt lgkmcnt({10-u})")
        c1 = "0" if u == 0 else r4(vD1)
        c2 = "0" if u == 0 else r4(vD2)
        E(f"v_mfma_f32_16x16x32_bf16 {r4(vD1)}, {r4(vW+8*u)}, {r4(hb+4*u)}, {c1}")
        E(f"v_mfma_f32_16x16x32_bf16 {r4(vD2)}, {r4(vW+8*u+4)}, {r4(hb+4*u)}, {c2}")
    for i in range(4):
        E(f"v_add_f32_dpp v{vD1+i}, v{vD2+i}, v{vD1+i} row_ror:8 row_mask:0xf bank_mask:0xf")
    for i in range(4): E(f"v_max_f32 v{vD1+i}, 0, v{vD1+i}")
    E(f"v_cvt_pk_bf16_f32 v{vD2}, v{vD1}, v{vD1+1}")
    E(f"v_cvt_pk_bf16_f32 v{vD2+1}, v{vD1+2}, v{vD1+3}")
    E(f"s_mov_b64 exec, s[{sLO8}:{sLO8+1}]")
    E(f"buffer_store_dwordx2 {r2(vD2)}, v{vA}, {S4(sH1)}, s{sT3} offen sc1", tag="extra")
    stamp(14)
    E("s_branch L_fin")

    E.label("L_ffn2")
    E.comment("FFN2: %d columns of w2" % (16 * NC))
    E(f"s_mov_b64 s[{sDRY}:{sDRY+1}], {0 if a.dry & 2 else -1}")
    E(f"s_mov_b32 s{sROLE}, 2")
    E(f"s_mov_b32 s{sWF}, s18")
    E(f"s_and_b32 s{sWF+1}, s19, 0xffff")
    vDA = vQ + 2
    vA = vD1
    lpr = 2 * NC
    rpi = 64 // lpr
    nd2 = 7 * NC
    E(f"v_lshrrev_b32 v{vDA}, {NC}, v{vL}")
    E(f"v_mul_u32_u24 v{vDA}, 1280, v{vDA}")
    E(f"v_and_b32 v{vA+1}, {lpr-1}, v{vL}")
    E(f"v_lshl_add_u32 v{vDA}, v{vA+1}, 4, v{vDA}")
    sD0, sD2 = 12, 13
    E(f"s_mul_i32 s{sD0}, s{sW}, {7*32*1280}")
    E(f"s_mul_i32 s{sT1}, s{sTILE}, {32*NC}")
    E(f"s_add_u32 s{sD0}, s{sD0}, s{sT1}")
    E(f"s_mul_i32 s{sT3}, s{sW}, {nd2*1024}")
    E(f"s_add_u32 s{sT3}, s{sT3}, {WT}")
    E(f"s_mov_b32 s{sD2}, s{sT3}")
    def dma2():
        for t in range(nd2 if not a.nodma else 0):
            E(f"s_mov_b32 m0, s{sD2}")
            E(f"buffer_load_dwordx4 v{vDA}, {S4(sWF)}, s{sD0} offen{fnt} lds", tag="extra")
            if t < nd2 - 1:
                E(f"s_add_u32 s{sD0}, s{sD0}, {rpi*1280}")
                E(f"s_add_u32 s{sD2}, s{sD2}, 1024")
    E("s_barrier")
    stamp(10)
    if not a.late2: dma2()
    vB7 = vQ
    vXO = vQ + 1
    E(f"v_and_b32 v{vB7}, 7, v{vL}")
    E(f"v_mul_u32_u24 v{vXO}, 1280, v{vB7}")
    E(f"v_lshl_add_u32 v{vXO}, v{vJ}, 3, v{vXO}")
    E(f"s_and_b32 s{sT4}, s{sW}, {NC-1}")
    E(f"s_lshl_b32 s{sT4}, s{sT4}, 5")
    E(f"s_add_u32 s{sT1}, s{sT1}, s{sT4}")
    xr = vS
    E(f"buffer_load_dwordx2 {r2(xr)}, v{vXO}, {S4(sX)}, s{sT1} offen", tag="extra")
    vHA = vF + 128
    E(f"s_lshr_b32 s{sT0}, s{sT1}, 1")
    E(f"v_lshl_add_u32 v{vA}, v{vJ}, 2, s{sT0}")
    E(f"v_mul_u32_u24 v{vA+1}, {HS}, v{vB7}")
    for r in range(4):
        E(f"v_add_u32 v{vA+2}, {r}, v{vA}")
        E(f"v_mul_u32_u24 v{vA+3}, 4370, v{vA+2}")
        E(f"v_lshrrev_b32 v{vA+3}, 16, v{vA+3}")
        E(f"v_add_u32 v{vA+2}, v{vA+2}, v{vA+3}")
        E(f"v_lshl_add_u32 v{vHA+r}, v{vA+2}, 2, v{vA+1}")
        if r in (0, 3):
            E(f"v_lshl_add_u32 v{vHA+4+r//3}, v{vA+3}, 6, v{vA+1}")
    vH1 = vB1 + 1
    E(f"v_lshrrev_b32 v{vH1}, 1, v{vJ}")
    E(f"v_lshlrev_b32 v{vH1}, 8, v{vH1}")
    E(f"v_lshl_add_u32 v{vH1}, v{vB7}, 5, v{vH1}")
    E(f"v_and_b32 v{vB1+2}, 1, v{vJ}")
    E(f"v_lshl_add_u32 v{vH1}, v{vB1+2}, 4, v{vH1}")
    E(f"v_lshrrev_b32 v{vB1+2}, 3, v{vN}")
    E(f"v_lshl_add_u32 v{vH1}, v{vB1+2}, 9, v{vH1}")
    rb = 32 * NC
    vTR = vB1 + 2
    E(f"v_mul_u32_u24 v{vTR}, {8*rb}, v{vJ}")
    E(f"v_lshrrev_b32 v{vB1+3}, 2, v{vN}")
    E(f"v_lshl_add_u32 v{vTR}, v{vB1+3}, {4+NC}, v{vTR}")
    E(f"v_and_b32 v{vB1+3}, 3, v{vN}")
    E(f"v_lshl_add_u32 v{vTR}, v{vB1+3}, 3, v{vTR}")
    E(f"v_add_u32 v{vTR}, s{sT3}, v{vTR}")
    vRWp, vRRp = vB0, vB0 + 1
    E(f"s_lshl_b32 s{sT0}, s{sW}, 11")
    E(f"v_add_u32 v{vRWp}, s{sT0}, v{vL16}")
    E(f"s_lshl_b32 s{sT0}, s{sT4}, 5")
    E(f"v_add_u32 v{vRRp}, s{sT0}, v{vL16}")
    E(f"s_mul_i32 s{sT2}, s{sW}, {7*512}")
    acc = [vF + 96 + 4 * i for i in range(4)]
    ac = vS + 4
    hx = vS + 12
    hxk = vS + 8
    hb = vF + 64
    def trs():
        E("s_waitcnt vmcnt(0)")
        for t in range(7):
            for c in range(NC):
                E(f"ds_read_b64_tr_b16 {r2(vW+8*t+4*c)}, v{vTR} offset:{t*32*rb+c*32}")
                E(f"ds_read_b64_tr_b16 {r2(vW+8*t+4*c+2)}, v{vTR} offset:{t*32*rb+c*32+4*rb}")
        for i in range(2):
            E(f"v_lshlrev_b32 v{hxk+2*i}, 16, v{xr+i}")
            E(f"v_and_b32 v{hxk+2*i+1}, 0xffff0000, v{xr+i}")
        E("s_waitcnt lgkmcnt(0)")
        stamp(11)
    def cpoll(lbl, thr_):
        E.label(lbl)
        E(f"buffer_load_dword v{vD1}, v{vHA+4}, {S4(sWS)}, 0 offen offset:60 sc1", tag="extra")
        E(f"buffer_load_dword v{vD1+1}, v{vHA+5}, {S4(sWS)}, 0 offen offset:60 sc1", tag="extra")
        E("s_waitcnt vmcnt(0)")
        E(f"v_min_f32 v{vD1}, v{vD1}, v{vD1+1}")
        E(f"v_cmp_gt_f32 vcc, {thr_:#x}, v{vD1}")
        E(f"s_cbranch_vccz {lbl}_ok")
        spin(f"{lbl}_ok")
        E(f"s_sleep {a.sleep3}")
        E(f"s_branch {lbl}")
        E.label(f"{lbl}_ok")
    E.label("L_f2_top")
    E(f"s_mov_b64 exec, s[{sDRY}:{sDRY+1}]")
    E("s_cbranch_execz L_f2_got")
    if a.late2:
        E(f"s_cmp_ge_u32 s{sW}, 1")
        E("s_cbranch_scc1 L_f2_g_ok")
        cpoll("L_f2_g", struct.unpack("<I", struct.pack("<f", float(a.late2)))[0])
        E("s_barrier")
        dma2()
    trs()
    E(f"s_cmp_ge_u32 s{sW}, {NC}")
    E("s_cbranch_scc1 L_f2_go")
    cpoll("L_f2_c", 0x42000000)
    for r in range(4):
        E(f"buffer_load_dword v{ac+r}, v{vHA+r}, {S4(sWS)}, 0 offen sc1", tag="extra")
    E.label("L_f2_go")
    E("s_barrier")
    stamp(12)
    E.label("L_f2_poll2")
    for u in range(4):
        E(f"buffer_load_dwordx4 {r4(hb+4*u)}, v{vH1}, {S4(sH1)}, s{sT2} offen offset:{1024*u} sc1", tag="extra")
    E("s_waitcnt vmcnt(0)")
    E(f"v_max3_u32 v{vD1}, v{hb}, v{hb+1}, v{hb+2}")
    E(f"v_max3_u32 v{vD1+1}, v{hb+3}, v{hb+4}, v{hb+5}")
    for k in range(6, 16, 2):
        tgt = vD1 + ((k // 2) % 2)
        E(f"v_max3_u32 v{tgt}, v{tgt}, v{hb+k}, v{hb+k+1}")
    E(f"v_max_u32 v{vD1}, v{vD1}, v{vD1+1}")
    E(f"v_cmp_eq_u32 vcc, -1, v{vD1}")
    E("s_cbranch_vccz L_f2_got")
    spin("L_f2_got")
    if a.sleep2: E(f"s_sleep {a.sleep2}")
    E("s_branch L_f2_poll2")
    E.label("L_f2_got")
    if a.tprio: E("s_setprio 2")
    stamp(13)
    for t in range(7):
        u, half = divmod(t, 2)
        for c in range(NC):
            d = acc[2 * c + half]
            cc = "0" if u == 0 else r4(d)
            E(f"v_mfma_f32_16x16x32_bf16 {r4(d)}, {r4(vW+8*t+4*c)}, {r4(hb+4*u)}, {cc}")
    bf16r_many(E, range(ac, ac + 4))
    for i in range(4): E(f"v_add_f32 v{hx+i}, v{hxk+i}, v{ac+i}")
    bf16r_many(E, range(hx, hx + 4))
    for c in range(NC):
        for r in range(4):
            E(f"v_cndmask_b32 v{acc[2*c]+r}, v{acc[2*c+1]+r}, v{acc[2*c]+r}, s[{sLO8}:{sLO8+1}]")
        E(f"ds_write_b128 v{vRWp}, {r4(acc[2*c])} offset:{F2R+1024*c}")
    E("s_waitcnt lgkmcnt(0)")
    E("s_barrier")
    E(f"s_cmp_ge_u32 s{sW}, {NC}")
    E("s_cbranch_scc1 L_f2_next")
    pb = vF + 144
    for p in range(8):
        E(f"ds_read_b128 {r4(pb+4*p)}, v{vRRp} offset:{F2R+2048*p}")
    if a.ts: E("s_waitcnt lgkmcnt(0)")
    for p in range(4):
        if not a.ts: E(f"s_waitcnt lgkmcnt({6-2*p})")
        for i in range(4): E(f"v_add_f32 v{pb+8*p+i}, v{pb+8*p+i}, v{pb+8*p+4+i}")
        if p % 2 == 1:
            for i in range(4): E(f"v_add_f32 v{pb+8*p-8+i}, v{pb+8*p-8+i}, v{pb+8*p+i}")
    for i in range(4): E(f"v_add_f32 v{pb+i}, v{pb+i}, v{pb+16+i}")
    for i in range(4):
        E(f"v_add_f32_dpp v{pb+i}, v{pb+i}, v{pb+i} row_ror:8 row_mask:0xf bank_mask:0xf")
    bf16r_many(E, range(pb, pb + 4))
    for i in range(4): E(f"v_add_f32 v{pb+i}, v{hx+i}, v{pb+i}")
    E(f"v_cvt_pk_bf16_f32 v{vD2}, v{pb}, v{pb+1}")
    E(f"v_cvt_pk_bf16_f32 v{vD2+1}, v{pb+2}, v{pb+3}")
    E(f"s_and_b64 exec, exec, s[{sLO8}:{sLO8+1}]")
    E("s_cbranch_execz L_f2_next")
    E(f"buffer_store_dwordx2 {r2(vD2)}, v{vXO}, {S4(sOUT)}, s{sT1} offen{a.opol}", tag="extra")
    stamp(14)
    E.label("L_f2_next")
    E(f"s_cmp_lg_u32 s{sDRY}, 0")
    E("s_cbranch_scc1 L_fin")
    E(f"s_mov_b64 s[{sDRY}:{sDRY+1}], -1")
    if a.tprio: E("s_setprio 0")
    E("s_branch L_f2_top")
    E.label("L_fin")
    if a.ts and a.echo:
        E(f"s_cmp_lg_u32 s{sROLE}, 2")
        E("s_cbranch_scc1 L_end")
        E(f"s_cmp_lg_u32 s{sW}, 0")
        E("s_cbranch_scc1 L_end")
        E("s_waitcnt vmcnt(0)")
        stamp(15)
        E("s_waitcnt lgkmcnt(0)")
        if a.skew == 8:
            E("s_mov_b64 exec, -1")
            E(f"s_mov_b32 s{sT0}, 0x30000")
            E(f"v_lshlrev_b32 v{vS+1}, 2, v{vL}")
            E(f"buffer_load_dword v{vS}, v{vS+1}, {S4(sWS)}, s{sT0} offen sc1", tag="extra")
            E("s_waitcnt vmcnt(0)")
            E(f"v_readlane_b32 s{sT0}, v{vS}, 0")
            E(f"s_mov_b32 s{sT1}, s{sT0}")
            for i in range(1, 8):
                E(f"v_readlane_b32 s{sT4}, v{vS}, {i}")
                E(f"s_max_u32 s{sT0}, s{sT0}, s{sT4}")
                E(f"s_min_u32 s{sT1}, s{sT1}, s{sT4}")
            E(f"s_sub_u32 s{sT0}, s{sT0}, s{sT1}")
            E(f"s_mul_i32 s{sT0}, s{sT0}, {a.emul}")
        elif a.skew >= 0:
            E("s_mov_b64 exec, -1")
            E(f"s_mov_b32 s{sT0}, 0x30000")
            E(f"buffer_load_dword v{vS}, off, {S4(sWS)}, s{sT0} offset:{4*a.skew} sc1", tag="extra")
            E(f"buffer_load_dword v{vS+1}, off, {S4(sWS)}, s{sT0} offset:4 sc1", tag="extra")
            E("s_waitcnt vmcnt(0)")
            E(f"v_sub_u32 v{vS}, v{vS}, v{vS+1}")
            E(f"v_readfirstlane_b32 s{sT0}, v{vS}")
            E(f"s_add_u32 s{sT0}, s{sT0}, 200")
            E(f"s_lshl_b32 s{sT0}, s{sT0}, 2")
        else:
            E(f"s_sub_u32 s{sT0}, s{sTS+2*a.echo}, s{sTS+2*a.echo0}")
            E(f"s_mul_i32 s{sT0}, s{sT0}, {a.emul}")
        E(f"s_min_u32 s{sT0}, s{sT0}, 20000")
        E(f"s_add_u32 s{sT0}, s{sT0}, s{sTS+30}")
        E.label("L_echo")
        E(f"s_memrealtime s[{sT2}:{sT2+1}]")
        E("s_waitcnt lgkmcnt(0)")
        E(f"s_sub_u32 s{sT1}, s{sT0}, s{sT2}")
        E(f"s_cmp_gt_i32 s{sT1}, 0")
        E("s_cbranch_scc1 L_echo")
    elif a.ts:
        E("s_waitcnt vmcnt(0)")
        stamp(15)
        write_stamps()
    E.label("L_end")
    E("s_endpgm")
    E.label("L_codeend")

    out = HDR
    out += f"; @launch grid=(256,1,1) block=(512,1,1) lds={LDS_TOTAL}\n"
    out += f""".amdgcn_target "amdgcn-amd-amdhsa--gfx950"
.text
.globl {NAME}
.p2align 8
.type {NAME},@function
{NAME}:
"""
    out += E.text().replace("CODE_BYTES", f"L_codeend-{NAME}")
    out += f""".section .rodata,"a"
.p2align 6
.amdhsa_kernel {NAME}
  .amdhsa_next_free_vgpr 256
  .amdhsa_next_free_sgpr 102
  .amdhsa_accum_offset 256
  .amdhsa_group_segment_fixed_size 0
  .amdhsa_kernarg_size 88
  .amdhsa_user_sgpr_count 2
  .amdhsa_user_sgpr_kernarg_segment_ptr 1
  .amdhsa_system_sgpr_workgroup_id_x 1
  .amdhsa_float_denorm_mode_32 3
.end_amdhsa_kernel
"""
    return out

def parser():
    p = argparse.ArgumentParser()
    p.add_argument("-o", default="sequential_preLN__sliding_block_cached__dense_activation_relu__decode.s")
    p.add_argument("--fnt", type=int, default=0)
    p.add_argument("--ts", type=int, default=0)
    p.add_argument("--sleep", type=int, default=1)
    p.add_argument("--sleep2", type=int, default=1)
    p.add_argument("--depth", type=int, default=6)
    p.add_argument("--first", type=int, default=2)
    p.add_argument("--budget", type=int, default=16)
    p.add_argument("--qspan", type=int, default=32)
    p.add_argument("--ostart", type=int, default=0)
    p.add_argument("--otail", type=int, default=4)
    p.add_argument("--tkpos", type=int, default=28)
    p.add_argument("--pf", type=int, default=2)
    p.add_argument("--spf", type=int, default=1)
    p.add_argument("--tprio", type=int, default=0)
    p.add_argument("--prio", type=int, default=-1)
    p.add_argument("--emul", type=int, default=1)
    p.add_argument("--dyn", type=int, default=0)
    p.add_argument("--abar", type=int, default=0)
    p.add_argument("--spec", type=int, default=0)
    p.add_argument("--qp2", type=int, default=1)
    p.add_argument("--nc2", type=int, default=2)
    p.add_argument("--late2", type=int, default=0)
    p.add_argument("--nk0", type=int, default=5)
    p.add_argument("--pfwg", type=int, default=16)
    p.add_argument("--ln2", type=int, default=1)
    p.add_argument("--endpf", type=int, default=3)
    p.add_argument("--epos", type=int, default=0)
    p.add_argument("--nodma", type=int, default=0)
    p.add_argument("--gate", type=float, default=31)
    p.add_argument("--gstep", type=int, default=104)
    p.add_argument("--dplan", default="0000")
    p.add_argument("--opol", default="")
    p.add_argument("--skew", type=int, default=-1)
    p.add_argument("--htab", default="0x76325410")
    p.add_argument("--rtab", default="0x210cba98")
    p.add_argument("--sphalf", type=int, default=2)
    p.add_argument("--npoll2", type=int, default=1)
    p.add_argument("--stag2", type=int, default=4)
    p.add_argument("--pub", default="sc1")
    p.add_argument("--sub", default="sc1")
    p.add_argument("--zwg", type=int, default=28)
    p.add_argument("--nrep", type=int, default=8)
    p.add_argument("--sleep3", type=int, default=4)
    p.add_argument("--h1wait", type=int, default=0)
    p.add_argument("--npoll", type=int, default=1)
    p.add_argument("--stag", type=int, default=3)
    p.add_argument("--static", type=int, default=0)
    p.add_argument("--l2pf", type=int, default=6)
    p.add_argument("--echo", type=int, default=0)
    p.add_argument("--echo0", type=int, default=0)
    p.add_argument("--kvpol", default=" nt")
    p.add_argument("--wpol", default="")
    p.add_argument("--bd1", type=int, default=0)
    p.add_argument("--bd2", type=int, default=0)
    p.add_argument("--bd3", type=int, default=0)
    p.add_argument("--hmap", type=int, default=3)
    p.add_argument("--tlb", type=int, default=0)
    p.add_argument("--dry", type=int, default=2)
    return p

if __name__ == "__main__":
    a = parser().parse_args()
    open(a.o, "w").write(gen(a))
```

```python
import sys, argparse, struct
from collections import deque
from asmlib import Emitter
from gen2 import (NAME, HDR, srd, srd_off, r4, r2, S4, row_reduce, wave_reduce, bf16r, bf16r_many, unpack10, ln_stats,
                  LOG2E, SCALE, sT0, sT1, sT2, sT3, sT4)

RED = 0
QF = 8448
ML = 8704
YP = 9216
YPS = 3328
HN = 9216
HNS = 1408
F2R = 9216
WT = 35840
LDS_TOTAL = 150528
HS = 3072
H1_BASE = 32768
TS_BASE = 1 << 20
NF1 = 27

sW, sH, sB = 3, 26, 27
sK, sV, sWQ, sWO, sX, sWS, sDB, sWF, sOUT, sH1 = 28, 32, 36, 40, 44, 48, 52, 56, 60, 64
sROLE, sTILE = 100, 101
sSPIN = 9
sLO8 = 10
sKO, sVO, sQ0, sQ1, sOO = 12, 13, 14, 15, 20
sDRY = 22
sEX = 24
sTKO = 25
sTS = 68
vL, vL16, vWQ, vWO = 0, 1, 2, 3
vM = 4
vQ = 8
vB0, vB1 = 12, 16
vD1, vD2 = 20, 24
vT = 28
vS = 32
vF = 48
vJ, vN = vT, vT + 1

class Task:
    def __init__(self, fn, needs=(), frees=(), barrier=0, cost=1, atomic=False):
        self.fn, self.needs, self.frees, self.barrier, self.cost = fn, list(needs), list(frees), barrier, cost
        self.atomic = atomic
        self.q = None

class RecEmitter(Emitter):
    def __init__(self):
        super().__init__(); self.rec = None
    def __call__(self, text, tag=None):
        if self.rec is not None: self.rec.append(("i", text, tag))
        else: super().__call__(text, tag)
    def label(self, name):
        if self.rec is not None: self.rec.append(("l", name, None))
        else: super().label(name)
    def flush(self, n=None):
        if self.rec is not None: self.rec.append(("f", None, None))
        else: super().flush(n)
    def record(self, fn):
        self.rec = []; fn(); r = self.rec; self.rec = None; return deque(r)
    def play(self, item):
        k, a, b = item
        if k == "i": self(a, b)
        elif k == "l": self.label(a)
        else: self.flush()

def gen(a):
    E = RecEmitter()
    NC = a.nc2
    NF2 = 40 // NC
    nt = a.kvpol
    wnt = a.wpol
    fnt = " nt" if a.fnt else ""
    def stamp(i):
        if a.ts: E(f"s_memrealtime s[{sTS+2*i}:{sTS+2*i+1}]")
    def spin(lbl):
        E(f"s_sub_u32 s{sSPIN}, s{sSPIN}, 1")
        E(f"s_cmp_lt_i32 s{sSPIN}, 0")
        E(f"s_cbranch_scc1 {lbl}")
    def write_stamps():
        E("s_waitcnt lgkmcnt(0)")
        E("s_mov_b64 exec, 1")
        E(f"s_lshl_b32 s{sT0}, s2, 3")
        E(f"s_add_u32 s{sT0}, s{sT0}, s{sW}")
        E(f"s_lshl_b32 s{sT0}, s{sT0}, 8")
        E(f"s_add_u32 s{sT0}, s{sT0}, {TS_BASE}")
        for i in range(16):
            E(f"v_mov_b32 v{vT}, s{sTS+2*i}")
            E(f"v_mov_b32 v{vT+1}, s{sTS+2*i+1}")
            E(f"buffer_store_dwordx2 {r2(vT)}, off, {S4(sWS)}, s{sT0} offset:{8*i}", tag="extra")
            E("s_nop 1")
        E(f"s_getreg_b32 s{sT1}, hwreg(HW_REG_XCC_ID)")
        E(f"v_mov_b32 v{vT}, s{sT1}")
        E(f"v_mov_b32 v{vT+1}, s{sROLE}")
        E(f"buffer_store_dwordx2 {r2(vT)}, off, {S4(sWS)}, s{sT0} offset:128", tag="extra")
        E("s_nop 1")
        E(f"v_mov_b32 v{vT}, s{sSPIN}")
        E(f"v_mov_b32 v{vT+1}, 0")
        E(f"buffer_store_dwordx2 {r2(vT)}, off, {S4(sWS)}, s{sT0} offset:136", tag="extra")

    E("s_cmp_ge_u32 s2, 256")
    E("s_cbranch_scc1 L_end")
    E("s_load_dwordx16 s[4:19], s[0:1], 0")
    E("s_load_dwordx4 s[20:23], s[0:1], 64")
    E("s_load_dwordx2 s[24:25], s[0:1], 80")
    if a.ts:
        for i in range(1, 16): E(f"s_mov_b64 s[{sTS+2*i}:{sTS+2*i+1}], 0")
        stamp(0)
    E(f"v_lshrrev_b32 v{vT}, 6, v0")
    E(f"v_and_b32 v{vL}, 63, v0")
    E(f"v_readfirstlane_b32 s{sW}, v{vT}")
    if a.hmap == 3:
        E(f"s_and_b32 s{sH}, s2, 7")
        E(f"s_lshl_b32 s{sH}, s{sH}, 2")
        E(f"s_lshr_b32 s{sH}, {a.htab}, s{sH}")
        E(f"s_and_b32 s{sB}, s{sH}, 4")
        E(f"s_lshl_b32 s{sB}, s{sB}, 2")
        E(f"s_and_b32 s{sH}, s{sH}, 3")
        E(f"s_add_u32 s{sH}, s{sH}, s{sB}")
        E(f"s_bfe_u32 s{sB}, s2, 0x20003")
        E(f"s_lshl_b32 s{sB}, s{sB}, 2")
        E(f"s_add_u32 s{sH}, s{sH}, s{sB}")
    elif a.hmap == 2:
        E(f"s_and_b32 s{sH}, s2, 6")
        E(f"s_lshr_b32 s{sH}, 0x8d, s{sH}")
        E(f"s_and_b32 s{sH}, s{sH}, 3")
        E(f"s_and_b32 s{sB}, s2, 1")
        E(f"s_lshl_b32 s{sB}, s{sB}, 4")
        E(f"s_add_u32 s{sH}, s{sH}, s{sB}")
        E(f"s_bfe_u32 s{sB}, s2, 0x20003")
        E(f"s_lshl_b32 s{sB}, s{sB}, 2")
        E(f"s_add_u32 s{sH}, s{sH}, s{sB}")
    elif a.hmap:
        E(f"s_and_b32 s{sH}, s2, 7")
        E(f"s_lshl_b32 s{sH}, s{sH}, 2")
        E(f"s_bfe_u32 s{sB}, s2, 0x20003")
        E(f"s_add_u32 s{sH}, s{sH}, s{sB}")
    else:
        E(f"s_and_b32 s{sH}, s2, 31")
    E(f"s_lshr_b32 s{sB}, s2, 5")
    E(f"v_lshlrev_b32 v{vL16}, 4, v{vL}")
    E(f"v_lshrrev_b32 v{vJ}, 4, v{vL}")
    E(f"v_and_b32 v{vN}, 15, v{vL}")
    E(f"v_mul_u32_u24 v{vWQ}, {8192 if a.qp2 else 81920}, v{vJ}")
    E(f"v_lshl_add_u32 v{vWQ}, v{vN}, 4, v{vWQ}")
    vXS, vXC = vT + 2, vT + 3
    E(f"v_mul_u32_u24 v{vXS}, 20, v{vL}")
    t0, t1, t2, t3 = 64, 65, 66, 67
    if not a.qp2:
        E(f"v_lshrrev_b32 v{vXC}, 3, v{vN}")
        E(f"v_lshl_add_u32 v{vXC}, v{vXC}, 2, v{vJ}")
        E(f"s_lshl_b32 s{t0}, s{sW}, 3")
        E(f"v_add_u32 v{vXC}, s{t0}, v{vXC}")
        E(f"v_mul_u32_u24 v{vXC}, 20, v{vXC}")
    E(f"s_lshl_b32 s{t0}, s{sB}, 5")
    E(f"s_add_u32 s{t0}, s{t0}, s{sH}")
    E(f"s_lshl_b32 s{t0}, s{t0}, 20")
    E(f"s_add_u32 s{t0}, s{t0}, 0xc0000")
    E(f"s_lshl_b32 s{t1}, s{sH}, 8")
    E(f"s_mul_i32 s{t2}, s{sH}, {128*1280}")
    E(f"s_mul_i32 s{t3}, s{sB}, 1280")
    E(f"s_mov_b32 s{sROLE}, 0")
    E(f"s_lshl_b32 s{sTILE}, s{sW}, 10")
    if a.x13:
        E(f"s_and_b32 s{sROLE}, s{sH}, 4")
        E(f"s_lshl_b32 s{sROLE}, s{sROLE}, 11")
        E(f"s_add_u32 s{sTILE}, s{sTILE}, s{sROLE}")
    if a.pf:
        E(f"s_cmp_gt_u32 s{sW}, {a.pf - 1}")
        E("s_cbranch_scc1 L_nopf")
        E(f"s_cmp_ge_u32 s2, {a.pfwg}")
        E("s_cbranch_scc1 L_nopf")
        E(f"s_getpc_b64 s[{sWF}:{sWF+1}]")
        E.label("L_pc")
        E(f"s_lshl_b32 s{sOUT}, s{sW}, 13")
        E(f"v_lshlrev_b32 v{vB0}, 7, v{vL}")
        E(f"v_add_u32 v{vB0}, s{sOUT}, v{vB0}")
        E(f"v_min_u32 v{vB0}, L_codeend-L_pc-4, v{vB0}")
        E(f"v_mov_b32 v{vB0+3}, s{sWF+1}")
        E(f"v_add_co_u32 v{vB0+2}, vcc, s{sWF}, v{vB0}")
        E(f"v_addc_co_u32 v{vB0+3}, vcc, 0, v{vB0+3}, vcc")
        E(f"global_load_dword v{vS+15}, v[{vB0+2}:{vB0+3}], off", tag="extra")
        E.label("L_nopf")
    E("s_waitcnt lgkmcnt(0)")
    srd_off(E, sK, 6, f"s{t0}", 0x40000)
    if a.x13:
        E(f"s_lshl_b32 s{sROLE}, s{sROLE}, 1")
        E(f"s_sub_u32 s0, 8192, s{sROLE}")
        E(f"s_add_u32 s1, 8192, s{sROLE}")
        E(f"s_mov_b32 s{sROLE}, s{sTILE}")
    def kvstep(f): return (f"s{f % 2}" if a.x13 else "8192")
    slot_of = {}
    free = deque(range(52))
    def alloc(tag):
        s = free.popleft(); slot_of[tag] = vF + 4 * s; return slot_of[tag]
    def release(tag):
        free.append((slot_of[tag] - vF) // 4)
    for f in range(a.nk0):
        if f: E(f"s_add_u32 s{sTILE}, s{sTILE}, {kvstep(f-1)}")
        E(f"buffer_load_dwordx4 {r4(alloc(f'k{f}'))}, v{vL16}, {S4(sK)}, s{sTILE} offen{nt}", tag=f"k{f}")
    srd(E, sX, 4, 5, 10240)
    xs_raw, xc_raw = vS, vS + 6
    E(f"buffer_load_dwordx4 {r4(xs_raw)}, v{vXS}, {S4(sX)}, s{t3} offen", tag="xs")
    E(f"buffer_load_dword v{xs_raw+4}, v{vXS}, {S4(sX)}, s{t3} offen offset:16", tag="xs")
    if not a.qp2:
        E(f"buffer_load_dwordx4 {r4(xc_raw)}, v{vXC}, {S4(sX)}, s{t3} offen", tag="xc")
        E(f"buffer_load_dword v{xc_raw+4}, v{vXC}, {S4(sX)}, s{t3} offen offset:16", tag="xc")
    srd_off(E, sWQ, 10, f"s{t1}", 639 * 8192 + 256)
    srd_off(E, sV, 8, f"s{t0}", 0x40000)
    srd_off(E, sWO, 12, f"s{t2}", 128 * 1280)
    srd(E, sWS, 24, 25, 1 << 22)
    srd(E, sDB, 22, 23, 256)
    srd(E, sOUT, 20, 21, 10240)
    srd_off(E, sH1, 24, H1_BASE, 108 * 256)
    E(f"s_add_u32 s{sKO}, s{sTILE}, {kvstep(a.nk0-1)}")
    if a.x13:
        E(f"s_mov_b32 s{sVO}, s{sROLE}")
        E(f"s_mov_b32 s{sROLE}, 0")
    else: E(f"s_lshl_b32 s{sVO}, s{sW}, 10")
    if a.qp2 and a.qrot:
        E(f"s_lshl_b32 s{sQ1}, s{sW}, 15")
        E(f"s_mul_i32 s{sQ0}, s{sB}, 10")
        E(f"s_lshr_b32 s{sQ0}, s{sQ0}, 3")
        E(f"s_lshl_b32 s{sQ0}, s{sQ0}, 19")
        E(f"s_add_u32 s{sQ0}, s{sQ0}, s{sQ1}")
    elif a.qp2:
        E(f"s_lshl_b32 s{sQ0}, s{sW}, 15")
    else:
        E(f"s_mul_i32 s{sQ0}, s{sW}, 655360")
        E(f"s_add_u32 s{sQ1}, s{sQ0}, 327680")
    E(f"s_mul_i32 s{sOO}, s{sW}, 1280")
    sOC = 25
    if a.orot:
        assert not a.dyn and a.endpf == 3
        E(f"s_mul_i32 s{sOC}, s{sB}, 5")
        E(f"s_lshr_b32 s{sOC}, s{sOC}, 3")
        E(f"s_lshl_b32 s{sOC}, s{sOC}, 8")
        E(f"s_add_u32 s{sOO}, s{sOO}, s{sOC}")

    if a.tlb:
        E(f"s_cmp_lg_u32 s{sW}, 1")
        E("s_cbranch_scc1 L_notlb")
        E(f"buffer_load_dword v{vS+14}, off, {S4(sV)}, 0 nt", tag="extra")
        E(f"buffer_load_dword v{vS+14}, off, {S4(sWO)}, 0 nt", tag="extra")
        if a.tlb > 1:
            E(f"s_mov_b32 s{sWF+2}, {640*3456}")
            E(f"s_mov_b32 s{sWF+3}, 0x20000")
            E(f"s_mov_b32 s{sT0}, {640*3456-4}")
            for p in (16, 18):
                E(f"s_mov_b32 s{sWF}, s{p}")
                E(f"s_and_b32 s{sWF+1}, s{p+1}, 0xffff")
                E(f"buffer_load_dword v{vS+14}, off, {S4(sWF)}, 0 nt", tag="extra")
                E(f"buffer_load_dword v{vS+14}, off, {S4(sWF)}, s{sT0} nt", tag="extra")
            E(f"s_mov_b32 s{sT0}, 0x20000")
            E(f"buffer_load_dword v{vS+14}, off, {S4(sWS)}, s{sT0} nt", tag="extra")
            E(f"buffer_load_dword v{vS+14}, off, {S4(sOUT)}, 0 nt", tag="extra")
        E.label("L_notlb")
    if a.skew >= 0:
        E("s_cmp_ge_u32 s2, 8")
        E("s_cbranch_scc1 L_noskew")
        E("s_waitcnt lgkmcnt(0)")
        E(f"v_mov_b32 v{vS+12}, s{sTS}")
        E(f"s_lshl_b32 s{sT0}, s2, 2")
        E(f"s_add_u32 s{sT0}, s{sT0}, 0x30000")
        E(f"buffer_store_dword v{vS+12}, off, {S4(sWS)}, s{sT0} sc1", tag="extra")
        E.label("L_noskew")
    def t_init():
        z = [alloc("z0"), alloc("z1"), alloc("z2"), alloc("z3")]
        zr = [z[0], z[0] + 2, z[1], z[1] + 2, z[2], z[2] + 2]
        init_seen.update(issued)
        E(f"s_cmp_lg_u32 s{sW}, 7")
        E("s_cbranch_scc1 L_nosent")
        E(f"v_mov_b32 v{z[0]}, -1")
        E(f"v_lshlrev_b32 v{z[3]}, 2, v{vL}")
        E(f"s_lshl_b32 s{sT0}, s2, 8")
        E(f"buffer_atomic_swap v{z[0]}, v{z[3]}, {S4(sH1)}, s{sT0} offen sc0", tag="extra")
        E.label("L_nosent")
        E(f"s_cmp_lg_u32 s{sW}, 6")
        E("s_cbranch_scc1 L_noinit")
        E(f"s_and_b32 s{sT0}, s2, 31")
        E(f"s_cmp_lg_u32 s{sT0}, {a.zwg}")
        E("s_cbranch_scc1 L_noinit")
        for q in z[:3]:
            for i in range(4): E(f"v_mov_b32 v{q+i}, 0")
        E(f"v_lshlrev_b32 v{z[3]}, 3, v{vL}")
        E(f"s_mul_i32 s{sT0}, s{sB}, {HS}")
        for i in range(6):
            E(f"buffer_atomic_swap_x2 {r2(zr[i])}, v{z[3]}, {S4(sWS)}, s{sT0} offen offset:{512*i} sc0", tag="extra")
        E.label("L_noinit")
    init_seen = set()
    def t_flagset():
        assert "wq11" not in init_seen
        E(f"s_cmp_lg_u32 s{sW}, 6")
        E("s_cbranch_scc1 L_noflag")
        E(f"s_and_b32 s{sT0}, s2, 31")
        E(f"s_cmp_lg_u32 s{sT0}, {a.zwg}")
        E("s_cbranch_scc1 L_noflag")
        E(f"v_mov_b32 v{slot_of['z3']}, 1")
        E(f"s_lshl_b32 s{sT0}, s{sB}, 2")
        E("s_mov_b64 exec, 1")
        E(f"buffer_store_dword v{slot_of['z3']}, off, {S4(sDB)}, s{sT0} sc1", tag="extra")
        E("s_mov_b64 exec, -1")
        E.label("L_noflag")

    def kload(f):
        def fn():
            E(f"buffer_load_dwordx4 {r4(alloc(f'k{f}'))}, v{vL16}, {S4(sK)}, s{sKO} offen{nt}", tag=f"k{f}")
            if f < 31: E(f"s_add_u32 s{sKO}, s{sKO}, {kvstep(f)}")
        return (f"k{f}", fn, True)
    def vload(f):
        def fn():
            E(f"buffer_load_dwordx4 {r4(alloc(f'v{f}'))}, v{vL16}, {S4(sV)}, s{sVO} offen{nt}", tag=f"v{f}")
            if f < 31: E(f"s_add_u32 s{sVO}, s{sVO}, {kvstep(f)}")
        return (f"v{f}", fn, True)
    def qload(f):
        def fn():
            s = sQ0 if (f % 2 == 0 or a.qp2) else sQ1
            E(f"buffer_load_dwordx4 {r4(alloc(f'wq{f}'))}, v{vWQ}, {S4(sWQ)}, s{s} offen{wnt}", tag=f"wq{f}")
            if a.qp2:
                if f < 19: E(f"s_add_u32 s{s}, s{s}, {32*8192}")
                if a.qrot and f < 19 and f % 2 == 1:
                    E(f"s_cmp_ge_u32 s{s}, {640*8192}")
                    E(f"s_cselect_b32 s{s}, s{sQ1}, s{s}")
            elif f < 18: E(f"s_add_u32 s{s}, s{s}, 8192")
        return (f"wq{f}", fn, True)
    def oload(f):
        def fn():
            if a.orot:
                E(f"buffer_load_dwordx4 {r4(alloc(f'wo{f}'))}, v{vWO}, {S4(sWO)}, s{sOO} offen{wnt}", tag=f"wo{f}")
                if f % 4 < 3: E(f"s_add_u32 s{sOO}, s{sOO}, {8*1280}")
                elif f < 19:
                    E(f"s_add_u32 s{sOC}, s{sOC}, 256")
                    E(f"s_cmp_ge_u32 s{sOC}, 1280")
                    E(f"s_cselect_b32 s{sOC}, 0, s{sOC}")
                    E(f"s_mul_i32 s{sOO}, s{sW}, 1280")
                    E(f"s_add_u32 s{sOO}, s{sOO}, s{sOC}")
                return
            fp, cg = divmod(f, 5)
            E(f"buffer_load_dwordx4 {r4(alloc(f'wo{f}'))}, v{vWO}, {S4(sWO)}, s{sOO} offen offset:{cg*256}{wnt}", tag=f"wo{f}")
            if cg == 4 and fp < 3: E(f"s_add_u32 s{sOO}, s{sOO}, {8*1280}")
        return (f"wo{f}", fn, True)
    vFL = vWQ
    vTK = vQ + 3
    def fload():
        def fn():
            E(f"v_and_b32 v{vFL}, 7, v{vL}")
            E(f"v_lshlrev_b32 v{vFL}, 2, v{vFL}")
            E(f"buffer_load_dword v{vFL}, v{vFL}, {S4(sDB)}, 0 offen sc1", tag="flag")
        return ("flag", fn, False)
    TKL = QF
    def ticket():
        def fn():
            v = alloc("tk")
            E(f"v_mov_b32 v{v+1}, {TKL}")
            E(f"s_cmp_lg_u32 s{sW}, 0")
            E("s_cbranch_scc1 L_notk")
            E(f"v_mov_b32 v{v}, 1")
            E(f"s_and_b32 s{sTKO}, s2, 7")
            E(f"s_lshl_b32 s{sTKO}, s{sTKO}, 4")
            E("s_mov_b64 exec, 1")
            E(f"buffer_atomic_add v{v}, off, {S4(sDB)}, s{sTKO} offset:128 sc0", tag="extra")
            E("s_mov_b64 exec, -1")
            E.label("L_notk")
        return ("tk", fn, True)
    def l2pf_outer():
        def fn():
            vPF = vS + 13
            E(f"s_and_b32 s{sT0}, s2, 7")
            E(f"s_lshl_b32 s{sT0}, s{sT0}, 2")
            E(f"s_lshr_b32 s{sT0}, {a.rtab}, s{sT0}")
            E(f"s_and_b32 s{sT0}, s{sT0}, 15")
            E(f"s_lshr_b32 s{sT1}, s2, 3")
            E(f"s_mov_b32 s{sWF+2}, {640*3456}")
            E(f"s_mov_b32 s{sWF+3}, 0x20000")
            E(f"s_cmp_ge_u32 s{sT0}, 8")
            E("s_cbranch_scc1 L_l2b")
            E(f"s_cmp_ge_u32 s{sW}, 3")
            E("s_cbranch_scc1 L_nol2")
            E(f"s_mov_b32 s{sWF}, s16")
            E(f"s_and_b32 s{sWF+1}, s17, 0xffff")
            E(f"s_mul_i32 s{sT2}, s{sT0}, {9*128}")
            E(f"s_mul_i32 s{sT0}, s{sW}, {3*128}")
            E(f"s_add_u32 s{sT2}, s{sT2}, s{sT0}")
            E(f"s_mul_i32 s{sT1}, s{sT1}, {20*3456}")
            E(f"s_add_u32 s{sT2}, s{sT2}, s{sT1}")
            E(f"v_mul_u32_u24 v{vPF}, 43, v{vL}")
            E(f"v_lshrrev_b32 v{vPF}, 7, v{vPF}")
            E(f"v_mul_u32_u24 v{vPF}, {3456-384}, v{vPF}")
            E(f"v_lshl_add_u32 v{vPF}, v{vL}, 7, v{vPF}")
            E(f"s_mov_b32 exec_hi, 0xfffffff")
            E("s_branch L_l2go")
            E.label("L_l2b")
            E(f"s_cmp_ge_u32 s{sW}, 2")
            E("s_cbranch_scc1 L_nol2")
            E(f"s_mov_b32 s{sWF}, s18")
            E(f"s_and_b32 s{sWF+1}, s19, 0xffff")
            E(f"s_sub_u32 s{sT0}, s{sT0}, 8")
            E(f"s_lshl_b32 s{sT0}, s{sT0}, 1")
            E(f"s_add_u32 s{sT2}, s{sT0}, s{sW}")
            E(f"s_lshl_b32 s{sT2}, s{sT2}, 7")
            E(f"s_mul_i32 s{sT1}, s{sT1}, {54*1280}")
            E(f"s_add_u32 s{sT2}, s{sT2}, s{sT1}")
            E(f"v_mul_u32_u24 v{vPF}, 1280, v{vL}")
            E(f"s_mov_b32 exec_hi, 0x3fffff")
            E.label("L_l2go")
            E(f"buffer_load_dword v{vPF}, v{vPF}, {S4(sWF)}, s{sT2} offen", tag="extra")
            E("s_mov_b64 exec, -1")
            E.label("L_nol2")
        return fn
    t_l2pf = l2pf_outer()
    sPO, sPC, sPD = 21, 24, 25
    def t_spf0():
        E(f"s_and_b32 s{sT0}, s2, 7")
        E(f"s_lshl_b32 s{sT0}, s{sT0}, 2")
        E(f"s_lshr_b32 s{sT0}, {a.rtab}, s{sT0}")
        E(f"s_and_b32 s{sPC}, s{sT0}, 15")
        E(f"s_lshr_b32 s{sT1}, s2, 3")
        E(f"s_mov_b32 s{sWF+2}, {640*3456}")
        E(f"s_mov_b32 s{sWF+3}, 0x20000")
        E(f"s_mul_i32 s{sT2}, s{sT1}, 20")
        E(f"s_add_u32 s{sT2}, s{sT2}, s{sW}")
        E(f"s_mul_i32 s{sT2}, s{sT2}, 3456")
        E(f"s_mul_i32 s{sT0}, s{sPC}, 1152")
        E(f"s_add_u32 s{sT2}, s{sT2}, s{sT0}")
        E(f"s_mul_i32 s{sT3}, s{sT1}, 54")
        E(f"s_add_u32 s{sT3}, s{sT3}, s{sW}")
        E(f"s_mul_i32 s{sT3}, s{sT3}, 1280")
        E(f"s_sub_u32 s{sT0}, s{sPC}, 8")
        E(f"s_lshl_b32 s{sT0}, s{sT0}, 8")
        E(f"s_add_u32 s{sT3}, s{sT3}, s{sT0}")
        E(f"s_cmp_lt_u32 s{sPC}, 8")
        E(f"s_cselect_b32 s{sPO}, s{sT2}, s{sT3}")
        E(f"s_cselect_b32 s{sWF}, s16, s18")
        E(f"s_cselect_b32 s{sWF+1}, s17, s19")
        E(f"s_and_b32 s{sWF+1}, s{sWF+1}, 0xffff")
    def t_spf(part):
        def fn():
            E(f"s_cmp_lt_u32 s{sPC}, 8")
            E(f"s_cbranch_scc0 L_spb{part}")
            if part == 2:
                E(f"s_cmp_ge_u32 s{sW}, 4")
                E(f"s_cbranch_scc1 L_spe{part}")
            for ln in range(9 if not a.endpf & 1 else 0):
                for hf in range(a.sphalf):
                    E(f"s_buffer_load_dword s{sPD}, {S4(sWF)}, s{sPO} offset:{part*8*3456 + ln*128 + hf*64}")
            E(f"s_branch L_spe{part}")
            E.label(f"L_spb{part}")
            for k in (([0, 1, 2], [3, 4], [5, 6])[part] if not a.endpf & 2 else []):
                for ln in range(2):
                    for hf in range(a.sphalf):
                        E(f"s_buffer_load_dword s{sPD}, {S4(sWF)}, s{sPO} offset:{k*8*1280 + ln*128 + hf*64}")
            E.label(f"L_spe{part}")
        return fn
    sEO, sEM = 14, 15
    sES = 36
    def t_epf_prep():
        v = alloc("epf")
        E(f"s_and_b32 s{sT0}, s2, 7")
        E(f"s_lshl_b32 s{sT0}, s{sT0}, 2")
        E(f"s_lshr_b32 s{sT0}, {a.rtab}, s{sT0}")
        E(f"s_and_b32 s{sT0}, s{sT0}, 15")
        E(f"s_lshr_b32 s{sT1}, s2, 3")
        E(f"s_mul_i32 s{sT2}, s{sT1}, {20*3456}")
        E(f"s_mul_i32 s{sT3}, s{sT0}, 1152")
        E(f"s_add_u32 s{sT2}, s{sT2}, s{sT3}")
        E(f"s_mul_i32 s{sT3}, s{sT1}, {54*1280}")
        E(f"s_sub_u32 s{sT1}, s{sT0}, 8")
        E(f"s_lshl_b32 s{sT1}, s{sT1}, 8")
        E(f"s_add_u32 s{sT3}, s{sT3}, s{sT1}")
        E(f"s_mul_i32 s{sT1}, s{sW}, 23")
        E(f"v_add_u32 v{v}, s{sT1}, v{vL}")
        E(f"v_mul_u32_u24 v{v+1}, 7282, v{v}")
        E(f"v_lshrrev_b32 v{v+1}, 16, v{v+1}")
        E(f"v_mul_u32_u24 v{v+1}, {3456-1152}, v{v+1}")
        E(f"v_lshl_add_u32 v{v+1}, v{v}, 7, v{v+1}")
        E(f"s_mul_i32 s{sT1}, s{sW}, 14")
        E(f"v_add_u32 v{v}, s{sT1}, v{vL}")
        E(f"v_lshrrev_b32 v{v+2}, 1, v{v}")
        E(f"v_mul_u32_u24 v{v+2}, {1280-256}, v{v+2}")
        E(f"v_lshl_add_u32 v{v+2}, v{v}, 7, v{v+2}")
        E(f"s_cmp_lt_u32 s{sT0}, 8")
        E(f"s_cselect_b32 s{sEO}, s{sT2}, s{sT3}")
        E(f"s_mov_b32 s{sEM}, {(1 << 14) - 1 if a.endpf & 2 else 1}")
        E(f"s_cselect_b32 s{sEM}, {(1 << 23) - 1 if a.endpf & 1 else 1}, s{sEM}")
        E(f"s_cselect_b32 s{sES}, s16, s18")
        E(f"s_cselect_b32 s{sES+1}, s17, s19")
        E(f"s_cselect_b64 vcc, -1, 0")
        E(f"s_and_b32 s{sES+1}, s{sES+1}, 0xffff")
        E(f"s_mov_b32 s{sES+2}, {640*3456}")
        E(f"s_mov_b32 s{sES+3}, 0x20000")
        E(f"v_cndmask_b32 v{v}, v{v+2}, v{v+1}, vcc")
    def epf():
        def fn():
            v = slot_of["epf"]
            E(f"s_mov_b32 exec_lo, s{sEM}")
            E(f"s_mov_b32 exec_hi, 0")
            E(f"buffer_load_dword v{v+3}, v{v}, {S4(sES)}, s{sEO} offen", tag="epf")
            E("s_mov_b64 exec, -1")
        return ("epf", fn, False)
    def prio(k, lo, hi):
        def fn():
            E(f"s_cmp_ge_u32 s{sW}, 4")
            E(f"s_cbranch_scc1 L_pr{k}a")
            E(f"s_setprio {lo}")
            E(f"s_branch L_pr{k}b")
            E.label(f"L_pr{k}a")
            E(f"s_setprio {hi}")
            E.label(f"L_pr{k}b")
        return ("tk", fn, False)
    loads = []
    qi = 0
    for f in range(a.nk0, 32):
        want = min(20, (f - a.nk0 + 1) * 20 // (a.qspan - a.nk0 + 1) + 1)
        while qi < want:
            loads.append(qload(qi)); qi += 1
        loads.append(kload(f))
    while qi < 20:
        loads.append(qload(qi)); qi += 1
    nmid = 20 - a.otail
    oi = 0
    for f in range(32):
        loads.append(vload(f))
        if f == 16: loads.append(fload())
        if f == a.prio: loads.append(prio(0, 0, 1))
        if f == a.tkpos and a.dyn: loads.append(ticket())
        want = max(0, (f + 1 - a.ostart)) * nmid // (32 - a.ostart)
        while oi < want:
            loads.append(oload(oi)); oi += 1
    while oi < 20:
        loads.append(oload(oi)); oi += 1
    if a.endpf and a.epos >= 0: loads.insert(len(loads) - a.epos, epf())

    vRW, vRR = vXS, vXC
    def t_setup():
        E(f"s_mov_b32 s{sSPIN}, 0x40000")
        E(f"s_mov_b32 s{sLO8}, 0x00ff00ff")
        E(f"s_mov_b32 s{sLO8+1}, 0x00ff00ff")
        E(f"v_mul_u32_u24 v{vWO}, 40960, v{vJ}")
        E(f"v_and_b32 v{vB0}, 1, v{vN}")
        E(f"v_lshrrev_b32 v{vB0+1}, 1, v{vN}")
        E(f"v_lshl_add_u32 v{vWO}, v{vN}, 4, v{vWO}")
        E(f"v_lshlrev_b32 v{vB0}, 4, v{vB0}")
        E(f"v_mov_b32 v{vB0+2}, 0xffff")
        E(f"v_lshlrev_b32 v{vB0}, v{vB0}, v{vB0+2}")
        E(f"v_and_b32 v{vB0+1}, 3, v{vB0+1}")
        for w in range(4):
            E(f"v_cmp_eq_u32 vcc, {w}, v{vB0+1}")
            E(f"v_cndmask_b32 v{vM+w}, 0, v{vB0}, vcc")
        E(f"v_lshrrev_b32 v{vB0}, 3, v{vN}")
        E(f"s_lshl_b32 s{sT0}, s{sW}, 1")
        E(f"v_add_u32 v{vB0}, s{sT0}, v{vB0}")
        E(f"v_mul_u32_u24 v{vRW}, 528, v{vB0}")
        E(f"v_and_b32 v{vB0}, 7, v{vN}")
        E(f"v_lshl_add_u32 v{vRW}, v{vB0}, 6, v{vRW}")
        E(f"v_lshl_add_u32 v{vRW}, v{vJ}, 4, v{vRW}")
        E(f"v_mul_u32_u24 v{vRR}, 528, v{vN}")
        E(f"v_lshl_add_u32 v{vRR}, v{vJ}, 4, v{vRR}")
        E(f"s_lshl_b32 s{sT0}, s{sW}, 6")
        E(f"v_add_u32 v{vRR}, s{sT0}, v{vRR}")
    f0 = 8
    vMEAN, vRCP = 18, 19
    def t_ln1a():
        stamp(1)
        unpack10(E, xs_raw, f0)
        ln_stats(E, f0, 20, 21, 22, vMEAN, vRCP)
    def t_ln1b():
        if not a.qp2: unpack10(E, xc_raw, f0)
        for i in range(10): E(f"v_sub_f32 v{f0+i}, v{f0+i}, v{vMEAN}")
        bf16r_many(E, range(f0, f0 + 10))
        for i in range(10): E(f"v_mul_f32 v{f0+i}, v{f0+i}, v{vRCP}")
        if not a.qp2:
            for i in range(10): E(f"v_cvt_pk_bf16_f32 v{vS+i}, v{f0+i}, v{f0+i}")
            return
        for i in range(5): E(f"v_cvt_pk_bf16_f32 v{vS+i}, v{f0+2*i}, v{f0+2*i+1}")
        E(f"s_mul_i32 s{sT0}, s{sW}, 2816")
        E(f"v_mul_u32_u24 v20, 20, v{vL}")
        E(f"v_add_u32 v20, s{sT0}, v20")
        for i in range(5): E(f"ds_write_b32 v20, v{vS+i} offset:{WT+4*i}")
        if a.qrot:
            for i in range(5): E(f"ds_write_b32 v20, v{vS+i} offset:{WT+1280+4*i}")
        E(f"v_lshrrev_b32 v21, 3, v{vN}")
        E(f"v_lshlrev_b32 v21, 6, v21")
        E(f"v_lshl_add_u32 v21, v{vJ}, 1, v21")
        E(f"s_mul_i32 s{sT0}, s{sW}, 2824")
        if a.qrot:
            E(f"s_mul_i32 s{sT1}, s{sB}, 10")
            E(f"s_lshr_b32 s{sT1}, s{sT1}, 3")
            E(f"s_lshl_b32 s{sT1}, s{sT1}, 7")
            E(f"s_add_u32 s{sT0}, s{sT0}, s{sT1}")
        E(f"v_add_u32 v21, s{sT0}, v21")
        E("s_waitcnt lgkmcnt(0)")
        for i in range(10): E(f"ds_read_u16 v{vS+i}, v21 offset:{WT+128*i}")
        E("s_waitcnt lgkmcnt(0)")
        for i in range(10): E(f"v_lshl_or_b32 v{vS+i}, v{vS+i}, 16, v{vS+i}")
    def bfrag(dst, src):
        for w in range(4): E(f"v_and_b32 v{dst+w}, v{src}, v{vM+w}")
    def t_pair(t, pre):
        def fn():
            B = vB0 if t % 2 == 0 else vB1
            bfrag(B, vS + t)
            c1 = "0" if t == 0 else r4(vD1)
            c2 = "0" if t == 0 else r4(vD2)
            E(f"v_mfma_f32_16x16x32_bf16 {r4(vD1)}, {r4(slot_of[f'{pre}{2*t}'])}, {r4(B)}, {c1}")
            E(f"v_mfma_f32_16x16x32_bf16 {r4(vD2)}, {r4(slot_of[f'{pre}{2*t+1}'])}, {r4(B)}, {c2}")
        return fn
    def red_a():
        for r in range(4):
            E(f"v_cndmask_b32 v{vD1+r}, v{vD2+r}, v{vD1+r}, s[{sLO8}:{sLO8+1}]")
        E(f"ds_write_b128 v{vRW}, {r4(vD1)} offset:{RED}")
    def t_bar():
        E("s_waitcnt lgkmcnt(0)")
        E("s_barrier")
    def red_b(dst):
        E(f"ds_read_b128 {r4(dst)}, v{vRR} offset:{RED}")
        E("s_waitcnt lgkmcnt(0)")
        row_reduce(E, [dst + i for i in range(4)])
        for i in range(4): E(f"v_cvt_pk_bf16_f32 v{dst+i}, v{dst+i}, v{dst+i}")
    def t_qr2():
        E(f"v_lshlrev_b32 v{vB1}, 6, v{vJ}")
        E(f"s_lshl_b32 s{sT0}, s{sW}, 1")
        E(f"v_add_u32 v{vB1}, s{sT0}, v{vB1}")
        red_b(vB0)
        E(f"s_mov_b32 exec_lo, 0x00010001")
        E(f"s_mov_b32 exec_hi, 0x00010001")
        for i in range(4): E(f"ds_write_b16 v{vB1}, v{vB0+i} offset:{QF+16*i}")
        E("s_mov_b64 exec, -1")
        E(f"v_lshlrev_b32 v{vB1}, 4, v{vN}")
    def t_qr3():
        E(f"ds_read_b128 {r4(vQ)}, v{vB1} offset:{QF}")
        E("s_waitcnt lgkmcnt(0)")
        stamp(2)
    def t_k2(t):
        def fn():
            ks = [slot_of[f"k{2*t+i}"] for i in range(4)]
            acc = [vB0 + i for i in range(4)]
            for i in range(4):
                for u in range(4):
                    E(f"v_dot2_f32_bf16 v{acc[u]}, v{ks[u]+i}, v{vQ+i}, {'0' if i == 0 else 'v%d' % acc[u]}")
            s0, s1 = vS + t, vS + t + 1
            E(f"v_add_f32_dpp v{s0}, v{acc[0]}, v{acc[0]} row_ror:8 row_mask:0xf bank_mask:0x3")
            E(f"v_add_f32_dpp v{s0}, v{acc[1]}, v{acc[1]} row_ror:8 row_mask:0xf bank_mask:0xc")
            E(f"v_add_f32_dpp v{s1}, v{acc[2]}, v{acc[2]} row_ror:8 row_mask:0xf bank_mask:0x3")
            E(f"v_add_f32_dpp v{s1}, v{acc[3]}, v{acc[3]} row_ror:8 row_mask:0xf bank_mask:0xc")
            for mod in ("row_half_mirror", "quad_perm:[1,0,3,2]", "quad_perm:[2,3,0,1]"):
                for s in (s0, s1):
                    E(f"v_add_f32_dpp v{s}, v{s}, v{s} {mod} row_mask:0xf bank_mask:0xf")
            bf16r_many(E, [s0, s1])
            E(f"v_mul_f32 v{s0}, {SCALE:#x}, v{s0}")
            E(f"v_mul_f32 v{s1}, {SCALE:#x}, v{s1}")
            bf16r_many(E, [s0, s1])
        return fn
    m, l = vD1, vD1 + 1
    def t_sm1():
        E(f"v_max3_f32 v{m}, v{vS}, v{vS+1}, v{vS+2}")
        for i in range(3, 15, 2): E(f"v_max3_f32 v{m}, v{m}, v{vS+i}, v{vS+i+1}")
        E(f"v_max_f32 v{m}, v{m}, v{vS+15}")
        for i in range(16): E(f"v_sub_f32 v{vS+i}, v{vS+i}, v{m}")
        for i in range(16): E(f"v_mul_f32 v{vS+i}, {LOG2E:#x}, v{vS+i}")
        for i in range(16): E(f"v_exp_f32 v{vS+i}, v{vS+i}")
        E(f"v_add_f32 v{l}, v{vS}, v{vS+1}")
        E(f"v_add_f32 v{vB0}, v{vS+2}, v{vS+3}")
        for i in range(4, 16, 2):
            E(f"v_add_f32 v{l}, v{l}, v{vS+i}")
            E(f"v_add_f32 v{vB0}, v{vB0}, v{vS+i+1}")
        E(f"v_add_f32 v{l}, v{l}, v{vB0}")
        E(f"v_and_b32 v{vB0}, 56, v{vL}")
        E(f"s_lshl_b32 s{sT0}, s{sW}, 6")
        E(f"v_add_u32 v{vB0}, s{sT0}, v{vB0}")
        E(f"ds_write_b64 v{vB0}, {r2(m)} offset:{ML}")
        E(f"v_lshlrev_b32 v{vB0}, 3, v{vL}")
        stamp(3)
    def t_smb():
        E("s_waitcnt lgkmcnt(0)")
        E("s_barrier")
        stamp(4)
    def t_sm2():
        mg, lg = vD2, vD2 + 1
        E(f"ds_read_b64 {r2(mg)}, v{vB0} offset:{ML}")
        E("s_waitcnt lgkmcnt(0)")
        E(f"v_mov_b32 v{vB0}, v{mg}")
        wave_reduce(E, vB0, sT0, "v_max_f32")
        E(f"v_subrev_f32 v{mg}, s{sT0}, v{mg}")
        E(f"v_subrev_f32 v{m}, s{sT0}, v{m}")
        E(f"v_mul_f32 v{mg}, {LOG2E:#x}, v{mg}")
        E(f"v_mul_f32 v{m}, {LOG2E:#x}, v{m}")
        E(f"v_exp_f32 v{mg}, v{mg}")
        E(f"v_exp_f32 v{m}, v{m}")
        E(f"v_mul_f32 v{lg}, v{lg}, v{mg}")
        wave_reduce(E, lg, sT1)
        E(f"v_rcp_f32 v{l}, s{sT1}")
        E(f"v_mul_f32 v{m}, v{m}, v{l}")
        for i in range(16): E(f"v_mul_f32 v{vS+i}, v{vS+i}, v{m}")
        for i in range(16): E(f"v_cvt_pk_bf16_f32 v{vS+i}, v{vS+i}, v{vS+i}")
    Bs = [vB0, vB1, vD1, vD2]
    vA, vA2, vA3 = vQ, vQ + 1, vQ + 2
    vFL2 = vD2 + 2
    vA4 = vQ + 3
    sVA = 22
    def t_pre_tail():
        E(f"v_and_b32 v{vA}, 7, v{vL}")
        E(f"v_mul_u32_u24 v{vA}, 80, v{vA}")
        E(f"v_lshl_add_u32 v{vA}, v{vJ}, 4, v{vA}")
        E(f"s_mul_i32 s{sT0}, s{sW}, {YPS}")
        E(f"v_add_u32 v{vA}, s{sT0}, v{vA}")
        for k, (dst, add) in enumerate(((vA2, 0), (vA3, 480))):
            E(f"s_mul_i32 s{sT0}, s{sW}, 60")
            E(f"s_add_u32 s{sT0}, s{sT0}, {add}")
            E(f"v_mul_u32_u24 v{vA4}, 15, v{vJ}")
            E(f"v_add3_u32 v{vA4}, v{vA4}, v{vN}, s{sT0}")
            if k == 1:
                E(f"s_mov_b32 s{sT1}, 640")
                E(f"v_cmp_gt_u32 s[{sVA}:{sVA+1}], s{sT1}, v{vA4}")
            E(f"v_min_u32 v{vA4}, 639, v{vA4}")
            E(f"v_lshrrev_b32 v{dst}, 7, v{vA4}")
            E(f"v_mul_u32_u24 v{dst}, 640, v{dst}")
            E(f"v_and_b32 v{vFL2}, 7, v{vA4}")
            E(f"v_mul_u32_u24 v{vFL2}, 80, v{vFL2}")
            E(f"v_add_u32 v{dst}, v{dst}, v{vFL2}")
            E(f"v_bfe_u32 v{vFL2}, v{vA4}, 3, 4")
            E(f"v_lshl_add_u32 v{dst}, v{vFL2}, 2, v{dst}")
        E(f"v_lshlrev_b32 v{vA4}, 2, v{vL}")
    def t_role():
        E(f"s_and_b32 s{sT0}, s2, 7")
        E(f"s_lshl_b32 s{sT0}, s{sT0}, 2")
        E(f"s_lshr_b32 s{sT0}, {a.rtab}, s{sT0}")
        E(f"s_and_b32 s{sT0}, s{sT0}, 15")
        if a.dyn: E(f"s_mov_b32 s{sT1}, s{sTKO}")
        else: E(f"s_lshr_b32 s{sT1}, s2, 3")
        E(f"s_mul_i32 s{sT2}, s{sT0}, 9")
        E(f"s_add_u32 s{sT2}, s{sT2}, s{sT1}")
        E(f"s_add_u32 s{sT2}, s{sT2}, {NF2}")
        E(f"s_cmp_lt_u32 s{sT1}, 9")
        E(f"s_cselect_b32 s{sT2}, s{sT2}, 255")
        E(f"s_sub_u32 s{sT3}, s{sT0}, 8")
        E(f"s_mul_i32 s{sT3}, s{sT3}, {8 // NC}")
        E(f"s_add_u32 s{sT3}, s{sT3}, s{sT1}")
        E(f"s_cmp_lt_u32 s{sT1}, {8 // NC}")
        E(f"s_cselect_b32 s{sT3}, s{sT3}, 255")
        E(f"s_cmp_lt_u32 s{sT0}, 8")
        E(f"s_cselect_b32 s{sTILE}, s{sT2}, s{sT3}")
    def t_flag():
        E(f"v_cmp_eq_u32 vcc, 0, v{vFL}")
        E.flush()
        E("s_cbranch_vccz L_flagok")
        E.label("L_flag")
        E("s_sleep 2")
        E(f"v_and_b32 v{vFL}, 7, v{vL}")
        E(f"v_lshlrev_b32 v{vFL}, 2, v{vFL}")
        E(f"buffer_load_dword v{vFL}, v{vFL}, {S4(sDB)}, 0 offen sc1", tag="extra")
        E("s_waitcnt vmcnt(0)")
        E(f"v_cmp_eq_u32 vcc, 0, v{vFL}")
        E.flush()
        E("s_cbranch_vccz L_flagok")
        spin("L_flagok")
        E("s_branch L_flag")
        E.label("L_flagok")
    sDO, sDL = 21, 24
    vDM1 = vFL
    def t_dmaprep():
        tmp = alloc("tmpd")
        E(f"s_mov_b32 s{sWF}, s16")
        E(f"s_and_b32 s{sWF+1}, s17, 0xffff")
        E(f"s_mov_b32 s{sWF+2}, {640*3456}")
        E(f"s_mov_b32 s{sWF+3}, 0x20000")
        E(f"v_lshrrev_b32 v{vDM1}, 3, v{vL}")
        E(f"v_mul_u32_u24 v{vDM1}, 3456, v{vDM1}")
        E(f"v_and_b32 v{tmp}, 1, v{vJ}")
        E(f"v_lshlrev_b32 v{tmp}, 2, v{tmp}")
        E(f"s_and_b32 s{sT0}, s{sW}, 1")
        E(f"s_lshl_b32 s{sT1}, s{sT0}, 1")
        E(f"v_xor_b32 v{tmp}, s{sT1}, v{tmp}")
        E(f"v_xor_b32 v{tmp}, v{vL}, v{tmp}")
        E(f"v_and_b32 v{tmp}, 7, v{tmp}")
        E(f"v_lshl_add_u32 v{vDM1}, v{tmp}, 4, v{vDM1}")
        E(f"s_lshr_b32 s{sT1}, s{sW}, 1")
        E(f"s_mul_i32 s{sT1}, s{sT1}, 15")
        E(f"s_lshl_b32 s{sT0}, s{sT0}, 3")
        E(f"s_add_u32 s{sT1}, s{sT1}, s{sT0}")
        E(f"s_mul_i32 s{sT1}, s{sT1}, 3456")
        E(f"s_mov_b32 s{sDO}, s{sT1}")
        E(f"s_lshl_b32 s{sDL}, s{sW}, 10")
        E(f"s_add_u32 s{sDL}, s{sDL}, {WT}")
    def t_ypw():
        stamp(7)
        E(f"s_mov_b64 exec, s[{sLO8}:{sLO8+1}]")
        for cg in range(5):
            if a.orot: E(f"ds_write_b128 v{ypa(cg)}, {r4(slot_of[f'y{cg}'])} offset:{YP}")
            else: E(f"ds_write_b128 v{vA}, {r4(slot_of[f'y{cg}'])} offset:{YP+cg*640}")
        E("s_mov_b64 exec, -1")
    def ypa(cg): return vA if cg == 4 else slot_of["ya"] + cg
    def t_ypaddr():
        alloc("ya")
        E(f"s_mul_i32 s{sT0}, s{sB}, 5")
        E(f"s_lshr_b32 s{sT0}, s{sT0}, 3")
        E(f"s_mul_i32 s{sT0}, s{sT0}, 640")
        for cg in range(5):
            E(f"v_add_u32 v{ypa(cg)}, s{sT0}, v{vA}")
            if cg < 4:
                E(f"s_add_u32 s{sT0}, s{sT0}, 640")
                E(f"s_cmp_ge_u32 s{sT0}, 3200")
                E(f"s_cselect_b32 s{sT0}, 0, s{sT0}")
    def t_or1():
        stamp(5)
        red_a()
        if a.dyn:
            E(f"s_cmp_eq_u32 s{sW}, 0")
            E("s_cselect_b32 exec_lo, 1, 0")
            E("s_mov_b32 exec_hi, 0")
            E(f"ds_write_b32 v{slot_of['tk']+1}, v{slot_of['tk']}")
            E("s_mov_b64 exec, -1")
        t_bar()
        stamp(6)
    def t_or2():
        if a.dyn: E(f"ds_read_b32 v{slot_of['tk']}, v{slot_of['tk']+1}")
        red_b(vS)
        bfrag(Bs[0], vS)
        for cg in range(5): alloc(f"y{cg}")
    def t_y(f):
        def fn():
            fp, cg = divmod(f, 5) if not a.orot else (f % 4, f // 4)
            y = slot_of[f"y{cg}"]
            c = "0" if fp == 0 else r4(y)
            E(f"v_mfma_f32_16x16x32_bf16 {r4(y)}, {r4(slot_of[f'wo{f}'])}, {r4(Bs[fp])}, {c}")
            if fp < 3 and cg < 4: E(f"v_and_b32 v{Bs[fp+1]+cg}, v{vS+fp+1}, v{vM+cg}")
            if a.dyn and f == 4: E(f"v_readfirstlane_b32 s{sTKO}, v{slot_of['tk']}")
            if a.dyn and f == 9: t_role()
        return fn
    tasks = []
    tasks.append(Task(t_setup))
    tasks.append(Task(t_ln1a, ["xs"], cost=3))
    tasks.append(Task(t_ln1b, [] if a.qp2 else ["xc"], cost=2))
    for t in range(10):
        tasks.append(Task(t_pair(t, "wq"), [f"wq{2*t+1}"], frees=[f"wq{2*t}", f"wq{2*t+1}"]))
        if t == 1: tasks.append(Task(t_init, atomic=True))
        if t == 5: tasks.append(Task(t_flagset, ["wq11"], frees=["z0", "z1", "z2", "z3"], atomic=True))
        if t == a.l2pf and not a.spf and not a.nodma: tasks.append(Task(t_l2pf, atomic=True))
        if a.spf and a.nodma < 2 and a.endpf != 3:
            if t == 0: tasks.append(Task(t_spf0, atomic=True))
            if t in (2, 4, 6): tasks.append(Task(t_spf(t // 2 - 1), atomic=True))
    tasks.append(Task(red_a))
    tasks.append(Task(t_bar, barrier=a.bd1))
    tasks.append(Task(t_qr2))
    tasks.append(Task(t_bar, barrier=a.bd2))
    tasks.append(Task(t_qr3))
    for t in range(0, 16, 2):
        tasks.append(Task(t_k2(t), [f"k{2*t+3}"], frees=[f"k{2*t+i}" for i in range(4)], cost=2))
    tasks.append(Task(t_sm1, cost=2))
    tasks.append(Task(t_smb, barrier=a.bd3))
    tasks.append(Task(t_sm2, cost=2))
    tasks.append(Task(t_pre_tail))
    if not a.dyn: tasks.append(Task(t_role, atomic=True))
    if a.endpf: tasks.append(Task(t_epf_prep, atomic=True))
    for t in range(16):
        tasks.append(Task(t_pair(t, "v"), [f"v{2*t+1}"], frees=[f"v{2*t}", f"v{2*t+1}"], cost=0.5))
        if t == 9:
            tasks.append(Task(t_flag, ["flag"], atomic=True))
            tasks.append(Task(t_dmaprep, frees=["tmpd"]))
            if a.orot: tasks.append(Task(t_ypaddr, atomic=True))
    tasks.append(Task(t_or1, barrier=99))
    tasks.append(Task(t_or2))
    yorder = range(20) if not a.orot else [4 * cg + fp for fp in range(4) for cg in range(4)] + [16, 17, 18, 19]
    for f in yorder: tasks.append(Task(t_y(f), [f"wo{f}"], cost=0.25))
    tasks.append(Task(t_ypw))

    issued = {"xs", "xc"} | {f"k{f}" for f in range(a.nk0)}
    pend = deque(tasks)
    def ready(t): return all(n in issued and n not in E.vm for n in t.needs)
    def start(t):
        if t.q is None:
            for n in t.needs:
                assert n in issued, n
                if n in E.vm: E.wait_vm(n)
            t.q = E.record(t.fn)
    def step(t, budget):
        start(t)
        n = 0
        masked = False
        while t.q and (t.atomic or masked or n < budget):
            it = t.q.popleft(); E.play(it); n += 1
            if it[0] == "i" and "exec" in it[1].split(",")[0]:
                masked = not it[1].endswith("exec, -1")
        if not t.q:
            for x in t.frees: release(x)
        return n
    def run(t):
        step(t, 10**9)
    D = a.depth
    for i, (tag, fn, needs_slot) in enumerate(loads):
        while needs_slot and not free:
            run(pend.popleft())
        if tag == "epf":
            while any(t.fn is t_epf_prep for t in pend): run(pend.popleft())
            while pend[0].q is not None: run(pend.popleft())
        if tag == "tk":
            while pend[0].q is not None: run(pend.popleft())
        lim = 63 if i < a.first else D
        if len(E.vm) >= lim:
            E(f"s_waitcnt vmcnt({lim-1})")
            E.vm = E.vm[len(E.vm) - (lim - 1):]
        fn(); issued.add(tag)
        if i + 1 < a.first: continue
        budget = a.budget
        while pend and budget > 0 and (pend[0].q is not None or ready(pend[0])):
            if pend[0].barrier > 0:
                pend[0].barrier -= 1
                break
            budget -= step(pend[0], budget)
            if not pend[0].q: pend.popleft()
    while pend: run(pend.popleft())
    assert set(E.vm) <= {"epf"}, E.vm
    E.vm = []
    E(f"s_mul_i32 s{sT0}, s{sB}, {HS}")
    E(f"s_lshl_b32 s{sT1}, s{sW}, 8")
    E(f"s_add_u32 s{sT0}, s{sT0}, s{sT1}")
    E(f"s_mov_b32 s{sT2}, 0x80008000")
    E(f"s_mov_b32 s{sT3}, 0x80008000")
    E("s_waitcnt lgkmcnt(0)")
    E("s_barrier")
    stamp(8)
    vP = vS
    for k, ad in enumerate((vA2, vA3)):
        for p in range(4):
            E(f"ds_read2st64_b32 {r2(vP+8*k+2*p)}, v{ad} offset0:{YP//256+26*p} offset1:{YP//256+26*p+13}")
    for k in range(2):
        b = vP + 8 * k
        if not a.ts: E(f"s_waitcnt lgkmcnt({4 if k == 0 else 0})")
        else: E("s_waitcnt lgkmcnt(0)")
        for st in (4, 2, 1):
            for p in range(st):
                E(f"v_add_f32 v{b+p}, v{b+p}, v{b+p+st}")
        if k == 1: E(f"v_cndmask_b32 v{b}, 0, v{b}, s[{sVA}:{sVA+1}]")
        E(f"v_cndmask_b32 v{b}, v{b}, 1.0, s[{sT2}:{sT3}]")
        if k == 1:
            E(f"s_cmp_ge_u32 s{sW}, 3")
            E("s_cbranch_scc1 L_arr")
        E(f"buffer_atomic_add_f32 v{b}, v{vA4}, {S4(sWS)}, s{sT0} offen offset:{2048*k}", tag="extra")
    E.label("L_arr")
    stamp(9)
    if a.endpf and a.epos < 0: epf()[1]()
    if a.endpf: assert not (128 <= slot_of["epf"] - vF + 3 < 172), slot_of["epf"]
    E(f"s_cmp_ge_u32 s{sTILE}, {NF2 + NF1}")
    E("s_cbranch_scc1 L_fin")
    E(f"s_mov_b32 s{sWF+2}, {640*3456}")
    E(f"s_mov_b32 s{sWF+3}, 0x20000")
    E(f"s_cmp_lt_u32 s{sTILE}, {NF2}")
    E("s_cbranch_scc1 L_ffn2")

    vW = vF
    E(f"s_mov_b32 s{sROLE}, 1")
    E(f"s_sub_u32 s{sTILE}, s{sTILE}, {NF2}")
    E(f"s_mov_b32 s{sWF}, s16")
    E(f"s_and_b32 s{sWF+1}, s17, 0xffff")
    vDM, vX0 = vB0, vB0 + 1
    E(f"s_lshl_b32 s{sT0}, s{sTILE}, 7")
    E(f"s_add_u32 s{sDO}, s{sDO}, s{sT0}")
    xq = [vF + 172, vF + 174, vF + 176]
    if a.endpf: assert not (172 <= slot_of["epf"] - vF + 3 < 180)
    E(f"v_lshrrev_b32 v{vX0}, 2, v{vL}")
    E(f"v_mul_u32_u24 v{vX0}, 30, v{vX0}")
    E(f"v_and_b32 v{vX0+1}, 3, v{vL}")
    E(f"v_lshl_add_u32 v{vX0}, v{vX0+1}, 3, v{vX0}")
    E(f"s_mul_i32 s{sT0}, s{sW}, 1280")
    for i in range(3):
        E(f"buffer_load_dwordx2 {r2(xq[i])}, v{vX0}, {S4(sX)}, s{sT0} offen offset:{480*i}", tag="extra")
    if a.abar: E("s_barrier")
    stamp(10)
    late = True
    for t in range(11 if not a.nodma else 0):
        E(f"s_mov_b32 m0, s{sDL}")
        E(f"buffer_load_dwordx4 v{vDM1}, {S4(sWF)}, s{sDO} offen{fnt} lds", tag="extra")
        if t < 10:
            E(f"s_add_u32 s{sDO}, s{sDO}, {60*3456}")
            E(f"s_add_u32 s{sDL}, s{sDL}, 8192")
    if a.ts == 2: stamp(1)
    hb = vF + 88
    ac = vF + 136
    xk = vF + 148
    hn = vF + 160
    for i in range(12): E(f"v_mov_b32 v{hn+i}, 0")
    for i in range(8, 11): E(f"v_mov_b32 v{ac+i}, 0")
    E(f"v_mov_b32 v{ac+11}, 0x42000000")
    vA = vB1
    E(f"v_lshlrev_b32 v{vA+2}, 3, v{vL}")
    E(f"s_mul_i32 s{sT1}, s{sW}, {HNS}")
    E(f"v_add_u32 v{vA+2}, s{sT1}, v{vA+2}")
    vTR1 = vQ
    E(f"v_lshlrev_b32 v{vTR1}, 10, v{vJ}")
    E(f"v_lshrrev_b32 v{vDM}, 2, v{vN}")
    E(f"v_lshl_add_u32 v{vTR1}, v{vDM}, 7, v{vTR1}")
    E(f"v_and_b32 v{vDM}, 2, v{vDM}")
    E(f"v_and_b32 v{vX0}, 1, v{vJ}")
    E(f"v_or_b32 v{vDM}, v{vDM}, v{vX0}")
    E(f"s_and_b32 s{sT0}, s{sW}, 3")
    E(f"v_xor_b32 v{vDM}, s{sT0}, v{vDM}")
    E(f"v_lshl_add_u32 v{vTR1}, v{vDM}, 5, v{vTR1}")
    E(f"v_and_b32 v{vDM}, 3, v{vN}")
    E(f"v_lshl_add_u32 v{vTR1}, v{vDM}, 3, v{vTR1}")
    E(f"v_add_u32 v{vTR1}, {WT}, v{vTR1}")
    E(f"v_add_u32 v{vTR1+1}, {11*4096}, v{vTR1}")
    E(f"v_and_b32 v{vA+3}, 7, v{vL}")
    E(f"v_mul_u32_u24 v{vA+3}, {HNS}, v{vA+3}")
    E(f"v_lshl_add_u32 v{vA+3}, v{vJ}, 4, v{vA+3}")
    E(f"v_lshrrev_b32 v{vDM}, 3, v{vN}")
    E(f"v_lshl_add_u32 v{vA+3}, v{vDM}, 6, v{vA+3}")
    E(f"v_lshlrev_b32 v{vA}, 5, v{vN}")
    E(f"v_lshl_add_u32 v{vA}, v{vJ}, 3, v{vA}")
    E(f"s_lshl_b32 s{sT3}, s{sTILE}, 2")
    E(f"s_add_u32 s{sT3}, s{sT3}, s{sW}")
    E(f"s_lshl_b32 s{sT3}, s{sT3}, 8")
    E(f"s_mul_i32 s{sT2}, s{sW}, {HS}")
    sM3, sCL = 12, 14
    E(f"s_mov_b32 s{sM3}, 0x77777777")
    E(f"s_mov_b32 s{sM3+1}, 0x77777777")
    E(f"s_mov_b32 s{sCL}, 0x88888888")
    E(f"s_mov_b32 s{sCL+1}, 0x88888888")
    def accload():
        E(f"buffer_load_dwordx4 {r4(ac)}, v{vL16}, {S4(sWS)}, s{sT2} offen sc1", tag="extra")
        E(f"buffer_load_dwordx4 {r4(ac+4)}, v{vL16}, {S4(sWS)}, s{sT2} offen offset:1024 sc1", tag="extra")
        E("s_mov_b32 exec_hi, 0xffff")
        E(f"buffer_load_dwordx4 {r4(ac+8)}, v{vL16}, {S4(sWS)}, s{sT2} offen offset:2048 sc1", tag="extra")
        E("s_mov_b32 exec_hi, -1")
    if a.ts == 2: stamp(2)
    E("s_waitcnt vmcnt(%d)" % (0 if late else (2 if a.endpf and a.epos < 0 else 1)))
    if a.ts == 2: stamp(3)
    for i in range(6):
        E(f"v_lshlrev_b32 v{xk+2*i}, 16, v{xq[i//2]+i%2}")
        E(f"v_and_b32 v{xk+2*i+1}, 0xffff0000, v{xq[i//2]+i%2}")
    sLO_, sHI_, sONE = 20, 21, 24
    vNI, vKM = hn + 6, hn + 7
    if a.ln2:
        E(f"s_mov_b32 s{sLO_}, 0x00003f80")
        E(f"s_mov_b32 s{sHI_}, 0x3f800000")
        E(f"s_mov_b32 s{sONE}, 0x3f803f80")
        E(f"v_mov_b32 v{vNI}, 0xbacccccd")
        E(f"v_mov_b32 v{vKM}, -1")
        E(f"v_mov_b32 v{vKM+1}, -1")
        E(f"v_mov_b32 v{vKM+2}, -1")
        E("s_mov_b32 exec_lo, 0")
        E(f"s_mov_b32 exec_hi, {0xffffffff ^ ((1 << 11) - 1):#x}")
        E(f"v_mov_b32 v{xk+8}, 0"); E(f"v_mov_b32 v{xk+9}, 0"); E(f"v_mov_b32 v{vKM+1}, 0")
        E(f"s_mov_b32 exec_hi, {0xffffffff ^ ((1 << 10) - 1):#x}")
        E(f"v_mov_b32 v{xk+10}, 0"); E(f"v_mov_b32 v{xk+11}, 0"); E(f"v_mov_b32 v{vKM+2}, 0")
        E(f"s_mov_b64 exec, s[{sCL}:{sCL+1}]")
        for i in (3, 7, 11): E(f"v_mov_b32 v{xk+i}, 0xc2000000")
        E(f"v_mov_b32 v{vKM}, 0xffff")
        E(f"v_and_b32 v{vKM+2}, 0xffff, v{vKM+2}")
        E("s_mov_b32 exec_lo, 0")
        E("s_mov_b32 exec_hi, 0xffff0000")
        E(f"v_mov_b32 v{xk+11}, 0xc2000000")
        E("s_mov_b64 exec, -1")
    E("s_barrier")
    if a.ts == 2: stamp(4)
    thr = struct.unpack("<I", struct.pack("<f", float(a.gate)))[0]
    E(f"s_mul_i32 s{sT4}, s{sTILE}, {a.gstep}")
    E(f"s_and_b32 s{sT4}, s{sT4}, 0xffffffc0")
    E(f"s_add_u32 s{sT4}, s{sT4}, s{sT2}")
    if a.spec: accload()
    else: E(f"buffer_load_dword v{vD2}, off, {S4(sWS)}, s{sT4} offset:60 sc1", tag="extra")
    E(f"s_cmp_ge_u32 s{sW}, 4")
    E("s_cbranch_scc1 L_f1_notr")
    for t in range(22):
        o = (t % 11) * 4096
        E(f"ds_read_b64_tr_b16 {r2(vW+4*t)}, v{vTR1 + t//11} offset:{o}")
        E(f"ds_read_b64_tr_b16 {r2(vW+4*t+2)}, v{vTR1 + t//11} offset:{o+512}")
    stamp(11)
    E.label("L_f1_notr")
    if not a.spec: E("s_branch L_f1_gate")
    E.label("L_f1_poll")
    E("s_waitcnt vmcnt(0)")
    E(f"v_min3_f32 v{vD1}, v{ac+3}, v{ac+7}, v{ac+11}")
    E(f"v_cmp_gt_f32 vcc, 0x42000000, v{vD1}")
    E(f"s_and_b64 vcc, vcc, s[{sCL}:{sCL+1}]")
    E("s_cbranch_scc0 L_f1_go")
    spin("L_f1_go")
    E(f"v_readlane_b32 s{sT0}, v{ac+3}, 3")
    E(f"s_cmp_ge_u32 s{sT0}, {thr:#x}")
    E("s_cbranch_scc1 L_f1_full")
    E.label("L_f1_regate")
    if a.sleep: E(f"s_sleep {a.sleep}")
    E(f"buffer_load_dword v{vD2}, off, {S4(sWS)}, s{sT4} offset:60 sc1", tag="extra")
    E.label("L_f1_gate")
    E("s_waitcnt vmcnt(0)")
    E(f"v_readfirstlane_b32 s{sT0}, v{vD2}")
    E(f"s_cmp_ge_u32 s{sT0}, {thr:#x}")
    E("s_cbranch_scc1 L_f1_full")
    spin("L_f1_full")
    E("s_branch L_f1_regate")
    E.label("L_f1_full")
    accload()
    E("s_branch L_f1_poll")
    E.label("L_f1_go")
    if a.tprio: E("s_setprio 2")
    stamp(12)
    t0_, t1_, t2_, vMN, vRC = vD1, vD1 + 1, vD1 + 2, vD2, vD2 + 1
    if a.ln2 == 0:
        hx = ac
        bf16r_many(E, range(ac, ac + 12))
        for i in range(12): E(f"v_add_f32 v{hx+i}, v{xk+i}, v{ac+i}")
        bf16r_many(E, range(hx, hx + 12))
        full = [0, 1, 2, 4, 5, 6]
        def masked(fn):
            for i in full: fn(i)
            E(f"s_mov_b32 exec_hi, {(1 << 11) - 1:#x}")
            fn(8); fn(9)
            E(f"s_mov_b32 exec_hi, {(1 << 10) - 1:#x}")
            fn(10)
            E(f"s_and_b64 exec, exec, s[{sM3}:{sM3+1}]")
            fn(11)
            E(f"s_mov_b64 exec, s[{sM3}:{sM3+1}]")
            fn(3); fn(7)
            E("s_mov_b64 exec, -1")
        t0_, t1_, t2_, vMN, vRC = vD1, vD1 + 1, vD1 + 2, vD2, vD2 + 1
        def f_sum(i):
            if i == 0: E(f"v_add_f32 v{t0_}, v{hx}, v{hx+1}")
            elif i == 1: pass
            elif i == 2: E(f"v_add_f32 v{t1_}, v{hx+2}, v{hx+4}")
            elif i == 4: pass
            else:
                d = t0_ if i % 2 else t1_
                E(f"v_add_f32 v{d}, v{d}, v{hx+i}")
        masked(f_sum)
        E(f"v_add_f32 v{t0_}, v{t0_}, v{t1_}")
        E(f"v_mov_b32 v{t2_}, 0x3acccccd")
        wave_reduce(E, t0_, sT0)
        E(f"v_mul_f32 v{vMN}, s{sT0}, v{t2_}")
        for i in range(12): E(f"v_sub_f32 v{xk+i}, v{hx+i}, v{vMN}")
        def f_var(i):
            if i == 0: E(f"v_mul_f32 v{t0_}, v{xk}, v{xk}")
            elif i == 1: E(f"v_mul_f32 v{t1_}, v{xk+1}, v{xk+1}")
            else:
                d = t0_ if i % 2 == 0 else t1_
                E(f"v_fmac_f32 v{d}, v{xk+i}, v{xk+i}")
        masked(f_var)
        E(f"v_add_f32 v{t0_}, v{t0_}, v{t1_}")
        bf16r(E, vMN, vMN)
        row_reduce(E, [t0_])
        for i in range(6): E(f"v_sub_f32 v{hx+i}, v{hx+i}, v{vMN}")
        E(f"v_add_f32_dpp v{t0_}, v{t0_}, v{t0_} row_bcast:15 row_mask:0xa bank_mask:0xf")
        for i in range(6, 12): E(f"v_sub_f32 v{hx+i}, v{hx+i}, v{vMN}")
        E(f"v_add_f32_dpp v{t0_}, v{t0_}, v{t0_} row_bcast:31 row_mask:0xc bank_mask:0xf")
        bf16r_many(E, range(hx, hx + 4))
        E(f"v_readlane_b32 s{sT0}, v{t0_}, 63")
        bf16r_many(E, range(hx + 4, hx + 8))
        E(f"v_mul_f32 v{t0_}, s{sT0}, v{t2_}")
        bf16r(E, t0_, t0_)
        E(f"v_add_f32 v{t0_}, 0x3727c5ac, v{t0_}")
        bf16r(E, t0_, t0_)
        E(f"v_sqrt_f32 v{t0_}, v{t0_}")
        bf16r_many(E, range(hx + 8, hx + 12))
        bf16r(E, t0_, t0_)
        E(f"v_rcp_f32 v{vRC}, v{t0_}")
        masked(lambda i: E(f"v_mul_f32 v{hn+i}, v{hx+i}, v{vRC}"))
        for i in range(6): E(f"v_cvt_pk_bf16_f32 v{xk+i}, v{hn+2*i}, v{hn+2*i+1}")
    else:
        pk = hn
        sel = (sLO_, sHI_)
        for i in range(6): E(f"v_cvt_pk_bf16_f32 v{pk+i}, v{ac+2*i}, v{ac+2*i+1}")
        for i in range(12): E(f"v_dot2_f32_bf16 v{ac+i}, v{pk+i//2}, s{sel[i%2]}, v{xk+i}")
        for i in range(6): E(f"v_cvt_pk_bf16_f32 v{pk+i}, v{ac+2*i}, v{ac+2*i+1}")
        for i in range(6):
            d = t0_ if i % 2 == 0 else t1_
            E(f"v_dot2_f32_bf16 v{d}, v{pk+i}, s{sONE}, {'0' if i < 2 else 'v%d' % d}")
        fill = []
        for i in range(6):
            fill.append(f"v_lshlrev_b32 v{xk+2*i}, 16, v{pk+i}")
            fill.append(f"v_and_b32 v{xk+2*i+1}, 0xffff0000, v{pk+i}")
        chain = [f"v_add_f32 v{t0_}, v{t0_}, v{t1_}"]
        chain += [f"v_add_f32_dpp v{t0_}, v{t0_}, v{t0_} row_ror:{sh} row_mask:0xf bank_mask:0xf" for sh in (8, 4, 2, 1)]
        chain += [f"v_add_f32_dpp v{t0_}, v{t0_}, v{t0_} row_bcast:15 row_mask:0xa bank_mask:0xf",
                  f"v_add_f32_dpp v{t0_}, v{t0_}, v{t0_} row_bcast:31 row_mask:0xc bank_mask:0xf",
                  f"v_readlane_b32 s{sT0}, v{t0_}, 63"]
        for c in chain:
            for _ in range(2):
                if fill: E(fill.pop(0))
            E(c)
        E(f"v_mul_f32 v{vMN}, s{sT0}, v{vNI}")
        for i in range(12): E(f"v_add_f32 v{ac+i}, v{xk+i}, v{vMN}")
        full = [0, 1, 2, 4, 5, 6]
        def masked(fn):
            for i in full: fn(i)
            E(f"s_mov_b32 exec_hi, {(1 << 11) - 1:#x}")
            fn(8); fn(9)
            E(f"s_mov_b32 exec_hi, {(1 << 10) - 1:#x}")
            fn(10)
            E(f"s_and_b64 exec, exec, s[{sM3}:{sM3+1}]")
            fn(11)
            E(f"s_mov_b64 exec, s[{sM3}:{sM3+1}]")
            fn(3); fn(7)
            E("s_mov_b64 exec, -1")
        def f_var(i):
            if i == 0: E(f"v_mul_f32 v{t0_}, v{ac}, v{ac}")
            elif i == 1: E(f"v_mul_f32 v{t1_}, v{ac+1}, v{ac+1}")
            else:
                d = t0_ if i % 2 == 0 else t1_
                E(f"v_fmac_f32 v{d}, v{ac+i}, v{ac+i}")
        masked(f_var)
        E(f"v_add_f32 v{t0_}, v{t0_}, v{t1_}")
        bf16r(E, vMN, vMN)
        fill = [f"v_add_f32 v{ac+i}, v{xk+i}, v{vMN}" for i in range(12)]
        fill += [f"v_cvt_pk_bf16_f32 v{pk+i}, v{ac+2*i}, v{ac+2*i+1}" for i in range(6)]
        for i in (1, 3, 4, 5): fill.append(f"v_and_b32 v{pk+i}, v{pk+i}, v{vKM + (0 if i < 4 else i - 3)}")
        for i in range(6):
            fill.append(f"v_lshlrev_b32 v{ac+2*i}, 16, v{pk+i}")
            fill.append(f"v_and_b32 v{ac+2*i+1}, 0xffff0000, v{pk+i}")
        chain = [f"v_add_f32_dpp v{t0_}, v{t0_}, v{t0_} row_ror:{sh} row_mask:0xf bank_mask:0xf" for sh in (8, 4, 2, 1)]
        chain += [f"v_add_f32_dpp v{t0_}, v{t0_}, v{t0_} row_bcast:15 row_mask:0xa bank_mask:0xf",
                  f"v_add_f32_dpp v{t0_}, v{t0_}, v{t0_} row_bcast:31 row_mask:0xc bank_mask:0xf",
                  f"v_readlane_b32 s{sT0}, v{t0_}, 63",
                  f"v_mul_f32 v{t0_}, s{sT0}, -v{vNI}",
                  f"v_cvt_pk_bf16_f32 v{t0_}, v{t0_}, v{t0_}", f"v_and_b32 v{t0_}, 0xffff0000, v{t0_}",
                  f"v_add_f32 v{t0_}, 0x3727c5ac, v{t0_}",
                  f"v_cvt_pk_bf16_f32 v{t0_}, v{t0_}, v{t0_}", f"v_and_b32 v{t0_}, 0xffff0000, v{t0_}",
                  f"v_sqrt_f32 v{t0_}, v{t0_}",
                  f"v_cvt_pk_bf16_f32 v{t0_}, v{t0_}, v{t0_}", f"v_and_b32 v{t0_}, 0xffff0000, v{t0_}",
                  f"v_rcp_f32 v{vRC}, v{t0_}"]
        for c in chain:
            E(c)
            for _ in range(2):
                if fill: E(fill.pop(0))
        for c in fill: E(c)
        for i in range(12): E(f"v_mul_f32 v{ac+i}, v{ac+i}, v{vRC}")
        for i in range(6): E(f"v_cvt_pk_bf16_f32 v{xk+i}, v{ac+2*i}, v{ac+2*i+1}")
    E(f"ds_write_b64 v{vA+2}, {r2(xk)} offset:{HN}")
    E(f"ds_write_b64 v{vA+2}, {r2(xk+2)} offset:{HN+512}")
    E("s_mov_b32 exec_hi, 0xffff")
    E(f"ds_write_b64 v{vA+2}, {r2(xk+4)} offset:{HN+1024}")
    E("s_mov_b32 exec_hi, -1")
    E("s_waitcnt lgkmcnt(0)")
    E("s_barrier")
    E(f"s_cmp_ge_u32 s{sW}, 4")
    E("s_cbranch_scc1 L_fin")
    if a.ts:
        stamp(13); E("s_waitcnt lgkmcnt(0)")
    for u in range(11):
        E(f"ds_read_b128 {r4(hb+4*u)}, v{vA+3} offset:{HN+128*u}")
    for u in range(11):
        E(f"s_waitcnt lgkmcnt({10-u})")
        c1 = "0" if u == 0 else r4(vD1)
        c2 = "0" if u == 0 else r4(vD2)
        E(f"v_mfma_f32_16x16x32_bf16 {r4(vD1)}, {r4(vW+8*u)}, {r4(hb+4*u)}, {c1}")
        E(f"v_mfma_f32_16x16x32_bf16 {r4(vD2)}, {r4(vW+8*u+4)}, {r4(hb+4*u)}, {c2}")
    for i in range(4):
        E(f"v_add_f32_dpp v{vD1+i}, v{vD2+i}, v{vD1+i} row_ror:8 row_mask:0xf bank_mask:0xf")
    for i in range(4): E(f"v_max_f32 v{vD1+i}, 0, v{vD1+i}")
    E(f"v_cvt_pk_bf16_f32 v{vD2}, v{vD1}, v{vD1+1}")
    E(f"v_cvt_pk_bf16_f32 v{vD2+1}, v{vD1+2}, v{vD1+3}")
    E(f"s_mov_b64 exec, s[{sLO8}:{sLO8+1}]")
    E(f"buffer_store_dwordx2 {r2(vD2)}, v{vA}, {S4(sH1)}, s{sT3} offen sc1", tag="extra")
    stamp(14)
    E("s_branch L_fin")

    E.label("L_ffn2")
    E.comment("FFN2: %d columns of w2" % (16 * NC))
    E(f"s_mov_b64 s[{sDRY}:{sDRY+1}], {0 if a.dry & 2 else -1}")
    E(f"s_mov_b32 s{sROLE}, 2")
    E(f"s_mov_b32 s{sWF}, s18")
    E(f"s_and_b32 s{sWF+1}, s19, 0xffff")
    vDA = vQ + 2
    vA = vD1
    lpr = 2 * NC
    rpi = 64 // lpr
    nd2 = 7 * NC
    E(f"v_lshrrev_b32 v{vDA}, {NC}, v{vL}")
    E(f"v_mul_u32_u24 v{vDA}, 1280, v{vDA}")
    E(f"v_and_b32 v{vA+1}, {lpr-1}, v{vL}")
    E(f"v_lshl_add_u32 v{vDA}, v{vA+1}, 4, v{vDA}")
    sD0, sD2 = 12, 13
    E(f"s_mul_i32 s{sD0}, s{sW}, {7*32*1280}")
    E(f"s_mul_i32 s{sT1}, s{sTILE}, {32*NC}")
    E(f"s_add_u32 s{sD0}, s{sD0}, s{sT1}")
    E(f"s_mul_i32 s{sT3}, s{sW}, {nd2*1024}")
    E(f"s_add_u32 s{sT3}, s{sT3}, {WT}")
    E(f"s_mov_b32 s{sD2}, s{sT3}")
    def dma2():
        for t in range(nd2 if not a.nodma else 0):
            E(f"s_mov_b32 m0, s{sD2}")
            E(f"buffer_load_dwordx4 v{vDA}, {S4(sWF)}, s{sD0} offen{fnt} lds", tag="extra")
            if t < nd2 - 1:
                E(f"s_add_u32 s{sD0}, s{sD0}, {rpi*1280}")
                E(f"s_add_u32 s{sD2}, s{sD2}, 1024")
    E("s_barrier")
    stamp(10)
    if not a.late2: dma2()
    vB7 = vQ
    vXO = vQ + 1
    E(f"v_and_b32 v{vB7}, 7, v{vL}")
    E(f"v_mul_u32_u24 v{vXO}, 1280, v{vB7}")
    E(f"v_lshl_add_u32 v{vXO}, v{vJ}, 3, v{vXO}")
    E(f"s_and_b32 s{sT4}, s{sW}, {NC-1}")
    E(f"s_lshl_b32 s{sT4}, s{sT4}, 5")
    E(f"s_add_u32 s{sT1}, s{sT1}, s{sT4}")
    xr = vS
    E(f"buffer_load_dwordx2 {r2(xr)}, v{vXO}, {S4(sX)}, s{sT1} offen", tag="extra")
    vHA = vF + 128
    E(f"s_lshr_b32 s{sT0}, s{sT1}, 1")
    E(f"v_lshl_add_u32 v{vA}, v{vJ}, 2, s{sT0}")
    E(f"v_mul_u32_u24 v{vA+1}, {HS}, v{vB7}")
    for r in range(4):
        E(f"v_add_u32 v{vA+2}, {r}, v{vA}")
        E(f"v_mul_u32_u24 v{vA+3}, 4370, v{vA+2}")
        E(f"v_lshrrev_b32 v{vA+3}, 16, v{vA+3}")
        E(f"v_add_u32 v{vA+2}, v{vA+2}, v{vA+3}")
        E(f"v_lshl_add_u32 v{vHA+r}, v{vA+2}, 2, v{vA+1}")
        if r in (0, 3):
            E(f"v_lshl_add_u32 v{vHA+4+r//3}, v{vA+3}, 6, v{vA+1}")
    vH1 = vB1 + 1
    E(f"v_lshrrev_b32 v{vH1}, 1, v{vJ}")
    E(f"v_lshlrev_b32 v{vH1}, 8, v{vH1}")
    E(f"v_lshl_add_u32 v{vH1}, v{vB7}, 5, v{vH1}")
    E(f"v_and_b32 v{vB1+2}, 1, v{vJ}")
    E(f"v_lshl_add_u32 v{vH1}, v{vB1+2}, 4, v{vH1}")
    E(f"v_lshrrev_b32 v{vB1+2}, 3, v{vN}")
    E(f"v_lshl_add_u32 v{vH1}, v{vB1+2}, 9, v{vH1}")
    rb = 32 * NC
    vTR = vB1 + 2
    E(f"v_mul_u32_u24 v{vTR}, {8*rb}, v{vJ}")
    E(f"v_lshrrev_b32 v{vB1+3}, 2, v{vN}")
    E(f"v_lshl_add_u32 v{vTR}, v{vB1+3}, {4+NC}, v{vTR}")
    E(f"v_and_b32 v{vB1+3}, 3, v{vN}")
    E(f"v_lshl_add_u32 v{vTR}, v{vB1+3}, 3, v{vTR}")
    E(f"v_add_u32 v{vTR}, s{sT3}, v{vTR}")
    vRWp, vRRp = vB0, vB0 + 1
    E(f"s_lshl_b32 s{sT0}, s{sW}, 11")
    E(f"v_add_u32 v{vRWp}, s{sT0}, v{vL16}")
    E(f"s_lshl_b32 s{sT0}, s{sT4}, 5")
    E(f"v_add_u32 v{vRRp}, s{sT0}, v{vL16}")
    E(f"s_mul_i32 s{sT2}, s{sW}, {7*512}")
    acc = [vF + 96 + 4 * i for i in range(4)]
    ac = vS + 4
    hx = vS + 12
    hxk = vS + 8
    hb = vF + 64
    def trs():
        E("s_waitcnt vmcnt(0)")
        for t in range(7):
            for c in range(NC):
                E(f"ds_read_b64_tr_b16 {r2(vW+8*t+4*c)}, v{vTR} offset:{t*32*rb+c*32}")
                E(f"ds_read_b64_tr_b16 {r2(vW+8*t+4*c+2)}, v{vTR} offset:{t*32*rb+c*32+4*rb}")
        for i in range(2):
            E(f"v_lshlrev_b32 v{hxk+2*i}, 16, v{xr+i}")
            E(f"v_and_b32 v{hxk+2*i+1}, 0xffff0000, v{xr+i}")
        E("s_waitcnt lgkmcnt(0)")
        stamp(11)
    def cpoll(lbl, thr_):
        E.label(lbl)
        E(f"buffer_load_dword v{vD1}, v{vHA+4}, {S4(sWS)}, 0 offen offset:60 sc1", tag="extra")
        E(f"buffer_load_dword v{vD1+1}, v{vHA+5}, {S4(sWS)}, 0 offen offset:60 sc1", tag="extra")
        E("s_waitcnt vmcnt(0)")
        E(f"v_min_f32 v{vD1}, v{vD1}, v{vD1+1}")
        E(f"v_cmp_gt_f32 vcc, {thr_:#x}, v{vD1}")
        E(f"s_cbranch_vccz {lbl}_ok")
        spin(f"{lbl}_ok")
        E(f"s_sleep {a.sleep3}")
        E(f"s_branch {lbl}")
        E.label(f"{lbl}_ok")
    E.label("L_f2_top")
    E(f"s_mov_b64 exec, s[{sDRY}:{sDRY+1}]")
    E("s_cbranch_execz L_f2_got")
    if a.late2:
        E(f"s_cmp_ge_u32 s{sW}, 1")
        E("s_cbranch_scc1 L_f2_g_ok")
        cpoll("L_f2_g", struct.unpack("<I", struct.pack("<f", float(a.late2)))[0])
        E("s_barrier")
        dma2()
    trs()
    E(f"s_cmp_ge_u32 s{sW}, {NC}")
    E("s_cbranch_scc1 L_f2_go")
    cpoll("L_f2_c", 0x42000000)
    for r in range(4):
        E(f"buffer_load_dword v{ac+r}, v{vHA+r}, {S4(sWS)}, 0 offen sc1", tag="extra")
    E.label("L_f2_go")
    E("s_barrier")
    stamp(12)
    E.label("L_f2_poll2")
    for u in range(4):
        E(f"buffer_load_dwordx4 {r4(hb+4*u)}, v{vH1}, {S4(sH1)}, s{sT2} offen offset:{1024*u} sc1", tag="extra")
    E("s_waitcnt vmcnt(0)")
    E(f"v_max3_u32 v{vD1}, v{hb}, v{hb+1}, v{hb+2}")
    E(f"v_max3_u32 v{vD1+1}, v{hb+3}, v{hb+4}, v{hb+5}")
    for k in range(6, 16, 2):
        tgt = vD1 + ((k // 2) % 2)
        E(f"v_max3_u32 v{tgt}, v{tgt}, v{hb+k}, v{hb+k+1}")
    E(f"v_max_u32 v{vD1}, v{vD1}, v{vD1+1}")
    E(f"v_cmp_eq_u32 vcc, -1, v{vD1}")
    E("s_cbranch_vccz L_f2_got")
    spin("L_f2_got")
    if a.sleep2: E(f"s_sleep {a.sleep2}")
    E("s_branch L_f2_poll2")
    E.label("L_f2_got")
    if a.tprio: E("s_setprio 2")
    stamp(13)
    for t in range(7):
        u, half = divmod(t, 2)
        for c in range(NC):
            d = acc[2 * c + half]
            cc = "0" if u == 0 else r4(d)
            E(f"v_mfma_f32_16x16x32_bf16 {r4(d)}, {r4(vW+8*t+4*c)}, {r4(hb+4*u)}, {cc}")
    bf16r_many(E, range(ac, ac + 4))
    for i in range(4): E(f"v_add_f32 v{hx+i}, v{hxk+i}, v{ac+i}")
    bf16r_many(E, range(hx, hx + 4))
    for c in range(NC):
        for r in range(4):
            E(f"v_cndmask_b32 v{acc[2*c]+r}, v{acc[2*c+1]+r}, v{acc[2*c]+r}, s[{sLO8}:{sLO8+1}]")
        E(f"ds_write_b128 v{vRWp}, {r4(acc[2*c])} offset:{F2R+1024*c}")
    E("s_waitcnt lgkmcnt(0)")
    E("s_barrier")
    E(f"s_cmp_ge_u32 s{sW}, {NC}")
    E("s_cbranch_scc1 L_f2_next")
    pb = vF + 144
    for p in range(8):
        E(f"ds_read_b128 {r4(pb+4*p)}, v{vRRp} offset:{F2R+2048*p}")
    if a.ts: E("s_waitcnt lgkmcnt(0)")
    for p in range(4):
        if not a.ts: E(f"s_waitcnt lgkmcnt({6-2*p})")
        for i in range(4): E(f"v_add_f32 v{pb+8*p+i}, v{pb+8*p+i}, v{pb+8*p+4+i}")
        if p % 2 == 1:
            for i in range(4): E(f"v_add_f32 v{pb+8*p-8+i}, v{pb+8*p-8+i}, v{pb+8*p+i}")
    for i in range(4): E(f"v_add_f32 v{pb+i}, v{pb+i}, v{pb+16+i}")
    for i in range(4):
        E(f"v_add_f32_dpp v{pb+i}, v{pb+i}, v{pb+i} row_ror:8 row_mask:0xf bank_mask:0xf")
    bf16r_many(E, range(pb, pb + 4))
    for i in range(4): E(f"v_add_f32 v{pb+i}, v{hx+i}, v{pb+i}")
    E(f"v_cvt_pk_bf16_f32 v{vD2}, v{pb}, v{pb+1}")
    E(f"v_cvt_pk_bf16_f32 v{vD2+1}, v{pb+2}, v{pb+3}")
    E(f"s_and_b64 exec, exec, s[{sLO8}:{sLO8+1}]")
    E("s_cbranch_execz L_f2_next")
    E(f"buffer_store_dwordx2 {r2(vD2)}, v{vXO}, {S4(sOUT)}, s{sT1} offen{a.opol}", tag="extra")
    stamp(14)
    E.label("L_f2_next")
    E(f"s_cmp_lg_u32 s{sDRY}, 0")
    E("s_cbranch_scc1 L_fin")
    E(f"s_mov_b64 s[{sDRY}:{sDRY+1}], -1")
    if a.tprio: E("s_setprio 0")
    E("s_branch L_f2_top")
    E.label("L_fin")
    if a.ts and a.echo:
        E(f"s_cmp_lg_u32 s{sROLE}, 2")
        E("s_cbranch_scc1 L_end")
        E(f"s_cmp_lg_u32 s{sW}, 0")
        E("s_cbranch_scc1 L_end")
        E("s_waitcnt vmcnt(0)")
        stamp(15)
        E("s_waitcnt lgkmcnt(0)")
        if a.skew == 8:
            E("s_mov_b64 exec, -1")
            E(f"s_mov_b32 s{sT0}, 0x30000")
            E(f"v_lshlrev_b32 v{vS+1}, 2, v{vL}")
            E(f"buffer_load_dword v{vS}, v{vS+1}, {S4(sWS)}, s{sT0} offen sc1", tag="extra")
            E("s_waitcnt vmcnt(0)")
            E(f"v_readlane_b32 s{sT0}, v{vS}, 0")
            E(f"s_mov_b32 s{sT1}, s{sT0}")
            for i in range(1, 8):
                E(f"v_readlane_b32 s{sT4}, v{vS}, {i}")
                E(f"s_max_u32 s{sT0}, s{sT0}, s{sT4}")
                E(f"s_min_u32 s{sT1}, s{sT1}, s{sT4}")
            E(f"s_sub_u32 s{sT0}, s{sT0}, s{sT1}")
            E(f"s_mul_i32 s{sT0}, s{sT0}, {a.emul}")
        elif a.skew >= 0:
            E("s_mov_b64 exec, -1")
            E(f"s_mov_b32 s{sT0}, 0x30000")
            E(f"buffer_load_dword v{vS}, off, {S4(sWS)}, s{sT0} offset:{4*a.skew} sc1", tag="extra")
            E(f"buffer_load_dword v{vS+1}, off, {S4(sWS)}, s{sT0} offset:4 sc1", tag="extra")
            E("s_waitcnt vmcnt(0)")
            E(f"v_sub_u32 v{vS}, v{vS}, v{vS+1}")
            E(f"v_readfirstlane_b32 s{sT0}, v{vS}")
            E(f"s_add_u32 s{sT0}, s{sT0}, 200")
            E(f"s_lshl_b32 s{sT0}, s{sT0}, 2")
        else:
            E(f"s_sub_u32 s{sT0}, s{sTS+2*a.echo}, s{sTS+2*a.echo0}")
            E(f"s_mul_i32 s{sT0}, s{sT0}, {a.emul}")
        E(f"s_min_u32 s{sT0}, s{sT0}, 20000")
        E(f"s_add_u32 s{sT0}, s{sT0}, s{sTS+30}")
        E.label("L_echo")
        E(f"s_memrealtime s[{sT2}:{sT2+1}]")
        E("s_waitcnt lgkmcnt(0)")
        E(f"s_sub_u32 s{sT1}, s{sT0}, s{sT2}")
        E(f"s_cmp_gt_i32 s{sT1}, 0")
        E("s_cbranch_scc1 L_echo")
    elif a.ts:
        E("s_waitcnt vmcnt(0)")
        stamp(15)
        write_stamps()
    E.label("L_end")
    E("s_endpgm")
    E.label("L_codeend")

    out = HDR
    out += f"; @launch grid=(256,1,1) block=(512,1,1) lds={LDS_TOTAL}\n"
    out += f""".amdgcn_target "amdgcn-amd-amdhsa--gfx950"
.text
.globl {NAME}
.p2align 8
.type {NAME},@function
{NAME}:
"""
    out += E.text().replace("CODE_BYTES", f"L_codeend-{NAME}")
    out += f""".section .rodata,"a"
.p2align 6
.amdhsa_kernel {NAME}
  .amdhsa_next_free_vgpr 256
  .amdhsa_next_free_sgpr 102
  .amdhsa_accum_offset 256
  .amdhsa_group_segment_fixed_size 0
  .amdhsa_kernarg_size 88
  .amdhsa_user_sgpr_count 2
  .amdhsa_user_sgpr_kernarg_segment_ptr 1
  .amdhsa_system_sgpr_workgroup_id_x 1
  .amdhsa_float_denorm_mode_32 3
.end_amdhsa_kernel
"""
    return out

def parser():
    p = argparse.ArgumentParser()
    p.add_argument("-o", default="sequential_preLN__sliding_block_cached__dense_activation_relu__decode.s")
    p.add_argument("--fnt", type=int, default=0)
    p.add_argument("--ts", type=int, default=0)
    p.add_argument("--sleep", type=int, default=1)
    p.add_argument("--sleep2", type=int, default=1)
    p.add_argument("--depth", type=int, default=5)
    p.add_argument("--first", type=int, default=1)
    p.add_argument("--budget", type=int, default=16)
    p.add_argument("--qspan", type=int, default=32)
    p.add_argument("--ostart", type=int, default=0)
    p.add_argument("--otail", type=int, default=4)
    p.add_argument("--tkpos", type=int, default=28)
    p.add_argument("--pf", type=int, default=2)
    p.add_argument("--spf", type=int, default=1)
    p.add_argument("--orot", type=int, default=0)
    p.add_argument("--qrot", type=int, default=1)
    p.add_argument("--x13", type=int, default=1)
    p.add_argument("--tprio", type=int, default=0)
    p.add_argument("--prio", type=int, default=-1)
    p.add_argument("--emul", type=int, default=1)
    p.add_argument("--dyn", type=int, default=0)
    p.add_argument("--abar", type=int, default=0)
    p.add_argument("--spec", type=int, default=0)
    p.add_argument("--qp2", type=int, default=1)
    p.add_argument("--nc2", type=int, default=2)
    p.add_argument("--late2", type=int, default=0)
    p.add_argument("--nk0", type=int, default=4)
    p.add_argument("--pfwg", type=int, default=16)
    p.add_argument("--ln2", type=int, default=1)
    p.add_argument("--endpf", type=int, default=3)
    p.add_argument("--epos", type=int, default=0)
    p.add_argument("--nodma", type=int, default=0)
    p.add_argument("--gate", type=float, default=31)
    p.add_argument("--gstep", type=int, default=104)
    p.add_argument("--dplan", default="0000")
    p.add_argument("--opol", default="")
    p.add_argument("--skew", type=int, default=-1)
    p.add_argument("--htab", default="0x76325410")
    p.add_argument("--rtab", default="0x210cba98")
    p.add_argument("--sphalf", type=int, default=2)
    p.add_argument("--npoll2", type=int, default=1)
    p.add_argument("--stag2", type=int, default=4)
    p.add_argument("--pub", default="sc1")
    p.add_argument("--sub", default="sc1")
    p.add_argument("--zwg", type=int, default=28)
    p.add_argument("--nrep", type=int, default=8)
    p.add_argument("--sleep3", type=int, default=4)
    p.add_argument("--h1wait", type=int, default=0)
    p.add_argument("--npoll", type=int, default=1)
    p.add_argument("--stag", type=int, default=3)
    p.add_argument("--static", type=int, default=0)
    p.add_argument("--l2pf", type=int, default=6)
    p.add_argument("--echo", type=int, default=0)
    p.add_argument("--echo0", type=int, default=0)
    p.add_argument("--kvpol", default=" nt")
    p.add_argument("--wpol", default="")
    p.add_argument("--bd1", type=int, default=0)
    p.add_argument("--bd2", type=int, default=0)
    p.add_argument("--bd3", type=int, default=0)
    p.add_argument("--hmap", type=int, default=3)
    p.add_argument("--tlb", type=int, default=0)
    p.add_argument("--dry", type=int, default=2)
    return p

if __name__ == "__main__":
    a = parser().parse_args()
    open(a.o, "w").write(gen(a))
```

```python
import sys, argparse, struct
from collections import deque
from asmlib import Emitter
from gen2 import (NAME, HDR, srd, srd_off, r4, r2, S4, row_reduce, wave_reduce, bf16r, bf16r_many, unpack10, ln_stats,
                  LOG2E, SCALE, sT0, sT1, sT2, sT3, sT4)

RED = 0
QF = 8448
ML = 8704
YP = 9216
YPS = 3328
HN = 9216
HNS = 1408
F2R = 9216
WT = 35840
LDS_TOTAL = 150528
HS = 3072
H1_BASE = 32768
TS_BASE = 1 << 20
NF1 = 27

sW, sH, sB = 3, 26, 27
sK, sV, sWQ, sWO, sX, sWS, sDB, sWF, sOUT, sH1 = 28, 32, 36, 40, 44, 48, 52, 56, 60, 64
sROLE, sTILE = 100, 101
sSPIN = 9
sLO8 = 10
sKO, sVO, sQ0, sQ1, sOO = 12, 13, 14, 15, 20
sDRY = 22
sEX = 24
sTKO = 25
sTS = 68
vL, vL16, vWQ, vWO = 0, 1, 2, 3
vM = 4
vQ = 8
vB0, vB1 = 12, 16
vD1, vD2 = 20, 24
vT = 28
vS = 32
vF = 48
vJ, vN = vT, vT + 1

class Task:
    def __init__(self, fn, needs=(), frees=(), barrier=0, cost=1, atomic=False):
        self.fn, self.needs, self.frees, self.barrier, self.cost = fn, list(needs), list(frees), barrier, cost
        self.atomic = atomic
        self.q = None

class RecEmitter(Emitter):
    def __init__(self):
        super().__init__(); self.rec = None
    def __call__(self, text, tag=None):
        if self.rec is not None: self.rec.append(("i", text, tag))
        else: super().__call__(text, tag)
    def label(self, name):
        if self.rec is not None: self.rec.append(("l", name, None))
        else: super().label(name)
    def flush(self, n=None):
        if self.rec is not None: self.rec.append(("f", None, None))
        else: super().flush(n)
    def record(self, fn):
        self.rec = []; fn(); r = self.rec; self.rec = None; return deque(r)
    def play(self, item):
        k, a, b = item
        if k == "i": self(a, b)
        elif k == "l": self.label(a)
        else: self.flush()

def gen(a):
    E = RecEmitter()
    NC = a.nc2
    NF2 = 40 // NC
    nt = a.kvpol
    wnt = a.wpol
    fnt = " nt" if a.fnt else ""
    def stamp(i):
        if a.ts: E(f"s_memrealtime s[{sTS+2*i}:{sTS+2*i+1}]")
    def spin(lbl):
        E(f"s_sub_u32 s{sSPIN}, s{sSPIN}, 1")
        E(f"s_cmp_lt_i32 s{sSPIN}, 0")
        E(f"s_cbranch_scc1 {lbl}")
    def write_stamps():
        E("s_waitcnt lgkmcnt(0)")
        E("s_mov_b64 exec, 1")
        E(f"s_lshl_b32 s{sT0}, s2, 3")
        E(f"s_add_u32 s{sT0}, s{sT0}, s{sW}")
        E(f"s_lshl_b32 s{sT0}, s{sT0}, 8")
        E(f"s_add_u32 s{sT0}, s{sT0}, {TS_BASE}")
        for i in range(16):
            E(f"v_mov_b32 v{vT}, s{sTS+2*i}")
            E(f"v_mov_b32 v{vT+1}, s{sTS+2*i+1}")
            E(f"buffer_store_dwordx2 {r2(vT)}, off, {S4(sWS)}, s{sT0} offset:{8*i}", tag="extra")
            E("s_nop 1")
        E(f"s_getreg_b32 s{sT1}, hwreg(HW_REG_XCC_ID)")
        E(f"v_mov_b32 v{vT}, s{sT1}")
        E(f"v_mov_b32 v{vT+1}, s{sROLE}")
        E(f"buffer_store_dwordx2 {r2(vT)}, off, {S4(sWS)}, s{sT0} offset:128", tag="extra")
        E("s_nop 1")
        E(f"v_mov_b32 v{vT}, s{sSPIN}")
        E(f"v_mov_b32 v{vT+1}, 0")
        E(f"buffer_store_dwordx2 {r2(vT)}, off, {S4(sWS)}, s{sT0} offset:136", tag="extra")

    E("s_cmp_ge_u32 s2, 256")
    E("s_cbranch_scc1 L_end")
    E("s_load_dwordx16 s[4:19], s[0:1], 0")
    E("s_load_dwordx4 s[20:23], s[0:1], 64")
    E("s_load_dwordx2 s[24:25], s[0:1], 80")
    if a.ts:
        for i in range(1, 16): E(f"s_mov_b64 s[{sTS+2*i}:{sTS+2*i+1}], 0")
        stamp(0)
    if a.fastpro:
        assert a.hmap == 3 and int(a.htab, 0) == 0x76325410 and a.x13 and a.qp2
        vXS, vXC = vT + 2, vT + 3
        t0, t1, t2, t3 = 64, 65, 66, 67
        E(f"v_lshrrev_b32 v{vT}, 6, v0")
        E(f"v_and_b32 v{vL}, 63, v0")
        E(f"v_readfirstlane_b32 s{sW}, v{vT}")
        E(f"s_and_b32 s{sH}, s2, 0xe1")
        E(f"s_bfe_u32 s{t1}, s2, 0x30002")
        E(f"s_lshl1_add_u32 s{sH}, s{t1}, s{sH}")
        E(f"s_and_b32 s{t1}, s2, 2")
        E(f"s_lshl3_add_u32 s{sH}, s{t1}, s{sH}")
        E(f"v_lshlrev_b32 v{vL16}, 4, v{vL}")
        E(f"s_lshl_b32 s{t0}, s{sH}, 20")
        E(f"s_add_u32 s{t0}, s{t0}, 0xc0000")
        E(f"s_and_b32 s{t1}, s2, 8")
        E(f"s_add_u32 s{sTILE}, s{t1}, s{sW}")
        E(f"s_lshl_b32 s{sTILE}, s{sTILE}, 10")
        E(f"s_lshl_b32 s{t1}, s{t1}, 11")
        E(f"s_sub_u32 s{t2}, 8192, s{t1}")
        E(f"s_add_u32 s{t3}, 8192, s{t1}")
        E(f"s_mov_b32 s{sROLE}, s{sTILE}")
        E(f"s_mov_b32 s{sK+2}, 0x40000")
        E(f"s_mov_b32 s{sK+3}, 0x20000")
        E("s_waitcnt lgkmcnt(0)")
        E(f"s_add_u32 s{sK}, s6, s{t0}")
        E(f"s_addc_u32 s{sK+1}, s7, 0")
        E(f"s_and_b32 s{sK+1}, s{sK+1}, 0xffff")
        def kvstep(f): return (f"s{f % 2}" if a.x13 else "8192")
        slot_of = {}
        free = deque(range(52))
        def alloc(tag):
            s = free.popleft(); slot_of[tag] = vF + 4 * s; return slot_of[tag]
        def release(tag):
            free.append((slot_of[tag] - vF) // 4)
        for f in range(a.nk0):
            if f: E(f"s_add_u32 s{sTILE}, s{sTILE}, s{t2 + (f-1) % 2}")
            E(f"buffer_load_dwordx4 {r4(alloc(f'k{f}'))}, v{vL16}, {S4(sK)}, s{sTILE} offen{nt}", tag=f"k{f}")
        E(f"s_mov_b64 s[0:1], s[{t2}:{t3}]")
        E(f"s_lshr_b32 s{sB}, s2, 5")
        E(f"s_and_b32 s{sH}, s{sH}, 31")
        E(f"v_mul_u32_u24 v{vXS}, 20, v{vL}")
        E(f"s_mul_i32 s{t3}, s{sB}, 1280")
        E(f"s_lshl_b32 s{t1}, s{sH}, 8")
        E(f"s_mul_i32 s{t2}, s{sH}, {128*1280}")
        E(f"v_lshrrev_b32 v{vJ}, 4, v{vL}")
        E(f"v_and_b32 v{vN}, 15, v{vL}")
        E(f"v_lshlrev_b32 v{vWQ}, 13, v{vJ}")
        E(f"v_lshl_add_u32 v{vWQ}, v{vN}, 4, v{vWQ}")
        if a.pf:
            E(f"s_cmp_gt_u32 s{sW}, {a.pf - 1}")
            E("s_cbranch_scc1 L_nopf")
            E(f"s_cmp_ge_u32 s2, {a.pfwg}")
            E("s_cbranch_scc1 L_nopf")
            E(f"s_getpc_b64 s[{sWF}:{sWF+1}]")
            E.label("L_pc")
            E(f"s_lshl_b32 s{sOUT}, s{sW}, 13")
            E(f"v_lshlrev_b32 v{vB0}, 7, v{vL}")
            E(f"v_add_u32 v{vB0}, s{sOUT}, v{vB0}")
            E(f"v_min_u32 v{vB0}, L_codeend-L_pc-4, v{vB0}")
            E(f"v_mov_b32 v{vB0+3}, s{sWF+1}")
            E(f"v_add_co_u32 v{vB0+2}, vcc, s{sWF}, v{vB0}")
            E(f"v_addc_co_u32 v{vB0+3}, vcc, 0, v{vB0+3}, vcc")
            E(f"global_load_dword v{vS+15}, v[{vB0+2}:{vB0+3}], off", tag="extra")
            E.label("L_nopf")
    else:
        E(f"v_lshrrev_b32 v{vT}, 6, v0")
        E(f"v_and_b32 v{vL}, 63, v0")
        E(f"v_readfirstlane_b32 s{sW}, v{vT}")
        if a.hmap == 3:
            E(f"s_and_b32 s{sH}, s2, 7")
            E(f"s_lshl_b32 s{sH}, s{sH}, 2")
            E(f"s_lshr_b32 s{sH}, {a.htab}, s{sH}")
            E(f"s_and_b32 s{sB}, s{sH}, 4")
            E(f"s_lshl_b32 s{sB}, s{sB}, 2")
            E(f"s_and_b32 s{sH}, s{sH}, 3")
            E(f"s_add_u32 s{sH}, s{sH}, s{sB}")
            E(f"s_bfe_u32 s{sB}, s2, 0x20003")
            E(f"s_lshl_b32 s{sB}, s{sB}, 2")
            E(f"s_add_u32 s{sH}, s{sH}, s{sB}")
        elif a.hmap == 2:
            E(f"s_and_b32 s{sH}, s2, 6")
            E(f"s_lshr_b32 s{sH}, 0x8d, s{sH}")
            E(f"s_and_b32 s{sH}, s{sH}, 3")
            E(f"s_and_b32 s{sB}, s2, 1")
            E(f"s_lshl_b32 s{sB}, s{sB}, 4")
            E(f"s_add_u32 s{sH}, s{sH}, s{sB}")
            E(f"s_bfe_u32 s{sB}, s2, 0x20003")
            E(f"s_lshl_b32 s{sB}, s{sB}, 2")
            E(f"s_add_u32 s{sH}, s{sH}, s{sB}")
        elif a.hmap:
            E(f"s_and_b32 s{sH}, s2, 7")
            E(f"s_lshl_b32 s{sH}, s{sH}, 2")
            E(f"s_bfe_u32 s{sB}, s2, 0x20003")
            E(f"s_add_u32 s{sH}, s{sH}, s{sB}")
        else:
            E(f"s_and_b32 s{sH}, s2, 31")
        E(f"s_lshr_b32 s{sB}, s2, 5")
        E(f"v_lshlrev_b32 v{vL16}, 4, v{vL}")
        E(f"v_lshrrev_b32 v{vJ}, 4, v{vL}")
        E(f"v_and_b32 v{vN}, 15, v{vL}")
        E(f"v_mul_u32_u24 v{vWQ}, {8192 if a.qp2 else 81920}, v{vJ}")
        E(f"v_lshl_add_u32 v{vWQ}, v{vN}, 4, v{vWQ}")
        vXS, vXC = vT + 2, vT + 3
        E(f"v_mul_u32_u24 v{vXS}, 20, v{vL}")
        t0, t1, t2, t3 = 64, 65, 66, 67
        if not a.qp2:
            E(f"v_lshrrev_b32 v{vXC}, 3, v{vN}")
            E(f"v_lshl_add_u32 v{vXC}, v{vXC}, 2, v{vJ}")
            E(f"s_lshl_b32 s{t0}, s{sW}, 3")
            E(f"v_add_u32 v{vXC}, s{t0}, v{vXC}")
            E(f"v_mul_u32_u24 v{vXC}, 20, v{vXC}")
        E(f"s_lshl_b32 s{t0}, s{sB}, 5")
        E(f"s_add_u32 s{t0}, s{t0}, s{sH}")
        E(f"s_lshl_b32 s{t0}, s{t0}, 20")
        E(f"s_add_u32 s{t0}, s{t0}, 0xc0000")
        E(f"s_lshl_b32 s{t1}, s{sH}, 8")
        E(f"s_mul_i32 s{t2}, s{sH}, {128*1280}")
        E(f"s_mul_i32 s{t3}, s{sB}, 1280")
        E(f"s_mov_b32 s{sROLE}, 0")
        E(f"s_lshl_b32 s{sTILE}, s{sW}, 10")
        if a.x13:
            E(f"s_and_b32 s{sROLE}, s{sH}, 4")
            E(f"s_lshl_b32 s{sROLE}, s{sROLE}, 11")
            E(f"s_add_u32 s{sTILE}, s{sTILE}, s{sROLE}")
        if a.pf:
            E(f"s_cmp_gt_u32 s{sW}, {a.pf - 1}")
            E("s_cbranch_scc1 L_nopf")
            E(f"s_cmp_ge_u32 s2, {a.pfwg}")
            E("s_cbranch_scc1 L_nopf")
            E(f"s_getpc_b64 s[{sWF}:{sWF+1}]")
            E.label("L_pc")
            E(f"s_lshl_b32 s{sOUT}, s{sW}, 13")
            E(f"v_lshlrev_b32 v{vB0}, 7, v{vL}")
            E(f"v_add_u32 v{vB0}, s{sOUT}, v{vB0}")
            E(f"v_min_u32 v{vB0}, L_codeend-L_pc-4, v{vB0}")
            E(f"v_mov_b32 v{vB0+3}, s{sWF+1}")
            E(f"v_add_co_u32 v{vB0+2}, vcc, s{sWF}, v{vB0}")
            E(f"v_addc_co_u32 v{vB0+3}, vcc, 0, v{vB0+3}, vcc")
            E(f"global_load_dword v{vS+15}, v[{vB0+2}:{vB0+3}], off", tag="extra")
            E.label("L_nopf")
        E("s_waitcnt lgkmcnt(0)")
        srd_off(E, sK, 6, f"s{t0}", 0x40000)
        if a.x13:
            E(f"s_lshl_b32 s{sROLE}, s{sROLE}, 1")
            E(f"s_sub_u32 s0, 8192, s{sROLE}")
            E(f"s_add_u32 s1, 8192, s{sROLE}")
            E(f"s_mov_b32 s{sROLE}, s{sTILE}")
        def kvstep(f): return (f"s{f % 2}" if a.x13 else "8192")
        slot_of = {}
        free = deque(range(52))
        def alloc(tag):
            s = free.popleft(); slot_of[tag] = vF + 4 * s; return slot_of[tag]
        def release(tag):
            free.append((slot_of[tag] - vF) // 4)
        for f in range(a.nk0):
            if f: E(f"s_add_u32 s{sTILE}, s{sTILE}, {kvstep(f-1)}")
            E(f"buffer_load_dwordx4 {r4(alloc(f'k{f}'))}, v{vL16}, {S4(sK)}, s{sTILE} offen{nt}", tag=f"k{f}")
    srd(E, sX, 4, 5, 10240)
    xs_raw, xc_raw = vS, vS + 6
    E(f"buffer_load_dwordx4 {r4(xs_raw)}, v{vXS}, {S4(sX)}, s{t3} offen", tag="xs")
    E(f"buffer_load_dword v{xs_raw+4}, v{vXS}, {S4(sX)}, s{t3} offen offset:16", tag="xs")
    if not a.qp2:
        E(f"buffer_load_dwordx4 {r4(xc_raw)}, v{vXC}, {S4(sX)}, s{t3} offen", tag="xc")
        E(f"buffer_load_dword v{xc_raw+4}, v{vXC}, {S4(sX)}, s{t3} offen offset:16", tag="xc")
    srd_off(E, sWQ, 10, f"s{t1}", 639 * 8192 + 256)
    srd_off(E, sV, 8, f"s{t0}", 0x40000)
    srd_off(E, sWO, 12, f"s{t2}", 128 * 1280)
    srd(E, sWS, 24, 25, 1 << 22)
    srd(E, sDB, 22, 23, 256)
    srd(E, sOUT, 20, 21, 10240)
    srd_off(E, sH1, 24, H1_BASE, 108 * 256)
    E(f"s_add_u32 s{sKO}, s{sTILE}, {kvstep(a.nk0-1)}")
    if a.x13:
        E(f"s_mov_b32 s{sVO}, s{sROLE}")
        E(f"s_mov_b32 s{sROLE}, 0")
    else: E(f"s_lshl_b32 s{sVO}, s{sW}, 10")
    if a.qp2 and a.qrot:
        E(f"s_lshl_b32 s{sQ1}, s{sW}, 15")
        E(f"s_mul_i32 s{sQ0}, s{sB}, 10")
        E(f"s_lshr_b32 s{sQ0}, s{sQ0}, 3")
        E(f"s_lshl_b32 s{sQ0}, s{sQ0}, 19")
        E(f"s_add_u32 s{sQ0}, s{sQ0}, s{sQ1}")
    elif a.qp2:
        E(f"s_lshl_b32 s{sQ0}, s{sW}, 15")
    else:
        E(f"s_mul_i32 s{sQ0}, s{sW}, 655360")
        E(f"s_add_u32 s{sQ1}, s{sQ0}, 327680")
    E(f"s_mul_i32 s{sOO}, s{sW}, 1280")
    sOC = 25
    if a.orot:
        assert not a.dyn and a.endpf == 3
        E(f"s_mul_i32 s{sOC}, s{sB}, 5")
        E(f"s_lshr_b32 s{sOC}, s{sOC}, 3")
        E(f"s_lshl_b32 s{sOC}, s{sOC}, 8")
        E(f"s_add_u32 s{sOO}, s{sOO}, s{sOC}")

    if a.tlb:
        E(f"s_cmp_lg_u32 s{sW}, 1")
        E("s_cbranch_scc1 L_notlb")
        E(f"buffer_load_dword v{vS+14}, off, {S4(sV)}, 0 nt", tag="extra")
        E(f"buffer_load_dword v{vS+14}, off, {S4(sWO)}, 0 nt", tag="extra")
        if a.tlb > 1:
            E(f"s_mov_b32 s{sWF+2}, {640*3456}")
            E(f"s_mov_b32 s{sWF+3}, 0x20000")
            E(f"s_mov_b32 s{sT0}, {640*3456-4}")
            for p in (16, 18):
                E(f"s_mov_b32 s{sWF}, s{p}")
                E(f"s_and_b32 s{sWF+1}, s{p+1}, 0xffff")
                E(f"buffer_load_dword v{vS+14}, off, {S4(sWF)}, 0 nt", tag="extra")
                E(f"buffer_load_dword v{vS+14}, off, {S4(sWF)}, s{sT0} nt", tag="extra")
            E(f"s_mov_b32 s{sT0}, 0x20000")
            E(f"buffer_load_dword v{vS+14}, off, {S4(sWS)}, s{sT0} nt", tag="extra")
            E(f"buffer_load_dword v{vS+14}, off, {S4(sOUT)}, 0 nt", tag="extra")
        E.label("L_notlb")
    if a.skew >= 0:
        E("s_cmp_ge_u32 s2, 8")
        E("s_cbranch_scc1 L_noskew")
        E("s_waitcnt lgkmcnt(0)")
        E(f"v_mov_b32 v{vS+12}, s{sTS}")
        E(f"s_lshl_b32 s{sT0}, s2, 2")
        E(f"s_add_u32 s{sT0}, s{sT0}, 0x30000")
        E(f"buffer_store_dword v{vS+12}, off, {S4(sWS)}, s{sT0} sc1", tag="extra")
        E.label("L_noskew")
    def t_init():
        z = [alloc("z0"), alloc("z1"), alloc("z2"), alloc("z3")]
        zr = [z[0], z[0] + 2, z[1], z[1] + 2, z[2], z[2] + 2]
        init_seen.update(issued)
        E(f"s_cmp_lg_u32 s{sW}, 7")
        E("s_cbranch_scc1 L_nosent")
        if a.sent2:
            E(f"s_and_b32 s{sT0}, s2, {7 & ~a.sent2}")
            E(f"s_cmp_lg_u32 s{sT0}, {a.sentg}")
            E("s_cbranch_scc1 L_nosent")
            E(f"s_lshr_b32 s{sT0}, s2, 3")
            E(f"s_cmp_ge_u32 s{sT0}, 27")
            E("s_cbranch_scc1 L_nosent")
            E(f"s_and_b32 s{sT1}, s2, {a.sent2}")
            E(f"s_cselect_b32 s{sT1}, 27, 0")
            E(f"s_add_u32 s{sT0}, s{sT0}, s{sT1}")
            E(f"s_lshl_b32 s{sT0}, s{sT0}, 9")
            E(f"v_mov_b32 v{z[0]}, -1")
            E(f"v_mov_b32 v{z[0]+1}, -1")
            E(f"v_lshlrev_b32 v{z[3]}, 3, v{vL}")
            E(f"buffer_atomic_swap_x2 {r2(z[0])}, v{z[3]}, {S4(sH1)}, s{sT0} offen sc0", tag="extra")
        else:
            E(f"v_mov_b32 v{z[0]}, -1")
            E(f"v_lshlrev_b32 v{z[3]}, 2, v{vL}")
            E(f"s_lshl_b32 s{sT0}, s2, 8")
            if not a.nosent: E(f"buffer_atomic_swap v{z[0]}, v{z[3]}, {S4(sH1)}, s{sT0} offen sc0", tag="extra")
        E.label("L_nosent")
        E(f"s_cmp_lg_u32 s{sW}, 6")
        E("s_cbranch_scc1 L_noinit")
        E(f"s_and_b32 s{sT0}, s2, 31")
        E(f"s_cmp_lg_u32 s{sT0}, {a.zwg}")
        E("s_cbranch_scc1 L_noinit")
        for q in z[:3]:
            for i in range(4): E(f"v_mov_b32 v{q+i}, 0")
        E(f"v_lshlrev_b32 v{z[3]}, 3, v{vL}")
        E(f"s_mul_i32 s{sT0}, s{sB}, {HS}")
        for i in range(6):
            E(f"buffer_atomic_swap_x2 {r2(zr[i])}, v{z[3]}, {S4(sWS)}, s{sT0} offen offset:{512*i} sc0", tag="extra")
        E.label("L_noinit")
    init_seen = set()
    def t_flagset():
        assert "wq11" not in init_seen
        E(f"s_cmp_lg_u32 s{sW}, 6")
        E("s_cbranch_scc1 L_noflag")
        E(f"s_and_b32 s{sT0}, s2, 31")
        E(f"s_cmp_lg_u32 s{sT0}, {a.zwg}")
        E("s_cbranch_scc1 L_noflag")
        E(f"v_mov_b32 v{slot_of['z3']}, 1")
        E(f"s_lshl_b32 s{sT0}, s{sB}, 2")
        E("s_mov_b64 exec, 1")
        E(f"buffer_store_dword v{slot_of['z3']}, off, {S4(sDB)}, s{sT0} sc1", tag="extra")
        E("s_mov_b64 exec, -1")
        E.label("L_noflag")

    def kload(f):
        def fn():
            E(f"buffer_load_dwordx4 {r4(alloc(f'k{f}'))}, v{vL16}, {S4(sK)}, s{sKO} offen{nt}", tag=f"k{f}")
            if f < 31: E(f"s_add_u32 s{sKO}, s{sKO}, {kvstep(f)}")
        return (f"k{f}", fn, True)
    def vload(f):
        def fn():
            E(f"buffer_load_dwordx4 {r4(alloc(f'v{f}'))}, v{vL16}, {S4(sV)}, s{sVO} offen{nt}", tag=f"v{f}")
            if f < 31: E(f"s_add_u32 s{sVO}, s{sVO}, {kvstep(f)}")
        return (f"v{f}", fn, True)
    def qload(f):
        def fn():
            s = sQ0 if (f % 2 == 0 or a.qp2) else sQ1
            E(f"buffer_load_dwordx4 {r4(alloc(f'wq{f}'))}, v{vWQ}, {S4(sWQ)}, s{s} offen{wnt}", tag=f"wq{f}")
            if a.qp2:
                if f < 19: E(f"s_add_u32 s{s}, s{s}, {32*8192}")
                if a.qrot and f < 19 and f % 2 == 1:
                    E(f"s_cmp_ge_u32 s{s}, {640*8192}")
                    E(f"s_cselect_b32 s{s}, s{sQ1}, s{s}")
            elif f < 18: E(f"s_add_u32 s{s}, s{s}, 8192")
        return (f"wq{f}", fn, True)
    def oload(f):
        def fn():
            if a.orot:
                E(f"buffer_load_dwordx4 {r4(alloc(f'wo{f}'))}, v{vWO}, {S4(sWO)}, s{sOO} offen{wnt}", tag=f"wo{f}")
                if f % 4 < 3: E(f"s_add_u32 s{sOO}, s{sOO}, {8*1280}")
                elif f < 19:
                    E(f"s_add_u32 s{sOC}, s{sOC}, 256")
                    E(f"s_cmp_ge_u32 s{sOC}, 1280")
                    E(f"s_cselect_b32 s{sOC}, 0, s{sOC}")
                    E(f"s_mul_i32 s{sOO}, s{sW}, 1280")
                    E(f"s_add_u32 s{sOO}, s{sOO}, s{sOC}")
                return
            fp, cg = divmod(f, 5)
            E(f"buffer_load_dwordx4 {r4(alloc(f'wo{f}'))}, v{vWO}, {S4(sWO)}, s{sOO} offen offset:{cg*256}{wnt}", tag=f"wo{f}")
            if cg == 4 and fp < 3: E(f"s_add_u32 s{sOO}, s{sOO}, {8*1280}")
        return (f"wo{f}", fn, True)
    vFL = vWQ
    vTK = vQ + 3
    def fload():
        def fn():
            E(f"v_and_b32 v{vFL}, 7, v{vL}")
            E(f"v_lshlrev_b32 v{vFL}, 2, v{vFL}")
            E(f"buffer_load_dword v{vFL}, v{vFL}, {S4(sDB)}, 0 offen sc1", tag="flag")
        return ("flag", fn, False)
    TKL = QF
    def ticket():
        def fn():
            v = alloc("tk")
            E(f"v_mov_b32 v{v+1}, {TKL}")
            E(f"s_cmp_lg_u32 s{sW}, 0")
            E("s_cbranch_scc1 L_notk")
            E(f"v_mov_b32 v{v}, 1")
            E(f"s_and_b32 s{sTKO}, s2, 7")
            E(f"s_lshl_b32 s{sTKO}, s{sTKO}, 4")
            E("s_mov_b64 exec, 1")
            E(f"buffer_atomic_add v{v}, off, {S4(sDB)}, s{sTKO} offset:128 sc0", tag="extra")
            E("s_mov_b64 exec, -1")
            E.label("L_notk")
        return ("tk", fn, True)
    def l2pf_outer():
        def fn():
            vPF = vS + 13
            E(f"s_and_b32 s{sT0}, s2, 7")
            E(f"s_lshl_b32 s{sT0}, s{sT0}, 2")
            E(f"s_lshr_b32 s{sT0}, {a.rtab}, s{sT0}")
            E(f"s_and_b32 s{sT0}, s{sT0}, 15")
            E(f"s_lshr_b32 s{sT1}, s2, 3")
            E(f"s_mov_b32 s{sWF+2}, {640*3456}")
            E(f"s_mov_b32 s{sWF+3}, 0x20000")
            E(f"s_cmp_ge_u32 s{sT0}, 8")
            E("s_cbranch_scc1 L_l2b")
            E(f"s_cmp_ge_u32 s{sW}, 3")
            E("s_cbranch_scc1 L_nol2")
            E(f"s_mov_b32 s{sWF}, s16")
            E(f"s_and_b32 s{sWF+1}, s17, 0xffff")
            E(f"s_mul_i32 s{sT2}, s{sT0}, {9*128}")
            E(f"s_mul_i32 s{sT0}, s{sW}, {3*128}")
            E(f"s_add_u32 s{sT2}, s{sT2}, s{sT0}")
            E(f"s_mul_i32 s{sT1}, s{sT1}, {20*3456}")
            E(f"s_add_u32 s{sT2}, s{sT2}, s{sT1}")
            E(f"v_mul_u32_u24 v{vPF}, 43, v{vL}")
            E(f"v_lshrrev_b32 v{vPF}, 7, v{vPF}")
            E(f"v_mul_u32_u24 v{vPF}, {3456-384}, v{vPF}")
            E(f"v_lshl_add_u32 v{vPF}, v{vL}, 7, v{vPF}")
            E(f"s_mov_b32 exec_hi, 0xfffffff")
            E("s_branch L_l2go")
            E.label("L_l2b")
            E(f"s_cmp_ge_u32 s{sW}, 2")
            E("s_cbranch_scc1 L_nol2")
            E(f"s_mov_b32 s{sWF}, s18")
            E(f"s_and_b32 s{sWF+1}, s19, 0xffff")
            E(f"s_sub_u32 s{sT0}, s{sT0}, 8")
            E(f"s_lshl_b32 s{sT0}, s{sT0}, 1")
            E(f"s_add_u32 s{sT2}, s{sT0}, s{sW}")
            E(f"s_lshl_b32 s{sT2}, s{sT2}, 7")
            E(f"s_mul_i32 s{sT1}, s{sT1}, {54*1280}")
            E(f"s_add_u32 s{sT2}, s{sT2}, s{sT1}")
            E(f"v_mul_u32_u24 v{vPF}, 1280, v{vL}")
            E(f"s_mov_b32 exec_hi, 0x3fffff")
            E.label("L_l2go")
            E(f"buffer_load_dword v{vPF}, v{vPF}, {S4(sWF)}, s{sT2} offen", tag="extra")
            E("s_mov_b64 exec, -1")
            E.label("L_nol2")
        return fn
    t_l2pf = l2pf_outer()
    sPO, sPC, sPD = 21, 24, 25
    def t_spf0():
        E(f"s_and_b32 s{sT0}, s2, 7")
        E(f"s_lshl_b32 s{sT0}, s{sT0}, 2")
        E(f"s_lshr_b32 s{sT0}, {a.rtab}, s{sT0}")
        E(f"s_and_b32 s{sPC}, s{sT0}, 15")
        E(f"s_lshr_b32 s{sT1}, s2, 3")
        E(f"s_mov_b32 s{sWF+2}, {640*3456}")
        E(f"s_mov_b32 s{sWF+3}, 0x20000")
        E(f"s_mul_i32 s{sT2}, s{sT1}, 20")
        E(f"s_add_u32 s{sT2}, s{sT2}, s{sW}")
        E(f"s_mul_i32 s{sT2}, s{sT2}, 3456")
        E(f"s_mul_i32 s{sT0}, s{sPC}, 1152")
        E(f"s_add_u32 s{sT2}, s{sT2}, s{sT0}")
        E(f"s_mul_i32 s{sT3}, s{sT1}, 54")
        E(f"s_add_u32 s{sT3}, s{sT3}, s{sW}")
        E(f"s_mul_i32 s{sT3}, s{sT3}, 1280")
        E(f"s_sub_u32 s{sT0}, s{sPC}, 8")
        E(f"s_lshl_b32 s{sT0}, s{sT0}, 8")
        E(f"s_add_u32 s{sT3}, s{sT3}, s{sT0}")
        E(f"s_cmp_lt_u32 s{sPC}, 8")
        E(f"s_cselect_b32 s{sPO}, s{sT2}, s{sT3}")
        E(f"s_cselect_b32 s{sWF}, s16, s18")
        E(f"s_cselect_b32 s{sWF+1}, s17, s19")
        E(f"s_and_b32 s{sWF+1}, s{sWF+1}, 0xffff")
    def t_spf(part):
        def fn():
            E(f"s_cmp_lt_u32 s{sPC}, 8")
            E(f"s_cbranch_scc0 L_spb{part}")
            if part == 2:
                E(f"s_cmp_ge_u32 s{sW}, 4")
                E(f"s_cbranch_scc1 L_spe{part}")
            for ln in range(9 if not a.endpf & 1 else 0):
                for hf in range(a.sphalf):
                    E(f"s_buffer_load_dword s{sPD}, {S4(sWF)}, s{sPO} offset:{part*8*3456 + ln*128 + hf*64}")
            E(f"s_branch L_spe{part}")
            E.label(f"L_spb{part}")
            for k in (([0, 1, 2], [3, 4], [5, 6])[part] if not a.endpf & 2 else []):
                for ln in range(2):
                    for hf in range(a.sphalf):
                        E(f"s_buffer_load_dword s{sPD}, {S4(sWF)}, s{sPO} offset:{k*8*1280 + ln*128 + hf*64}")
            E.label(f"L_spe{part}")
        return fn
    sEO, sEM = 14, 15
    sES = 36
    def t_epf_prep():
        v = alloc("epf")
        E(f"s_and_b32 s{sT0}, s2, 7")
        E(f"s_lshl_b32 s{sT0}, s{sT0}, 2")
        E(f"s_lshr_b32 s{sT0}, {a.rtab}, s{sT0}")
        E(f"s_and_b32 s{sT0}, s{sT0}, 15")
        E(f"s_lshr_b32 s{sT1}, s2, 3")
        E(f"s_mul_i32 s{sT2}, s{sT1}, {20*3456}")
        E(f"s_mul_i32 s{sT3}, s{sT0}, 1152")
        E(f"s_add_u32 s{sT2}, s{sT2}, s{sT3}")
        E(f"s_mul_i32 s{sT3}, s{sT1}, {54*1280}")
        E(f"s_sub_u32 s{sT1}, s{sT0}, 8")
        E(f"s_lshl_b32 s{sT1}, s{sT1}, 8")
        E(f"s_add_u32 s{sT3}, s{sT3}, s{sT1}")
        E(f"s_mul_i32 s{sT1}, s{sW}, 23")
        E(f"v_add_u32 v{v}, s{sT1}, v{vL}")
        E(f"v_mul_u32_u24 v{v+1}, 7282, v{v}")
        E(f"v_lshrrev_b32 v{v+1}, 16, v{v+1}")
        E(f"v_mul_u32_u24 v{v+1}, {3456-1152}, v{v+1}")
        E(f"v_lshl_add_u32 v{v+1}, v{v}, 7, v{v+1}")
        E(f"s_mul_i32 s{sT1}, s{sW}, 14")
        E(f"v_add_u32 v{v}, s{sT1}, v{vL}")
        E(f"v_lshrrev_b32 v{v+2}, 1, v{v}")
        E(f"v_mul_u32_u24 v{v+2}, {1280-256}, v{v+2}")
        E(f"v_lshl_add_u32 v{v+2}, v{v}, 7, v{v+2}")
        E(f"s_cmp_lt_u32 s{sT0}, 8")
        E(f"s_cselect_b32 s{sEO}, s{sT2}, s{sT3}")
        E(f"s_mov_b32 s{sEM}, {(1 << 14) - 1 if a.endpf & 2 else 1}")
        E(f"s_cselect_b32 s{sEM}, {(1 << 23) - 1 if a.endpf & 1 else 1}, s{sEM}")
        E(f"s_cselect_b32 s{sES}, s16, s18")
        E(f"s_cselect_b32 s{sES+1}, s17, s19")
        E(f"s_cselect_b64 vcc, -1, 0")
        E(f"s_and_b32 s{sES+1}, s{sES+1}, 0xffff")
        E(f"s_mov_b32 s{sES+2}, {640*3456}")
        E(f"s_mov_b32 s{sES+3}, 0x20000")
        E(f"v_cndmask_b32 v{v}, v{v+2}, v{v+1}, vcc")
    def epf():
        def fn():
            v = slot_of["epf"]
            E(f"s_mov_b32 exec_lo, s{sEM}")
            E(f"s_mov_b32 exec_hi, 0")
            E(f"buffer_load_dword v{v+3}, v{v}, {S4(sES)}, s{sEO} offen", tag="epf")
            E("s_mov_b64 exec, -1")
        return ("epf", fn, False)
    def prio(k, lo, hi):
        def fn():
            E(f"s_cmp_ge_u32 s{sW}, 4")
            E(f"s_cbranch_scc1 L_pr{k}a")
            E(f"s_setprio {lo}")
            E(f"s_branch L_pr{k}b")
            E.label(f"L_pr{k}a")
            E(f"s_setprio {hi}")
            E.label(f"L_pr{k}b")
        return ("tk", fn, False)
    loads = []
    qi = 0
    for f in range(a.nk0, 32):
        want = min(20, (f - a.nk0 + 1) * 20 // (a.qspan - a.nk0 + 1) + 1)
        while qi < want:
            loads.append(qload(qi)); qi += 1
        loads.append(kload(f))
    while qi < 20:
        loads.append(qload(qi)); qi += 1
    nmid = 20 - a.otail
    oi = 0
    for f in range(32):
        loads.append(vload(f))
        if f == 16 and not a.noflag: loads.append(fload())
        if f == a.prio: loads.append(prio(0, 0, 1))
        if f == a.tkpos and a.dyn: loads.append(ticket())
        want = max(0, (f + 1 - a.ostart)) * nmid // (32 - a.ostart)
        while oi < want:
            loads.append(oload(oi)); oi += 1
    while oi < 20:
        loads.append(oload(oi)); oi += 1
    if a.endpf and a.epos >= 0: loads.insert(len(loads) - a.epos, epf())

    vRW, vRR = vXS, vXC
    def t_setup():
        E(f"s_mov_b32 s{sSPIN}, 0x40000")
        E(f"s_mov_b32 s{sLO8}, 0x00ff00ff")
        E(f"s_mov_b32 s{sLO8+1}, 0x00ff00ff")
        E(f"v_mul_u32_u24 v{vWO}, 40960, v{vJ}")
        E(f"v_and_b32 v{vB0}, 1, v{vN}")
        E(f"v_lshrrev_b32 v{vB0+1}, 1, v{vN}")
        E(f"v_lshl_add_u32 v{vWO}, v{vN}, 4, v{vWO}")
        E(f"v_lshlrev_b32 v{vB0}, 4, v{vB0}")
        E(f"v_mov_b32 v{vB0+2}, 0xffff")
        E(f"v_lshlrev_b32 v{vB0}, v{vB0}, v{vB0+2}")
        E(f"v_and_b32 v{vB0+1}, 3, v{vB0+1}")
        for w in range(4):
            E(f"v_cmp_eq_u32 vcc, {w}, v{vB0+1}")
            E(f"v_cndmask_b32 v{vM+w}, 0, v{vB0}, vcc")
        E(f"v_lshrrev_b32 v{vB0}, 3, v{vN}")
        E(f"s_lshl_b32 s{sT0}, s{sW}, 1")
        E(f"v_add_u32 v{vB0}, s{sT0}, v{vB0}")
        E(f"v_mul_u32_u24 v{vRW}, 528, v{vB0}")
        E(f"v_and_b32 v{vB0}, 7, v{vN}")
        E(f"v_lshl_add_u32 v{vRW}, v{vB0}, 6, v{vRW}")
        E(f"v_lshl_add_u32 v{vRW}, v{vJ}, 4, v{vRW}")
        E(f"v_mul_u32_u24 v{vRR}, 528, v{vN}")
        E(f"v_lshl_add_u32 v{vRR}, v{vJ}, 4, v{vRR}")
        E(f"s_lshl_b32 s{sT0}, s{sW}, 6")
        E(f"v_add_u32 v{vRR}, s{sT0}, v{vRR}")
    f0 = 8
    vMEAN, vRCP = 18, 19
    def t_ln1a():
        stamp(1)
        unpack10(E, xs_raw, f0)
        ln_stats(E, f0, 20, 21, 22, vMEAN, vRCP)
    def t_ln1b():
        if not a.qp2: unpack10(E, xc_raw, f0)
        for i in range(10): E(f"v_sub_f32 v{f0+i}, v{f0+i}, v{vMEAN}")
        bf16r_many(E, range(f0, f0 + 10))
        for i in range(10): E(f"v_mul_f32 v{f0+i}, v{f0+i}, v{vRCP}")
        if not a.qp2:
            for i in range(10): E(f"v_cvt_pk_bf16_f32 v{vS+i}, v{f0+i}, v{f0+i}")
            return
        for i in range(5): E(f"v_cvt_pk_bf16_f32 v{vS+i}, v{f0+2*i}, v{f0+2*i+1}")
        E(f"s_mul_i32 s{sT0}, s{sW}, 2816")
        E(f"v_mul_u32_u24 v20, 20, v{vL}")
        E(f"v_add_u32 v20, s{sT0}, v20")
        for i in range(5): E(f"ds_write_b32 v20, v{vS+i} offset:{WT+4*i}")
        if a.qrot:
            for i in range(5): E(f"ds_write_b32 v20, v{vS+i} offset:{WT+1280+4*i}")
        E(f"v_lshrrev_b32 v21, 3, v{vN}")
        E(f"v_lshlrev_b32 v21, 6, v21")
        E(f"v_lshl_add_u32 v21, v{vJ}, 1, v21")
        E(f"s_mul_i32 s{sT0}, s{sW}, 2824")
        if a.qrot:
            E(f"s_mul_i32 s{sT1}, s{sB}, 10")
            E(f"s_lshr_b32 s{sT1}, s{sT1}, 3")
            E(f"s_lshl_b32 s{sT1}, s{sT1}, 7")
            E(f"s_add_u32 s{sT0}, s{sT0}, s{sT1}")
        E(f"v_add_u32 v21, s{sT0}, v21")
        E("s_waitcnt lgkmcnt(0)")
        for i in range(10): E(f"ds_read_u16 v{vS+i}, v21 offset:{WT+128*i}")
        E("s_waitcnt lgkmcnt(0)")
        for i in range(10): E(f"v_lshl_or_b32 v{vS+i}, v{vS+i}, 16, v{vS+i}")
    def bfrag(dst, src):
        for w in range(4): E(f"v_and_b32 v{dst+w}, v{src}, v{vM+w}")
    def t_pair(t, pre):
        def fn():
            B = vB0 if t % 2 == 0 else vB1
            bfrag(B, vS + t)
            c1 = "0" if t == 0 else r4(vD1)
            c2 = "0" if t == 0 else r4(vD2)
            E(f"v_mfma_f32_16x16x32_bf16 {r4(vD1)}, {r4(slot_of[f'{pre}{2*t}'])}, {r4(B)}, {c1}")
            E(f"v_mfma_f32_16x16x32_bf16 {r4(vD2)}, {r4(slot_of[f'{pre}{2*t+1}'])}, {r4(B)}, {c2}")
        return fn
    def red_a():
        for r in range(4):
            E(f"v_cndmask_b32 v{vD1+r}, v{vD2+r}, v{vD1+r}, s[{sLO8}:{sLO8+1}]")
        E(f"ds_write_b128 v{vRW}, {r4(vD1)} offset:{RED}")
    def t_bar():
        E("s_waitcnt lgkmcnt(0)")
        E("s_barrier")
    def red_b(dst):
        E(f"ds_read_b128 {r4(dst)}, v{vRR} offset:{RED}")
        E("s_waitcnt lgkmcnt(0)")
        row_reduce(E, [dst + i for i in range(4)])
        for i in range(4): E(f"v_cvt_pk_bf16_f32 v{dst+i}, v{dst+i}, v{dst+i}")
    def t_qr2():
        E(f"v_lshlrev_b32 v{vB1}, 6, v{vJ}")
        E(f"s_lshl_b32 s{sT0}, s{sW}, 1")
        E(f"v_add_u32 v{vB1}, s{sT0}, v{vB1}")
        red_b(vB0)
        E(f"s_mov_b32 exec_lo, 0x00010001")
        E(f"s_mov_b32 exec_hi, 0x00010001")
        for i in range(4): E(f"ds_write_b16 v{vB1}, v{vB0+i} offset:{QF+16*i}")
        E("s_mov_b64 exec, -1")
        E(f"v_lshlrev_b32 v{vB1}, 4, v{vN}")
    def t_qr3():
        E(f"ds_read_b128 {r4(vQ)}, v{vB1} offset:{QF}")
        E("s_waitcnt lgkmcnt(0)")
        stamp(2)
    def t_k2(t):
        def fn():
            ks = [slot_of[f"k{2*t+i}"] for i in range(4)]
            acc = [vB0 + i for i in range(4)]
            for i in range(4):
                for u in range(4):
                    E(f"v_dot2_f32_bf16 v{acc[u]}, v{ks[u]+i}, v{vQ+i}, {'0' if i == 0 else 'v%d' % acc[u]}")
            s0, s1 = vS + t, vS + t + 1
            E(f"v_add_f32_dpp v{s0}, v{acc[0]}, v{acc[0]} row_ror:8 row_mask:0xf bank_mask:0x3")
            E(f"v_add_f32_dpp v{s0}, v{acc[1]}, v{acc[1]} row_ror:8 row_mask:0xf bank_mask:0xc")
            E(f"v_add_f32_dpp v{s1}, v{acc[2]}, v{acc[2]} row_ror:8 row_mask:0xf bank_mask:0x3")
            E(f"v_add_f32_dpp v{s1}, v{acc[3]}, v{acc[3]} row_ror:8 row_mask:0xf bank_mask:0xc")
            for mod in ("row_half_mirror", "quad_perm:[1,0,3,2]", "quad_perm:[2,3,0,1]"):
                for s in (s0, s1):
                    E(f"v_add_f32_dpp v{s}, v{s}, v{s} {mod} row_mask:0xf bank_mask:0xf")
            bf16r_many(E, [s0, s1])
            E(f"v_mul_f32 v{s0}, {SCALE:#x}, v{s0}")
            E(f"v_mul_f32 v{s1}, {SCALE:#x}, v{s1}")
            bf16r_many(E, [s0, s1])
        return fn
    m, l = vD1, vD1 + 1
    def t_sm1():
        E(f"v_max3_f32 v{m}, v{vS}, v{vS+1}, v{vS+2}")
        for i in range(3, 15, 2): E(f"v_max3_f32 v{m}, v{m}, v{vS+i}, v{vS+i+1}")
        E(f"v_max_f32 v{m}, v{m}, v{vS+15}")
        for i in range(16): E(f"v_sub_f32 v{vS+i}, v{vS+i}, v{m}")
        for i in range(16): E(f"v_mul_f32 v{vS+i}, {LOG2E:#x}, v{vS+i}")
        for i in range(16): E(f"v_exp_f32 v{vS+i}, v{vS+i}")
        E(f"v_add_f32 v{l}, v{vS}, v{vS+1}")
        E(f"v_add_f32 v{vB0}, v{vS+2}, v{vS+3}")
        for i in range(4, 16, 2):
            E(f"v_add_f32 v{l}, v{l}, v{vS+i}")
            E(f"v_add_f32 v{vB0}, v{vB0}, v{vS+i+1}")
        E(f"v_add_f32 v{l}, v{l}, v{vB0}")
        E(f"v_and_b32 v{vB0}, 56, v{vL}")
        E(f"s_lshl_b32 s{sT0}, s{sW}, 6")
        E(f"v_add_u32 v{vB0}, s{sT0}, v{vB0}")
        E(f"ds_write_b64 v{vB0}, {r2(m)} offset:{ML}")
        E(f"v_lshlrev_b32 v{vB0}, 3, v{vL}")
        stamp(3)
    def t_smb():
        E("s_waitcnt lgkmcnt(0)")
        E("s_barrier")
        stamp(4)
    def t_sm2():
        mg, lg = vD2, vD2 + 1
        E(f"ds_read_b64 {r2(mg)}, v{vB0} offset:{ML}")
        E("s_waitcnt lgkmcnt(0)")
        E(f"v_mov_b32 v{vB0}, v{mg}")
        wave_reduce(E, vB0, sT0, "v_max_f32")
        E(f"v_subrev_f32 v{mg}, s{sT0}, v{mg}")
        E(f"v_subrev_f32 v{m}, s{sT0}, v{m}")
        E(f"v_mul_f32 v{mg}, {LOG2E:#x}, v{mg}")
        E(f"v_mul_f32 v{m}, {LOG2E:#x}, v{m}")
        E(f"v_exp_f32 v{mg}, v{mg}")
        E(f"v_exp_f32 v{m}, v{m}")
        E(f"v_mul_f32 v{lg}, v{lg}, v{mg}")
        wave_reduce(E, lg, sT1)
        E(f"v_rcp_f32 v{l}, s{sT1}")
        E(f"v_mul_f32 v{m}, v{m}, v{l}")
        for i in range(16): E(f"v_mul_f32 v{vS+i}, v{vS+i}, v{m}")
        for i in range(16): E(f"v_cvt_pk_bf16_f32 v{vS+i}, v{vS+i}, v{vS+i}")
    Bs = [vB0, vB1, vD1, vD2]
    vA, vA2, vA3 = vQ, vQ + 1, vQ + 2
    vFL2 = vD2 + 2
    vA4 = vQ + 3
    sVA = 22
    def t_pre_tail():
        E(f"v_and_b32 v{vA}, 7, v{vL}")
        E(f"v_mul_u32_u24 v{vA}, 80, v{vA}")
        E(f"v_lshl_add_u32 v{vA}, v{vJ}, 4, v{vA}")
        E(f"s_mul_i32 s{sT0}, s{sW}, {YPS}")
        E(f"v_add_u32 v{vA}, s{sT0}, v{vA}")
        for k, (dst, add) in enumerate(((vA2, 0), (vA3, 480))):
            E(f"s_mul_i32 s{sT0}, s{sW}, 60")
            E(f"s_add_u32 s{sT0}, s{sT0}, {add}")
            E(f"v_mul_u32_u24 v{vA4}, 15, v{vJ}")
            E(f"v_add3_u32 v{vA4}, v{vA4}, v{vN}, s{sT0}")
            if k == 1:
                E(f"s_mov_b32 s{sT1}, 640")
                E(f"v_cmp_gt_u32 s[{sVA}:{sVA+1}], s{sT1}, v{vA4}")
            E(f"v_min_u32 v{vA4}, 639, v{vA4}")
            E(f"v_lshrrev_b32 v{dst}, 7, v{vA4}")
            E(f"v_mul_u32_u24 v{dst}, 640, v{dst}")
            E(f"v_and_b32 v{vFL2}, 7, v{vA4}")
            E(f"v_mul_u32_u24 v{vFL2}, 80, v{vFL2}")
            E(f"v_add_u32 v{dst}, v{dst}, v{vFL2}")
            E(f"v_bfe_u32 v{vFL2}, v{vA4}, 3, 4")
            E(f"v_lshl_add_u32 v{dst}, v{vFL2}, 2, v{dst}")
        E(f"v_lshlrev_b32 v{vA4}, 2, v{vL}")
    def t_role():
        E(f"s_and_b32 s{sT0}, s2, 7")
        E(f"s_lshl_b32 s{sT0}, s{sT0}, 2")
        E(f"s_lshr_b32 s{sT0}, {a.rtab}, s{sT0}")
        E(f"s_and_b32 s{sT0}, s{sT0}, 15")
        if a.dyn: E(f"s_mov_b32 s{sT1}, s{sTKO}")
        else: E(f"s_lshr_b32 s{sT1}, s2, 3")
        E(f"s_mul_i32 s{sT2}, s{sT0}, 9")
        E(f"s_add_u32 s{sT2}, s{sT2}, s{sT1}")
        E(f"s_add_u32 s{sT2}, s{sT2}, {NF2}")
        E(f"s_cmp_lt_u32 s{sT1}, 9")
        E(f"s_cselect_b32 s{sT2}, s{sT2}, 255")
        E(f"s_sub_u32 s{sT3}, s{sT0}, 8")
        E(f"s_mul_i32 s{sT3}, s{sT3}, {8 // NC}")
        E(f"s_add_u32 s{sT3}, s{sT3}, s{sT1}")
        E(f"s_cmp_lt_u32 s{sT1}, {8 // NC}")
        E(f"s_cselect_b32 s{sT3}, s{sT3}, 255")
        E(f"s_cmp_lt_u32 s{sT0}, 8")
        E(f"s_cselect_b32 s{sTILE}, s{sT2}, s{sT3}")
    def t_flag():
        E(f"v_cmp_eq_u32 vcc, 0, v{vFL}")
        E.flush()
        E("s_cbranch_vccz L_flagok")
        E.label("L_flag")
        E("s_sleep 2")
        E(f"v_and_b32 v{vFL}, 7, v{vL}")
        E(f"v_lshlrev_b32 v{vFL}, 2, v{vFL}")
        E(f"buffer_load_dword v{vFL}, v{vFL}, {S4(sDB)}, 0 offen sc1", tag="extra")
        E("s_waitcnt vmcnt(0)")
        E(f"v_cmp_eq_u32 vcc, 0, v{vFL}")
        E.flush()
        E("s_cbranch_vccz L_flagok")
        spin("L_flagok")
        E("s_branch L_flag")
        E.label("L_flagok")
    sDO, sDL = 21, 24
    vDM1 = vFL
    def t_dmaprep():
        tmp = alloc("tmpd")
        E(f"s_mov_b32 s{sWF}, s16")
        E(f"s_and_b32 s{sWF+1}, s17, 0xffff")
        E(f"s_mov_b32 s{sWF+2}, {640*3456}")
        E(f"s_mov_b32 s{sWF+3}, 0x20000")
        E(f"v_lshrrev_b32 v{vDM1}, 3, v{vL}")
        E(f"v_mul_u32_u24 v{vDM1}, 3456, v{vDM1}")
        E(f"v_and_b32 v{tmp}, 1, v{vJ}")
        E(f"v_lshlrev_b32 v{tmp}, 2, v{tmp}")
        E(f"s_and_b32 s{sT0}, s{sW}, 1")
        E(f"s_lshl_b32 s{sT1}, s{sT0}, 1")
        E(f"v_xor_b32 v{tmp}, s{sT1}, v{tmp}")
        E(f"v_xor_b32 v{tmp}, v{vL}, v{tmp}")
        E(f"v_and_b32 v{tmp}, 7, v{tmp}")
        E(f"v_lshl_add_u32 v{vDM1}, v{tmp}, 4, v{vDM1}")
        E(f"s_lshr_b32 s{sT1}, s{sW}, 1")
        E(f"s_mul_i32 s{sT1}, s{sT1}, 15")
        E(f"s_lshl_b32 s{sT0}, s{sT0}, 3")
        E(f"s_add_u32 s{sT1}, s{sT1}, s{sT0}")
        E(f"s_mul_i32 s{sT1}, s{sT1}, 3456")
        E(f"s_mov_b32 s{sDO}, s{sT1}")
        E(f"s_lshl_b32 s{sDL}, s{sW}, 10")
        E(f"s_add_u32 s{sDL}, s{sDL}, {WT}")
    def t_ypw():
        stamp(7)
        E(f"s_mov_b64 exec, s[{sLO8}:{sLO8+1}]")
        for cg in range(5):
            if a.orot: E(f"ds_write_b128 v{ypa(cg)}, {r4(slot_of[f'y{cg}'])} offset:{YP}")
            else: E(f"ds_write_b128 v{vA}, {r4(slot_of[f'y{cg}'])} offset:{YP+cg*640}")
        E("s_mov_b64 exec, -1")
    def ypa(cg): return vA if cg == 4 else slot_of["ya"] + cg
    def t_ypaddr():
        alloc("ya")
        E(f"s_mul_i32 s{sT0}, s{sB}, 5")
        E(f"s_lshr_b32 s{sT0}, s{sT0}, 3")
        E(f"s_mul_i32 s{sT0}, s{sT0}, 640")
        for cg in range(5):
            E(f"v_add_u32 v{ypa(cg)}, s{sT0}, v{vA}")
            if cg < 4:
                E(f"s_add_u32 s{sT0}, s{sT0}, 640")
                E(f"s_cmp_ge_u32 s{sT0}, 3200")
                E(f"s_cselect_b32 s{sT0}, 0, s{sT0}")
    def t_or1():
        stamp(5)
        red_a()
        if a.dyn:
            E(f"s_cmp_eq_u32 s{sW}, 0")
            E("s_cselect_b32 exec_lo, 1, 0")
            E("s_mov_b32 exec_hi, 0")
            E(f"ds_write_b32 v{slot_of['tk']+1}, v{slot_of['tk']}")
            E("s_mov_b64 exec, -1")
        t_bar()
        stamp(6)
    def t_or2():
        if a.dyn: E(f"ds_read_b32 v{slot_of['tk']}, v{slot_of['tk']+1}")
        red_b(vS)
        bfrag(Bs[0], vS)
        for cg in range(5): alloc(f"y{cg}")
    def t_y(f):
        def fn():
            fp, cg = divmod(f, 5) if not a.orot else (f % 4, f // 4)
            y = slot_of[f"y{cg}"]
            c = "0" if fp == 0 else r4(y)
            E(f"v_mfma_f32_16x16x32_bf16 {r4(y)}, {r4(slot_of[f'wo{f}'])}, {r4(Bs[fp])}, {c}")
            if fp < 3 and cg < 4: E(f"v_and_b32 v{Bs[fp+1]+cg}, v{vS+fp+1}, v{vM+cg}")
            if a.dyn and f == 4: E(f"v_readfirstlane_b32 s{sTKO}, v{slot_of['tk']}")
            if a.dyn and f == 9: t_role()
        return fn
    tasks = []
    if a.init0: tasks.append(Task(t_init, atomic=True))
    tasks.append(Task(t_setup))
    tasks.append(Task(t_ln1a, ["xs"], cost=3))
    tasks.append(Task(t_ln1b, [] if a.qp2 else ["xc"], cost=2))
    for t in range(10):
        tasks.append(Task(t_pair(t, "wq"), [f"wq{2*t+1}"], frees=[f"wq{2*t}", f"wq{2*t+1}"]))
        if t == 1 and not a.init0: tasks.append(Task(t_init, atomic=True))
        if t == 5: tasks.append(Task(t_flagset, ["wq11"], frees=["z0", "z1", "z2", "z3"], atomic=True))
        if t == a.l2pf and not a.spf and not a.nodma: tasks.append(Task(t_l2pf, atomic=True))
        if a.spf and a.nodma < 2 and a.endpf != 3:
            if t == 0: tasks.append(Task(t_spf0, atomic=True))
            if t in (2, 4, 6): tasks.append(Task(t_spf(t // 2 - 1), atomic=True))
    tasks.append(Task(red_a))
    tasks.append(Task(t_bar, barrier=a.bd1))
    tasks.append(Task(t_qr2))
    tasks.append(Task(t_bar, barrier=a.bd2))
    tasks.append(Task(t_qr3))
    for t in range(0, 16, 2):
        tasks.append(Task(t_k2(t), [f"k{2*t+3}"], frees=[f"k{2*t+i}" for i in range(4)], cost=2))
    tasks.append(Task(t_sm1, cost=2))
    tasks.append(Task(t_smb, barrier=a.bd3))
    tasks.append(Task(t_sm2, cost=2))
    tasks.append(Task(t_pre_tail))
    if not a.dyn: tasks.append(Task(t_role, atomic=True))
    if a.endpf: tasks.append(Task(t_epf_prep, atomic=True))
    for t in range(16):
        tasks.append(Task(t_pair(t, "v"), [f"v{2*t+1}"], frees=[f"v{2*t}", f"v{2*t+1}"], cost=0.5))
        if t == 9:
            if not a.noflag: tasks.append(Task(t_flag, ["flag"], atomic=True))
            tasks.append(Task(t_dmaprep, frees=["tmpd"]))
            if a.orot: tasks.append(Task(t_ypaddr, atomic=True))
    tasks.append(Task(t_or1, barrier=99))
    tasks.append(Task(t_or2))
    yorder = range(20) if not a.orot else [4 * cg + fp for fp in range(4) for cg in range(4)] + [16, 17, 18, 19]
    for f in yorder: tasks.append(Task(t_y(f), [f"wo{f}"], cost=0.25))
    tasks.append(Task(t_ypw))

    issued = {"xs", "xc"} | {f"k{f}" for f in range(a.nk0)}
    pend = deque(tasks)
    def ready(t): return all(n in issued and n not in E.vm for n in t.needs)
    def start(t):
        if t.q is None:
            for n in t.needs:
                assert n in issued, n
                if n in E.vm: E.wait_vm(n)
            t.q = E.record(t.fn)
    def step(t, budget):
        start(t)
        n = 0
        masked = False
        while t.q and (t.atomic or masked or n < budget):
            it = t.q.popleft(); E.play(it); n += 1
            if it[0] == "i" and "exec" in it[1].split(",")[0]:
                masked = not it[1].endswith("exec, -1")
        if not t.q:
            for x in t.frees: release(x)
        return n
    def run(t):
        step(t, 10**9)
    D = a.depth
    for i, (tag, fn, needs_slot) in enumerate(loads):
        while needs_slot and not free:
            run(pend.popleft())
        if tag == "epf":
            while any(t.fn is t_epf_prep for t in pend): run(pend.popleft())
            while pend[0].q is not None: run(pend.popleft())
        if tag == "tk":
            while pend[0].q is not None: run(pend.popleft())
        lim = 63 if i < a.first else D
        if len(E.vm) >= lim:
            E(f"s_waitcnt vmcnt({lim-1})")
            E.vm = E.vm[len(E.vm) - (lim - 1):]
        fn(); issued.add(tag)
        if i + 1 < a.first: continue
        budget = a.budget
        while pend and budget > 0 and (pend[0].q is not None or ready(pend[0])):
            if pend[0].barrier > 0:
                pend[0].barrier -= 1
                break
            budget -= step(pend[0], budget)
            if not pend[0].q: pend.popleft()
    while pend: run(pend.popleft())
    assert set(E.vm) <= {"epf"}, E.vm
    E.vm = []
    E(f"s_mul_i32 s{sT0}, s{sB}, {HS}")
    E(f"s_lshl_b32 s{sT1}, s{sW}, 8")
    E(f"s_add_u32 s{sT0}, s{sT0}, s{sT1}")
    E(f"s_mov_b32 s{sT2}, 0x80008000")
    E(f"s_mov_b32 s{sT3}, 0x80008000")
    E("s_waitcnt lgkmcnt(0)")
    E("s_barrier")
    stamp(8)
    vP = vS
    for k, ad in enumerate((vA2, vA3)):
        for p in range(4):
            E(f"ds_read2st64_b32 {r2(vP+8*k+2*p)}, v{ad} offset0:{YP//256+26*p} offset1:{YP//256+26*p+13}")
    for k in range(2):
        b = vP + 8 * k
        if not a.ts: E(f"s_waitcnt lgkmcnt({4 if k == 0 else 0})")
        else: E("s_waitcnt lgkmcnt(0)")
        for st in (4, 2, 1):
            for p in range(st):
                E(f"v_add_f32 v{b+p}, v{b+p}, v{b+p+st}")
        if k == 1: E(f"v_cndmask_b32 v{b}, 0, v{b}, s[{sVA}:{sVA+1}]")
        E(f"v_cndmask_b32 v{b}, v{b}, 1.0, s[{sT2}:{sT3}]")
        if k == 1:
            E(f"s_cmp_ge_u32 s{sW}, 3")
            E("s_cbranch_scc1 L_arr")
        E(f"buffer_atomic_add_f32 v{b}, v{vA4}, {S4(sWS)}, s{sT0} offen offset:{2048*k}", tag="extra")
    E.label("L_arr")
    stamp(9)
    if a.endpf and a.epos < 0: epf()[1]()
    if a.endpf: assert not (128 <= slot_of["epf"] - vF + 3 < 172), slot_of["epf"]
    E(f"s_cmp_ge_u32 s{sTILE}, {NF2 + NF1}")
    E("s_cbranch_scc1 L_fin")
    E(f"s_mov_b32 s{sWF+2}, {640*3456}")
    E(f"s_mov_b32 s{sWF+3}, 0x20000")
    E(f"s_cmp_lt_u32 s{sTILE}, {NF2}")
    E("s_cbranch_scc1 L_ffn2")

    vW = vF
    E(f"s_mov_b32 s{sROLE}, 1")
    E(f"s_sub_u32 s{sTILE}, s{sTILE}, {NF2}")
    E(f"s_mov_b32 s{sWF}, s16")
    E(f"s_and_b32 s{sWF+1}, s17, 0xffff")
    vDM, vX0 = vB0, vB0 + 1
    E(f"s_lshl_b32 s{sT0}, s{sTILE}, 7")
    E(f"s_add_u32 s{sDO}, s{sDO}, s{sT0}")
    xq = [vF + 172, vF + 174, vF + 176]
    if a.endpf: assert not (172 <= slot_of["epf"] - vF + 3 < 180)
    E(f"v_lshrrev_b32 v{vX0}, 2, v{vL}")
    E(f"v_mul_u32_u24 v{vX0}, 30, v{vX0}")
    E(f"v_and_b32 v{vX0+1}, 3, v{vL}")
    E(f"v_lshl_add_u32 v{vX0}, v{vX0+1}, 3, v{vX0}")
    E(f"s_mul_i32 s{sT0}, s{sW}, 1280")
    for i in range(3):
        E(f"buffer_load_dwordx2 {r2(xq[i])}, v{vX0}, {S4(sX)}, s{sT0} offen offset:{480*i}", tag="extra")
    if a.abar: E("s_barrier")
    stamp(10)
    late = True
    for t in range(11 if not a.nodma else 0):
        E(f"s_mov_b32 m0, s{sDL}")
        E(f"buffer_load_dwordx4 v{vDM1}, {S4(sWF)}, s{sDO} offen{fnt} lds", tag="extra")
        if t < 10:
            E(f"s_add_u32 s{sDO}, s{sDO}, {60*3456}")
            E(f"s_add_u32 s{sDL}, s{sDL}, 8192")
    if a.ts == 2: stamp(1)
    hb = vF + 88
    ac = vF + 136
    xk = vF + 148
    hn = vF + 160
    for i in range(12): E(f"v_mov_b32 v{hn+i}, 0")
    for i in range(8, 11): E(f"v_mov_b32 v{ac+i}, 0")
    E(f"v_mov_b32 v{ac+11}, 0x42000000")
    vA = vB1
    E(f"v_lshlrev_b32 v{vA+2}, 3, v{vL}")
    E(f"s_mul_i32 s{sT1}, s{sW}, {HNS}")
    E(f"v_add_u32 v{vA+2}, s{sT1}, v{vA+2}")
    vTR1 = vQ
    E(f"v_lshlrev_b32 v{vTR1}, 10, v{vJ}")
    E(f"v_lshrrev_b32 v{vDM}, 2, v{vN}")
    E(f"v_lshl_add_u32 v{vTR1}, v{vDM}, 7, v{vTR1}")
    E(f"v_and_b32 v{vDM}, 2, v{vDM}")
    E(f"v_and_b32 v{vX0}, 1, v{vJ}")
    E(f"v_or_b32 v{vDM}, v{vDM}, v{vX0}")
    E(f"s_and_b32 s{sT0}, s{sW}, 3")
    E(f"v_xor_b32 v{vDM}, s{sT0}, v{vDM}")
    E(f"v_lshl_add_u32 v{vTR1}, v{vDM}, 5, v{vTR1}")
    E(f"v_and_b32 v{vDM}, 3, v{vN}")
    E(f"v_lshl_add_u32 v{vTR1}, v{vDM}, 3, v{vTR1}")
    E(f"v_add_u32 v{vTR1}, {WT}, v{vTR1}")
    E(f"v_add_u32 v{vTR1+1}, {11*4096}, v{vTR1}")
    E(f"v_and_b32 v{vA+3}, 7, v{vL}")
    E(f"v_mul_u32_u24 v{vA+3}, {HNS}, v{vA+3}")
    E(f"v_lshl_add_u32 v{vA+3}, v{vJ}, 4, v{vA+3}")
    E(f"v_lshrrev_b32 v{vDM}, 3, v{vN}")
    E(f"v_lshl_add_u32 v{vA+3}, v{vDM}, 6, v{vA+3}")
    E(f"v_lshlrev_b32 v{vA}, 5, v{vN}")
    E(f"v_lshl_add_u32 v{vA}, v{vJ}, 3, v{vA}")
    E(f"s_lshl_b32 s{sT3}, s{sTILE}, 2")
    E(f"s_add_u32 s{sT3}, s{sT3}, s{sW}")
    E(f"s_lshl_b32 s{sT3}, s{sT3}, 8")
    E(f"s_mul_i32 s{sT2}, s{sW}, {HS}")
    sM3, sCL = 12, 14
    E(f"s_mov_b32 s{sM3}, 0x77777777")
    E(f"s_mov_b32 s{sM3+1}, 0x77777777")
    E(f"s_mov_b32 s{sCL}, 0x88888888")
    E(f"s_mov_b32 s{sCL+1}, 0x88888888")
    def accload():
        E(f"buffer_load_dwordx4 {r4(ac)}, v{vL16}, {S4(sWS)}, s{sT2} offen sc1", tag="extra")
        E(f"buffer_load_dwordx4 {r4(ac+4)}, v{vL16}, {S4(sWS)}, s{sT2} offen offset:1024 sc1", tag="extra")
        E("s_mov_b32 exec_hi, 0xffff")
        E(f"buffer_load_dwordx4 {r4(ac+8)}, v{vL16}, {S4(sWS)}, s{sT2} offen offset:2048 sc1", tag="extra")
        E("s_mov_b32 exec_hi, -1")
    if a.ts == 2: stamp(2)
    E("s_waitcnt vmcnt(%d)" % (0 if late else (2 if a.endpf and a.epos < 0 else 1)))
    if a.ts == 2: stamp(3)
    for i in range(6):
        E(f"v_lshlrev_b32 v{xk+2*i}, 16, v{xq[i//2]+i%2}")
        E(f"v_and_b32 v{xk+2*i+1}, 0xffff0000, v{xq[i//2]+i%2}")
    sLO_, sHI_, sONE = 20, 21, 24
    vNI, vKM = hn + 6, hn + 7
    if a.ln2:
        E(f"s_mov_b32 s{sLO_}, 0x00003f80")
        E(f"s_mov_b32 s{sHI_}, 0x3f800000")
        E(f"s_mov_b32 s{sONE}, 0x3f803f80")
        E(f"v_mov_b32 v{vNI}, 0xbacccccd")
        E(f"v_mov_b32 v{vKM}, -1")
        E(f"v_mov_b32 v{vKM+1}, -1")
        E(f"v_mov_b32 v{vKM+2}, -1")
        E("s_mov_b32 exec_lo, 0")
        E(f"s_mov_b32 exec_hi, {0xffffffff ^ ((1 << 11) - 1):#x}")
        E(f"v_mov_b32 v{xk+8}, 0"); E(f"v_mov_b32 v{xk+9}, 0"); E(f"v_mov_b32 v{vKM+1}, 0")
        E(f"s_mov_b32 exec_hi, {0xffffffff ^ ((1 << 10) - 1):#x}")
        E(f"v_mov_b32 v{xk+10}, 0"); E(f"v_mov_b32 v{xk+11}, 0"); E(f"v_mov_b32 v{vKM+2}, 0")
        E(f"s_mov_b64 exec, s[{sCL}:{sCL+1}]")
        for i in (3, 7, 11): E(f"v_mov_b32 v{xk+i}, 0xc2000000")
        E(f"v_mov_b32 v{vKM}, 0xffff")
        E(f"v_and_b32 v{vKM+2}, 0xffff, v{vKM+2}")
        E("s_mov_b32 exec_lo, 0")
        E("s_mov_b32 exec_hi, 0xffff0000")
        E(f"v_mov_b32 v{xk+11}, 0xc2000000")
        E("s_mov_b64 exec, -1")
    E("s_barrier")
    if a.ts == 2: stamp(4)
    thr = struct.unpack("<I", struct.pack("<f", float(a.gate)))[0]
    E(f"s_mul_i32 s{sT4}, s{sTILE}, {a.gstep}")
    E(f"s_and_b32 s{sT4}, s{sT4}, 0xffffffc0")
    E(f"s_add_u32 s{sT4}, s{sT4}, s{sT2}")
    if a.spec: accload()
    else: E(f"buffer_load_dword v{vD2}, off, {S4(sWS)}, s{sT4} offset:60 sc1", tag="extra")
    E(f"s_cmp_ge_u32 s{sW}, 4")
    E("s_cbranch_scc1 L_f1_notr")
    for t in range(22):
        o = (t % 11) * 4096
        E(f"ds_read_b64_tr_b16 {r2(vW+4*t)}, v{vTR1 + t//11} offset:{o}")
        E(f"ds_read_b64_tr_b16 {r2(vW+4*t+2)}, v{vTR1 + t//11} offset:{o+512}")
    stamp(11)
    E.label("L_f1_notr")
    if not a.spec: E("s_branch L_f1_gate")
    E.label("L_f1_poll")
    E("s_waitcnt vmcnt(0)")
    E(f"v_min3_f32 v{vD1}, v{ac+3}, v{ac+7}, v{ac+11}")
    E(f"v_cmp_gt_f32 vcc, 0x42000000, v{vD1}")
    E(f"s_and_b64 vcc, vcc, s[{sCL}:{sCL+1}]")
    E("s_cbranch_scc0 L_f1_go")
    spin("L_f1_go")
    E(f"v_readlane_b32 s{sT0}, v{ac+3}, 3")
    E(f"s_cmp_ge_u32 s{sT0}, {thr:#x}")
    E("s_cbranch_scc1 L_f1_full")
    E.label("L_f1_regate")
    if a.sleep: E(f"s_sleep {a.sleep}")
    E(f"buffer_load_dword v{vD2}, off, {S4(sWS)}, s{sT4} offset:60 sc1", tag="extra")
    E.label("L_f1_gate")
    E("s_waitcnt vmcnt(0)")
    E(f"v_readfirstlane_b32 s{sT0}, v{vD2}")
    E(f"s_cmp_ge_u32 s{sT0}, {thr:#x}")
    E("s_cbranch_scc1 L_f1_full")
    spin("L_f1_full")
    E("s_branch L_f1_regate")
    E.label("L_f1_full")
    accload()
    E("s_branch L_f1_poll")
    E.label("L_f1_go")
    if a.tprio: E("s_setprio 2")
    stamp(12)
    t0_, t1_, t2_, vMN, vRC = vD1, vD1 + 1, vD1 + 2, vD2, vD2 + 1
    if a.ln2 == 0:
        hx = ac
        bf16r_many(E, range(ac, ac + 12))
        for i in range(12): E(f"v_add_f32 v{hx+i}, v{xk+i}, v{ac+i}")
        bf16r_many(E, range(hx, hx + 12))
        full = [0, 1, 2, 4, 5, 6]
        def masked(fn):
            for i in full: fn(i)
            E(f"s_mov_b32 exec_hi, {(1 << 11) - 1:#x}")
            fn(8); fn(9)
            E(f"s_mov_b32 exec_hi, {(1 << 10) - 1:#x}")
            fn(10)
            E(f"s_and_b64 exec, exec, s[{sM3}:{sM3+1}]")
            fn(11)
            E(f"s_mov_b64 exec, s[{sM3}:{sM3+1}]")
            fn(3); fn(7)
            E("s_mov_b64 exec, -1")
        t0_, t1_, t2_, vMN, vRC = vD1, vD1 + 1, vD1 + 2, vD2, vD2 + 1
        def f_sum(i):
            if i == 0: E(f"v_add_f32 v{t0_}, v{hx}, v{hx+1}")
            elif i == 1: pass
            elif i == 2: E(f"v_add_f32 v{t1_}, v{hx+2}, v{hx+4}")
            elif i == 4: pass
            else:
                d = t0_ if i % 2 else t1_
                E(f"v_add_f32 v{d}, v{d}, v{hx+i}")
        masked(f_sum)
        E(f"v_add_f32 v{t0_}, v{t0_}, v{t1_}")
        E(f"v_mov_b32 v{t2_}, 0x3acccccd")
        wave_reduce(E, t0_, sT0)
        E(f"v_mul_f32 v{vMN}, s{sT0}, v{t2_}")
        for i in range(12): E(f"v_sub_f32 v{xk+i}, v{hx+i}, v{vMN}")
        def f_var(i):
            if i == 0: E(f"v_mul_f32 v{t0_}, v{xk}, v{xk}")
            elif i == 1: E(f"v_mul_f32 v{t1_}, v{xk+1}, v{xk+1}")
            else:
                d = t0_ if i % 2 == 0 else t1_
                E(f"v_fmac_f32 v{d}, v{xk+i}, v{xk+i}")
        masked(f_var)
        E(f"v_add_f32 v{t0_}, v{t0_}, v{t1_}")
        bf16r(E, vMN, vMN)
        row_reduce(E, [t0_])
        for i in range(6): E(f"v_sub_f32 v{hx+i}, v{hx+i}, v{vMN}")
        E(f"v_add_f32_dpp v{t0_}, v{t0_}, v{t0_} row_bcast:15 row_mask:0xa bank_mask:0xf")
        for i in range(6, 12): E(f"v_sub_f32 v{hx+i}, v{hx+i}, v{vMN}")
        E(f"v_add_f32_dpp v{t0_}, v{t0_}, v{t0_} row_bcast:31 row_mask:0xc bank_mask:0xf")
        bf16r_many(E, range(hx, hx + 4))
        E(f"v_readlane_b32 s{sT0}, v{t0_}, 63")
        bf16r_many(E, range(hx + 4, hx + 8))
        E(f"v_mul_f32 v{t0_}, s{sT0}, v{t2_}")
        bf16r(E, t0_, t0_)
        E(f"v_add_f32 v{t0_}, 0x3727c5ac, v{t0_}")
        bf16r(E, t0_, t0_)
        E(f"v_sqrt_f32 v{t0_}, v{t0_}")
        bf16r_many(E, range(hx + 8, hx + 12))
        bf16r(E, t0_, t0_)
        E(f"v_rcp_f32 v{vRC}, v{t0_}")
        masked(lambda i: E(f"v_mul_f32 v{hn+i}, v{hx+i}, v{vRC}"))
        for i in range(6): E(f"v_cvt_pk_bf16_f32 v{xk+i}, v{hn+2*i}, v{hn+2*i+1}")
    else:
        pk = hn
        sel = (sLO_, sHI_)
        for i in range(6): E(f"v_cvt_pk_bf16_f32 v{pk+i}, v{ac+2*i}, v{ac+2*i+1}")
        for i in range(12): E(f"v_dot2_f32_bf16 v{ac+i}, v{pk+i//2}, s{sel[i%2]}, v{xk+i}")
        for i in range(6): E(f"v_cvt_pk_bf16_f32 v{pk+i}, v{ac+2*i}, v{ac+2*i+1}")
        for i in range(6):
            d = t0_ if i % 2 == 0 else t1_
            E(f"v_dot2_f32_bf16 v{d}, v{pk+i}, s{sONE}, {'0' if i < 2 else 'v%d' % d}")
        fill = []
        for i in range(6):
            fill.append(f"v_lshlrev_b32 v{xk+2*i}, 16, v{pk+i}")
            fill.append(f"v_and_b32 v{xk+2*i+1}, 0xffff0000, v{pk+i}")
        chain = [f"v_add_f32 v{t0_}, v{t0_}, v{t1_}"]
        chain += [f"v_add_f32_dpp v{t0_}, v{t0_}, v{t0_} row_ror:{sh} row_mask:0xf bank_mask:0xf" for sh in (8, 4, 2, 1)]
        chain += [f"v_add_f32_dpp v{t0_}, v{t0_}, v{t0_} row_bcast:15 row_mask:0xa bank_mask:0xf",
                  f"v_add_f32_dpp v{t0_}, v{t0_}, v{t0_} row_bcast:31 row_mask:0xc bank_mask:0xf",
                  f"v_readlane_b32 s{sT0}, v{t0_}, 63"]
        for c in chain:
            for _ in range(2):
                if fill: E(fill.pop(0))
            E(c)
        E(f"v_mul_f32 v{vMN}, s{sT0}, v{vNI}")
        for i in range(12): E(f"v_add_f32 v{ac+i}, v{xk+i}, v{vMN}")
        full = [0, 1, 2, 4, 5, 6]
        def masked(fn):
            for i in full: fn(i)
            E(f"s_mov_b32 exec_hi, {(1 << 11) - 1:#x}")
            fn(8); fn(9)
            E(f"s_mov_b32 exec_hi, {(1 << 10) - 1:#x}")
            fn(10)
            E(f"s_and_b64 exec, exec, s[{sM3}:{sM3+1}]")
            fn(11)
            E(f"s_mov_b64 exec, s[{sM3}:{sM3+1}]")
            fn(3); fn(7)
            E("s_mov_b64 exec, -1")
        def f_var(i):
            if i == 0: E(f"v_mul_f32 v{t0_}, v{ac}, v{ac}")
            elif i == 1: E(f"v_mul_f32 v{t1_}, v{ac+1}, v{ac+1}")
            else:
                d = t0_ if i % 2 == 0 else t1_
                E(f"v_fmac_f32 v{d}, v{ac+i}, v{ac+i}")
        masked(f_var)
        E(f"v_add_f32 v{t0_}, v{t0_}, v{t1_}")
        bf16r(E, vMN, vMN)
        fill = [f"v_add_f32 v{ac+i}, v{xk+i}, v{vMN}" for i in range(12)]
        fill += [f"v_cvt_pk_bf16_f32 v{pk+i}, v{ac+2*i}, v{ac+2*i+1}" for i in range(6)]
        for i in (1, 3, 4, 5): fill.append(f"v_and_b32 v{pk+i}, v{pk+i}, v{vKM + (0 if i < 4 else i - 3)}")
        for i in range(6):
            fill.append(f"v_lshlrev_b32 v{ac+2*i}, 16, v{pk+i}")
            fill.append(f"v_and_b32 v{ac+2*i+1}, 0xffff0000, v{pk+i}")
        chain = [f"v_add_f32_dpp v{t0_}, v{t0_}, v{t0_} row_ror:{sh} row_mask:0xf bank_mask:0xf" for sh in (8, 4, 2, 1)]
        chain += [f"v_add_f32_dpp v{t0_}, v{t0_}, v{t0_} row_bcast:15 row_mask:0xa bank_mask:0xf",
                  f"v_add_f32_dpp v{t0_}, v{t0_}, v{t0_} row_bcast:31 row_mask:0xc bank_mask:0xf",
                  f"v_readlane_b32 s{sT0}, v{t0_}, 63",
                  f"v_mul_f32 v{t0_}, s{sT0}, -v{vNI}",
                  f"v_cvt_pk_bf16_f32 v{t0_}, v{t0_}, v{t0_}", f"v_and_b32 v{t0_}, 0xffff0000, v{t0_}",
                  f"v_add_f32 v{t0_}, 0x3727c5ac, v{t0_}",
                  f"v_cvt_pk_bf16_f32 v{t0_}, v{t0_}, v{t0_}", f"v_and_b32 v{t0_}, 0xffff0000, v{t0_}",
                  f"v_sqrt_f32 v{t0_}, v{t0_}",
                  f"v_cvt_pk_bf16_f32 v{t0_}, v{t0_}, v{t0_}", f"v_and_b32 v{t0_}, 0xffff0000, v{t0_}",
                  f"v_rcp_f32 v{vRC}, v{t0_}"]
        for c in chain:
            E(c)
            for _ in range(2):
                if fill: E(fill.pop(0))
        for c in fill: E(c)
        for i in range(12): E(f"v_mul_f32 v{ac+i}, v{ac+i}, v{vRC}")
        for i in range(6): E(f"v_cvt_pk_bf16_f32 v{xk+i}, v{ac+2*i}, v{ac+2*i+1}")
    E(f"ds_write_b64 v{vA+2}, {r2(xk)} offset:{HN}")
    E(f"ds_write_b64 v{vA+2}, {r2(xk+2)} offset:{HN+512}")
    E("s_mov_b32 exec_hi, 0xffff")
    E(f"ds_write_b64 v{vA+2}, {r2(xk+4)} offset:{HN+1024}")
    E("s_mov_b32 exec_hi, -1")
    E("s_waitcnt lgkmcnt(0)")
    E("s_barrier")
    E(f"s_cmp_ge_u32 s{sW}, 4")
    E("s_cbranch_scc1 L_fin")
    if a.ts:
        stamp(13); E("s_waitcnt lgkmcnt(0)")
    for u in range(11):
        E(f"ds_read_b128 {r4(hb+4*u)}, v{vA+3} offset:{HN+128*u}")
    for u in range(11):
        E(f"s_waitcnt lgkmcnt({10-u})")
        c1 = "0" if u == 0 else r4(vD1)
        c2 = "0" if u == 0 else r4(vD2)
        E(f"v_mfma_f32_16x16x32_bf16 {r4(vD1)}, {r4(vW+8*u)}, {r4(hb+4*u)}, {c1}")
        E(f"v_mfma_f32_16x16x32_bf16 {r4(vD2)}, {r4(vW+8*u+4)}, {r4(hb+4*u)}, {c2}")
    for i in range(4):
        E(f"v_add_f32_dpp v{vD1+i}, v{vD2+i}, v{vD1+i} row_ror:8 row_mask:0xf bank_mask:0xf")
    for i in range(4): E(f"v_max_f32 v{vD1+i}, 0, v{vD1+i}")
    E(f"v_cvt_pk_bf16_f32 v{vD2}, v{vD1}, v{vD1+1}")
    E(f"v_cvt_pk_bf16_f32 v{vD2+1}, v{vD1+2}, v{vD1+3}")
    E(f"s_mov_b64 exec, s[{sLO8}:{sLO8+1}]")
    E(f"buffer_store_dwordx2 {r2(vD2)}, v{vA}, {S4(sH1)}, s{sT3} offen sc1", tag="extra")
    stamp(14)
    E("s_branch L_fin")

    E.label("L_ffn2")
    E.comment("FFN2: %d columns of w2" % (16 * NC))
    E(f"s_mov_b64 s[{sDRY}:{sDRY+1}], {0 if a.dry & 2 else -1}")
    E(f"s_mov_b32 s{sROLE}, 2")
    E(f"s_mov_b32 s{sWF}, s18")
    E(f"s_and_b32 s{sWF+1}, s19, 0xffff")
    vDA = vQ + 2
    vA = vD1
    lpr = 2 * NC
    rpi = 64 // lpr
    nd2 = 7 * NC
    E(f"v_lshrrev_b32 v{vDA}, {NC}, v{vL}")
    E(f"v_mul_u32_u24 v{vDA}, 1280, v{vDA}")
    E(f"v_and_b32 v{vA+1}, {lpr-1}, v{vL}")
    E(f"v_lshl_add_u32 v{vDA}, v{vA+1}, 4, v{vDA}")
    sD0, sD2 = 12, 13
    E(f"s_mul_i32 s{sD0}, s{sW}, {7*32*1280}")
    E(f"s_mul_i32 s{sT1}, s{sTILE}, {32*NC}")
    E(f"s_add_u32 s{sD0}, s{sD0}, s{sT1}")
    E(f"s_mul_i32 s{sT3}, s{sW}, {nd2*1024}")
    E(f"s_add_u32 s{sT3}, s{sT3}, {WT}")
    E(f"s_mov_b32 s{sD2}, s{sT3}")
    def dma2():
        for t in range(nd2 if not a.nodma else 0):
            E(f"s_mov_b32 m0, s{sD2}")
            E(f"buffer_load_dwordx4 v{vDA}, {S4(sWF)}, s{sD0} offen{fnt} lds", tag="extra")
            if t < nd2 - 1:
                E(f"s_add_u32 s{sD0}, s{sD0}, {rpi*1280}")
                E(f"s_add_u32 s{sD2}, s{sD2}, 1024")
    E("s_barrier")
    stamp(10)
    if not a.late2: dma2()
    vB7 = vQ
    vXO = vQ + 1
    E(f"v_and_b32 v{vB7}, 7, v{vL}")
    E(f"v_mul_u32_u24 v{vXO}, 1280, v{vB7}")
    E(f"v_lshl_add_u32 v{vXO}, v{vJ}, 3, v{vXO}")
    E(f"s_and_b32 s{sT4}, s{sW}, {NC-1}")
    E(f"s_lshl_b32 s{sT4}, s{sT4}, 5")
    E(f"s_add_u32 s{sT1}, s{sT1}, s{sT4}")
    xr = vS
    E(f"buffer_load_dwordx2 {r2(xr)}, v{vXO}, {S4(sX)}, s{sT1} offen", tag="extra")
    vHA = vF + 128
    E(f"s_lshr_b32 s{sT0}, s{sT1}, 1")
    E(f"v_lshl_add_u32 v{vA}, v{vJ}, 2, s{sT0}")
    E(f"v_mul_u32_u24 v{vA+1}, {HS}, v{vB7}")
    for r in range(4):
        E(f"v_add_u32 v{vA+2}, {r}, v{vA}")
        E(f"v_mul_u32_u24 v{vA+3}, 4370, v{vA+2}")
        E(f"v_lshrrev_b32 v{vA+3}, 16, v{vA+3}")
        E(f"v_add_u32 v{vA+2}, v{vA+2}, v{vA+3}")
        E(f"v_lshl_add_u32 v{vHA+r}, v{vA+2}, 2, v{vA+1}")
        if r in (0, 3):
            E(f"v_lshl_add_u32 v{vHA+4+r//3}, v{vA+3}, 6, v{vA+1}")
    vH1 = vB1 + 1
    E(f"v_lshrrev_b32 v{vH1}, 1, v{vJ}")
    E(f"v_lshlrev_b32 v{vH1}, 8, v{vH1}")
    E(f"v_lshl_add_u32 v{vH1}, v{vB7}, 5, v{vH1}")
    E(f"v_and_b32 v{vB1+2}, 1, v{vJ}")
    E(f"v_lshl_add_u32 v{vH1}, v{vB1+2}, 4, v{vH1}")
    E(f"v_lshrrev_b32 v{vB1+2}, 3, v{vN}")
    E(f"v_lshl_add_u32 v{vH1}, v{vB1+2}, 9, v{vH1}")
    rb = 32 * NC
    vTR = vB1 + 2
    E(f"v_mul_u32_u24 v{vTR}, {8*rb}, v{vJ}")
    E(f"v_lshrrev_b32 v{vB1+3}, 2, v{vN}")
    E(f"v_lshl_add_u32 v{vTR}, v{vB1+3}, {4+NC}, v{vTR}")
    E(f"v_and_b32 v{vB1+3}, 3, v{vN}")
    E(f"v_lshl_add_u32 v{vTR}, v{vB1+3}, 3, v{vTR}")
    E(f"v_add_u32 v{vTR}, s{sT3}, v{vTR}")
    vRWp, vRRp = vB0, vB0 + 1
    E(f"s_lshl_b32 s{sT0}, s{sW}, 11")
    E(f"v_add_u32 v{vRWp}, s{sT0}, v{vL16}")
    E(f"s_lshl_b32 s{sT0}, s{sT4}, 5")
    E(f"v_add_u32 v{vRRp}, s{sT0}, v{vL16}")
    E(f"s_mul_i32 s{sT2}, s{sW}, {7*512}")
    acc = [vF + 96 + 4 * i for i in range(4)]
    ac = vS + 4
    hx = vS + 12
    hxk = vS + 8
    hb = vF + 64
    def trs():
        E("s_waitcnt vmcnt(0)")
        for t in range(7):
            for c in range(NC):
                E(f"ds_read_b64_tr_b16 {r2(vW+8*t+4*c)}, v{vTR} offset:{t*32*rb+c*32}")
                E(f"ds_read_b64_tr_b16 {r2(vW+8*t+4*c+2)}, v{vTR} offset:{t*32*rb+c*32+4*rb}")
        for i in range(2):
            E(f"v_lshlrev_b32 v{hxk+2*i}, 16, v{xr+i}")
            E(f"v_and_b32 v{hxk+2*i+1}, 0xffff0000, v{xr+i}")
        E("s_waitcnt lgkmcnt(0)")
        stamp(11)
    def cpoll(lbl, thr_):
        E.label(lbl)
        E(f"buffer_load_dword v{vD1}, v{vHA+4}, {S4(sWS)}, 0 offen offset:60 sc1", tag="extra")
        E(f"buffer_load_dword v{vD1+1}, v{vHA+5}, {S4(sWS)}, 0 offen offset:60 sc1", tag="extra")
        E("s_waitcnt vmcnt(0)")
        E(f"v_min_f32 v{vD1}, v{vD1}, v{vD1+1}")
        E(f"v_cmp_gt_f32 vcc, {thr_:#x}, v{vD1}")
        E(f"s_cbranch_vccz {lbl}_ok")
        spin(f"{lbl}_ok")
        E(f"s_sleep {a.sleep3}")
        E(f"s_branch {lbl}")
        E.label(f"{lbl}_ok")
    E.label("L_f2_top")
    E(f"s_mov_b64 exec, s[{sDRY}:{sDRY+1}]")
    E("s_cbranch_execz L_f2_got")
    if a.late2:
        E(f"s_cmp_ge_u32 s{sW}, 1")
        E("s_cbranch_scc1 L_f2_g_ok")
        cpoll("L_f2_g", struct.unpack("<I", struct.pack("<f", float(a.late2)))[0])
        E("s_barrier")
        dma2()
    trs()
    E(f"s_cmp_ge_u32 s{sW}, {NC}")
    E("s_cbranch_scc1 L_f2_go")
    cpoll("L_f2_c", 0x42000000)
    for r in range(4):
        E(f"buffer_load_dword v{ac+r}, v{vHA+r}, {S4(sWS)}, 0 offen sc1", tag="extra")
    E.label("L_f2_go")
    E("s_barrier")
    stamp(12)
    E.label("L_f2_poll2")
    for u in range(4):
        E(f"buffer_load_dwordx4 {r4(hb+4*u)}, v{vH1}, {S4(sH1)}, s{sT2} offen offset:{1024*u} sc1", tag="extra")
    E("s_waitcnt vmcnt(0)")
    E(f"v_max3_u32 v{vD1}, v{hb}, v{hb+1}, v{hb+2}")
    E(f"v_max3_u32 v{vD1+1}, v{hb+3}, v{hb+4}, v{hb+5}")
    for k in range(6, 16, 2):
        tgt = vD1 + ((k // 2) % 2)
        E(f"v_max3_u32 v{tgt}, v{tgt}, v{hb+k}, v{hb+k+1}")
    E(f"v_max_u32 v{vD1}, v{vD1}, v{vD1+1}")
    E(f"v_cmp_eq_u32 vcc, -1, v{vD1}")
    E("s_cbranch_vccz L_f2_got")
    spin("L_f2_got")
    if a.sleep2: E(f"s_sleep {a.sleep2}")
    E("s_branch L_f2_poll2")
    E.label("L_f2_got")
    if a.tprio: E("s_setprio 2")
    stamp(13)
    for t in range(7):
        u, half = divmod(t, 2)
        for c in range(NC):
            d = acc[2 * c + half]
            cc = "0" if u == 0 else r4(d)
            E(f"v_mfma_f32_16x16x32_bf16 {r4(d)}, {r4(vW+8*t+4*c)}, {r4(hb+4*u)}, {cc}")
    bf16r_many(E, range(ac, ac + 4))
    for i in range(4): E(f"v_add_f32 v{hx+i}, v{hxk+i}, v{ac+i}")
    bf16r_many(E, range(hx, hx + 4))
    for c in range(NC):
        for r in range(4):
            E(f"v_cndmask_b32 v{acc[2*c]+r}, v{acc[2*c+1]+r}, v{acc[2*c]+r}, s[{sLO8}:{sLO8+1}]")
        E(f"ds_write_b128 v{vRWp}, {r4(acc[2*c])} offset:{F2R+1024*c}")
    E("s_waitcnt lgkmcnt(0)")
    E("s_barrier")
    E(f"s_cmp_ge_u32 s{sW}, {NC}")
    E("s_cbranch_scc1 L_f2_next")
    pb = vF + 144
    for p in range(8):
        E(f"ds_read_b128 {r4(pb+4*p)}, v{vRRp} offset:{F2R+2048*p}")
    if a.ts: E("s_waitcnt lgkmcnt(0)")
    for p in range(4):
        if not a.ts: E(f"s_waitcnt lgkmcnt({6-2*p})")
        for i in range(4): E(f"v_add_f32 v{pb+8*p+i}, v{pb+8*p+i}, v{pb+8*p+4+i}")
        if p % 2 == 1:
            for i in range(4): E(f"v_add_f32 v{pb+8*p-8+i}, v{pb+8*p-8+i}, v{pb+8*p+i}")
    for i in range(4): E(f"v_add_f32 v{pb+i}, v{pb+i}, v{pb+16+i}")
    for i in range(4):
        E(f"v_add_f32_dpp v{pb+i}, v{pb+i}, v{pb+i} row_ror:8 row_mask:0xf bank_mask:0xf")
    bf16r_many(E, range(pb, pb + 4))
    for i in range(4): E(f"v_add_f32 v{pb+i}, v{hx+i}, v{pb+i}")
    E(f"v_cvt_pk_bf16_f32 v{vD2}, v{pb}, v{pb+1}")
    E(f"v_cvt_pk_bf16_f32 v{vD2+1}, v{pb+2}, v{pb+3}")
    E(f"s_and_b64 exec, exec, s[{sLO8}:{sLO8+1}]")
    E("s_cbranch_execz L_f2_next")
    E(f"buffer_store_dwordx2 {r2(vD2)}, v{vXO}, {S4(sOUT)}, s{sT1} offen{a.opol}", tag="extra")
    stamp(14)
    E.label("L_f2_next")
    E(f"s_cmp_lg_u32 s{sDRY}, 0")
    E("s_cbranch_scc1 L_fin")
    E(f"s_mov_b64 s[{sDRY}:{sDRY+1}], -1")
    if a.tprio: E("s_setprio 0")
    E("s_branch L_f2_top")
    E.label("L_fin")
    if a.ts and a.echo:
        E(f"s_cmp_lg_u32 s{sROLE}, 2")
        E("s_cbranch_scc1 L_end")
        E(f"s_cmp_lg_u32 s{sW}, 0")
        E("s_cbranch_scc1 L_end")
        E("s_waitcnt vmcnt(0)")
        stamp(15)
        E("s_waitcnt lgkmcnt(0)")
        if a.skew == 8:
            E("s_mov_b64 exec, -1")
            E(f"s_mov_b32 s{sT0}, 0x30000")
            E(f"v_lshlrev_b32 v{vS+1}, 2, v{vL}")
            E(f"buffer_load_dword v{vS}, v{vS+1}, {S4(sWS)}, s{sT0} offen sc1", tag="extra")
            E("s_waitcnt vmcnt(0)")
            E(f"v_readlane_b32 s{sT0}, v{vS}, 0")
            E(f"s_mov_b32 s{sT1}, s{sT0}")
            for i in range(1, 8):
                E(f"v_readlane_b32 s{sT4}, v{vS}, {i}")
                E(f"s_max_u32 s{sT0}, s{sT0}, s{sT4}")
                E(f"s_min_u32 s{sT1}, s{sT1}, s{sT4}")
            E(f"s_sub_u32 s{sT0}, s{sT0}, s{sT1}")
            E(f"s_mul_i32 s{sT0}, s{sT0}, {a.emul}")
        elif a.skew >= 0:
            E("s_mov_b64 exec, -1")
            E(f"s_mov_b32 s{sT0}, 0x30000")
            E(f"buffer_load_dword v{vS}, off, {S4(sWS)}, s{sT0} offset:{4*a.skew} sc1", tag="extra")
            E(f"buffer_load_dword v{vS+1}, off, {S4(sWS)}, s{sT0} offset:4 sc1", tag="extra")
            E("s_waitcnt vmcnt(0)")
            E(f"v_sub_u32 v{vS}, v{vS}, v{vS+1}")
            E(f"v_readfirstlane_b32 s{sT0}, v{vS}")
            E(f"s_add_u32 s{sT0}, s{sT0}, 200")
            E(f"s_lshl_b32 s{sT0}, s{sT0}, 2")
        else:
            E(f"s_sub_u32 s{sT0}, s{sTS+2*a.echo}, s{sTS+2*a.echo0}")
            E(f"s_mul_i32 s{sT0}, s{sT0}, {a.emul}")
        E(f"s_min_u32 s{sT0}, s{sT0}, 20000")
        E(f"s_add_u32 s{sT0}, s{sT0}, s{sTS+30}")
        E.label("L_echo")
        E(f"s_memrealtime s[{sT2}:{sT2+1}]")
        E("s_waitcnt lgkmcnt(0)")
        E(f"s_sub_u32 s{sT1}, s{sT0}, s{sT2}")
        E(f"s_cmp_gt_i32 s{sT1}, 0")
        E("s_cbranch_scc1 L_echo")
    elif a.ts:
        E("s_waitcnt vmcnt(0)")
        stamp(15)
        write_stamps()
    E.label("L_end")
    E("s_endpgm")
    E.label("L_codeend")

    out = HDR
    out += f"; @launch grid=(256,1,1) block=(512,1,1) lds={LDS_TOTAL}\n"
    out += f""".amdgcn_target "amdgcn-amd-amdhsa--gfx950"
.text
.globl {NAME}
.p2align 8
.type {NAME},@function
{NAME}:
"""
    out += E.text().replace("CODE_BYTES", f"L_codeend-{NAME}")
    out += f""".section .rodata,"a"
.p2align 6
.amdhsa_kernel {NAME}
  .amdhsa_next_free_vgpr 256
  .amdhsa_next_free_sgpr 102
  .amdhsa_accum_offset 256
  .amdhsa_group_segment_fixed_size 0
  .amdhsa_kernarg_size 88
  .amdhsa_user_sgpr_count 2
  .amdhsa_user_sgpr_kernarg_segment_ptr 1
  .amdhsa_system_sgpr_workgroup_id_x 1
  .amdhsa_float_denorm_mode_32 3
.end_amdhsa_kernel
"""
    return out

def parser():
    p = argparse.ArgumentParser()
    p.add_argument("-o", default="sequential_preLN__sliding_block_cached__dense_activation_relu__decode.s")
    p.add_argument("--fnt", type=int, default=0)
    p.add_argument("--ts", type=int, default=0)
    p.add_argument("--sleep", type=int, default=1)
    p.add_argument("--sleep2", type=int, default=1)
    p.add_argument("--depth", type=int, default=5)
    p.add_argument("--first", type=int, default=1)
    p.add_argument("--budget", type=int, default=16)
    p.add_argument("--qspan", type=int, default=32)
    p.add_argument("--ostart", type=int, default=0)
    p.add_argument("--otail", type=int, default=4)
    p.add_argument("--tkpos", type=int, default=28)
    p.add_argument("--pf", type=int, default=2)
    p.add_argument("--spf", type=int, default=1)
    p.add_argument("--fastpro", type=int, default=1)
    p.add_argument("--init0", type=int, default=0)
    p.add_argument("--sent2", type=int, default=2)
    p.add_argument("--sentg", type=int, default=4)
    p.add_argument("--nosent", type=int, default=0)
    p.add_argument("--noflag", type=int, default=0)
    p.add_argument("--orot", type=int, default=0)
    p.add_argument("--qrot", type=int, default=1)
    p.add_argument("--x13", type=int, default=1)
    p.add_argument("--tprio", type=int, default=0)
    p.add_argument("--prio", type=int, default=-1)
    p.add_argument("--emul", type=int, default=1)
    p.add_argument("--dyn", type=int, default=0)
    p.add_argument("--abar", type=int, default=0)
    p.add_argument("--spec", type=int, default=0)
    p.add_argument("--qp2", type=int, default=1)
    p.add_argument("--nc2", type=int, default=2)
    p.add_argument("--late2", type=int, default=0)
    p.add_argument("--nk0", type=int, default=4)
    p.add_argument("--pfwg", type=int, default=16)
    p.add_argument("--ln2", type=int, default=1)
    p.add_argument("--endpf", type=int, default=3)
    p.add_argument("--epos", type=int, default=0)
    p.add_argument("--nodma", type=int, default=0)
    p.add_argument("--gate", type=float, default=31)
    p.add_argument("--gstep", type=int, default=104)
    p.add_argument("--dplan", default="0000")
    p.add_argument("--opol", default="")
    p.add_argument("--skew", type=int, default=-1)
    p.add_argument("--htab", default="0x76325410")
    p.add_argument("--rtab", default="0x210cba98")
    p.add_argument("--sphalf", type=int, default=2)
    p.add_argument("--npoll2", type=int, default=1)
    p.add_argument("--stag2", type=int, default=4)
    p.add_argument("--pub", default="sc1")
    p.add_argument("--sub", default="sc1")
    p.add_argument("--zwg", type=int, default=28)
    p.add_argument("--nrep", type=int, default=8)
    p.add_argument("--sleep3", type=int, default=4)
    p.add_argument("--h1wait", type=int, default=0)
    p.add_argument("--npoll", type=int, default=1)
    p.add_argument("--stag", type=int, default=3)
    p.add_argument("--static", type=int, default=0)
    p.add_argument("--l2pf", type=int, default=6)
    p.add_argument("--echo", type=int, default=0)
    p.add_argument("--echo0", type=int, default=0)
    p.add_argument("--kvpol", default=" nt")
    p.add_argument("--wpol", default="")
    p.add_argument("--bd1", type=int, default=0)
    p.add_argument("--bd2", type=int, default=0)
    p.add_argument("--bd3", type=int, default=0)
    p.add_argument("--hmap", type=int, default=3)
    p.add_argument("--tlb", type=int, default=0)
    p.add_argument("--dry", type=int, default=2)
    return p

if __name__ == "__main__":
    a = parser().parse_args()
    open(a.o, "w").write(gen(a))
```

```python
import sys, argparse, struct
from collections import deque
from asmlib import Emitter
from gen2 import (NAME, HDR, srd, srd_off, r4, r2, S4, row_reduce, wave_reduce, bf16r, bf16r_many, unpack10, ln_stats,
                  LOG2E, SCALE, sT0, sT1, sT2, sT3, sT4)

RED = 0
QF = 8448
ML = 8704
YP = 9216
YPS = 3328
HN = 9216
HNS = 1408
F2R = 9216
WT = 35840
LDS_TOTAL = 150528
HS = 3072
H1_BASE = 32768
TS_BASE = 1 << 20
NF1 = 27

sW, sH, sB = 3, 26, 27
sK, sV, sWQ, sWO, sX, sWS, sDB, sWF, sOUT, sH1 = 28, 32, 36, 40, 44, 48, 52, 56, 60, 64
sROLE, sTILE = 100, 101
sSPIN = 9
sLO8 = 10
sKO, sVO, sQ0, sQ1, sOO = 12, 13, 14, 15, 20
sDRY = 22
sEX = 24
sTKO = 25
sTS = 68
vL, vL16, vWQ, vWO = 0, 1, 2, 3
vM = 4
vQ = 8
vB0, vB1 = 12, 16
vD1, vD2 = 20, 24
vT = 28
vS = 32
vF = 48
vJ, vN = vT, vT + 1

class Task:
    def __init__(self, fn, needs=(), frees=(), barrier=0, cost=1, atomic=False):
        self.fn, self.needs, self.frees, self.barrier, self.cost = fn, list(needs), list(frees), barrier, cost
        self.atomic = atomic
        self.q = None

class RecEmitter(Emitter):
    def __init__(self):
        super().__init__(); self.rec = None
    def __call__(self, text, tag=None):
        if self.rec is not None: self.rec.append(("i", text, tag))
        else: super().__call__(text, tag)
    def label(self, name):
        if self.rec is not None: self.rec.append(("l", name, None))
        else: super().label(name)
    def flush(self, n=None):
        if self.rec is not None: self.rec.append(("f", None, None))
        else: super().flush(n)
    def record(self, fn):
        self.rec = []; fn(); r = self.rec; self.rec = None; return deque(r)
    def play(self, item):
        k, a, b = item
        if k == "i": self(a, b)
        elif k == "l": self.label(a)
        else: self.flush()

def gen(a):
    E = RecEmitter()
    NC = a.nc2
    NF2 = 40 // NC
    nt = a.kvpol
    wnt = a.wpol
    fnt = " nt" if a.fnt else ""
    def stamp(i):
        if a.ts: E(f"s_memrealtime s[{sTS+2*i}:{sTS+2*i+1}]")
    def spin(lbl):
        E(f"s_sub_u32 s{sSPIN}, s{sSPIN}, 1")
        E(f"s_cmp_lt_i32 s{sSPIN}, 0")
        E(f"s_cbranch_scc1 {lbl}")
    def write_stamps():
        E("s_waitcnt lgkmcnt(0)")
        E("s_mov_b64 exec, 1")
        E(f"s_lshl_b32 s{sT0}, s2, 3")
        E(f"s_add_u32 s{sT0}, s{sT0}, s{sW}")
        E(f"s_lshl_b32 s{sT0}, s{sT0}, 8")
        E(f"s_add_u32 s{sT0}, s{sT0}, {TS_BASE}")
        for i in range(16):
            E(f"v_mov_b32 v{vT}, s{sTS+2*i}")
            E(f"v_mov_b32 v{vT+1}, s{sTS+2*i+1}")
            E(f"buffer_store_dwordx2 {r2(vT)}, off, {S4(sWS)}, s{sT0} offset:{8*i}", tag="extra")
            E("s_nop 1")
        E(f"s_getreg_b32 s{sT1}, hwreg(HW_REG_XCC_ID)")
        E(f"v_mov_b32 v{vT}, s{sT1}")
        E(f"v_mov_b32 v{vT+1}, s{sROLE}")
        E(f"buffer_store_dwordx2 {r2(vT)}, off, {S4(sWS)}, s{sT0} offset:128", tag="extra")
        E("s_nop 1")
        E(f"v_mov_b32 v{vT}, s{sSPIN}")
        E(f"v_mov_b32 v{vT+1}, 0")
        E(f"buffer_store_dwordx2 {r2(vT)}, off, {S4(sWS)}, s{sT0} offset:136", tag="extra")

    E("s_cmp_ge_u32 s2, 256")
    E("s_cbranch_scc1 L_end")
    E("s_load_dwordx16 s[4:19], s[0:1], 0")
    E("s_load_dwordx4 s[20:23], s[0:1], 64")
    E("s_load_dwordx2 s[24:25], s[0:1], 80")
    if a.ts:
        for i in range(1, 16): E(f"s_mov_b64 s[{sTS+2*i}:{sTS+2*i+1}], 0")
        stamp(0)
    if a.fastpro:
        assert a.hmap == 3 and int(a.htab, 0) == 0x76325410 and a.x13 and a.qp2
        vXS, vXC = vT + 2, vT + 3
        t0, t1, t2, t3 = 64, 65, 66, 67
        E(f"v_lshrrev_b32 v{vT}, 6, v0")
        E(f"v_and_b32 v{vL}, 63, v0")
        E(f"v_readfirstlane_b32 s{sW}, v{vT}")
        E(f"s_and_b32 s{sH}, s2, 0xe1")
        E(f"s_bfe_u32 s{t1}, s2, 0x30002")
        E(f"s_lshl1_add_u32 s{sH}, s{t1}, s{sH}")
        E(f"s_and_b32 s{t1}, s2, 2")
        E(f"s_lshl3_add_u32 s{sH}, s{t1}, s{sH}")
        E(f"v_lshlrev_b32 v{vL16}, 4, v{vL}")
        E(f"s_lshl_b32 s{t0}, s{sH}, 20")
        E(f"s_add_u32 s{t0}, s{t0}, 0xc0000")
        E(f"s_and_b32 s{t1}, s2, 8")
        E(f"s_add_u32 s{sTILE}, s{t1}, s{sW}")
        E(f"s_lshl_b32 s{sTILE}, s{sTILE}, 10")
        E(f"s_lshl_b32 s{t1}, s{t1}, 11")
        E(f"s_sub_u32 s{t2}, 8192, s{t1}")
        E(f"s_add_u32 s{t3}, 8192, s{t1}")
        E(f"s_mov_b32 s{sROLE}, s{sTILE}")
        E(f"s_mov_b32 s{sK+2}, 0x40000")
        E(f"s_mov_b32 s{sK+3}, 0x20000")
        E("s_waitcnt lgkmcnt(0)")
        E(f"s_add_u32 s{sK}, s6, s{t0}")
        E(f"s_addc_u32 s{sK+1}, s7, 0")
        E(f"s_and_b32 s{sK+1}, s{sK+1}, 0xffff")
        def kvstep(f): return (f"s{f % 2}" if a.x13 else "8192")
        slot_of = {}
        free = deque(range(52))
        def alloc(tag):
            s = free.popleft(); slot_of[tag] = vF + 4 * s; return slot_of[tag]
        def release(tag):
            free.append((slot_of[tag] - vF) // 4)
        for f in range(a.nk0):
            if f: E(f"s_add_u32 s{sTILE}, s{sTILE}, s{t2 + (f-1) % 2}")
            E(f"buffer_load_dwordx4 {r4(alloc(f'k{f}'))}, v{vL16}, {S4(sK)}, s{sTILE} offen{nt}", tag=f"k{f}")
        E(f"s_mov_b64 s[0:1], s[{t2}:{t3}]")
        E(f"s_lshr_b32 s{sB}, s2, 5")
        E(f"s_and_b32 s{sH}, s{sH}, 31")
        E(f"v_mul_u32_u24 v{vXS}, 20, v{vL}")
        E(f"s_mul_i32 s{t3}, s{sB}, 1280")
        E(f"s_lshl_b32 s{t1}, s{sH}, 8")
        E(f"s_mul_i32 s{t2}, s{sH}, {128*1280}")
        E(f"v_lshrrev_b32 v{vJ}, 4, v{vL}")
        E(f"v_and_b32 v{vN}, 15, v{vL}")
        E(f"v_lshlrev_b32 v{vWQ}, 13, v{vJ}")
        E(f"v_lshl_add_u32 v{vWQ}, v{vN}, 4, v{vWQ}")
        if a.pf:
            E(f"s_cmp_gt_u32 s{sW}, {a.pf - 1}")
            E("s_cbranch_scc1 L_nopf")
            E(f"s_cmp_ge_u32 s2, {a.pfwg}")
            E("s_cbranch_scc1 L_nopf")
            E(f"s_getpc_b64 s[{sWF}:{sWF+1}]")
            E.label("L_pc")
            E(f"s_lshl_b32 s{sOUT}, s{sW}, 13")
            E(f"v_lshlrev_b32 v{vB0}, 7, v{vL}")
            E(f"v_add_u32 v{vB0}, s{sOUT}, v{vB0}")
            E(f"v_min_u32 v{vB0}, L_codeend-L_pc-4, v{vB0}")
            E(f"v_mov_b32 v{vB0+3}, s{sWF+1}")
            E(f"v_add_co_u32 v{vB0+2}, vcc, s{sWF}, v{vB0}")
            E(f"v_addc_co_u32 v{vB0+3}, vcc, 0, v{vB0+3}, vcc")
            E(f"global_load_dword v{vS+15}, v[{vB0+2}:{vB0+3}], off", tag="extra")
            E.label("L_nopf")
    else:
        E(f"v_lshrrev_b32 v{vT}, 6, v0")
        E(f"v_and_b32 v{vL}, 63, v0")
        E(f"v_readfirstlane_b32 s{sW}, v{vT}")
        if a.hmap == 3:
            E(f"s_and_b32 s{sH}, s2, 7")
            E(f"s_lshl_b32 s{sH}, s{sH}, 2")
            E(f"s_lshr_b32 s{sH}, {a.htab}, s{sH}")
            E(f"s_and_b32 s{sB}, s{sH}, 4")
            E(f"s_lshl_b32 s{sB}, s{sB}, 2")
            E(f"s_and_b32 s{sH}, s{sH}, 3")
            E(f"s_add_u32 s{sH}, s{sH}, s{sB}")
            E(f"s_bfe_u32 s{sB}, s2, 0x20003")
            E(f"s_lshl_b32 s{sB}, s{sB}, 2")
            E(f"s_add_u32 s{sH}, s{sH}, s{sB}")
        elif a.hmap == 2:
            E(f"s_and_b32 s{sH}, s2, 6")
            E(f"s_lshr_b32 s{sH}, 0x8d, s{sH}")
            E(f"s_and_b32 s{sH}, s{sH}, 3")
            E(f"s_and_b32 s{sB}, s2, 1")
            E(f"s_lshl_b32 s{sB}, s{sB}, 4")
            E(f"s_add_u32 s{sH}, s{sH}, s{sB}")
            E(f"s_bfe_u32 s{sB}, s2, 0x20003")
            E(f"s_lshl_b32 s{sB}, s{sB}, 2")
            E(f"s_add_u32 s{sH}, s{sH}, s{sB}")
        elif a.hmap:
            E(f"s_and_b32 s{sH}, s2, 7")
            E(f"s_lshl_b32 s{sH}, s{sH}, 2")
            E(f"s_bfe_u32 s{sB}, s2, 0x20003")
            E(f"s_add_u32 s{sH}, s{sH}, s{sB}")
        else:
            E(f"s_and_b32 s{sH}, s2, 31")
        E(f"s_lshr_b32 s{sB}, s2, 5")
        E(f"v_lshlrev_b32 v{vL16}, 4, v{vL}")
        E(f"v_lshrrev_b32 v{vJ}, 4, v{vL}")
        E(f"v_and_b32 v{vN}, 15, v{vL}")
        E(f"v_mul_u32_u24 v{vWQ}, {8192 if a.qp2 else 81920}, v{vJ}")
        E(f"v_lshl_add_u32 v{vWQ}, v{vN}, 4, v{vWQ}")
        vXS, vXC = vT + 2, vT + 3
        E(f"v_mul_u32_u24 v{vXS}, 20, v{vL}")
        t0, t1, t2, t3 = 64, 65, 66, 67
        if not a.qp2:
            E(f"v_lshrrev_b32 v{vXC}, 3, v{vN}")
            E(f"v_lshl_add_u32 v{vXC}, v{vXC}, 2, v{vJ}")
            E(f"s_lshl_b32 s{t0}, s{sW}, 3")
            E(f"v_add_u32 v{vXC}, s{t0}, v{vXC}")
            E(f"v_mul_u32_u24 v{vXC}, 20, v{vXC}")
        E(f"s_lshl_b32 s{t0}, s{sB}, 5")
        E(f"s_add_u32 s{t0}, s{t0}, s{sH}")
        E(f"s_lshl_b32 s{t0}, s{t0}, 20")
        E(f"s_add_u32 s{t0}, s{t0}, 0xc0000")
        E(f"s_lshl_b32 s{t1}, s{sH}, 8")
        E(f"s_mul_i32 s{t2}, s{sH}, {128*1280}")
        E(f"s_mul_i32 s{t3}, s{sB}, 1280")
        E(f"s_mov_b32 s{sROLE}, 0")
        E(f"s_lshl_b32 s{sTILE}, s{sW}, 10")
        if a.x13:
            E(f"s_and_b32 s{sROLE}, s{sH}, 4")
            E(f"s_lshl_b32 s{sROLE}, s{sROLE}, 11")
            E(f"s_add_u32 s{sTILE}, s{sTILE}, s{sROLE}")
        if a.pf:
            E(f"s_cmp_gt_u32 s{sW}, {a.pf - 1}")
            E("s_cbranch_scc1 L_nopf")
            E(f"s_cmp_ge_u32 s2, {a.pfwg}")
            E("s_cbranch_scc1 L_nopf")
            E(f"s_getpc_b64 s[{sWF}:{sWF+1}]")
            E.label("L_pc")
            E(f"s_lshl_b32 s{sOUT}, s{sW}, 13")
            E(f"v_lshlrev_b32 v{vB0}, 7, v{vL}")
            E(f"v_add_u32 v{vB0}, s{sOUT}, v{vB0}")
            E(f"v_min_u32 v{vB0}, L_codeend-L_pc-4, v{vB0}")
            E(f"v_mov_b32 v{vB0+3}, s{sWF+1}")
            E(f"v_add_co_u32 v{vB0+2}, vcc, s{sWF}, v{vB0}")
            E(f"v_addc_co_u32 v{vB0+3}, vcc, 0, v{vB0+3}, vcc")
            E(f"global_load_dword v{vS+15}, v[{vB0+2}:{vB0+3}], off", tag="extra")
            E.label("L_nopf")
        E("s_waitcnt lgkmcnt(0)")
        srd_off(E, sK, 6, f"s{t0}", 0x40000)
        if a.x13:
            E(f"s_lshl_b32 s{sROLE}, s{sROLE}, 1")
            E(f"s_sub_u32 s0, 8192, s{sROLE}")
            E(f"s_add_u32 s1, 8192, s{sROLE}")
            E(f"s_mov_b32 s{sROLE}, s{sTILE}")
        def kvstep(f): return (f"s{f % 2}" if a.x13 else "8192")
        slot_of = {}
        free = deque(range(52))
        def alloc(tag):
            s = free.popleft(); slot_of[tag] = vF + 4 * s; return slot_of[tag]
        def release(tag):
            free.append((slot_of[tag] - vF) // 4)
        for f in range(a.nk0):
            if f: E(f"s_add_u32 s{sTILE}, s{sTILE}, {kvstep(f-1)}")
            E(f"buffer_load_dwordx4 {r4(alloc(f'k{f}'))}, v{vL16}, {S4(sK)}, s{sTILE} offen{nt}", tag=f"k{f}")
    srd(E, sX, 4, 5, 10240)
    xs_raw, xc_raw = vS, vS + 6
    E(f"buffer_load_dwordx4 {r4(xs_raw)}, v{vXS}, {S4(sX)}, s{t3} offen", tag="xs")
    E(f"buffer_load_dword v{xs_raw+4}, v{vXS}, {S4(sX)}, s{t3} offen offset:16", tag="xs")
    if not a.qp2:
        E(f"buffer_load_dwordx4 {r4(xc_raw)}, v{vXC}, {S4(sX)}, s{t3} offen", tag="xc")
        E(f"buffer_load_dword v{xc_raw+4}, v{vXC}, {S4(sX)}, s{t3} offen offset:16", tag="xc")
    srd_off(E, sWQ, 10, f"s{t1}", 639 * 8192 + 256)
    srd_off(E, sV, 8, f"s{t0}", 0x40000)
    srd_off(E, sWO, 12, f"s{t2}", 128 * 1280)
    srd(E, sWS, 24, 25, 1 << 22)
    srd(E, sDB, 22, 23, 256)
    srd(E, sOUT, 20, 21, 10240)
    srd_off(E, sH1, 24, H1_BASE, 108 * 256)
    E(f"s_add_u32 s{sKO}, s{sTILE}, {kvstep(a.nk0-1)}")
    if a.x13:
        E(f"s_mov_b32 s{sVO}, s{sROLE}")
        E(f"s_mov_b32 s{sROLE}, 0")
    else: E(f"s_lshl_b32 s{sVO}, s{sW}, 10")
    if a.qp2 and a.qrot:
        E(f"s_lshl_b32 s{sQ1}, s{sW}, 15")
        E(f"s_mul_i32 s{sQ0}, s{sB}, 10")
        E(f"s_lshr_b32 s{sQ0}, s{sQ0}, 3")
        E(f"s_lshl_b32 s{sQ0}, s{sQ0}, 19")
        E(f"s_add_u32 s{sQ0}, s{sQ0}, s{sQ1}")
    elif a.qp2:
        E(f"s_lshl_b32 s{sQ0}, s{sW}, 15")
    else:
        E(f"s_mul_i32 s{sQ0}, s{sW}, 655360")
        E(f"s_add_u32 s{sQ1}, s{sQ0}, 327680")
    E(f"s_mul_i32 s{sOO}, s{sW}, 1280")
    sOC = 25
    if a.orot:
        assert not a.dyn and a.endpf == 3
        E(f"s_mul_i32 s{sOC}, s{sB}, 5")
        E(f"s_lshr_b32 s{sOC}, s{sOC}, 3")
        E(f"s_lshl_b32 s{sOC}, s{sOC}, 8")
        E(f"s_add_u32 s{sOO}, s{sOO}, s{sOC}")

    if a.tlb:
        E(f"s_cmp_lg_u32 s{sW}, 1")
        E("s_cbranch_scc1 L_notlb")
        E(f"buffer_load_dword v{vS+14}, off, {S4(sV)}, 0 nt", tag="extra")
        E(f"buffer_load_dword v{vS+14}, off, {S4(sWO)}, 0 nt", tag="extra")
        if a.tlb > 1:
            E(f"s_mov_b32 s{sWF+2}, {640*3456}")
            E(f"s_mov_b32 s{sWF+3}, 0x20000")
            E(f"s_mov_b32 s{sT0}, {640*3456-4}")
            for p in (16, 18):
                E(f"s_mov_b32 s{sWF}, s{p}")
                E(f"s_and_b32 s{sWF+1}, s{p+1}, 0xffff")
                E(f"buffer_load_dword v{vS+14}, off, {S4(sWF)}, 0 nt", tag="extra")
                E(f"buffer_load_dword v{vS+14}, off, {S4(sWF)}, s{sT0} nt", tag="extra")
            E(f"s_mov_b32 s{sT0}, 0x20000")
            E(f"buffer_load_dword v{vS+14}, off, {S4(sWS)}, s{sT0} nt", tag="extra")
            E(f"buffer_load_dword v{vS+14}, off, {S4(sOUT)}, 0 nt", tag="extra")
        E.label("L_notlb")
    if a.skew >= 0:
        E("s_cmp_ge_u32 s2, 8")
        E("s_cbranch_scc1 L_noskew")
        E("s_waitcnt lgkmcnt(0)")
        E(f"v_mov_b32 v{vS+12}, s{sTS}")
        E(f"s_lshl_b32 s{sT0}, s2, 2")
        E(f"s_add_u32 s{sT0}, s{sT0}, 0x30000")
        E(f"buffer_store_dword v{vS+12}, off, {S4(sWS)}, s{sT0} sc1", tag="extra")
        E.label("L_noskew")
    def t_init():
        z = [alloc("z0"), alloc("z1"), alloc("z2"), alloc("z3")]
        zr = [z[0], z[0] + 2, z[1], z[1] + 2, z[2], z[2] + 2]
        init_seen.update(issued)
        E(f"s_cmp_lg_u32 s{sW}, 7")
        E("s_cbranch_scc1 L_nosent")
        if a.sent2:
            E(f"s_and_b32 s{sT0}, s2, {7 & ~a.sent2}")
            E(f"s_cmp_lg_u32 s{sT0}, {a.sentg}")
            E("s_cbranch_scc1 L_nosent")
            E(f"s_lshr_b32 s{sT0}, s2, 3")
            E(f"s_cmp_ge_u32 s{sT0}, 27")
            E("s_cbranch_scc1 L_nosent")
            E(f"s_and_b32 s{sT1}, s2, {a.sent2}")
            E(f"s_cselect_b32 s{sT1}, 27, 0")
            E(f"s_add_u32 s{sT0}, s{sT0}, s{sT1}")
            E(f"s_lshl_b32 s{sT0}, s{sT0}, 9")
            E(f"v_mov_b32 v{z[0]}, -1")
            E(f"v_mov_b32 v{z[0]+1}, -1")
            E(f"v_lshlrev_b32 v{z[3]}, 3, v{vL}")
            E(f"buffer_atomic_swap_x2 {r2(z[0])}, v{z[3]}, {S4(sH1)}, s{sT0} offen sc0", tag="extra")
        else:
            E(f"v_mov_b32 v{z[0]}, -1")
            E(f"v_lshlrev_b32 v{z[3]}, 2, v{vL}")
            E(f"s_lshl_b32 s{sT0}, s2, 8")
            if not a.nosent: E(f"buffer_atomic_swap v{z[0]}, v{z[3]}, {S4(sH1)}, s{sT0} offen sc0", tag="extra")
        E.label("L_nosent")
        E(f"s_cmp_lg_u32 s{sW}, 6")
        E("s_cbranch_scc1 L_noinit")
        E(f"s_and_b32 s{sT0}, s2, 31")
        E(f"s_cmp_lg_u32 s{sT0}, {a.zwg}")
        E("s_cbranch_scc1 L_noinit")
        for q in z[:3]:
            for i in range(4): E(f"v_mov_b32 v{q+i}, 0")
        E(f"v_lshlrev_b32 v{z[3]}, 3, v{vL}")
        E(f"s_mul_i32 s{sT0}, s{sB}, {HS}")
        for i in range(6):
            E(f"buffer_atomic_swap_x2 {r2(zr[i])}, v{z[3]}, {S4(sWS)}, s{sT0} offen offset:{512*i} sc0", tag="extra")
        E.label("L_noinit")
    init_seen = set()
    def t_flagset():
        assert "wq11" not in init_seen
        E(f"s_cmp_lg_u32 s{sW}, 6")
        E("s_cbranch_scc1 L_noflag")
        E(f"s_and_b32 s{sT0}, s2, 31")
        E(f"s_cmp_lg_u32 s{sT0}, {a.zwg}")
        E("s_cbranch_scc1 L_noflag")
        E(f"v_mov_b32 v{slot_of['z3']}, 1")
        E(f"s_lshl_b32 s{sT0}, s{sB}, 2")
        E("s_mov_b64 exec, 1")
        E(f"buffer_store_dword v{slot_of['z3']}, off, {S4(sDB)}, s{sT0} sc1", tag="extra")
        E("s_mov_b64 exec, -1")
        E.label("L_noflag")

    def kload(f):
        def fn():
            E(f"buffer_load_dwordx4 {r4(alloc(f'k{f}'))}, v{vL16}, {S4(sK)}, s{sKO} offen{nt}", tag=f"k{f}")
            if f < 31: E(f"s_add_u32 s{sKO}, s{sKO}, {kvstep(f)}")
        return (f"k{f}", fn, True)
    def vload(f):
        def fn():
            E(f"buffer_load_dwordx4 {r4(alloc(f'v{f}'))}, v{vL16}, {S4(sV)}, s{sVO} offen{nt}", tag=f"v{f}")
            if f < 31: E(f"s_add_u32 s{sVO}, s{sVO}, {kvstep(f)}")
        return (f"v{f}", fn, True)
    def qload(f):
        def fn():
            s = sQ0 if (f % 2 == 0 or a.qp2) else sQ1
            E(f"buffer_load_dwordx4 {r4(alloc(f'wq{f}'))}, v{vWQ}, {S4(sWQ)}, s{s} offen{wnt}", tag=f"wq{f}")
            if a.qp2:
                if f < 19: E(f"s_add_u32 s{s}, s{s}, {32*8192}")
                if a.qrot and f < 19 and f % 2 == 1:
                    E(f"s_cmp_ge_u32 s{s}, {640*8192}")
                    E(f"s_cselect_b32 s{s}, s{sQ1}, s{s}")
            elif f < 18: E(f"s_add_u32 s{s}, s{s}, 8192")
        return (f"wq{f}", fn, True)
    def oload(f):
        def fn():
            if a.orot:
                E(f"buffer_load_dwordx4 {r4(alloc(f'wo{f}'))}, v{vWO}, {S4(sWO)}, s{sOO} offen{wnt}", tag=f"wo{f}")
                if f % 4 < 3: E(f"s_add_u32 s{sOO}, s{sOO}, {8*1280}")
                elif f < 19:
                    E(f"s_add_u32 s{sOC}, s{sOC}, 256")
                    E(f"s_cmp_ge_u32 s{sOC}, 1280")
                    E(f"s_cselect_b32 s{sOC}, 0, s{sOC}")
                    E(f"s_mul_i32 s{sOO}, s{sW}, 1280")
                    E(f"s_add_u32 s{sOO}, s{sOO}, s{sOC}")
                return
            fp, cg = divmod(f, 5)
            E(f"buffer_load_dwordx4 {r4(alloc(f'wo{f}'))}, v{vWO}, {S4(sWO)}, s{sOO} offen offset:{cg*256}{wnt}", tag=f"wo{f}")
            if cg == 4 and fp < 3: E(f"s_add_u32 s{sOO}, s{sOO}, {8*1280}")
        return (f"wo{f}", fn, True)
    vFL = vWQ
    vTK = vQ + 3
    def fload():
        def fn():
            E(f"v_and_b32 v{vFL}, 7, v{vL}")
            E(f"v_lshlrev_b32 v{vFL}, 2, v{vFL}")
            E(f"buffer_load_dword v{vFL}, v{vFL}, {S4(sDB)}, 0 offen sc1", tag="flag")
        return ("flag", fn, False)
    TKL = QF
    def ticket():
        def fn():
            v = alloc("tk")
            E(f"v_mov_b32 v{v+1}, {TKL}")
            if a.dyn == 2:
                E(f"s_lshr_b32 s{sTKO}, s2, 3")
                E(f"s_cmp_lg_u32 s{sW}, 0")
                E("s_cbranch_scc1 L_notk")
                E(f"s_and_b32 s{sT0}, s2, 7")
                E(f"s_lshl_b32 s{sT0}, s{sT0}, 2")
                E(f"s_lshr_b32 s{sT0}, {a.rtab}, s{sT0}")
                E(f"s_and_b32 s{sT0}, s{sT0}, 15")
                E(f"s_cmp_ge_u32 s{sT0}, 8")
                E("s_cbranch_scc1 L_notk")
                E(f"s_lshl_b32 s{sT0}, s{sT0}, 6")
                E(f"s_add_u32 s{sT0}, s{sT0}, 64")
                E(f"s_mov_b32 s{sTKO}, 1")
                E(f"s_atomic_add s{sTKO}, s[{sDB}:{sDB+1}], s{sT0} glc")
            else:
                E(f"s_cmp_lg_u32 s{sW}, 0")
                E("s_cbranch_scc1 L_notk")
                E(f"v_mov_b32 v{v}, 1")
                E(f"s_and_b32 s{sTKO}, s2, 7")
                E(f"s_lshl_b32 s{sTKO}, s{sTKO}, 4")
                E("s_mov_b64 exec, 1")
                E(f"buffer_atomic_add v{v}, off, {S4(sDB)}, s{sTKO} offset:128 sc0", tag="extra")
                E("s_mov_b64 exec, -1")
            E.label("L_notk")
        return ("tk", fn, True)
    def l2pf_outer():
        def fn():
            vPF = vS + 13
            E(f"s_and_b32 s{sT0}, s2, 7")
            E(f"s_lshl_b32 s{sT0}, s{sT0}, 2")
            E(f"s_lshr_b32 s{sT0}, {a.rtab}, s{sT0}")
            E(f"s_and_b32 s{sT0}, s{sT0}, 15")
            E(f"s_lshr_b32 s{sT1}, s2, 3")
            E(f"s_mov_b32 s{sWF+2}, {640*3456}")
            E(f"s_mov_b32 s{sWF+3}, 0x20000")
            E(f"s_cmp_ge_u32 s{sT0}, 8")
            E("s_cbranch_scc1 L_l2b")
            E(f"s_cmp_ge_u32 s{sW}, 3")
            E("s_cbranch_scc1 L_nol2")
            E(f"s_mov_b32 s{sWF}, s16")
            E(f"s_and_b32 s{sWF+1}, s17, 0xffff")
            E(f"s_mul_i32 s{sT2}, s{sT0}, {9*128}")
            E(f"s_mul_i32 s{sT0}, s{sW}, {3*128}")
            E(f"s_add_u32 s{sT2}, s{sT2}, s{sT0}")
            E(f"s_mul_i32 s{sT1}, s{sT1}, {20*3456}")
            E(f"s_add_u32 s{sT2}, s{sT2}, s{sT1}")
            E(f"v_mul_u32_u24 v{vPF}, 43, v{vL}")
            E(f"v_lshrrev_b32 v{vPF}, 7, v{vPF}")
            E(f"v_mul_u32_u24 v{vPF}, {3456-384}, v{vPF}")
            E(f"v_lshl_add_u32 v{vPF}, v{vL}, 7, v{vPF}")
            E(f"s_mov_b32 exec_hi, 0xfffffff")
            E("s_branch L_l2go")
            E.label("L_l2b")
            E(f"s_cmp_ge_u32 s{sW}, 2")
            E("s_cbranch_scc1 L_nol2")
            E(f"s_mov_b32 s{sWF}, s18")
            E(f"s_and_b32 s{sWF+1}, s19, 0xffff")
            E(f"s_sub_u32 s{sT0}, s{sT0}, 8")
            E(f"s_lshl_b32 s{sT0}, s{sT0}, 1")
            E(f"s_add_u32 s{sT2}, s{sT0}, s{sW}")
            E(f"s_lshl_b32 s{sT2}, s{sT2}, 7")
            E(f"s_mul_i32 s{sT1}, s{sT1}, {54*1280}")
            E(f"s_add_u32 s{sT2}, s{sT2}, s{sT1}")
            E(f"v_mul_u32_u24 v{vPF}, 1280, v{vL}")
            E(f"s_mov_b32 exec_hi, 0x3fffff")
            E.label("L_l2go")
            E(f"buffer_load_dword v{vPF}, v{vPF}, {S4(sWF)}, s{sT2} offen", tag="extra")
            E("s_mov_b64 exec, -1")
            E.label("L_nol2")
        return fn
    t_l2pf = l2pf_outer()
    sPO, sPC, sPD = 21, 24, 25
    def t_spf0():
        E(f"s_and_b32 s{sT0}, s2, 7")
        E(f"s_lshl_b32 s{sT0}, s{sT0}, 2")
        E(f"s_lshr_b32 s{sT0}, {a.rtab}, s{sT0}")
        E(f"s_and_b32 s{sPC}, s{sT0}, 15")
        E(f"s_lshr_b32 s{sT1}, s2, 3")
        E(f"s_mov_b32 s{sWF+2}, {640*3456}")
        E(f"s_mov_b32 s{sWF+3}, 0x20000")
        E(f"s_mul_i32 s{sT2}, s{sT1}, 20")
        E(f"s_add_u32 s{sT2}, s{sT2}, s{sW}")
        E(f"s_mul_i32 s{sT2}, s{sT2}, 3456")
        E(f"s_mul_i32 s{sT0}, s{sPC}, 1152")
        E(f"s_add_u32 s{sT2}, s{sT2}, s{sT0}")
        E(f"s_mul_i32 s{sT3}, s{sT1}, 54")
        E(f"s_add_u32 s{sT3}, s{sT3}, s{sW}")
        E(f"s_mul_i32 s{sT3}, s{sT3}, 1280")
        E(f"s_sub_u32 s{sT0}, s{sPC}, 8")
        E(f"s_lshl_b32 s{sT0}, s{sT0}, 8")
        E(f"s_add_u32 s{sT3}, s{sT3}, s{sT0}")
        E(f"s_cmp_lt_u32 s{sPC}, 8")
        E(f"s_cselect_b32 s{sPO}, s{sT2}, s{sT3}")
        E(f"s_cselect_b32 s{sWF}, s16, s18")
        E(f"s_cselect_b32 s{sWF+1}, s17, s19")
        E(f"s_and_b32 s{sWF+1}, s{sWF+1}, 0xffff")
    def t_spf(part):
        def fn():
            E(f"s_cmp_lt_u32 s{sPC}, 8")
            E(f"s_cbranch_scc0 L_spb{part}")
            if part == 2:
                E(f"s_cmp_ge_u32 s{sW}, 4")
                E(f"s_cbranch_scc1 L_spe{part}")
            for ln in range(9 if not a.endpf & 1 else 0):
                for hf in range(a.sphalf):
                    E(f"s_buffer_load_dword s{sPD}, {S4(sWF)}, s{sPO} offset:{part*8*3456 + ln*128 + hf*64}")
            E(f"s_branch L_spe{part}")
            E.label(f"L_spb{part}")
            for k in (([0, 1, 2], [3, 4], [5, 6])[part] if not a.endpf & 2 else []):
                for ln in range(2):
                    for hf in range(a.sphalf):
                        E(f"s_buffer_load_dword s{sPD}, {S4(sWF)}, s{sPO} offset:{k*8*1280 + ln*128 + hf*64}")
            E.label(f"L_spe{part}")
        return fn
    sEO, sEM = 14, 15
    sES = 36
    def t_epf_prep():
        v = alloc("epf")
        E(f"s_and_b32 s{sT0}, s2, 7")
        E(f"s_lshl_b32 s{sT0}, s{sT0}, 2")
        E(f"s_lshr_b32 s{sT0}, {a.rtab}, s{sT0}")
        E(f"s_and_b32 s{sT0}, s{sT0}, 15")
        E(f"s_lshr_b32 s{sT1}, s2, 3")
        E(f"s_mul_i32 s{sT2}, s{sT1}, {20*3456}")
        E(f"s_mul_i32 s{sT3}, s{sT0}, 1152")
        E(f"s_add_u32 s{sT2}, s{sT2}, s{sT3}")
        E(f"s_mul_i32 s{sT3}, s{sT1}, {54*1280}")
        E(f"s_sub_u32 s{sT1}, s{sT0}, 8")
        E(f"s_lshl_b32 s{sT1}, s{sT1}, 8")
        E(f"s_add_u32 s{sT3}, s{sT3}, s{sT1}")
        E(f"s_mul_i32 s{sT1}, s{sW}, 23")
        E(f"v_add_u32 v{v}, s{sT1}, v{vL}")
        E(f"v_mul_u32_u24 v{v+1}, 7282, v{v}")
        E(f"v_lshrrev_b32 v{v+1}, 16, v{v+1}")
        E(f"v_mul_u32_u24 v{v+1}, {3456-1152}, v{v+1}")
        E(f"v_lshl_add_u32 v{v+1}, v{v}, 7, v{v+1}")
        E(f"s_mul_i32 s{sT1}, s{sW}, 14")
        E(f"v_add_u32 v{v}, s{sT1}, v{vL}")
        E(f"v_lshrrev_b32 v{v+2}, 1, v{v}")
        E(f"v_mul_u32_u24 v{v+2}, {1280-256}, v{v+2}")
        E(f"v_lshl_add_u32 v{v+2}, v{v}, 7, v{v+2}")
        E(f"s_cmp_lt_u32 s{sT0}, 8")
        E(f"s_cselect_b32 s{sEO}, s{sT2}, s{sT3}")
        E(f"s_mov_b32 s{sEM}, {(1 << 14) - 1 if (a.endpf & 2 and not a.hyb) else 1}")
        E(f"s_cselect_b32 s{sEM}, {(1 << 23) - 1 if a.endpf & 1 else 1}, s{sEM}")
        E(f"s_cselect_b32 s{sES}, s16, s18")
        E(f"s_cselect_b32 s{sES+1}, s17, s19")
        E(f"s_cselect_b64 vcc, -1, 0")
        E(f"s_and_b32 s{sES+1}, s{sES+1}, 0xffff")
        E(f"s_mov_b32 s{sES+2}, {640*3456}")
        E(f"s_mov_b32 s{sES+3}, 0x20000")
        E(f"v_cndmask_b32 v{v}, v{v+2}, v{v+1}, vcc")
    def epf():
        def fn():
            v = slot_of["epf"]
            E(f"s_mov_b32 exec_lo, s{sEM}")
            E(f"s_mov_b32 exec_hi, 0")
            E(f"buffer_load_dword v{v+3}, v{v}, {S4(sES)}, s{sEO} offen", tag="epf")
            E("s_mov_b64 exec, -1")
        return ("epf", fn, False)
    def prio(k, lo, hi):
        def fn():
            E(f"s_cmp_ge_u32 s{sW}, 4")
            E(f"s_cbranch_scc1 L_pr{k}a")
            E(f"s_setprio {lo}")
            E(f"s_branch L_pr{k}b")
            E.label(f"L_pr{k}a")
            E(f"s_setprio {hi}")
            E.label(f"L_pr{k}b")
        return ("tk", fn, False)
    loads = []
    qi = 0
    for f in range(a.nk0, 32):
        want = min(20, (f - a.nk0 + 1) * 20 // (a.qspan - a.nk0 + 1) + 1)
        while qi < want:
            loads.append(qload(qi)); qi += 1
        loads.append(kload(f))
    while qi < 20:
        loads.append(qload(qi)); qi += 1
    nmid = 20 - a.otail
    oi = 0
    for f in range(32):
        loads.append(vload(f))
        if f == 16 and not a.noflag: loads.append(fload())
        if f == a.prio: loads.append(prio(0, 0, 1))
        if f == a.tkpos and a.dyn: loads.append(ticket())
        want = max(0, (f + 1 - a.ostart)) * nmid // (32 - a.ostart)
        while oi < want:
            loads.append(oload(oi)); oi += 1
    while oi < 20:
        loads.append(oload(oi)); oi += 1
    if a.endpf and a.epos >= 0: loads.insert(len(loads) - a.epos, epf())

    vRW, vRR = vXS, vXC
    def t_setup():
        E(f"s_mov_b32 s{sSPIN}, 0x40000")
        E(f"s_mov_b32 s{sLO8}, 0x00ff00ff")
        E(f"s_mov_b32 s{sLO8+1}, 0x00ff00ff")
        E(f"v_mul_u32_u24 v{vWO}, 40960, v{vJ}")
        E(f"v_and_b32 v{vB0}, 1, v{vN}")
        E(f"v_lshrrev_b32 v{vB0+1}, 1, v{vN}")
        E(f"v_lshl_add_u32 v{vWO}, v{vN}, 4, v{vWO}")
        E(f"v_lshlrev_b32 v{vB0}, 4, v{vB0}")
        E(f"v_mov_b32 v{vB0+2}, 0xffff")
        E(f"v_lshlrev_b32 v{vB0}, v{vB0}, v{vB0+2}")
        E(f"v_and_b32 v{vB0+1}, 3, v{vB0+1}")
        for w in range(4):
            E(f"v_cmp_eq_u32 vcc, {w}, v{vB0+1}")
            E(f"v_cndmask_b32 v{vM+w}, 0, v{vB0}, vcc")
        E(f"v_lshrrev_b32 v{vB0}, 3, v{vN}")
        E(f"s_lshl_b32 s{sT0}, s{sW}, 1")
        E(f"v_add_u32 v{vB0}, s{sT0}, v{vB0}")
        E(f"v_mul_u32_u24 v{vRW}, 528, v{vB0}")
        E(f"v_and_b32 v{vB0}, 7, v{vN}")
        E(f"v_lshl_add_u32 v{vRW}, v{vB0}, 6, v{vRW}")
        E(f"v_lshl_add_u32 v{vRW}, v{vJ}, 4, v{vRW}")
        E(f"v_mul_u32_u24 v{vRR}, 528, v{vN}")
        E(f"v_lshl_add_u32 v{vRR}, v{vJ}, 4, v{vRR}")
        E(f"s_lshl_b32 s{sT0}, s{sW}, 6")
        E(f"v_add_u32 v{vRR}, s{sT0}, v{vRR}")
    f0 = 8
    vMEAN, vRCP = 18, 19
    def t_ln1a():
        stamp(1)
        unpack10(E, xs_raw, f0)
        ln_stats(E, f0, 20, 21, 22, vMEAN, vRCP)
    def t_ln1b():
        if not a.qp2: unpack10(E, xc_raw, f0)
        for i in range(10): E(f"v_sub_f32 v{f0+i}, v{f0+i}, v{vMEAN}")
        bf16r_many(E, range(f0, f0 + 10))
        for i in range(10): E(f"v_mul_f32 v{f0+i}, v{f0+i}, v{vRCP}")
        if not a.qp2:
            for i in range(10): E(f"v_cvt_pk_bf16_f32 v{vS+i}, v{f0+i}, v{f0+i}")
            return
        for i in range(5): E(f"v_cvt_pk_bf16_f32 v{vS+i}, v{f0+2*i}, v{f0+2*i+1}")
        E(f"s_mul_i32 s{sT0}, s{sW}, 2816")
        E(f"v_mul_u32_u24 v20, 20, v{vL}")
        E(f"v_add_u32 v20, s{sT0}, v20")
        for i in range(5): E(f"ds_write_b32 v20, v{vS+i} offset:{WT+4*i}")
        if a.qrot:
            for i in range(5): E(f"ds_write_b32 v20, v{vS+i} offset:{WT+1280+4*i}")
        E(f"v_lshrrev_b32 v21, 3, v{vN}")
        E(f"v_lshlrev_b32 v21, 6, v21")
        E(f"v_lshl_add_u32 v21, v{vJ}, 1, v21")
        E(f"s_mul_i32 s{sT0}, s{sW}, 2824")
        if a.qrot:
            E(f"s_mul_i32 s{sT1}, s{sB}, 10")
            E(f"s_lshr_b32 s{sT1}, s{sT1}, 3")
            E(f"s_lshl_b32 s{sT1}, s{sT1}, 7")
            E(f"s_add_u32 s{sT0}, s{sT0}, s{sT1}")
        E(f"v_add_u32 v21, s{sT0}, v21")
        E("s_waitcnt lgkmcnt(0)")
        for i in range(10): E(f"ds_read_u16 v{vS+i}, v21 offset:{WT+128*i}")
        E("s_waitcnt lgkmcnt(0)")
        for i in range(10): E(f"v_lshl_or_b32 v{vS+i}, v{vS+i}, 16, v{vS+i}")
    def bfrag(dst, src):
        for w in range(4): E(f"v_and_b32 v{dst+w}, v{src}, v{vM+w}")
    def t_pair(t, pre):
        def fn():
            B = vB0 if t % 2 == 0 else vB1
            bfrag(B, vS + t)
            c1 = "0" if t == 0 else r4(vD1)
            c2 = "0" if t == 0 else r4(vD2)
            E(f"v_mfma_f32_16x16x32_bf16 {r4(vD1)}, {r4(slot_of[f'{pre}{2*t}'])}, {r4(B)}, {c1}")
            E(f"v_mfma_f32_16x16x32_bf16 {r4(vD2)}, {r4(slot_of[f'{pre}{2*t+1}'])}, {r4(B)}, {c2}")
        return fn
    def red_a():
        for r in range(4):
            E(f"v_cndmask_b32 v{vD1+r}, v{vD2+r}, v{vD1+r}, s[{sLO8}:{sLO8+1}]")
        E(f"ds_write_b128 v{vRW}, {r4(vD1)} offset:{RED}")
    def t_bar():
        E("s_waitcnt lgkmcnt(0)")
        E("s_barrier")
    def red_b(dst, mid=None):
        E(f"ds_read_b128 {r4(dst)}, v{vRR} offset:{RED}")
        if mid: mid()
        E("s_waitcnt lgkmcnt(0)")
        row_reduce(E, [dst + i for i in range(4)])
        for i in range(4): E(f"v_cvt_pk_bf16_f32 v{dst+i}, v{dst+i}, v{dst+i}")
    def t_qr2():
        E(f"v_lshlrev_b32 v{vB1}, 6, v{vJ}")
        E(f"s_lshl_b32 s{sT0}, s{sW}, 1")
        E(f"v_add_u32 v{vB1}, s{sT0}, v{vB1}")
        red_b(vB0)
        E(f"s_mov_b32 exec_lo, 0x00010001")
        E(f"s_mov_b32 exec_hi, 0x00010001")
        for i in range(4): E(f"ds_write_b16 v{vB1}, v{vB0+i} offset:{QF+16*i}")
        E("s_mov_b64 exec, -1")
        E(f"v_lshlrev_b32 v{vB1}, 4, v{vN}")
    def t_qr3():
        E(f"ds_read_b128 {r4(vQ)}, v{vB1} offset:{QF}")
        E("s_waitcnt lgkmcnt(0)")
        stamp(2)
    def t_k2(t):
        def fn():
            ks = [slot_of[f"k{2*t+i}"] for i in range(4)]
            acc = [vB0 + i for i in range(4)]
            for i in range(4):
                for u in range(4):
                    E(f"v_dot2_f32_bf16 v{acc[u]}, v{ks[u]+i}, v{vQ+i}, {'0' if i == 0 else 'v%d' % acc[u]}")
            s0, s1 = vS + t, vS + t + 1
            E(f"v_add_f32_dpp v{s0}, v{acc[0]}, v{acc[0]} row_ror:8 row_mask:0xf bank_mask:0x3")
            E(f"v_add_f32_dpp v{s0}, v{acc[1]}, v{acc[1]} row_ror:8 row_mask:0xf bank_mask:0xc")
            E(f"v_add_f32_dpp v{s1}, v{acc[2]}, v{acc[2]} row_ror:8 row_mask:0xf bank_mask:0x3")
            E(f"v_add_f32_dpp v{s1}, v{acc[3]}, v{acc[3]} row_ror:8 row_mask:0xf bank_mask:0xc")
            for mod in ("row_half_mirror", "quad_perm:[1,0,3,2]", "quad_perm:[2,3,0,1]"):
                for s in (s0, s1):
                    E(f"v_add_f32_dpp v{s}, v{s}, v{s} {mod} row_mask:0xf bank_mask:0xf")
            bf16r_many(E, [s0, s1])
            E(f"v_mul_f32 v{s0}, {SCALE:#x}, v{s0}")
            E(f"v_mul_f32 v{s1}, {SCALE:#x}, v{s1}")
            bf16r_many(E, [s0, s1])
        return fn
    m, l = vD1, vD1 + 1
    def t_sm1():
        E(f"v_max3_f32 v{m}, v{vS}, v{vS+1}, v{vS+2}")
        for i in range(3, 15, 2): E(f"v_max3_f32 v{m}, v{m}, v{vS+i}, v{vS+i+1}")
        E(f"v_max_f32 v{m}, v{m}, v{vS+15}")
        for i in range(16): E(f"v_sub_f32 v{vS+i}, v{vS+i}, v{m}")
        for i in range(16): E(f"v_mul_f32 v{vS+i}, {LOG2E:#x}, v{vS+i}")
        for i in range(16): E(f"v_exp_f32 v{vS+i}, v{vS+i}")
        E(f"v_add_f32 v{l}, v{vS}, v{vS+1}")
        E(f"v_add_f32 v{vB0}, v{vS+2}, v{vS+3}")
        for i in range(4, 16, 2):
            E(f"v_add_f32 v{l}, v{l}, v{vS+i}")
            E(f"v_add_f32 v{vB0}, v{vB0}, v{vS+i+1}")
        E(f"v_add_f32 v{l}, v{l}, v{vB0}")
        E(f"v_and_b32 v{vB0}, 56, v{vL}")
        E(f"s_lshl_b32 s{sT0}, s{sW}, 6")
        E(f"v_add_u32 v{vB0}, s{sT0}, v{vB0}")
        E(f"ds_write_b64 v{vB0}, {r2(m)} offset:{ML}")
        E(f"v_lshlrev_b32 v{vB0}, 3, v{vL}")
        stamp(3)
    def t_smb():
        E("s_waitcnt lgkmcnt(0)")
        E("s_barrier")
        stamp(4)
    def t_sm2():
        mg, lg = vD2, vD2 + 1
        E(f"ds_read_b64 {r2(mg)}, v{vB0} offset:{ML}")
        E("s_waitcnt lgkmcnt(0)")
        E(f"v_mov_b32 v{vB0}, v{mg}")
        wave_reduce(E, vB0, sT0, "v_max_f32")
        E(f"v_subrev_f32 v{mg}, s{sT0}, v{mg}")
        E(f"v_subrev_f32 v{m}, s{sT0}, v{m}")
        E(f"v_mul_f32 v{mg}, {LOG2E:#x}, v{mg}")
        E(f"v_mul_f32 v{m}, {LOG2E:#x}, v{m}")
        E(f"v_exp_f32 v{mg}, v{mg}")
        E(f"v_exp_f32 v{m}, v{m}")
        E(f"v_mul_f32 v{lg}, v{lg}, v{mg}")
        wave_reduce(E, lg, sT1)
        E(f"v_rcp_f32 v{l}, s{sT1}")
        E(f"v_mul_f32 v{m}, v{m}, v{l}")
        for i in range(16): E(f"v_mul_f32 v{vS+i}, v{vS+i}, v{m}")
        for i in range(16): E(f"v_cvt_pk_bf16_f32 v{vS+i}, v{vS+i}, v{vS+i}")
    Bs = [vB0, vB1, vD1, vD2]
    vA, vA2, vA3 = vQ, vQ + 1, vQ + 2
    vFL2 = vD2 + 2
    vA4 = vQ + 3
    sVA = 22
    def t_pre_tail():
        E(f"v_and_b32 v{vA}, 7, v{vL}")
        E(f"v_mul_u32_u24 v{vA}, 80, v{vA}")
        E(f"v_lshl_add_u32 v{vA}, v{vJ}, 4, v{vA}")
        E(f"s_mul_i32 s{sT0}, s{sW}, {YPS}")
        E(f"v_add_u32 v{vA}, s{sT0}, v{vA}")
        for k, (dst, add) in enumerate(((vA2, 0), (vA3, 480))):
            E(f"s_mul_i32 s{sT0}, s{sW}, 60")
            E(f"s_add_u32 s{sT0}, s{sT0}, {add}")
            E(f"v_mul_u32_u24 v{vA4}, 15, v{vJ}")
            E(f"v_add3_u32 v{vA4}, v{vA4}, v{vN}, s{sT0}")
            if k == 1:
                E(f"s_mov_b32 s{sT1}, 640")
                E(f"v_cmp_gt_u32 s[{sVA}:{sVA+1}], s{sT1}, v{vA4}")
            E(f"v_min_u32 v{vA4}, 639, v{vA4}")
            E(f"v_lshrrev_b32 v{dst}, 7, v{vA4}")
            E(f"v_mul_u32_u24 v{dst}, 640, v{dst}")
            E(f"v_and_b32 v{vFL2}, 7, v{vA4}")
            E(f"v_mul_u32_u24 v{vFL2}, 80, v{vFL2}")
            E(f"v_add_u32 v{dst}, v{dst}, v{vFL2}")
            E(f"v_bfe_u32 v{vFL2}, v{vA4}, 3, 4")
            E(f"v_lshl_add_u32 v{dst}, v{vFL2}, 2, v{dst}")
        E(f"v_lshlrev_b32 v{vA4}, 2, v{vL}")
    def t_role():
        E(f"s_and_b32 s{sT0}, s2, 7")
        E(f"s_lshl_b32 s{sT0}, s{sT0}, 2")
        E(f"s_lshr_b32 s{sT0}, {a.rtab}, s{sT0}")
        E(f"s_and_b32 s{sT0}, s{sT0}, 15")
        if a.dyn: E(f"s_mov_b32 s{sT1}, s{sTKO}")
        else: E(f"s_lshr_b32 s{sT1}, s2, 3")
        E(f"s_mul_i32 s{sT2}, s{sT0}, 9")
        E(f"s_add_u32 s{sT2}, s{sT2}, s{sT1}")
        E(f"s_add_u32 s{sT2}, s{sT2}, {NF2}")
        E(f"s_cmp_lt_u32 s{sT1}, 9")
        E(f"s_cselect_b32 s{sT2}, s{sT2}, 255")
        E(f"s_sub_u32 s{sT3}, s{sT0}, 8")
        E(f"s_mul_i32 s{sT3}, s{sT3}, {8 // NC}")
        E(f"s_add_u32 s{sT3}, s{sT3}, s{sT1}")
        E(f"s_cmp_lt_u32 s{sT1}, {8 // NC}")
        E(f"s_cselect_b32 s{sT3}, s{sT3}, 255")
        E(f"s_cmp_lt_u32 s{sT0}, 8")
        E(f"s_cselect_b32 s{sTILE}, s{sT2}, s{sT3}")
    def t_flag():
        E(f"v_cmp_eq_u32 vcc, 0, v{vFL}")
        E.flush()
        E("s_cbranch_vccz L_flagok")
        E.label("L_flag")
        E("s_sleep 2")
        E(f"v_and_b32 v{vFL}, 7, v{vL}")
        E(f"v_lshlrev_b32 v{vFL}, 2, v{vFL}")
        E(f"buffer_load_dword v{vFL}, v{vFL}, {S4(sDB)}, 0 offen sc1", tag="extra")
        E("s_waitcnt vmcnt(0)")
        E(f"v_cmp_eq_u32 vcc, 0, v{vFL}")
        E.flush()
        E("s_cbranch_vccz L_flagok")
        spin("L_flagok")
        E("s_branch L_flag")
        E.label("L_flagok")
    sDO, sDL = 21, 24
    vDM1 = vFL
    def t_dmaprep():
        tmp = alloc("tmpd")
        E(f"s_mov_b32 s{sWF}, s16")
        E(f"s_and_b32 s{sWF+1}, s17, 0xffff")
        E(f"s_mov_b32 s{sWF+2}, {640*3456}")
        E(f"s_mov_b32 s{sWF+3}, 0x20000")
        E(f"v_lshrrev_b32 v{vDM1}, 3, v{vL}")
        E(f"v_mul_u32_u24 v{vDM1}, 3456, v{vDM1}")
        E(f"v_and_b32 v{tmp}, 1, v{vJ}")
        E(f"v_lshlrev_b32 v{tmp}, 2, v{tmp}")
        E(f"s_and_b32 s{sT0}, s{sW}, 1")
        E(f"s_lshl_b32 s{sT1}, s{sT0}, 1")
        E(f"v_xor_b32 v{tmp}, s{sT1}, v{tmp}")
        E(f"v_xor_b32 v{tmp}, v{vL}, v{tmp}")
        E(f"v_and_b32 v{tmp}, 7, v{tmp}")
        E(f"v_lshl_add_u32 v{vDM1}, v{tmp}, 4, v{vDM1}")
        E(f"s_lshr_b32 s{sT1}, s{sW}, 1")
        E(f"s_mul_i32 s{sT1}, s{sT1}, 15")
        E(f"s_lshl_b32 s{sT0}, s{sT0}, 3")
        E(f"s_add_u32 s{sT1}, s{sT1}, s{sT0}")
        E(f"s_mul_i32 s{sT1}, s{sT1}, 3456")
        E(f"s_mov_b32 s{sDO}, s{sT1}")
        E(f"s_lshl_b32 s{sDL}, s{sW}, 10")
        E(f"s_add_u32 s{sDL}, s{sDL}, {WT}")
    def t_ypw():
        stamp(7)
        E(f"s_mov_b64 exec, s[{sLO8}:{sLO8+1}]")
        for cg in range(5):
            if a.orot: E(f"ds_write_b128 v{ypa(cg)}, {r4(slot_of[f'y{cg}'])} offset:{YP}")
            else: E(f"ds_write_b128 v{vA}, {r4(slot_of[f'y{cg}'])} offset:{YP+cg*640}")
        E("s_mov_b64 exec, -1")
    def ypa(cg): return vA if cg == 4 else slot_of["ya"] + cg
    def t_ypaddr():
        alloc("ya")
        E(f"s_mul_i32 s{sT0}, s{sB}, 5")
        E(f"s_lshr_b32 s{sT0}, s{sT0}, 3")
        E(f"s_mul_i32 s{sT0}, s{sT0}, 640")
        for cg in range(5):
            E(f"v_add_u32 v{ypa(cg)}, s{sT0}, v{vA}")
            if cg < 4:
                E(f"s_add_u32 s{sT0}, s{sT0}, 640")
                E(f"s_cmp_ge_u32 s{sT0}, 3200")
                E(f"s_cselect_b32 s{sT0}, 0, s{sT0}")
    def t_or1():
        stamp(5)
        if a.dyn == 2:
            E("s_waitcnt lgkmcnt(0)")
            E(f"v_mov_b32 v{slot_of['tk']}, s{sTKO}")
        red_a()
        if a.dyn:
            E(f"s_cmp_eq_u32 s{sW}, 0")
            E("s_cselect_b32 exec_lo, 1, 0")
            E("s_mov_b32 exec_hi, 0")
            E(f"ds_write_b32 v{slot_of['tk']+1}, v{slot_of['tk']}")
            E("s_mov_b64 exec, -1")
        t_bar()
        stamp(6)
    def t_or2():
        if a.dyn: E(f"ds_read_b32 v{slot_of['tk']}, v{slot_of['tk']+1}")
        red_b(vS, epf()[1] if (a.endpf and a.epos == -2) else None)
        bfrag(Bs[0], vS)
        for cg in range(5): alloc(f"y{cg}")
    def t_y(f):
        def fn():
            fp, cg = divmod(f, 5) if not a.orot else (f % 4, f // 4)
            y = slot_of[f"y{cg}"]
            c = "0" if fp == 0 else r4(y)
            E(f"v_mfma_f32_16x16x32_bf16 {r4(y)}, {r4(slot_of[f'wo{f}'])}, {r4(Bs[fp])}, {c}")
            if fp < 3 and cg < 4: E(f"v_and_b32 v{Bs[fp+1]+cg}, v{vS+fp+1}, v{vM+cg}")
            if a.dyn and f == 4: E(f"v_readfirstlane_b32 s{sTKO}, v{slot_of['tk']}")
            if a.dyn and f == 9: t_role()
        return fn
    tasks = []
    if a.init0: tasks.append(Task(t_init, atomic=True))
    tasks.append(Task(t_setup))
    tasks.append(Task(t_ln1a, ["xs"], cost=3))
    tasks.append(Task(t_ln1b, [] if a.qp2 else ["xc"], cost=2))
    for t in range(10):
        tasks.append(Task(t_pair(t, "wq"), [f"wq{2*t+1}"], frees=[f"wq{2*t}", f"wq{2*t+1}"]))
        if t == 1 and not a.init0: tasks.append(Task(t_init, atomic=True))
        if t == 5: tasks.append(Task(t_flagset, ["wq11"], frees=["z0", "z1", "z2", "z3"], atomic=True))
        if t == a.l2pf and not a.spf and not a.nodma: tasks.append(Task(t_l2pf, atomic=True))
        if a.spf and a.nodma < 2 and a.endpf != 3:
            if t == 0: tasks.append(Task(t_spf0, atomic=True))
            if t in (2, 4, 6): tasks.append(Task(t_spf(t // 2 - 1), atomic=True))
    tasks.append(Task(red_a))
    tasks.append(Task(t_bar, barrier=a.bd1))
    tasks.append(Task(t_qr2))
    tasks.append(Task(t_bar, barrier=a.bd2))
    tasks.append(Task(t_qr3))
    for t in range(0, 16, 2):
        tasks.append(Task(t_k2(t), [f"k{2*t+3}"], frees=[f"k{2*t+i}" for i in range(4)], cost=2))
    tasks.append(Task(t_sm1, cost=2))
    tasks.append(Task(t_smb, barrier=a.bd3))
    tasks.append(Task(t_sm2, cost=2))
    tasks.append(Task(t_pre_tail))
    if not a.dyn: tasks.append(Task(t_role, atomic=True))
    if a.endpf: tasks.append(Task(t_epf_prep, atomic=True))
    for t in range(16):
        tasks.append(Task(t_pair(t, "v"), [f"v{2*t+1}"], frees=[f"v{2*t}", f"v{2*t+1}"], cost=0.5))
        if t == 9:
            if not a.noflag: tasks.append(Task(t_flag, ["flag"], atomic=True))
            tasks.append(Task(t_dmaprep, frees=["tmpd"]))
            if a.orot: tasks.append(Task(t_ypaddr, atomic=True))
    tasks.append(Task(t_or1, barrier=99))
    tasks.append(Task(t_or2))
    yorder = range(20) if not a.orot else [4 * cg + fp for fp in range(4) for cg in range(4)] + [16, 17, 18, 19]
    for f in yorder: tasks.append(Task(t_y(f), [f"wo{f}"], cost=0.25))
    tasks.append(Task(t_ypw))

    issued = {"xs", "xc"} | {f"k{f}" for f in range(a.nk0)}
    pend = deque(tasks)
    def ready(t): return all(n in issued and n not in E.vm for n in t.needs)
    def start(t):
        if t.q is None:
            for n in t.needs:
                assert n in issued, n
                if n in E.vm: E.wait_vm(n)
            t.q = E.record(t.fn)
    def step(t, budget):
        start(t)
        n = 0
        masked = False
        while t.q and (t.atomic or masked or n < budget):
            it = t.q.popleft(); E.play(it); n += 1
            if it[0] == "i" and "exec" in it[1].split(",")[0]:
                masked = not it[1].endswith("exec, -1")
        if not t.q:
            for x in t.frees: release(x)
        return n
    def run(t):
        step(t, 10**9)
    D = a.depth
    for i, (tag, fn, needs_slot) in enumerate(loads):
        while needs_slot and not free:
            run(pend.popleft())
        if tag == "epf":
            while any(t.fn is t_epf_prep for t in pend): run(pend.popleft())
            while pend[0].q is not None: run(pend.popleft())
        if tag == "tk":
            while pend[0].q is not None: run(pend.popleft())
        lim = 63 if i < a.first else D
        if len(E.vm) >= lim:
            E(f"s_waitcnt vmcnt({lim-1})")
            E.vm = E.vm[len(E.vm) - (lim - 1):]
        fn(); issued.add(tag)
        if i + 1 < a.first: continue
        budget = a.budget
        while pend and budget > 0 and (pend[0].q is not None or ready(pend[0])):
            if pend[0].barrier > 0:
                pend[0].barrier -= 1
                break
            budget -= step(pend[0], budget)
            if not pend[0].q: pend.popleft()
    while pend: run(pend.popleft())
    assert set(E.vm) <= {"epf"}, E.vm
    E.vm = []
    E(f"s_mul_i32 s{sT0}, s{sB}, {HS}")
    E(f"s_lshl_b32 s{sT1}, s{sW}, 8")
    E(f"s_add_u32 s{sT0}, s{sT0}, s{sT1}")
    E(f"s_mov_b32 s{sT2}, 0x80008000")
    E(f"s_mov_b32 s{sT3}, 0x80008000")
    E("s_waitcnt lgkmcnt(0)")
    E("s_barrier")
    stamp(8)
    vP = vS
    for k, ad in enumerate((vA2, vA3)):
        for p in range(4):
            E(f"ds_read2st64_b32 {r2(vP+8*k+2*p)}, v{ad} offset0:{YP//256+26*p} offset1:{YP//256+26*p+13}")
    for k in range(2):
        b = vP + 8 * k
        if not a.ts: E(f"s_waitcnt lgkmcnt({4 if k == 0 else 0})")
        else: E("s_waitcnt lgkmcnt(0)")
        for st in (4, 2, 1):
            for p in range(st):
                E(f"v_add_f32 v{b+p}, v{b+p}, v{b+p+st}")
        if k == 1: E(f"v_cndmask_b32 v{b}, 0, v{b}, s[{sVA}:{sVA+1}]")
        E(f"v_cndmask_b32 v{b}, v{b}, 1.0, s[{sT2}:{sT3}]")
        if k == 1:
            E(f"s_cmp_ge_u32 s{sW}, 3")
            E("s_cbranch_scc1 L_arr")
        E(f"buffer_atomic_add_f32 v{b}, v{vA4}, {S4(sWS)}, s{sT0} offen offset:{2048*k}", tag="extra")
    E.label("L_arr")
    stamp(9)
    if a.endpf and a.epos == -1: epf()[1]()
    if a.hyb:
        E(f"s_cmp_lg_u32 s{sEM}, 1")
        E("s_cbranch_scc1 L_nohyb")
        E(f"s_mov_b32 s{sEM}, {(1 << 14) - 1}")
        epf()[1]()
        E.label("L_nohyb")
    if a.endpf: assert not (128 <= slot_of["epf"] - vF + 3 < 172), slot_of["epf"]
    E(f"s_cmp_ge_u32 s{sTILE}, {NF2 + NF1}")
    E("s_cbranch_scc1 L_fin")
    E(f"s_mov_b32 s{sWF+2}, {640*3456}")
    E(f"s_mov_b32 s{sWF+3}, 0x20000")
    E(f"s_cmp_lt_u32 s{sTILE}, {NF2}")
    E("s_cbranch_scc1 L_ffn2")

    vW = vF
    E(f"s_mov_b32 s{sROLE}, 1")
    E(f"s_sub_u32 s{sTILE}, s{sTILE}, {NF2}")
    E(f"s_mov_b32 s{sWF}, s16")
    E(f"s_and_b32 s{sWF+1}, s17, 0xffff")
    vDM, vX0 = vB0, vB0 + 1
    E(f"s_lshl_b32 s{sT0}, s{sTILE}, 7")
    E(f"s_add_u32 s{sDO}, s{sDO}, s{sT0}")
    xq = [vF + 172, vF + 174, vF + 176]
    if a.endpf: assert not (172 <= slot_of["epf"] - vF + 3 < 180)
    E(f"v_lshrrev_b32 v{vX0}, 2, v{vL}")
    E(f"v_mul_u32_u24 v{vX0}, 30, v{vX0}")
    E(f"v_and_b32 v{vX0+1}, 3, v{vL}")
    E(f"v_lshl_add_u32 v{vX0}, v{vX0+1}, 3, v{vX0}")
    E(f"s_mul_i32 s{sT0}, s{sW}, 1280")
    for i in range(3):
        E(f"buffer_load_dwordx2 {r2(xq[i])}, v{vX0}, {S4(sX)}, s{sT0} offen offset:{480*i}", tag="extra")
    if a.abar: E("s_barrier")
    stamp(10)
    late = True
    for t in range(11 if not a.nodma else 0):
        E(f"s_mov_b32 m0, s{sDL}")
        E(f"buffer_load_dwordx4 v{vDM1}, {S4(sWF)}, s{sDO} offen{fnt} lds", tag="extra")
        if t < 10:
            E(f"s_add_u32 s{sDO}, s{sDO}, {60*3456}")
            E(f"s_add_u32 s{sDL}, s{sDL}, 8192")
    if a.ts == 2: stamp(1)
    thr = struct.unpack("<I", struct.pack("<f", float(a.gate)))[0]
    if a.spec == 2:
        E(f"s_mul_i32 s{sT2}, s{sW}, {HS}")
        E(f"s_mul_i32 s{sT4}, s{sTILE}, {a.gstep}")
        E(f"s_and_b32 s{sT4}, s{sT4}, 0xffffffc0")
        E(f"s_add_u32 s{sT4}, s{sT4}, s{sT2}")
        E(f"buffer_load_dword v{vD2}, off, {S4(sWS)}, s{sT4} offset:60 sc1", tag="extra")
    hb = vF + 88
    ac = vF + 136
    xk = vF + 148
    hn = vF + 160
    for i in range(12): E(f"v_mov_b32 v{hn+i}, 0")
    for i in range(8, 11): E(f"v_mov_b32 v{ac+i}, 0")
    E(f"v_mov_b32 v{ac+11}, 0x42000000")
    sets2 = [vF + 180, vF + 192]
    if a.pp2:
        assert not (180 <= slot_of["epf"] - vF + 3 < 204)
        for b_ in sets2:
            for i in range(8, 11): E(f"v_mov_b32 v{b_+i}, 0")
            E(f"v_mov_b32 v{b_+11}, 0x42000000")
    vA = vB1
    E(f"v_lshlrev_b32 v{vA+2}, 3, v{vL}")
    E(f"s_mul_i32 s{sT1}, s{sW}, {HNS}")
    E(f"v_add_u32 v{vA+2}, s{sT1}, v{vA+2}")
    vTR1 = vQ
    E(f"v_lshlrev_b32 v{vTR1}, 10, v{vJ}")
    E(f"v_lshrrev_b32 v{vDM}, 2, v{vN}")
    E(f"v_lshl_add_u32 v{vTR1}, v{vDM}, 7, v{vTR1}")
    E(f"v_and_b32 v{vDM}, 2, v{vDM}")
    E(f"v_and_b32 v{vX0}, 1, v{vJ}")
    E(f"v_or_b32 v{vDM}, v{vDM}, v{vX0}")
    E(f"s_and_b32 s{sT0}, s{sW}, 3")
    E(f"v_xor_b32 v{vDM}, s{sT0}, v{vDM}")
    E(f"v_lshl_add_u32 v{vTR1}, v{vDM}, 5, v{vTR1}")
    E(f"v_and_b32 v{vDM}, 3, v{vN}")
    E(f"v_lshl_add_u32 v{vTR1}, v{vDM}, 3, v{vTR1}")
    E(f"v_add_u32 v{vTR1}, {WT}, v{vTR1}")
    E(f"v_add_u32 v{vTR1+1}, {11*4096}, v{vTR1}")
    E(f"v_and_b32 v{vA+3}, 7, v{vL}")
    E(f"v_mul_u32_u24 v{vA+3}, {HNS}, v{vA+3}")
    E(f"v_lshl_add_u32 v{vA+3}, v{vJ}, 4, v{vA+3}")
    E(f"v_lshrrev_b32 v{vDM}, 3, v{vN}")
    E(f"v_lshl_add_u32 v{vA+3}, v{vDM}, 6, v{vA+3}")
    E(f"v_lshlrev_b32 v{vA}, 5, v{vN}")
    E(f"v_lshl_add_u32 v{vA}, v{vJ}, 3, v{vA}")
    E(f"s_lshl_b32 s{sT3}, s{sTILE}, 2")
    E(f"s_add_u32 s{sT3}, s{sT3}, s{sW}")
    E(f"s_lshl_b32 s{sT3}, s{sT3}, 8")
    E(f"s_mul_i32 s{sT2}, s{sW}, {HS}")
    sM3, sCL = 12, 14
    E(f"s_mov_b32 s{sM3}, 0x77777777")
    E(f"s_mov_b32 s{sM3+1}, 0x77777777")
    E(f"s_mov_b32 s{sCL}, 0x88888888")
    E(f"s_mov_b32 s{sCL+1}, 0x88888888")
    def accload(ac=ac):
        E(f"buffer_load_dwordx4 {r4(ac)}, v{vL16}, {S4(sWS)}, s{sT2} offen sc1", tag="extra")
        E(f"buffer_load_dwordx4 {r4(ac+4)}, v{vL16}, {S4(sWS)}, s{sT2} offen offset:1024 sc1", tag="extra")
        E("s_mov_b32 exec_hi, 0xffff")
        E(f"buffer_load_dwordx4 {r4(ac+8)}, v{vL16}, {S4(sWS)}, s{sT2} offen offset:2048 sc1", tag="extra")
        E("s_mov_b32 exec_hi, -1")
    if a.ts == 2: stamp(2)
    E("s_waitcnt vmcnt(%d)" % (12 if a.spec == 2 and not a.nodma else 0))
    if a.ts == 2: stamp(3)
    for i in range(6):
        E(f"v_lshlrev_b32 v{xk+2*i}, 16, v{xq[i//2]+i%2}")
        E(f"v_and_b32 v{xk+2*i+1}, 0xffff0000, v{xq[i//2]+i%2}")
    sLO_, sHI_, sONE = 20, 21, 24
    vNI, vKM = hn + 6, hn + 7
    if a.ln2:
        E(f"s_mov_b32 s{sLO_}, 0x00003f80")
        E(f"s_mov_b32 s{sHI_}, 0x3f800000")
        E(f"s_mov_b32 s{sONE}, 0x3f803f80")
        E(f"v_mov_b32 v{vNI}, 0xbacccccd")
        E(f"v_mov_b32 v{vKM}, -1")
        E(f"v_mov_b32 v{vKM+1}, -1")
        E(f"v_mov_b32 v{vKM+2}, -1")
        E("s_mov_b32 exec_lo, 0")
        E(f"s_mov_b32 exec_hi, {0xffffffff ^ ((1 << 11) - 1):#x}")
        E(f"v_mov_b32 v{xk+8}, 0"); E(f"v_mov_b32 v{xk+9}, 0"); E(f"v_mov_b32 v{vKM+1}, 0")
        E(f"s_mov_b32 exec_hi, {0xffffffff ^ ((1 << 10) - 1):#x}")
        E(f"v_mov_b32 v{xk+10}, 0"); E(f"v_mov_b32 v{xk+11}, 0"); E(f"v_mov_b32 v{vKM+2}, 0")
        E(f"s_mov_b64 exec, s[{sCL}:{sCL+1}]")
        for i in (3, 7, 11): E(f"v_mov_b32 v{xk+i}, 0xc2000000")
        E(f"v_mov_b32 v{vKM}, 0xffff")
        E(f"v_and_b32 v{vKM+2}, 0xffff, v{vKM+2}")
        E("s_mov_b32 exec_lo, 0")
        E("s_mov_b32 exec_hi, 0xffff0000")
        E(f"v_mov_b32 v{xk+11}, 0xc2000000")
        E("s_mov_b64 exec, -1")
    if a.spec == 2:
        sSP = 25
        E("s_waitcnt vmcnt(0)")
        E(f"v_readfirstlane_b32 s{sSP}, v{vD2}")
        E(f"s_cmp_ge_u32 s{sSP}, {thr:#x}")
        E("s_cbranch_scc1 L_f1_sp")
        E(f"buffer_load_dword v{vD2}, off, {S4(sWS)}, s{sT4} offset:60 sc1", tag="extra")
        E("s_branch L_f1_sp2")
        E.label("L_f1_sp")
        accload()
        E.label("L_f1_sp2")
        E("s_barrier")
    else:
        E("s_barrier")
        if a.ts == 2: stamp(4)
        E(f"s_mul_i32 s{sT4}, s{sTILE}, {a.gstep}")
        E(f"s_and_b32 s{sT4}, s{sT4}, 0xffffffc0")
        E(f"s_add_u32 s{sT4}, s{sT4}, s{sT2}")
        if a.spec: accload()
        else: E(f"buffer_load_dword v{vD2}, off, {S4(sWS)}, s{sT4} offset:60 sc1", tag="extra")
    E(f"s_cmp_ge_u32 s{sW}, 4")
    E("s_cbranch_scc1 L_f1_notr")
    for t in range(22):
        o = (t % 11) * 4096
        E(f"ds_read_b64_tr_b16 {r2(vW+4*t)}, v{vTR1 + t//11} offset:{o}")
        E(f"ds_read_b64_tr_b16 {r2(vW+4*t+2)}, v{vTR1 + t//11} offset:{o+512}")
    stamp(11)
    E.label("L_f1_notr")
    if not a.spec: E("s_branch L_f1_gate")
    if a.spec == 2:
        E(f"s_cmp_lt_u32 s{sSP}, {thr:#x}")
        E("s_cbranch_scc1 L_f1_gate")
    if a.pp2:
        assert a.ln2 and not a.spec
        E.label("L_f1_regate")
        if a.sleep: E(f"s_sleep {a.sleep}")
        E(f"buffer_load_dword v{vD2}, off, {S4(sWS)}, s{sT4} offset:60 sc1", tag="extra")
        E.label("L_f1_gate")
        E("s_waitcnt vmcnt(0)")
        E(f"v_readfirstlane_b32 s{sT0}, v{vD2}")
        E(f"s_cmp_ge_u32 s{sT0}, {thr:#x}")
        E("s_cbranch_scc1 L_f1_full")
        spin("L_f1_full")
        E("s_branch L_f1_regate")
        E.label("L_f1_full")
        accload(sets2[0])
        E(f"s_cmp_ge_u32 s{sT0}, 0x42000000")
        E("s_cbranch_scc0 L_f1_two")
        E("s_waitcnt vmcnt(0)")
        E(f"v_min3_f32 v{vD1}, v{sets2[0]+3}, v{sets2[0]+7}, v{sets2[0]+11}")
        E(f"v_cmp_gt_f32 vcc, 0x42000000, v{vD1}")
        E(f"s_and_b64 vcc, vcc, s[{sCL}:{sCL+1}]")
        E("s_cbranch_scc0 L_f1_got0")
        accload(sets2[0])
        E.label("L_f1_two")
        E(f"s_sleep {a.pp2}")
        accload(sets2[1])
        E.label("L_f1_poll")
        for k in range(2):
            E("s_waitcnt vmcnt(3)")
            E(f"v_min3_f32 v{vD1}, v{sets2[k]+3}, v{sets2[k]+7}, v{sets2[k]+11}")
            E(f"v_cmp_gt_f32 vcc, 0x42000000, v{vD1}")
            E(f"s_and_b64 vcc, vcc, s[{sCL}:{sCL+1}]")
            E(f"s_cbranch_scc0 L_f1_got{k}")
            accload(sets2[k])
        spin("L_f1_got0")
        E("s_branch L_f1_poll")
        E.label("L_f1_got1")
        for i in range(6): E(f"v_cvt_pk_bf16_f32 v{hn+i}, v{sets2[1]+2*i}, v{sets2[1]+2*i+1}")
        E("s_branch L_f1_go")
        E.label("L_f1_got0")
        for i in range(6): E(f"v_cvt_pk_bf16_f32 v{hn+i}, v{sets2[0]+2*i}, v{sets2[0]+2*i+1}")
    else:
        E.label("L_f1_poll")
        E("s_waitcnt vmcnt(0)")
        E(f"v_min3_f32 v{vD1}, v{ac+3}, v{ac+7}, v{ac+11}")
        E(f"v_cmp_gt_f32 vcc, 0x42000000, v{vD1}")
        E(f"s_and_b64 vcc, vcc, s[{sCL}:{sCL+1}]")
        E("s_cbranch_scc0 L_f1_go")
        spin("L_f1_go")
        E(f"v_readlane_b32 s{sT0}, v{ac+3}, 3")
        E(f"s_cmp_ge_u32 s{sT0}, {thr:#x}")
        E("s_cbranch_scc1 L_f1_full")
        E.label("L_f1_regate")
        if a.sleep: E(f"s_sleep {a.sleep}")
        E(f"buffer_load_dword v{vD2}, off, {S4(sWS)}, s{sT4} offset:60 sc1", tag="extra")
        E.label("L_f1_gate")
        E("s_waitcnt vmcnt(0)")
        E(f"v_readfirstlane_b32 s{sT0}, v{vD2}")
        E(f"s_cmp_ge_u32 s{sT0}, {thr:#x}")
        E("s_cbranch_scc1 L_f1_full")
        spin("L_f1_full")
        E("s_branch L_f1_regate")
        E.label("L_f1_full")
        accload()
        E("s_branch L_f1_poll")
    E.label("L_f1_go")
    if a.tprio: E("s_setprio 2")
    stamp(12)
    t0_, t1_, t2_, vMN, vRC = vD1, vD1 + 1, vD1 + 2, vD2, vD2 + 1
    if a.ln2 == 0:
        hx = ac
        bf16r_many(E, range(ac, ac + 12))
        for i in range(12): E(f"v_add_f32 v{hx+i}, v{xk+i}, v{ac+i}")
        bf16r_many(E, range(hx, hx + 12))
        full = [0, 1, 2, 4, 5, 6]
        def masked(fn):
            for i in full: fn(i)
            E(f"s_mov_b32 exec_hi, {(1 << 11) - 1:#x}")
            fn(8); fn(9)
            E(f"s_mov_b32 exec_hi, {(1 << 10) - 1:#x}")
            fn(10)
            E(f"s_and_b64 exec, exec, s[{sM3}:{sM3+1}]")
            fn(11)
            E(f"s_mov_b64 exec, s[{sM3}:{sM3+1}]")
            fn(3); fn(7)
            E("s_mov_b64 exec, -1")
        t0_, t1_, t2_, vMN, vRC = vD1, vD1 + 1, vD1 + 2, vD2, vD2 + 1
        def f_sum(i):
            if i == 0: E(f"v_add_f32 v{t0_}, v{hx}, v{hx+1}")
            elif i == 1: pass
            elif i == 2: E(f"v_add_f32 v{t1_}, v{hx+2}, v{hx+4}")
            elif i == 4: pass
            else:
                d = t0_ if i % 2 else t1_
                E(f"v_add_f32 v{d}, v{d}, v{hx+i}")
        masked(f_sum)
        E(f"v_add_f32 v{t0_}, v{t0_}, v{t1_}")
        E(f"v_mov_b32 v{t2_}, 0x3acccccd")
        wave_reduce(E, t0_, sT0)
        E(f"v_mul_f32 v{vMN}, s{sT0}, v{t2_}")
        for i in range(12): E(f"v_sub_f32 v{xk+i}, v{hx+i}, v{vMN}")
        def f_var(i):
            if i == 0: E(f"v_mul_f32 v{t0_}, v{xk}, v{xk}")
            elif i == 1: E(f"v_mul_f32 v{t1_}, v{xk+1}, v{xk+1}")
            else:
                d = t0_ if i % 2 == 0 else t1_
                E(f"v_fmac_f32 v{d}, v{xk+i}, v{xk+i}")
        masked(f_var)
        E(f"v_add_f32 v{t0_}, v{t0_}, v{t1_}")
        bf16r(E, vMN, vMN)
        row_reduce(E, [t0_])
        for i in range(6): E(f"v_sub_f32 v{hx+i}, v{hx+i}, v{vMN}")
        E(f"v_add_f32_dpp v{t0_}, v{t0_}, v{t0_} row_bcast:15 row_mask:0xa bank_mask:0xf")
        for i in range(6, 12): E(f"v_sub_f32 v{hx+i}, v{hx+i}, v{vMN}")
        E(f"v_add_f32_dpp v{t0_}, v{t0_}, v{t0_} row_bcast:31 row_mask:0xc bank_mask:0xf")
        bf16r_many(E, range(hx, hx + 4))
        E(f"v_readlane_b32 s{sT0}, v{t0_}, 63")
        bf16r_many(E, range(hx + 4, hx + 8))
        E(f"v_mul_f32 v{t0_}, s{sT0}, v{t2_}")
        bf16r(E, t0_, t0_)
        E(f"v_add_f32 v{t0_}, 0x3727c5ac, v{t0_}")
        bf16r(E, t0_, t0_)
        E(f"v_sqrt_f32 v{t0_}, v{t0_}")
        bf16r_many(E, range(hx + 8, hx + 12))
        bf16r(E, t0_, t0_)
        E(f"v_rcp_f32 v{vRC}, v{t0_}")
        masked(lambda i: E(f"v_mul_f32 v{hn+i}, v{hx+i}, v{vRC}"))
        for i in range(6): E(f"v_cvt_pk_bf16_f32 v{xk+i}, v{hn+2*i}, v{hn+2*i+1}")
    else:
        pk = hn
        sel = (sLO_, sHI_)
        if not a.pp2:
            for i in range(6): E(f"v_cvt_pk_bf16_f32 v{pk+i}, v{ac+2*i}, v{ac+2*i+1}")
        for i in range(12): E(f"v_dot2_f32_bf16 v{ac+i}, v{pk+i//2}, s{sel[i%2]}, v{xk+i}")
        for i in range(6): E(f"v_cvt_pk_bf16_f32 v{pk+i}, v{ac+2*i}, v{ac+2*i+1}")
        for i in range(6):
            d = t0_ if i % 2 == 0 else t1_
            E(f"v_dot2_f32_bf16 v{d}, v{pk+i}, s{sONE}, {'0' if i < 2 else 'v%d' % d}")
        fill = []
        for i in range(6):
            fill.append(f"v_lshlrev_b32 v{xk+2*i}, 16, v{pk+i}")
            fill.append(f"v_and_b32 v{xk+2*i+1}, 0xffff0000, v{pk+i}")
        chain = [f"v_add_f32 v{t0_}, v{t0_}, v{t1_}"]
        chain += [f"v_add_f32_dpp v{t0_}, v{t0_}, v{t0_} row_ror:{sh} row_mask:0xf bank_mask:0xf" for sh in (8, 4, 2, 1)]
        chain += [f"v_add_f32_dpp v{t0_}, v{t0_}, v{t0_} row_bcast:15 row_mask:0xa bank_mask:0xf",
                  f"v_add_f32_dpp v{t0_}, v{t0_}, v{t0_} row_bcast:31 row_mask:0xc bank_mask:0xf",
                  f"v_readlane_b32 s{sT0}, v{t0_}, 63"]
        for c in chain:
            for _ in range(2):
                if fill: E(fill.pop(0))
            E(c)
        E(f"v_mul_f32 v{vMN}, s{sT0}, v{vNI}")
        for i in range(12): E(f"v_add_f32 v{ac+i}, v{xk+i}, v{vMN}")
        full = [0, 1, 2, 4, 5, 6]
        def masked(fn):
            for i in full: fn(i)
            E(f"s_mov_b32 exec_hi, {(1 << 11) - 1:#x}")
            fn(8); fn(9)
            E(f"s_mov_b32 exec_hi, {(1 << 10) - 1:#x}")
            fn(10)
            E(f"s_and_b64 exec, exec, s[{sM3}:{sM3+1}]")
            fn(11)
            E(f"s_mov_b64 exec, s[{sM3}:{sM3+1}]")
            fn(3); fn(7)
            E("s_mov_b64 exec, -1")
        def f_var(i):
            if i == 0: E(f"v_mul_f32 v{t0_}, v{ac}, v{ac}")
            elif i == 1: E(f"v_mul_f32 v{t1_}, v{ac+1}, v{ac+1}")
            else:
                d = t0_ if i % 2 == 0 else t1_
                E(f"v_fmac_f32 v{d}, v{ac+i}, v{ac+i}")
        masked(f_var)
        E(f"v_add_f32 v{t0_}, v{t0_}, v{t1_}")
        bf16r(E, vMN, vMN)
        fill = [f"v_add_f32 v{ac+i}, v{xk+i}, v{vMN}" for i in range(12)]
        fill += [f"v_cvt_pk_bf16_f32 v{pk+i}, v{ac+2*i}, v{ac+2*i+1}" for i in range(6)]
        for i in (1, 3, 4, 5): fill.append(f"v_and_b32 v{pk+i}, v{pk+i}, v{vKM + (0 if i < 4 else i - 3)}")
        for i in range(6):
            fill.append(f"v_lshlrev_b32 v{ac+2*i}, 16, v{pk+i}")
            fill.append(f"v_and_b32 v{ac+2*i+1}, 0xffff0000, v{pk+i}")
        chain = [f"v_add_f32_dpp v{t0_}, v{t0_}, v{t0_} row_ror:{sh} row_mask:0xf bank_mask:0xf" for sh in (8, 4, 2, 1)]
        chain += [f"v_add_f32_dpp v{t0_}, v{t0_}, v{t0_} row_bcast:15 row_mask:0xa bank_mask:0xf",
                  f"v_add_f32_dpp v{t0_}, v{t0_}, v{t0_} row_bcast:31 row_mask:0xc bank_mask:0xf",
                  f"v_readlane_b32 s{sT0}, v{t0_}, 63",
                  f"v_mul_f32 v{t0_}, s{sT0}, -v{vNI}",
                  f"v_cvt_pk_bf16_f32 v{t0_}, v{t0_}, v{t0_}", f"v_and_b32 v{t0_}, 0xffff0000, v{t0_}",
                  f"v_add_f32 v{t0_}, 0x3727c5ac, v{t0_}",
                  f"v_cvt_pk_bf16_f32 v{t0_}, v{t0_}, v{t0_}", f"v_and_b32 v{t0_}, 0xffff0000, v{t0_}",
                  f"v_sqrt_f32 v{t0_}, v{t0_}",
                  f"v_cvt_pk_bf16_f32 v{t0_}, v{t0_}, v{t0_}", f"v_and_b32 v{t0_}, 0xffff0000, v{t0_}",
                  f"v_rcp_f32 v{vRC}, v{t0_}"]
        for c in chain:
            E(c)
            for _ in range(2):
                if fill: E(fill.pop(0))
        for c in fill: E(c)
        for i in range(12): E(f"v_mul_f32 v{ac+i}, v{ac+i}, v{vRC}")
        for i in range(6): E(f"v_cvt_pk_bf16_f32 v{xk+i}, v{ac+2*i}, v{ac+2*i+1}")
    E(f"ds_write_b64 v{vA+2}, {r2(xk)} offset:{HN}")
    E(f"ds_write_b64 v{vA+2}, {r2(xk+2)} offset:{HN+512}")
    E("s_mov_b32 exec_hi, 0xffff")
    E(f"ds_write_b64 v{vA+2}, {r2(xk+4)} offset:{HN+1024}")
    E("s_mov_b32 exec_hi, -1")
    E("s_waitcnt lgkmcnt(0)")
    E("s_barrier")
    E(f"s_cmp_ge_u32 s{sW}, 4")
    E("s_cbranch_scc1 L_fin")
    if a.ts:
        stamp(13); E("s_waitcnt lgkmcnt(0)")
    for u in range(11):
        E(f"ds_read_b128 {r4(hb+4*u)}, v{vA+3} offset:{HN+128*u}")
    for u in range(11):
        E(f"s_waitcnt lgkmcnt({10-u})")
        c1 = "0" if u == 0 else r4(vD1)
        c2 = "0" if u == 0 else r4(vD2)
        E(f"v_mfma_f32_16x16x32_bf16 {r4(vD1)}, {r4(vW+8*u)}, {r4(hb+4*u)}, {c1}")
        E(f"v_mfma_f32_16x16x32_bf16 {r4(vD2)}, {r4(vW+8*u+4)}, {r4(hb+4*u)}, {c2}")
    for i in range(4):
        E(f"v_add_f32_dpp v{vD1+i}, v{vD2+i}, v{vD1+i} row_ror:8 row_mask:0xf bank_mask:0xf")
    for i in range(4): E(f"v_max_f32 v{vD1+i}, 0, v{vD1+i}")
    E(f"v_cvt_pk_bf16_f32 v{vD2}, v{vD1}, v{vD1+1}")
    E(f"v_cvt_pk_bf16_f32 v{vD2+1}, v{vD1+2}, v{vD1+3}")
    E(f"s_mov_b64 exec, s[{sLO8}:{sLO8+1}]")
    E(f"buffer_store_dwordx2 {r2(vD2)}, v{vA}, {S4(sH1)}, s{sT3} offen sc1", tag="extra")
    stamp(14)
    E("s_branch L_fin")

    E.label("L_ffn2")
    E.comment("FFN2: %d columns of w2" % (16 * NC))
    E(f"s_mov_b64 s[{sDRY}:{sDRY+1}], {0 if a.dry & 2 else -1}")
    E(f"s_mov_b32 s{sROLE}, 2")
    E(f"s_mov_b32 s{sWF}, s18")
    E(f"s_and_b32 s{sWF+1}, s19, 0xffff")
    vDA = vQ + 2
    vA = vD1
    lpr = 2 * NC
    rpi = 64 // lpr
    nd2 = 7 * NC
    E(f"v_lshrrev_b32 v{vDA}, {NC}, v{vL}")
    E(f"v_mul_u32_u24 v{vDA}, 1280, v{vDA}")
    E(f"v_and_b32 v{vA+1}, {lpr-1}, v{vL}")
    E(f"v_lshl_add_u32 v{vDA}, v{vA+1}, 4, v{vDA}")
    sD0, sD2 = 12, 13
    E(f"s_mul_i32 s{sD0}, s{sW}, {7*32*1280}")
    E(f"s_mul_i32 s{sT1}, s{sTILE}, {32*NC}")
    E(f"s_add_u32 s{sD0}, s{sD0}, s{sT1}")
    E(f"s_mul_i32 s{sT3}, s{sW}, {nd2*1024}")
    E(f"s_add_u32 s{sT3}, s{sT3}, {WT}")
    E(f"s_mov_b32 s{sD2}, s{sT3}")
    def dma2():
        for t in range(nd2 if not a.nodma else 0):
            E(f"s_mov_b32 m0, s{sD2}")
            E(f"buffer_load_dwordx4 v{vDA}, {S4(sWF)}, s{sD0} offen{fnt} lds", tag="extra")
            if t < nd2 - 1:
                E(f"s_add_u32 s{sD0}, s{sD0}, {rpi*1280}")
                E(f"s_add_u32 s{sD2}, s{sD2}, 1024")
    E("s_barrier")
    stamp(10)
    if not a.late2: dma2()
    vB7 = vQ
    vXO = vQ + 1
    E(f"v_and_b32 v{vB7}, 7, v{vL}")
    E(f"v_mul_u32_u24 v{vXO}, 1280, v{vB7}")
    E(f"v_lshl_add_u32 v{vXO}, v{vJ}, 3, v{vXO}")
    E(f"s_and_b32 s{sT4}, s{sW}, {NC-1}")
    E(f"s_lshl_b32 s{sT4}, s{sT4}, 5")
    E(f"s_add_u32 s{sT1}, s{sT1}, s{sT4}")
    xr = vS
    E(f"buffer_load_dwordx2 {r2(xr)}, v{vXO}, {S4(sX)}, s{sT1} offen", tag="extra")
    vHA = vF + 128
    E(f"s_lshr_b32 s{sT0}, s{sT1}, 1")
    E(f"v_lshl_add_u32 v{vA}, v{vJ}, 2, s{sT0}")
    E(f"v_mul_u32_u24 v{vA+1}, {HS}, v{vB7}")
    for r in range(4):
        E(f"v_add_u32 v{vA+2}, {r}, v{vA}")
        E(f"v_mul_u32_u24 v{vA+3}, 4370, v{vA+2}")
        E(f"v_lshrrev_b32 v{vA+3}, 16, v{vA+3}")
        E(f"v_add_u32 v{vA+2}, v{vA+2}, v{vA+3}")
        E(f"v_lshl_add_u32 v{vHA+r}, v{vA+2}, 2, v{vA+1}")
        if r in (0, 3):
            E(f"v_lshl_add_u32 v{vHA+4+r//3}, v{vA+3}, 6, v{vA+1}")
    vH1 = vB1 + 1
    E(f"v_lshrrev_b32 v{vH1}, 1, v{vJ}")
    E(f"v_lshlrev_b32 v{vH1}, 8, v{vH1}")
    E(f"v_lshl_add_u32 v{vH1}, v{vB7}, 5, v{vH1}")
    E(f"v_and_b32 v{vB1+2}, 1, v{vJ}")
    E(f"v_lshl_add_u32 v{vH1}, v{vB1+2}, 4, v{vH1}")
    E(f"v_lshrrev_b32 v{vB1+2}, 3, v{vN}")
    E(f"v_lshl_add_u32 v{vH1}, v{vB1+2}, 9, v{vH1}")
    rb = 32 * NC
    vTR = vB1 + 2
    E(f"v_mul_u32_u24 v{vTR}, {8*rb}, v{vJ}")
    E(f"v_lshrrev_b32 v{vB1+3}, 2, v{vN}")
    E(f"v_lshl_add_u32 v{vTR}, v{vB1+3}, {4+NC}, v{vTR}")
    E(f"v_and_b32 v{vB1+3}, 3, v{vN}")
    E(f"v_lshl_add_u32 v{vTR}, v{vB1+3}, 3, v{vTR}")
    E(f"v_add_u32 v{vTR}, s{sT3}, v{vTR}")
    vRWp, vRRp = vB0, vB0 + 1
    E(f"s_lshl_b32 s{sT0}, s{sW}, 11")
    E(f"v_add_u32 v{vRWp}, s{sT0}, v{vL16}")
    E(f"s_lshl_b32 s{sT0}, s{sT4}, 5")
    E(f"v_add_u32 v{vRRp}, s{sT0}, v{vL16}")
    E(f"s_mul_i32 s{sT2}, s{sW}, {7*512}")
    acc = [vF + 96 + 4 * i for i in range(4)]
    ac = vS + 4
    hx = vS + 12
    hxk = vS + 8
    hb = vF + 64
    def trs():
        E("s_waitcnt vmcnt(0)")
        for t in range(7):
            for c in range(NC):
                E(f"ds_read_b64_tr_b16 {r2(vW+8*t+4*c)}, v{vTR} offset:{t*32*rb+c*32}")
                E(f"ds_read_b64_tr_b16 {r2(vW+8*t+4*c+2)}, v{vTR} offset:{t*32*rb+c*32+4*rb}")
        for i in range(2):
            E(f"v_lshlrev_b32 v{hxk+2*i}, 16, v{xr+i}")
            E(f"v_and_b32 v{hxk+2*i+1}, 0xffff0000, v{xr+i}")
        E("s_waitcnt lgkmcnt(0)")
        stamp(11)
    def cpoll(lbl, thr_):
        E.label(lbl)
        E(f"buffer_load_dword v{vD1}, v{vHA+4}, {S4(sWS)}, 0 offen offset:60 sc1", tag="extra")
        E(f"buffer_load_dword v{vD1+1}, v{vHA+5}, {S4(sWS)}, 0 offen offset:60 sc1", tag="extra")
        E("s_waitcnt vmcnt(0)")
        E(f"v_min_f32 v{vD1}, v{vD1}, v{vD1+1}")
        E(f"v_cmp_gt_f32 vcc, {thr_:#x}, v{vD1}")
        E(f"s_cbranch_vccz {lbl}_ok")
        spin(f"{lbl}_ok")
        E(f"s_sleep {a.sleep3}")
        E(f"s_branch {lbl}")
        E.label(f"{lbl}_ok")
    E.label("L_f2_top")
    E(f"s_mov_b64 exec, s[{sDRY}:{sDRY+1}]")
    E("s_cbranch_execz L_f2_got")
    if a.late2:
        E(f"s_cmp_ge_u32 s{sW}, 1")
        E("s_cbranch_scc1 L_f2_g_ok")
        cpoll("L_f2_g", struct.unpack("<I", struct.pack("<f", float(a.late2)))[0])
        E("s_barrier")
        dma2()
    trs()
    E(f"s_cmp_ge_u32 s{sW}, {NC}")
    E("s_cbranch_scc1 L_f2_go")
    cpoll("L_f2_c", 0x42000000)
    for r in range(4):
        E(f"buffer_load_dword v{ac+r}, v{vHA+r}, {S4(sWS)}, 0 offen sc1", tag="extra")
    E.label("L_f2_go")
    E("s_barrier")
    stamp(12)
    E.label("L_f2_poll2")
    for u in range(4):
        E(f"buffer_load_dwordx4 {r4(hb+4*u)}, v{vH1}, {S4(sH1)}, s{sT2} offen offset:{1024*u} sc1", tag="extra")
    E("s_waitcnt vmcnt(0)")
    E(f"v_max3_u32 v{vD1}, v{hb}, v{hb+1}, v{hb+2}")
    E(f"v_max3_u32 v{vD1+1}, v{hb+3}, v{hb+4}, v{hb+5}")
    for k in range(6, 16, 2):
        tgt = vD1 + ((k // 2) % 2)
        E(f"v_max3_u32 v{tgt}, v{tgt}, v{hb+k}, v{hb+k+1}")
    E(f"v_max_u32 v{vD1}, v{vD1}, v{vD1+1}")
    E(f"v_cmp_eq_u32 vcc, -1, v{vD1}")
    E("s_cbranch_vccz L_f2_got")
    spin("L_f2_got")
    if a.sleep2: E(f"s_sleep {a.sleep2}")
    E("s_branch L_f2_poll2")
    E.label("L_f2_got")
    if a.tprio: E("s_setprio 2")
    stamp(13)
    for t in range(7):
        u, half = divmod(t, 2)
        for c in range(NC):
            d = acc[2 * c + half]
            cc = "0" if u == 0 else r4(d)
            E(f"v_mfma_f32_16x16x32_bf16 {r4(d)}, {r4(vW+8*t+4*c)}, {r4(hb+4*u)}, {cc}")
    bf16r_many(E, range(ac, ac + 4))
    for i in range(4): E(f"v_add_f32 v{hx+i}, v{hxk+i}, v{ac+i}")
    bf16r_many(E, range(hx, hx + 4))
    for c in range(NC):
        for r in range(4):
            E(f"v_cndmask_b32 v{acc[2*c]+r}, v{acc[2*c+1]+r}, v{acc[2*c]+r}, s[{sLO8}:{sLO8+1}]")
        E(f"ds_write_b128 v{vRWp}, {r4(acc[2*c])} offset:{F2R+1024*c}")
    E("s_waitcnt lgkmcnt(0)")
    E("s_barrier")
    E(f"s_cmp_ge_u32 s{sW}, {NC}")
    E("s_cbranch_scc1 L_f2_next")
    pb = vF + 144
    for p in range(8):
        E(f"ds_read_b128 {r4(pb+4*p)}, v{vRRp} offset:{F2R+2048*p}")
    if a.ts: E("s_waitcnt lgkmcnt(0)")
    for p in range(4):
        if not a.ts: E(f"s_waitcnt lgkmcnt({6-2*p})")
        for i in range(4): E(f"v_add_f32 v{pb+8*p+i}, v{pb+8*p+i}, v{pb+8*p+4+i}")
        if p % 2 == 1:
            for i in range(4): E(f"v_add_f32 v{pb+8*p-8+i}, v{pb+8*p-8+i}, v{pb+8*p+i}")
    for i in range(4): E(f"v_add_f32 v{pb+i}, v{pb+i}, v{pb+16+i}")
    for i in range(4):
        E(f"v_add_f32_dpp v{pb+i}, v{pb+i}, v{pb+i} row_ror:8 row_mask:0xf bank_mask:0xf")
    bf16r_many(E, range(pb, pb + 4))
    for i in range(4): E(f"v_add_f32 v{pb+i}, v{hx+i}, v{pb+i}")
    E(f"v_cvt_pk_bf16_f32 v{vD2}, v{pb}, v{pb+1}")
    E(f"v_cvt_pk_bf16_f32 v{vD2+1}, v{pb+2}, v{pb+3}")
    E(f"s_and_b64 exec, exec, s[{sLO8}:{sLO8+1}]")
    E("s_cbranch_execz L_f2_next")
    E(f"buffer_store_dwordx2 {r2(vD2)}, v{vXO}, {S4(sOUT)}, s{sT1} offen{a.opol}", tag="extra")
    stamp(14)
    E.label("L_f2_next")
    E(f"s_cmp_lg_u32 s{sDRY}, 0")
    E("s_cbranch_scc1 L_fin")
    E(f"s_mov_b64 s[{sDRY}:{sDRY+1}], -1")
    if a.tprio: E("s_setprio 0")
    E("s_branch L_f2_top")
    E.label("L_fin")
    if a.ts and a.echo:
        E(f"s_cmp_lg_u32 s{sROLE}, 2")
        E("s_cbranch_scc1 L_end")
        E(f"s_cmp_lg_u32 s{sW}, 0")
        E("s_cbranch_scc1 L_end")
        E("s_waitcnt vmcnt(0)")
        stamp(15)
        E("s_waitcnt lgkmcnt(0)")
        if a.skew == 8:
            E("s_mov_b64 exec, -1")
            E(f"s_mov_b32 s{sT0}, 0x30000")
            E(f"v_lshlrev_b32 v{vS+1}, 2, v{vL}")
            E(f"buffer_load_dword v{vS}, v{vS+1}, {S4(sWS)}, s{sT0} offen sc1", tag="extra")
            E("s_waitcnt vmcnt(0)")
            E(f"v_readlane_b32 s{sT0}, v{vS}, 0")
            E(f"s_mov_b32 s{sT1}, s{sT0}")
            for i in range(1, 8):
                E(f"v_readlane_b32 s{sT4}, v{vS}, {i}")
                E(f"s_max_u32 s{sT0}, s{sT0}, s{sT4}")
                E(f"s_min_u32 s{sT1}, s{sT1}, s{sT4}")
            E(f"s_sub_u32 s{sT0}, s{sT0}, s{sT1}")
            E(f"s_mul_i32 s{sT0}, s{sT0}, {a.emul}")
        elif a.skew >= 0:
            E("s_mov_b64 exec, -1")
            E(f"s_mov_b32 s{sT0}, 0x30000")
            E(f"buffer_load_dword v{vS}, off, {S4(sWS)}, s{sT0} offset:{4*a.skew} sc1", tag="extra")
            E(f"buffer_load_dword v{vS+1}, off, {S4(sWS)}, s{sT0} offset:4 sc1", tag="extra")
            E("s_waitcnt vmcnt(0)")
            E(f"v_sub_u32 v{vS}, v{vS}, v{vS+1}")
            E(f"v_readfirstlane_b32 s{sT0}, v{vS}")
            E(f"s_add_u32 s{sT0}, s{sT0}, 200")
            E(f"s_lshl_b32 s{sT0}, s{sT0}, 2")
        else:
            E(f"s_sub_u32 s{sT0}, s{sTS+2*a.echo}, s{sTS+2*a.echo0}")
            E(f"s_mul_i32 s{sT0}, s{sT0}, {a.emul}")
        E(f"s_min_u32 s{sT0}, s{sT0}, 20000")
        E(f"s_add_u32 s{sT0}, s{sT0}, s{sTS+30}")
        E.label("L_echo")
        E(f"s_memrealtime s[{sT2}:{sT2+1}]")
        E("s_waitcnt lgkmcnt(0)")
        E(f"s_sub_u32 s{sT1}, s{sT0}, s{sT2}")
        E(f"s_cmp_gt_i32 s{sT1}, 0")
        E("s_cbranch_scc1 L_echo")
    elif a.ts:
        E("s_waitcnt vmcnt(0)")
        stamp(15)
        write_stamps()
    E.label("L_end")
    E("s_endpgm")
    E.label("L_codeend")

    out = HDR
    out += f"; @launch grid=(256,1,1) block=(512,1,1) lds={LDS_TOTAL}\n"
    out += f""".amdgcn_target "amdgcn-amd-amdhsa--gfx950"
.text
.globl {NAME}
.p2align 8
.type {NAME},@function
{NAME}:
"""
    out += E.text().replace("CODE_BYTES", f"L_codeend-{NAME}")
    out += f""".section .rodata,"a"
.p2align 6
.amdhsa_kernel {NAME}
  .amdhsa_next_free_vgpr 256
  .amdhsa_next_free_sgpr 102
  .amdhsa_accum_offset 256
  .amdhsa_group_segment_fixed_size 0
  .amdhsa_kernarg_size 88
  .amdhsa_user_sgpr_count 2
  .amdhsa_user_sgpr_kernarg_segment_ptr 1
  .amdhsa_system_sgpr_workgroup_id_x 1
  .amdhsa_float_denorm_mode_32 3
.end_amdhsa_kernel
"""
    return out

def parser():
    p = argparse.ArgumentParser()
    p.add_argument("-o", default="sequential_preLN__sliding_block_cached__dense_activation_relu__decode.s")
    p.add_argument("--fnt", type=int, default=0)
    p.add_argument("--ts", type=int, default=0)
    p.add_argument("--sleep", type=int, default=1)
    p.add_argument("--sleep2", type=int, default=1)
    p.add_argument("--depth", type=int, default=5)
    p.add_argument("--first", type=int, default=1)
    p.add_argument("--budget", type=int, default=16)
    p.add_argument("--qspan", type=int, default=32)
    p.add_argument("--ostart", type=int, default=0)
    p.add_argument("--otail", type=int, default=4)
    p.add_argument("--tkpos", type=int, default=28)
    p.add_argument("--pf", type=int, default=2)
    p.add_argument("--spf", type=int, default=1)
    p.add_argument("--pp2", type=int, default=0)
    p.add_argument("--hyb", type=int, default=0)
    p.add_argument("--fastpro", type=int, default=1)
    p.add_argument("--init0", type=int, default=0)
    p.add_argument("--sent2", type=int, default=2)
    p.add_argument("--sentg", type=int, default=4)
    p.add_argument("--nosent", type=int, default=0)
    p.add_argument("--noflag", type=int, default=0)
    p.add_argument("--orot", type=int, default=0)
    p.add_argument("--qrot", type=int, default=1)
    p.add_argument("--x13", type=int, default=1)
    p.add_argument("--tprio", type=int, default=0)
    p.add_argument("--prio", type=int, default=-1)
    p.add_argument("--emul", type=int, default=1)
    p.add_argument("--dyn", type=int, default=0)
    p.add_argument("--abar", type=int, default=0)
    p.add_argument("--spec", type=int, default=0)
    p.add_argument("--qp2", type=int, default=1)
    p.add_argument("--nc2", type=int, default=2)
    p.add_argument("--late2", type=int, default=0)
    p.add_argument("--nk0", type=int, default=4)
    p.add_argument("--pfwg", type=int, default=16)
    p.add_argument("--ln2", type=int, default=1)
    p.add_argument("--endpf", type=int, default=3)
    p.add_argument("--epos", type=int, default=-2)
    p.add_argument("--nodma", type=int, default=0)
    p.add_argument("--gate", type=float, default=31)
    p.add_argument("--gstep", type=int, default=104)
    p.add_argument("--dplan", default="0000")
    p.add_argument("--opol", default="")
    p.add_argument("--skew", type=int, default=-1)
    p.add_argument("--htab", default="0x76325410")
    p.add_argument("--rtab", default="0x210cba98")
    p.add_argument("--sphalf", type=int, default=2)
    p.add_argument("--npoll2", type=int, default=1)
    p.add_argument("--stag2", type=int, default=4)
    p.add_argument("--pub", default="sc1")
    p.add_argument("--sub", default="sc1")
    p.add_argument("--zwg", type=int, default=28)
    p.add_argument("--nrep", type=int, default=8)
    p.add_argument("--sleep3", type=int, default=4)
    p.add_argument("--h1wait", type=int, default=0)
    p.add_argument("--npoll", type=int, default=1)
    p.add_argument("--stag", type=int, default=3)
    p.add_argument("--static", type=int, default=0)
    p.add_argument("--l2pf", type=int, default=6)
    p.add_argument("--echo", type=int, default=0)
    p.add_argument("--echo0", type=int, default=0)
    p.add_argument("--kvpol", default=" nt")
    p.add_argument("--wpol", default="")
    p.add_argument("--bd1", type=int, default=0)
    p.add_argument("--bd2", type=int, default=0)
    p.add_argument("--bd3", type=int, default=0)
    p.add_argument("--hmap", type=int, default=3)
    p.add_argument("--tlb", type=int, default=0)
    p.add_argument("--dry", type=int, default=2)
    return p

if __name__ == "__main__":
    a = parser().parse_args()
    open(a.o, "w").write(gen(a))
```

```python
import sys, argparse, struct
from collections import deque
from asmlib import Emitter
from gen2 import (NAME, HDR, srd, srd_off, r4, r2, S4, row_reduce, wave_reduce, bf16r, bf16r_many, unpack10, ln_stats,
                  LOG2E, SCALE, sT0, sT1, sT2, sT3, sT4)

RED = 0
QF = 8448
ML = 8704
YP = 9216
YPS = 3328
HN = 9216
HNS = 1408
F2R = 9216
WT = 35840
LDS_TOTAL = 150528
HS = 3072
H1_BASE = 32768
TS_BASE = 1 << 20
NF1 = 27

sW, sH, sB = 3, 26, 27
sK, sV, sWQ, sWO, sX, sWS, sDB, sWF, sOUT, sH1 = 28, 32, 36, 40, 44, 48, 52, 56, 60, 64
sROLE, sTILE = 100, 101
sSPIN = 9
sLO8 = 10
sKO, sVO, sQ0, sQ1, sOO = 12, 13, 14, 15, 20
sDRY = 22
sEX = 24
sTKO = 25
sTS = 68
vL, vL16, vWQ, vWO = 0, 1, 2, 3
vM = 4
vQ = 8
vB0, vB1 = 12, 16
vD1, vD2 = 20, 24
vT = 28
vS = 32
vF = 48
vJ, vN = vT, vT + 1

class Task:
    def __init__(self, fn, needs=(), frees=(), barrier=0, cost=1, atomic=False):
        self.fn, self.needs, self.frees, self.barrier, self.cost = fn, list(needs), list(frees), barrier, cost
        self.atomic = atomic
        self.q = None

class RecEmitter(Emitter):
    def __init__(self):
        super().__init__(); self.rec = None
    def __call__(self, text, tag=None):
        if self.rec is not None: self.rec.append(("i", text, tag))
        else: super().__call__(text, tag)
    def label(self, name):
        if self.rec is not None: self.rec.append(("l", name, None))
        else: super().label(name)
    def flush(self, n=None):
        if self.rec is not None: self.rec.append(("f", None, None))
        else: super().flush(n)
    def record(self, fn):
        self.rec = []; fn(); r = self.rec; self.rec = None; return deque(r)
    def play(self, item):
        k, a, b = item
        if k == "i": self(a, b)
        elif k == "l": self.label(a)
        else: self.flush()

def gen(a):
    E = RecEmitter()
    NC = a.nc2
    NF2 = 40 // NC
    nt = a.kvpol
    wnt = a.wpol
    fnt = " nt" if a.fnt else ""
    def stamp(i):
        if a.ts: E(f"s_memrealtime s[{sTS+2*i}:{sTS+2*i+1}]")
    def spin(lbl):
        E(f"s_sub_u32 s{sSPIN}, s{sSPIN}, 1")
        E(f"s_cmp_lt_i32 s{sSPIN}, 0")
        E(f"s_cbranch_scc1 {lbl}")
    def write_stamps():
        E("s_waitcnt lgkmcnt(0)")
        E("s_mov_b64 exec, 1")
        E(f"s_lshl_b32 s{sT0}, s2, 3")
        E(f"s_add_u32 s{sT0}, s{sT0}, s{sW}")
        E(f"s_lshl_b32 s{sT0}, s{sT0}, 8")
        E(f"s_add_u32 s{sT0}, s{sT0}, {TS_BASE}")
        for i in range(16):
            E(f"v_mov_b32 v{vT}, s{sTS+2*i}")
            E(f"v_mov_b32 v{vT+1}, s{sTS+2*i+1}")
            E(f"buffer_store_dwordx2 {r2(vT)}, off, {S4(sWS)}, s{sT0} offset:{8*i}", tag="extra")
            E("s_nop 1")
        E(f"s_getreg_b32 s{sT1}, hwreg(HW_REG_XCC_ID)")
        E(f"v_mov_b32 v{vT}, s{sT1}")
        E(f"v_mov_b32 v{vT+1}, s{sROLE}")
        E(f"buffer_store_dwordx2 {r2(vT)}, off, {S4(sWS)}, s{sT0} offset:128", tag="extra")
        E("s_nop 1")
        E(f"v_mov_b32 v{vT}, s{sSPIN}")
        E(f"v_mov_b32 v{vT+1}, 0")
        E(f"buffer_store_dwordx2 {r2(vT)}, off, {S4(sWS)}, s{sT0} offset:136", tag="extra")

    E("s_cmp_ge_u32 s2, 256")
    E("s_cbranch_scc1 L_end")
    E("s_load_dwordx16 s[4:19], s[0:1], 0")
    E("s_load_dwordx4 s[20:23], s[0:1], 64")
    E("s_load_dwordx2 s[24:25], s[0:1], 80")
    if a.ts:
        for i in range(1, 16): E(f"s_mov_b64 s[{sTS+2*i}:{sTS+2*i+1}], 0")
        stamp(0)
    if a.fastpro:
        assert a.hmap == 3 and int(a.htab, 0) == 0x76325410 and a.x13 and a.qp2
        vXS, vXC = vT + 2, vT + 3
        t0, t1, t2, t3 = 64, 65, 66, 67
        E(f"v_lshrrev_b32 v{vT}, 6, v0")
        E(f"v_and_b32 v{vL}, 63, v0")
        E(f"v_readfirstlane_b32 s{sW}, v{vT}")
        E(f"s_and_b32 s{sH}, s2, 0xe1")
        E(f"s_bfe_u32 s{t1}, s2, 0x30002")
        E(f"s_lshl1_add_u32 s{sH}, s{t1}, s{sH}")
        E(f"s_and_b32 s{t1}, s2, 2")
        E(f"s_lshl3_add_u32 s{sH}, s{t1}, s{sH}")
        E(f"v_lshlrev_b32 v{vL16}, 4, v{vL}")
        E(f"s_lshl_b32 s{t0}, s{sH}, 20")
        E(f"s_add_u32 s{t0}, s{t0}, 0xc0000")
        E(f"s_and_b32 s{t1}, s2, 8")
        E(f"s_add_u32 s{sTILE}, s{t1}, s{sW}")
        E(f"s_lshl_b32 s{sTILE}, s{sTILE}, 10")
        E(f"s_lshl_b32 s{t1}, s{t1}, 11")
        E(f"s_sub_u32 s{t2}, 8192, s{t1}")
        E(f"s_add_u32 s{t3}, 8192, s{t1}")
        E(f"s_mov_b32 s{sROLE}, s{sTILE}")
        E(f"s_mov_b32 s{sK+2}, 0x40000")
        E(f"s_mov_b32 s{sK+3}, 0x20000")
        E("s_waitcnt lgkmcnt(0)")
        E(f"s_add_u32 s{sK}, s6, s{t0}")
        E(f"s_addc_u32 s{sK+1}, s7, 0")
        E(f"s_and_b32 s{sK+1}, s{sK+1}, 0xffff")
        def kvstep(f): return (f"s{f % 2}" if a.x13 else "8192")
        slot_of = {}
        free = deque(range(52))
        def alloc(tag):
            s = free.popleft(); slot_of[tag] = vF + 4 * s; return slot_of[tag]
        def release(tag):
            free.append((slot_of[tag] - vF) // 4)
        for f in range(a.nk0):
            if f: E(f"s_add_u32 s{sTILE}, s{sTILE}, s{t2 + (f-1) % 2}")
            E(f"buffer_load_dwordx4 {r4(alloc(f'k{f}'))}, v{vL16}, {S4(sK)}, s{sTILE} offen{nt}", tag=f"k{f}")
        E(f"s_mov_b64 s[0:1], s[{t2}:{t3}]")
        E(f"s_lshr_b32 s{sB}, s2, 5")
        E(f"s_and_b32 s{sH}, s{sH}, 31")
        E(f"v_mul_u32_u24 v{vXS}, 20, v{vL}")
        E(f"s_mul_i32 s{t3}, s{sB}, 1280")
        E(f"s_lshl_b32 s{t1}, s{sH}, 8")
        E(f"s_mul_i32 s{t2}, s{sH}, {128*1280}")
        E(f"v_lshrrev_b32 v{vJ}, 4, v{vL}")
        E(f"v_and_b32 v{vN}, 15, v{vL}")
        E(f"v_lshlrev_b32 v{vWQ}, 13, v{vJ}")
        E(f"v_lshl_add_u32 v{vWQ}, v{vN}, 4, v{vWQ}")
        if a.pf:
            E(f"s_cmp_gt_u32 s{sW}, {a.pf - 1}")
            E("s_cbranch_scc1 L_nopf")
            E(f"s_cmp_ge_u32 s2, {a.pfwg}")
            E("s_cbranch_scc1 L_nopf")
            E(f"s_getpc_b64 s[{sWF}:{sWF+1}]")
            E.label("L_pc")
            E(f"s_lshl_b32 s{sOUT}, s{sW}, 13")
            E(f"v_lshlrev_b32 v{vB0}, 7, v{vL}")
            E(f"v_add_u32 v{vB0}, s{sOUT}, v{vB0}")
            E(f"v_min_u32 v{vB0}, L_codeend-L_pc-4, v{vB0}")
            E(f"v_mov_b32 v{vB0+3}, s{sWF+1}")
            E(f"v_add_co_u32 v{vB0+2}, vcc, s{sWF}, v{vB0}")
            E(f"v_addc_co_u32 v{vB0+3}, vcc, 0, v{vB0+3}, vcc")
            E(f"global_load_dword v{vS+15}, v[{vB0+2}:{vB0+3}], off", tag="extra")
            E.label("L_nopf")
    else:
        E(f"v_lshrrev_b32 v{vT}, 6, v0")
        E(f"v_and_b32 v{vL}, 63, v0")
        E(f"v_readfirstlane_b32 s{sW}, v{vT}")
        if a.hmap == 3:
            E(f"s_and_b32 s{sH}, s2, 7")
            E(f"s_lshl_b32 s{sH}, s{sH}, 2")
            E(f"s_lshr_b32 s{sH}, {a.htab}, s{sH}")
            E(f"s_and_b32 s{sB}, s{sH}, 4")
            E(f"s_lshl_b32 s{sB}, s{sB}, 2")
            E(f"s_and_b32 s{sH}, s{sH}, 3")
            E(f"s_add_u32 s{sH}, s{sH}, s{sB}")
            E(f"s_bfe_u32 s{sB}, s2, 0x20003")
            E(f"s_lshl_b32 s{sB}, s{sB}, 2")
            E(f"s_add_u32 s{sH}, s{sH}, s{sB}")
        elif a.hmap == 2:
            E(f"s_and_b32 s{sH}, s2, 6")
            E(f"s_lshr_b32 s{sH}, 0x8d, s{sH}")
            E(f"s_and_b32 s{sH}, s{sH}, 3")
            E(f"s_and_b32 s{sB}, s2, 1")
            E(f"s_lshl_b32 s{sB}, s{sB}, 4")
            E(f"s_add_u32 s{sH}, s{sH}, s{sB}")
            E(f"s_bfe_u32 s{sB}, s2, 0x20003")
            E(f"s_lshl_b32 s{sB}, s{sB}, 2")
            E(f"s_add_u32 s{sH}, s{sH}, s{sB}")
        elif a.hmap:
            E(f"s_and_b32 s{sH}, s2, 7")
            E(f"s_lshl_b32 s{sH}, s{sH}, 2")
            E(f"s_bfe_u32 s{sB}, s2, 0x20003")
            E(f"s_add_u32 s{sH}, s{sH}, s{sB}")
        else:
            E(f"s_and_b32 s{sH}, s2, 31")
        E(f"s_lshr_b32 s{sB}, s2, 5")
        E(f"v_lshlrev_b32 v{vL16}, 4, v{vL}")
        E(f"v_lshrrev_b32 v{vJ}, 4, v{vL}")
        E(f"v_and_b32 v{vN}, 15, v{vL}")
        E(f"v_mul_u32_u24 v{vWQ}, {8192 if a.qp2 else 81920}, v{vJ}")
        E(f"v_lshl_add_u32 v{vWQ}, v{vN}, 4, v{vWQ}")
        vXS, vXC = vT + 2, vT + 3
        E(f"v_mul_u32_u24 v{vXS}, 20, v{vL}")
        t0, t1, t2, t3 = 64, 65, 66, 67
        if not a.qp2:
            E(f"v_lshrrev_b32 v{vXC}, 3, v{vN}")
            E(f"v_lshl_add_u32 v{vXC}, v{vXC}, 2, v{vJ}")
            E(f"s_lshl_b32 s{t0}, s{sW}, 3")
            E(f"v_add_u32 v{vXC}, s{t0}, v{vXC}")
            E(f"v_mul_u32_u24 v{vXC}, 20, v{vXC}")
        E(f"s_lshl_b32 s{t0}, s{sB}, 5")
        E(f"s_add_u32 s{t0}, s{t0}, s{sH}")
        E(f"s_lshl_b32 s{t0}, s{t0}, 20")
        E(f"s_add_u32 s{t0}, s{t0}, 0xc0000")
        E(f"s_lshl_b32 s{t1}, s{sH}, 8")
        E(f"s_mul_i32 s{t2}, s{sH}, {128*1280}")
        E(f"s_mul_i32 s{t3}, s{sB}, 1280")
        E(f"s_mov_b32 s{sROLE}, 0")
        E(f"s_lshl_b32 s{sTILE}, s{sW}, 10")
        if a.x13:
            E(f"s_and_b32 s{sROLE}, s{sH}, 4")
            E(f"s_lshl_b32 s{sROLE}, s{sROLE}, 11")
            E(f"s_add_u32 s{sTILE}, s{sTILE}, s{sROLE}")
        if a.pf:
            E(f"s_cmp_gt_u32 s{sW}, {a.pf - 1}")
            E("s_cbranch_scc1 L_nopf")
            E(f"s_cmp_ge_u32 s2, {a.pfwg}")
            E("s_cbranch_scc1 L_nopf")
            E(f"s_getpc_b64 s[{sWF}:{sWF+1}]")
            E.label("L_pc")
            E(f"s_lshl_b32 s{sOUT}, s{sW}, 13")
            E(f"v_lshlrev_b32 v{vB0}, 7, v{vL}")
            E(f"v_add_u32 v{vB0}, s{sOUT}, v{vB0}")
            E(f"v_min_u32 v{vB0}, L_codeend-L_pc-4, v{vB0}")
            E(f"v_mov_b32 v{vB0+3}, s{sWF+1}")
            E(f"v_add_co_u32 v{vB0+2}, vcc, s{sWF}, v{vB0}")
            E(f"v_addc_co_u32 v{vB0+3}, vcc, 0, v{vB0+3}, vcc")
            E(f"global_load_dword v{vS+15}, v[{vB0+2}:{vB0+3}], off", tag="extra")
            E.label("L_nopf")
        E("s_waitcnt lgkmcnt(0)")
        srd_off(E, sK, 6, f"s{t0}", 0x40000)
        if a.x13:
            E(f"s_lshl_b32 s{sROLE}, s{sROLE}, 1")
            E(f"s_sub_u32 s0, 8192, s{sROLE}")
            E(f"s_add_u32 s1, 8192, s{sROLE}")
            E(f"s_mov_b32 s{sROLE}, s{sTILE}")
        def kvstep(f): return (f"s{f % 2}" if a.x13 else "8192")
        slot_of = {}
        free = deque(range(52))
        def alloc(tag):
            s = free.popleft(); slot_of[tag] = vF + 4 * s; return slot_of[tag]
        def release(tag):
            free.append((slot_of[tag] - vF) // 4)
        for f in range(a.nk0):
            if f: E(f"s_add_u32 s{sTILE}, s{sTILE}, {kvstep(f-1)}")
            E(f"buffer_load_dwordx4 {r4(alloc(f'k{f}'))}, v{vL16}, {S4(sK)}, s{sTILE} offen{nt}", tag=f"k{f}")
    srd(E, sX, 4, 5, 10240)
    xs_raw, xc_raw = vS, vS + 6
    E(f"buffer_load_dwordx4 {r4(xs_raw)}, v{vXS}, {S4(sX)}, s{t3} offen", tag="xs")
    E(f"buffer_load_dword v{xs_raw+4}, v{vXS}, {S4(sX)}, s{t3} offen offset:16", tag="xs")
    if not a.qp2:
        E(f"buffer_load_dwordx4 {r4(xc_raw)}, v{vXC}, {S4(sX)}, s{t3} offen", tag="xc")
        E(f"buffer_load_dword v{xc_raw+4}, v{vXC}, {S4(sX)}, s{t3} offen offset:16", tag="xc")
    srd_off(E, sWQ, 10, f"s{t1}", 639 * 8192 + 256)
    srd_off(E, sV, 8, f"s{t0}", 0x40000)
    srd_off(E, sWO, 12, f"s{t2}", 128 * 1280)
    srd(E, sWS, 24, 25, 1 << 22)
    srd(E, sDB, 22, 23, 256)
    srd(E, sOUT, 20, 21, 10240)
    srd_off(E, sH1, 24, H1_BASE, 108 * 256)
    E(f"s_add_u32 s{sKO}, s{sTILE}, {kvstep(a.nk0-1)}")
    if a.x13:
        E(f"s_mov_b32 s{sVO}, s{sROLE}")
        E(f"s_mov_b32 s{sROLE}, 0")
    else: E(f"s_lshl_b32 s{sVO}, s{sW}, 10")
    if a.qp2 and a.qrot:
        E(f"s_lshl_b32 s{sQ1}, s{sW}, 15")
        E(f"s_mul_i32 s{sQ0}, s{sB}, 10")
        E(f"s_lshr_b32 s{sQ0}, s{sQ0}, 3")
        E(f"s_lshl_b32 s{sQ0}, s{sQ0}, 19")
        E(f"s_add_u32 s{sQ0}, s{sQ0}, s{sQ1}")
    elif a.qp2:
        E(f"s_lshl_b32 s{sQ0}, s{sW}, 15")
    else:
        E(f"s_mul_i32 s{sQ0}, s{sW}, 655360")
        E(f"s_add_u32 s{sQ1}, s{sQ0}, 327680")
    E(f"s_mul_i32 s{sOO}, s{sW}, 1280")
    sOC = 25
    if a.orot:
        assert not a.dyn and a.endpf == 3
        E(f"s_mul_i32 s{sOC}, s{sB}, 5")
        E(f"s_lshr_b32 s{sOC}, s{sOC}, 3")
        E(f"s_lshl_b32 s{sOC}, s{sOC}, 8")
        E(f"s_add_u32 s{sOO}, s{sOO}, s{sOC}")

    if a.tlb:
        E(f"s_cmp_lg_u32 s{sW}, 1")
        E("s_cbranch_scc1 L_notlb")
        E(f"buffer_load_dword v{vS+14}, off, {S4(sV)}, 0 nt", tag="extra")
        E(f"buffer_load_dword v{vS+14}, off, {S4(sWO)}, 0 nt", tag="extra")
        if a.tlb > 1:
            E(f"s_mov_b32 s{sWF+2}, {640*3456}")
            E(f"s_mov_b32 s{sWF+3}, 0x20000")
            E(f"s_mov_b32 s{sT0}, {640*3456-4}")
            for p in (16, 18):
                E(f"s_mov_b32 s{sWF}, s{p}")
                E(f"s_and_b32 s{sWF+1}, s{p+1}, 0xffff")
                E(f"buffer_load_dword v{vS+14}, off, {S4(sWF)}, 0 nt", tag="extra")
                E(f"buffer_load_dword v{vS+14}, off, {S4(sWF)}, s{sT0} nt", tag="extra")
            E(f"s_mov_b32 s{sT0}, 0x20000")
            E(f"buffer_load_dword v{vS+14}, off, {S4(sWS)}, s{sT0} nt", tag="extra")
            E(f"buffer_load_dword v{vS+14}, off, {S4(sOUT)}, 0 nt", tag="extra")
        E.label("L_notlb")
    if a.skew >= 0:
        E("s_cmp_ge_u32 s2, 8")
        E("s_cbranch_scc1 L_noskew")
        E("s_waitcnt lgkmcnt(0)")
        E(f"v_mov_b32 v{vS+12}, s{sTS}")
        E(f"s_lshl_b32 s{sT0}, s2, 2")
        E(f"s_add_u32 s{sT0}, s{sT0}, 0x30000")
        E(f"buffer_store_dword v{vS+12}, off, {S4(sWS)}, s{sT0} sc1", tag="extra")
        E.label("L_noskew")
    def t_init():
        z = [alloc("z0"), alloc("z1"), alloc("z2"), alloc("z3")]
        zr = [z[0], z[0] + 2, z[1], z[1] + 2, z[2], z[2] + 2]
        init_seen.update(issued)
        E(f"s_cmp_lg_u32 s{sW}, 7")
        E("s_cbranch_scc1 L_nosent")
        if a.sent2:
            E(f"s_and_b32 s{sT0}, s2, {7 & ~a.sent2}")
            E(f"s_cmp_lg_u32 s{sT0}, {a.sentg}")
            E("s_cbranch_scc1 L_nosent")
            E(f"s_lshr_b32 s{sT0}, s2, 3")
            E(f"s_cmp_ge_u32 s{sT0}, 27")
            E("s_cbranch_scc1 L_nosent")
            E(f"s_and_b32 s{sT1}, s2, {a.sent2}")
            E(f"s_cselect_b32 s{sT1}, 27, 0")
            E(f"s_add_u32 s{sT0}, s{sT0}, s{sT1}")
            E(f"s_lshl_b32 s{sT0}, s{sT0}, 9")
            E(f"v_mov_b32 v{z[0]}, -1")
            E(f"v_mov_b32 v{z[0]+1}, -1")
            E(f"v_lshlrev_b32 v{z[3]}, 3, v{vL}")
            E(f"buffer_atomic_swap_x2 {r2(z[0])}, v{z[3]}, {S4(sH1)}, s{sT0} offen sc0", tag="extra")
        else:
            E(f"v_mov_b32 v{z[0]}, -1")
            E(f"v_lshlrev_b32 v{z[3]}, 2, v{vL}")
            E(f"s_lshl_b32 s{sT0}, s2, 8")
            if not a.nosent: E(f"buffer_atomic_swap v{z[0]}, v{z[3]}, {S4(sH1)}, s{sT0} offen sc0", tag="extra")
        E.label("L_nosent")
        E(f"s_cmp_lg_u32 s{sW}, 6")
        E("s_cbranch_scc1 L_noinit")
        E(f"s_and_b32 s{sT0}, s2, 31")
        E(f"s_cmp_lg_u32 s{sT0}, {a.zwg}")
        E("s_cbranch_scc1 L_noinit")
        for q in z[:3]:
            for i in range(4): E(f"v_mov_b32 v{q+i}, 0")
        E(f"v_lshlrev_b32 v{z[3]}, 3, v{vL}")
        E(f"s_mul_i32 s{sT0}, s{sB}, {HS}")
        for i in range(6):
            E(f"buffer_atomic_swap_x2 {r2(zr[i])}, v{z[3]}, {S4(sWS)}, s{sT0} offen offset:{512*i} sc0", tag="extra")
        E.label("L_noinit")
    init_seen = set()
    def t_flagset():
        assert "wq11" not in init_seen
        E(f"s_cmp_lg_u32 s{sW}, 6")
        E("s_cbranch_scc1 L_noflag")
        E(f"s_and_b32 s{sT0}, s2, 31")
        E(f"s_cmp_lg_u32 s{sT0}, {a.zwg}")
        E("s_cbranch_scc1 L_noflag")
        E(f"v_mov_b32 v{slot_of['z3']}, 1")
        E(f"s_lshl_b32 s{sT0}, s{sB}, 2")
        E("s_mov_b64 exec, 1")
        E(f"buffer_store_dword v{slot_of['z3']}, off, {S4(sDB)}, s{sT0} sc1", tag="extra")
        E("s_mov_b64 exec, -1")
        E.label("L_noflag")

    def kload(f):
        def fn():
            E(f"buffer_load_dwordx4 {r4(alloc(f'k{f}'))}, v{vL16}, {S4(sK)}, s{sKO} offen{nt}", tag=f"k{f}")
            if f < 31: E(f"s_add_u32 s{sKO}, s{sKO}, {kvstep(f)}")
        return (f"k{f}", fn, True)
    def vload(f):
        def fn():
            E(f"buffer_load_dwordx4 {r4(alloc(f'v{f}'))}, v{vL16}, {S4(sV)}, s{sVO} offen{nt}", tag=f"v{f}")
            if f < 31: E(f"s_add_u32 s{sVO}, s{sVO}, {kvstep(f)}")
        return (f"v{f}", fn, True)
    def qload(f):
        def fn():
            s = sQ0 if (f % 2 == 0 or a.qp2) else sQ1
            E(f"buffer_load_dwordx4 {r4(alloc(f'wq{f}'))}, v{vWQ}, {S4(sWQ)}, s{s} offen{wnt}", tag=f"wq{f}")
            if a.qp2:
                if f < 19: E(f"s_add_u32 s{s}, s{s}, {32*8192}")
                if a.qrot and f < 19 and f % 2 == 1:
                    E(f"s_cmp_ge_u32 s{s}, {640*8192}")
                    E(f"s_cselect_b32 s{s}, s{sQ1}, s{s}")
            elif f < 18: E(f"s_add_u32 s{s}, s{s}, 8192")
        return (f"wq{f}", fn, True)
    def oload(f):
        def fn():
            if a.orot:
                E(f"buffer_load_dwordx4 {r4(alloc(f'wo{f}'))}, v{vWO}, {S4(sWO)}, s{sOO} offen{wnt}", tag=f"wo{f}")
                if f % 4 < 3: E(f"s_add_u32 s{sOO}, s{sOO}, {8*1280}")
                elif f < 19:
                    E(f"s_add_u32 s{sOC}, s{sOC}, 256")
                    E(f"s_cmp_ge_u32 s{sOC}, 1280")
                    E(f"s_cselect_b32 s{sOC}, 0, s{sOC}")
                    E(f"s_mul_i32 s{sOO}, s{sW}, 1280")
                    E(f"s_add_u32 s{sOO}, s{sOO}, s{sOC}")
                return
            fp, cg = divmod(f, 5)
            E(f"buffer_load_dwordx4 {r4(alloc(f'wo{f}'))}, v{vWO}, {S4(sWO)}, s{sOO} offen offset:{cg*256}{wnt}", tag=f"wo{f}")
            if cg == 4 and fp < 3: E(f"s_add_u32 s{sOO}, s{sOO}, {8*1280}")
        return (f"wo{f}", fn, True)
    vFL = vWQ
    vTK = vQ + 3
    sCLS = 25
    FM = 15 if a.dcls else 7
    def fladdr():
        E(f"v_and_b32 v{vFL}, 7, v{vL}")
        if a.dcls:
            E(f"s_and_b32 s{sCLS}, s2, 7")
            E(f"s_add_u32 s{sCLS}, s{sCLS}, 8")
            E("s_mov_b32 exec_lo, 0")
            E(f"v_mov_b32 v{vFL}, s{sCLS}")
            E("s_mov_b32 exec_lo, -1")
        E(f"v_lshlrev_b32 v{vFL}, 2, v{vFL}")
    def get_class():
        if a.dcls:
            E(f"s_mov_b32 s{sT0}, s{sCLS}")
            return
        E(f"s_and_b32 s{sT0}, s2, 7")
        E(f"s_lshl_b32 s{sT0}, s{sT0}, 2")
        E(f"s_lshr_b32 s{sT0}, {a.rtab}, s{sT0}")
        E(f"s_and_b32 s{sT0}, s{sT0}, 15")
    def t_cls_draw():
        E(f"s_cmp_lg_u32 s{sW}, 5")
        E("s_cbranch_scc1 L_nodraw")
        E(f"s_lshr_b32 s{sT0}, s2, 3")
        E(f"s_cmp_lg_u32 s{sT0}, {a.dclsm}")
        E("s_cbranch_scc1 L_nodraw")
        E(f"s_and_b32 s{sT0}, s2, 5")
        E(f"s_cmp_eq_u32 s{sT0}, 1")
        E("s_cbranch_scc1 L_nodraw")
        E(f"s_mov_b32 s{sCLS}, 1")
        E(f"s_atomic_add s{sCLS}, s[{sDB}:{sDB+1}], 128 glc")
        E.label("L_nodraw")
    def t_cls_pub():
        v = alloc("cp")
        E(f"s_cmp_lg_u32 s{sW}, 5")
        E("s_cbranch_scc1 L_nopub")
        E(f"s_lshr_b32 s{sT0}, s2, 3")
        E(f"s_cmp_lg_u32 s{sT0}, {a.dclsm}")
        E("s_cbranch_scc1 L_nopub")
        E("s_waitcnt lgkmcnt(0)")
        E(f"s_add_u32 s{sT1}, s{sCLS}, 5")
        E(f"s_cmp_lt_u32 s{sCLS}, 3")
        E(f"s_cselect_b32 s{sT1}, s{sCLS}, s{sT1}")
        E(f"s_bfe_u32 s{sT2}, s2, 0x10001")
        E(f"s_add_u32 s{sT2}, s{sT2}, 11")
        E(f"s_and_b32 s{sT0}, s2, 5")
        E(f"s_cmp_eq_u32 s{sT0}, 1")
        E(f"s_cselect_b32 s{sT1}, s{sT2}, s{sT1}")
        E(f"s_add_u32 s{sT1}, s{sT1}, 1")
        E(f"v_mov_b32 v{v}, s{sT1}")
        E(f"s_and_b32 s{sT0}, s2, 7")
        E(f"s_lshl_b32 s{sT0}, s{sT0}, 2")
        E("s_mov_b64 exec, 1")
        E(f"buffer_store_dword v{v}, off, {S4(sDB)}, s{sT0} offset:32 sc1", tag="extra")
        E("s_mov_b64 exec, -1")
        E.label("L_nopub")
    def t_cls_get():
        E(f"v_readlane_b32 s{sCLS}, v{vFL}, 32")
        E(f"s_sub_u32 s{sCLS}, s{sCLS}, 1")
    def fload():
        def fn():
            fladdr()
            E(f"buffer_load_dword v{vFL}, v{vFL}, {S4(sDB)}, 0 offen sc1", tag="flag")
        return ("flag", fn, False)
    TKL = QF
    def ticket():
        def fn():
            v = alloc("tk")
            E(f"v_mov_b32 v{v+1}, {TKL}")
            if a.dyn == 2:
                E(f"s_lshr_b32 s{sTKO}, s2, 3")
                E(f"s_cmp_lg_u32 s{sW}, 0")
                E("s_cbranch_scc1 L_notk")
                E(f"s_and_b32 s{sT0}, s2, 7")
                E(f"s_lshl_b32 s{sT0}, s{sT0}, 2")
                E(f"s_lshr_b32 s{sT0}, {a.rtab}, s{sT0}")
                E(f"s_and_b32 s{sT0}, s{sT0}, 15")
                E(f"s_cmp_ge_u32 s{sT0}, 8")
                E("s_cbranch_scc1 L_notk")
                E(f"s_lshl_b32 s{sT0}, s{sT0}, 6")
                E(f"s_add_u32 s{sT0}, s{sT0}, 64")
                E(f"s_mov_b32 s{sTKO}, 1")
                E(f"s_atomic_add s{sTKO}, s[{sDB}:{sDB+1}], s{sT0} glc")
            else:
                E(f"s_cmp_lg_u32 s{sW}, 0")
                E("s_cbranch_scc1 L_notk")
                E(f"v_mov_b32 v{v}, 1")
                E(f"s_and_b32 s{sTKO}, s2, 7")
                E(f"s_lshl_b32 s{sTKO}, s{sTKO}, 4")
                E("s_mov_b64 exec, 1")
                E(f"buffer_atomic_add v{v}, off, {S4(sDB)}, s{sTKO} offset:128 sc0", tag="extra")
                E("s_mov_b64 exec, -1")
            E.label("L_notk")
        return ("tk", fn, True)
    def l2pf_outer():
        def fn():
            vPF = vS + 13
            E(f"s_and_b32 s{sT0}, s2, 7")
            E(f"s_lshl_b32 s{sT0}, s{sT0}, 2")
            E(f"s_lshr_b32 s{sT0}, {a.rtab}, s{sT0}")
            E(f"s_and_b32 s{sT0}, s{sT0}, 15")
            E(f"s_lshr_b32 s{sT1}, s2, 3")
            E(f"s_mov_b32 s{sWF+2}, {640*3456}")
            E(f"s_mov_b32 s{sWF+3}, 0x20000")
            E(f"s_cmp_ge_u32 s{sT0}, 8")
            E("s_cbranch_scc1 L_l2b")
            E(f"s_cmp_ge_u32 s{sW}, 3")
            E("s_cbranch_scc1 L_nol2")
            E(f"s_mov_b32 s{sWF}, s16")
            E(f"s_and_b32 s{sWF+1}, s17, 0xffff")
            E(f"s_mul_i32 s{sT2}, s{sT0}, {9*128}")
            E(f"s_mul_i32 s{sT0}, s{sW}, {3*128}")
            E(f"s_add_u32 s{sT2}, s{sT2}, s{sT0}")
            E(f"s_mul_i32 s{sT1}, s{sT1}, {20*3456}")
            E(f"s_add_u32 s{sT2}, s{sT2}, s{sT1}")
            E(f"v_mul_u32_u24 v{vPF}, 43, v{vL}")
            E(f"v_lshrrev_b32 v{vPF}, 7, v{vPF}")
            E(f"v_mul_u32_u24 v{vPF}, {3456-384}, v{vPF}")
            E(f"v_lshl_add_u32 v{vPF}, v{vL}, 7, v{vPF}")
            E(f"s_mov_b32 exec_hi, 0xfffffff")
            E("s_branch L_l2go")
            E.label("L_l2b")
            E(f"s_cmp_ge_u32 s{sW}, 2")
            E("s_cbranch_scc1 L_nol2")
            E(f"s_mov_b32 s{sWF}, s18")
            E(f"s_and_b32 s{sWF+1}, s19, 0xffff")
            E(f"s_sub_u32 s{sT0}, s{sT0}, 8")
            E(f"s_lshl_b32 s{sT0}, s{sT0}, 1")
            E(f"s_add_u32 s{sT2}, s{sT0}, s{sW}")
            E(f"s_lshl_b32 s{sT2}, s{sT2}, 7")
            E(f"s_mul_i32 s{sT1}, s{sT1}, {54*1280}")
            E(f"s_add_u32 s{sT2}, s{sT2}, s{sT1}")
            E(f"v_mul_u32_u24 v{vPF}, 1280, v{vL}")
            E(f"s_mov_b32 exec_hi, 0x3fffff")
            E.label("L_l2go")
            E(f"buffer_load_dword v{vPF}, v{vPF}, {S4(sWF)}, s{sT2} offen", tag="extra")
            E("s_mov_b64 exec, -1")
            E.label("L_nol2")
        return fn
    t_l2pf = l2pf_outer()
    sPO, sPC, sPD = 21, 24, 25
    def t_spf0():
        E(f"s_and_b32 s{sT0}, s2, 7")
        E(f"s_lshl_b32 s{sT0}, s{sT0}, 2")
        E(f"s_lshr_b32 s{sT0}, {a.rtab}, s{sT0}")
        E(f"s_and_b32 s{sPC}, s{sT0}, 15")
        E(f"s_lshr_b32 s{sT1}, s2, 3")
        E(f"s_mov_b32 s{sWF+2}, {640*3456}")
        E(f"s_mov_b32 s{sWF+3}, 0x20000")
        E(f"s_mul_i32 s{sT2}, s{sT1}, 20")
        E(f"s_add_u32 s{sT2}, s{sT2}, s{sW}")
        E(f"s_mul_i32 s{sT2}, s{sT2}, 3456")
        E(f"s_mul_i32 s{sT0}, s{sPC}, 1152")
        E(f"s_add_u32 s{sT2}, s{sT2}, s{sT0}")
        E(f"s_mul_i32 s{sT3}, s{sT1}, 54")
        E(f"s_add_u32 s{sT3}, s{sT3}, s{sW}")
        E(f"s_mul_i32 s{sT3}, s{sT3}, 1280")
        E(f"s_sub_u32 s{sT0}, s{sPC}, 8")
        E(f"s_lshl_b32 s{sT0}, s{sT0}, 8")
        E(f"s_add_u32 s{sT3}, s{sT3}, s{sT0}")
        E(f"s_cmp_lt_u32 s{sPC}, 8")
        E(f"s_cselect_b32 s{sPO}, s{sT2}, s{sT3}")
        E(f"s_cselect_b32 s{sWF}, s16, s18")
        E(f"s_cselect_b32 s{sWF+1}, s17, s19")
        E(f"s_and_b32 s{sWF+1}, s{sWF+1}, 0xffff")
    def t_spf(part):
        def fn():
            E(f"s_cmp_lt_u32 s{sPC}, 8")
            E(f"s_cbranch_scc0 L_spb{part}")
            if part == 2:
                E(f"s_cmp_ge_u32 s{sW}, 4")
                E(f"s_cbranch_scc1 L_spe{part}")
            for ln in range(9 if not a.endpf & 1 else 0):
                for hf in range(a.sphalf):
                    E(f"s_buffer_load_dword s{sPD}, {S4(sWF)}, s{sPO} offset:{part*8*3456 + ln*128 + hf*64}")
            E(f"s_branch L_spe{part}")
            E.label(f"L_spb{part}")
            for k in (([0, 1, 2], [3, 4], [5, 6])[part] if not a.endpf & 2 else []):
                for ln in range(2):
                    for hf in range(a.sphalf):
                        E(f"s_buffer_load_dword s{sPD}, {S4(sWF)}, s{sPO} offset:{k*8*1280 + ln*128 + hf*64}")
            E.label(f"L_spe{part}")
        return fn
    sEO, sEM = 14, 15
    sES = 36
    def t_epf_prep():
        k_ = next(k for k in free if not (125 <= 4 * k < 204))
        free.remove(k_); free.appendleft(k_)
        v = alloc("epf")
        get_class()
        E(f"s_lshr_b32 s{sT1}, s2, 3")
        E(f"s_mul_i32 s{sT2}, s{sT1}, {20*3456}")
        E(f"s_mul_i32 s{sT3}, s{sT0}, 1152")
        E(f"s_add_u32 s{sT2}, s{sT2}, s{sT3}")
        E(f"s_mul_i32 s{sT3}, s{sT1}, {54*1280}")
        E(f"s_sub_u32 s{sT1}, s{sT0}, 8")
        E(f"s_lshl_b32 s{sT1}, s{sT1}, 8")
        E(f"s_add_u32 s{sT3}, s{sT3}, s{sT1}")
        E(f"s_mul_i32 s{sT1}, s{sW}, 23")
        E(f"v_add_u32 v{v}, s{sT1}, v{vL}")
        E(f"v_mul_u32_u24 v{v+1}, 7282, v{v}")
        E(f"v_lshrrev_b32 v{v+1}, 16, v{v+1}")
        E(f"v_mul_u32_u24 v{v+1}, {3456-1152}, v{v+1}")
        E(f"v_lshl_add_u32 v{v+1}, v{v}, 7, v{v+1}")
        E(f"s_mul_i32 s{sT1}, s{sW}, 14")
        E(f"v_add_u32 v{v}, s{sT1}, v{vL}")
        E(f"v_lshrrev_b32 v{v+2}, 1, v{v}")
        E(f"v_mul_u32_u24 v{v+2}, {1280-256}, v{v+2}")
        E(f"v_lshl_add_u32 v{v+2}, v{v}, 7, v{v+2}")
        E(f"s_cmp_lt_u32 s{sT0}, 8")
        E(f"s_cselect_b32 s{sEO}, s{sT2}, s{sT3}")
        E(f"s_mov_b32 s{sEM}, {(1 << 14) - 1 if (a.endpf & 2 and not a.hyb) else 1}")
        E(f"s_cselect_b32 s{sEM}, {(1 << 23) - 1 if a.endpf & 1 else 1}, s{sEM}")
        E(f"s_cselect_b32 s{sES}, s16, s18")
        E(f"s_cselect_b32 s{sES+1}, s17, s19")
        E(f"s_cselect_b64 vcc, -1, 0")
        E(f"s_and_b32 s{sES+1}, s{sES+1}, 0xffff")
        E(f"s_mov_b32 s{sES+2}, {640*3456}")
        E(f"s_mov_b32 s{sES+3}, 0x20000")
        E(f"v_cndmask_b32 v{v}, v{v+2}, v{v+1}, vcc")
    def epf():
        def fn():
            v = slot_of["epf"]
            E(f"s_mov_b32 exec_lo, s{sEM}")
            E(f"s_mov_b32 exec_hi, 0")
            E(f"buffer_load_dword v{v+3}, v{v}, {S4(sES)}, s{sEO} offen", tag="epf")
            E("s_mov_b64 exec, -1")
        return ("epf", fn, False)
    def prio(k, lo, hi):
        def fn():
            E(f"s_cmp_ge_u32 s{sW}, 4")
            E(f"s_cbranch_scc1 L_pr{k}a")
            E(f"s_setprio {lo}")
            E(f"s_branch L_pr{k}b")
            E.label(f"L_pr{k}a")
            E(f"s_setprio {hi}")
            E.label(f"L_pr{k}b")
        return ("tk", fn, False)
    loads = []
    qi = 0
    for f in range(a.nk0, 32):
        want = min(20, (f - a.nk0 + 1) * 20 // (a.qspan - a.nk0 + 1) + 1)
        while qi < want:
            loads.append(qload(qi)); qi += 1
        loads.append(kload(f))
    while qi < 20:
        loads.append(qload(qi)); qi += 1
    nmid = 20 - a.otail
    oi = 0
    for f in range(32):
        loads.append(vload(f))
        if f == a.fpos and not a.noflag: loads.append(fload())
        if f == a.prio: loads.append(prio(0, 0, 1))
        if f == a.tkpos and a.dyn: loads.append(ticket())
        want = max(0, (f + 1 - a.ostart)) * nmid // (32 - a.ostart)
        while oi < want:
            loads.append(oload(oi)); oi += 1
    while oi < 20:
        loads.append(oload(oi)); oi += 1
    if a.endpf and a.epos >= 0: loads.insert(len(loads) - a.epos, epf())

    vRW, vRR = vXS, vXC
    def t_setup():
        E(f"s_mov_b32 s{sSPIN}, 0x40000")
        E(f"s_mov_b32 s{sLO8}, 0x00ff00ff")
        E(f"s_mov_b32 s{sLO8+1}, 0x00ff00ff")
        E(f"v_mul_u32_u24 v{vWO}, 40960, v{vJ}")
        E(f"v_and_b32 v{vB0}, 1, v{vN}")
        E(f"v_lshrrev_b32 v{vB0+1}, 1, v{vN}")
        E(f"v_lshl_add_u32 v{vWO}, v{vN}, 4, v{vWO}")
        E(f"v_lshlrev_b32 v{vB0}, 4, v{vB0}")
        E(f"v_mov_b32 v{vB0+2}, 0xffff")
        E(f"v_lshlrev_b32 v{vB0}, v{vB0}, v{vB0+2}")
        E(f"v_and_b32 v{vB0+1}, 3, v{vB0+1}")
        for w in range(4):
            E(f"v_cmp_eq_u32 vcc, {w}, v{vB0+1}")
            E(f"v_cndmask_b32 v{vM+w}, 0, v{vB0}, vcc")
        E(f"v_lshrrev_b32 v{vB0}, 3, v{vN}")
        E(f"s_lshl_b32 s{sT0}, s{sW}, 1")
        E(f"v_add_u32 v{vB0}, s{sT0}, v{vB0}")
        E(f"v_mul_u32_u24 v{vRW}, 528, v{vB0}")
        E(f"v_and_b32 v{vB0}, 7, v{vN}")
        E(f"v_lshl_add_u32 v{vRW}, v{vB0}, 6, v{vRW}")
        E(f"v_lshl_add_u32 v{vRW}, v{vJ}, 4, v{vRW}")
        E(f"v_mul_u32_u24 v{vRR}, 528, v{vN}")
        E(f"v_lshl_add_u32 v{vRR}, v{vJ}, 4, v{vRR}")
        E(f"s_lshl_b32 s{sT0}, s{sW}, 6")
        E(f"v_add_u32 v{vRR}, s{sT0}, v{vRR}")
    f0 = 8
    vMEAN, vRCP = 18, 19
    def t_ln1a():
        stamp(1)
        unpack10(E, xs_raw, f0)
        ln_stats(E, f0, 20, 21, 22, vMEAN, vRCP)
    def t_ln1b():
        if not a.qp2: unpack10(E, xc_raw, f0)
        for i in range(10): E(f"v_sub_f32 v{f0+i}, v{f0+i}, v{vMEAN}")
        bf16r_many(E, range(f0, f0 + 10))
        for i in range(10): E(f"v_mul_f32 v{f0+i}, v{f0+i}, v{vRCP}")
        if not a.qp2:
            for i in range(10): E(f"v_cvt_pk_bf16_f32 v{vS+i}, v{f0+i}, v{f0+i}")
            return
        for i in range(5): E(f"v_cvt_pk_bf16_f32 v{vS+i}, v{f0+2*i}, v{f0+2*i+1}")
        E(f"s_mul_i32 s{sT0}, s{sW}, 2816")
        E(f"v_mul_u32_u24 v20, 20, v{vL}")
        E(f"v_add_u32 v20, s{sT0}, v20")
        for i in range(5): E(f"ds_write_b32 v20, v{vS+i} offset:{WT+4*i}")
        if a.qrot:
            for i in range(5): E(f"ds_write_b32 v20, v{vS+i} offset:{WT+1280+4*i}")
        E(f"v_lshrrev_b32 v21, 3, v{vN}")
        E(f"v_lshlrev_b32 v21, 6, v21")
        E(f"v_lshl_add_u32 v21, v{vJ}, 1, v21")
        E(f"s_mul_i32 s{sT0}, s{sW}, 2824")
        if a.qrot:
            E(f"s_mul_i32 s{sT1}, s{sB}, 10")
            E(f"s_lshr_b32 s{sT1}, s{sT1}, 3")
            E(f"s_lshl_b32 s{sT1}, s{sT1}, 7")
            E(f"s_add_u32 s{sT0}, s{sT0}, s{sT1}")
        E(f"v_add_u32 v21, s{sT0}, v21")
        E("s_waitcnt lgkmcnt(0)")
        for i in range(10): E(f"ds_read_u16 v{vS+i}, v21 offset:{WT+128*i}")
        E("s_waitcnt lgkmcnt(0)")
        for i in range(10): E(f"v_lshl_or_b32 v{vS+i}, v{vS+i}, 16, v{vS+i}")
    def bfrag(dst, src):
        for w in range(4): E(f"v_and_b32 v{dst+w}, v{src}, v{vM+w}")
    def t_pair(t, pre):
        def fn():
            B = vB0 if t % 2 == 0 else vB1
            bfrag(B, vS + t)
            c1 = "0" if t == 0 else r4(vD1)
            c2 = "0" if t == 0 else r4(vD2)
            E(f"v_mfma_f32_16x16x32_bf16 {r4(vD1)}, {r4(slot_of[f'{pre}{2*t}'])}, {r4(B)}, {c1}")
            E(f"v_mfma_f32_16x16x32_bf16 {r4(vD2)}, {r4(slot_of[f'{pre}{2*t+1}'])}, {r4(B)}, {c2}")
        return fn
    def red_a():
        for r in range(4):
            E(f"v_cndmask_b32 v{vD1+r}, v{vD2+r}, v{vD1+r}, s[{sLO8}:{sLO8+1}]")
        E(f"ds_write_b128 v{vRW}, {r4(vD1)} offset:{RED}")
    def t_bar():
        E("s_waitcnt lgkmcnt(0)")
        E("s_barrier")
    def red_b(dst, mid=None):
        E(f"ds_read_b128 {r4(dst)}, v{vRR} offset:{RED}")
        if mid: mid()
        E("s_waitcnt lgkmcnt(0)")
        row_reduce(E, [dst + i for i in range(4)])
        for i in range(4): E(f"v_cvt_pk_bf16_f32 v{dst+i}, v{dst+i}, v{dst+i}")
    def t_qr2():
        E(f"v_lshlrev_b32 v{vB1}, 6, v{vJ}")
        E(f"s_lshl_b32 s{sT0}, s{sW}, 1")
        E(f"v_add_u32 v{vB1}, s{sT0}, v{vB1}")
        red_b(vB0)
        E(f"s_mov_b32 exec_lo, 0x00010001")
        E(f"s_mov_b32 exec_hi, 0x00010001")
        for i in range(4): E(f"ds_write_b16 v{vB1}, v{vB0+i} offset:{QF+16*i}")
        E("s_mov_b64 exec, -1")
        E(f"v_lshlrev_b32 v{vB1}, 4, v{vN}")
    def t_qr3():
        E(f"ds_read_b128 {r4(vQ)}, v{vB1} offset:{QF}")
        E("s_waitcnt lgkmcnt(0)")
        stamp(2)
    def t_k2(t):
        def fn():
            ks = [slot_of[f"k{2*t+i}"] for i in range(4)]
            acc = [vB0 + i for i in range(4)]
            for i in range(4):
                for u in range(4):
                    E(f"v_dot2_f32_bf16 v{acc[u]}, v{ks[u]+i}, v{vQ+i}, {'0' if i == 0 else 'v%d' % acc[u]}")
            s0, s1 = vS + t, vS + t + 1
            E(f"v_add_f32_dpp v{s0}, v{acc[0]}, v{acc[0]} row_ror:8 row_mask:0xf bank_mask:0x3")
            E(f"v_add_f32_dpp v{s0}, v{acc[1]}, v{acc[1]} row_ror:8 row_mask:0xf bank_mask:0xc")
            E(f"v_add_f32_dpp v{s1}, v{acc[2]}, v{acc[2]} row_ror:8 row_mask:0xf bank_mask:0x3")
            E(f"v_add_f32_dpp v{s1}, v{acc[3]}, v{acc[3]} row_ror:8 row_mask:0xf bank_mask:0xc")
            for mod in ("row_half_mirror", "quad_perm:[1,0,3,2]", "quad_perm:[2,3,0,1]"):
                for s in (s0, s1):
                    E(f"v_add_f32_dpp v{s}, v{s}, v{s} {mod} row_mask:0xf bank_mask:0xf")
            bf16r_many(E, [s0, s1])
            E(f"v_mul_f32 v{s0}, {SCALE:#x}, v{s0}")
            E(f"v_mul_f32 v{s1}, {SCALE:#x}, v{s1}")
            bf16r_many(E, [s0, s1])
        return fn
    m, l = vD1, vD1 + 1
    def t_sm1():
        E(f"v_max3_f32 v{m}, v{vS}, v{vS+1}, v{vS+2}")
        for i in range(3, 15, 2): E(f"v_max3_f32 v{m}, v{m}, v{vS+i}, v{vS+i+1}")
        E(f"v_max_f32 v{m}, v{m}, v{vS+15}")
        for i in range(16): E(f"v_sub_f32 v{vS+i}, v{vS+i}, v{m}")
        for i in range(16): E(f"v_mul_f32 v{vS+i}, {LOG2E:#x}, v{vS+i}")
        for i in range(16): E(f"v_exp_f32 v{vS+i}, v{vS+i}")
        E(f"v_add_f32 v{l}, v{vS}, v{vS+1}")
        E(f"v_add_f32 v{vB0}, v{vS+2}, v{vS+3}")
        for i in range(4, 16, 2):
            E(f"v_add_f32 v{l}, v{l}, v{vS+i}")
            E(f"v_add_f32 v{vB0}, v{vB0}, v{vS+i+1}")
        E(f"v_add_f32 v{l}, v{l}, v{vB0}")
        E(f"v_and_b32 v{vB0}, 56, v{vL}")
        E(f"s_lshl_b32 s{sT0}, s{sW}, 6")
        E(f"v_add_u32 v{vB0}, s{sT0}, v{vB0}")
        E(f"ds_write_b64 v{vB0}, {r2(m)} offset:{ML}")
        E(f"v_lshlrev_b32 v{vB0}, 3, v{vL}")
        stamp(3)
    def t_smb():
        E("s_waitcnt lgkmcnt(0)")
        E("s_barrier")
        stamp(4)
    def t_sm2():
        mg, lg = vD2, vD2 + 1
        E(f"ds_read_b64 {r2(mg)}, v{vB0} offset:{ML}")
        E("s_waitcnt lgkmcnt(0)")
        E(f"v_mov_b32 v{vB0}, v{mg}")
        wave_reduce(E, vB0, sT0, "v_max_f32")
        E(f"v_subrev_f32 v{mg}, s{sT0}, v{mg}")
        E(f"v_subrev_f32 v{m}, s{sT0}, v{m}")
        E(f"v_mul_f32 v{mg}, {LOG2E:#x}, v{mg}")
        E(f"v_mul_f32 v{m}, {LOG2E:#x}, v{m}")
        E(f"v_exp_f32 v{mg}, v{mg}")
        E(f"v_exp_f32 v{m}, v{m}")
        E(f"v_mul_f32 v{lg}, v{lg}, v{mg}")
        wave_reduce(E, lg, sT1)
        E(f"v_rcp_f32 v{l}, s{sT1}")
        E(f"v_mul_f32 v{m}, v{m}, v{l}")
        for i in range(16): E(f"v_mul_f32 v{vS+i}, v{vS+i}, v{m}")
        for i in range(16): E(f"v_cvt_pk_bf16_f32 v{vS+i}, v{vS+i}, v{vS+i}")
    Bs = [vB0, vB1, vD1, vD2]
    vA, vA2, vA3 = vQ, vQ + 1, vQ + 2
    vFL2 = vD2 + 2
    vA4 = vQ + 3
    sVA = 22
    def t_pre_tail():
        E(f"v_and_b32 v{vA}, 7, v{vL}")
        E(f"v_mul_u32_u24 v{vA}, 80, v{vA}")
        E(f"v_lshl_add_u32 v{vA}, v{vJ}, 4, v{vA}")
        E(f"s_mul_i32 s{sT0}, s{sW}, {YPS}")
        E(f"v_add_u32 v{vA}, s{sT0}, v{vA}")
        for k, (dst, add) in enumerate(((vA2, 0), (vA3, 480))):
            E(f"s_mul_i32 s{sT0}, s{sW}, 60")
            E(f"s_add_u32 s{sT0}, s{sT0}, {add}")
            E(f"v_mul_u32_u24 v{vA4}, 15, v{vJ}")
            E(f"v_add3_u32 v{vA4}, v{vA4}, v{vN}, s{sT0}")
            if k == 1:
                E(f"s_mov_b32 s{sT1}, 640")
                E(f"v_cmp_gt_u32 s[{sVA}:{sVA+1}], s{sT1}, v{vA4}")
            E(f"v_min_u32 v{vA4}, 639, v{vA4}")
            E(f"v_lshrrev_b32 v{dst}, 7, v{vA4}")
            E(f"v_mul_u32_u24 v{dst}, 640, v{dst}")
            E(f"v_and_b32 v{vFL2}, 7, v{vA4}")
            E(f"v_mul_u32_u24 v{vFL2}, 80, v{vFL2}")
            E(f"v_add_u32 v{dst}, v{dst}, v{vFL2}")
            E(f"v_bfe_u32 v{vFL2}, v{vA4}, 3, 4")
            E(f"v_lshl_add_u32 v{dst}, v{vFL2}, 2, v{dst}")
        E(f"v_lshlrev_b32 v{vA4}, 2, v{vL}")
    def t_role():
        get_class()
        if a.dyn: E(f"s_mov_b32 s{sT1}, s{sTKO}")
        else: E(f"s_lshr_b32 s{sT1}, s2, 3")
        E(f"s_mul_i32 s{sT2}, s{sT0}, 9")
        E(f"s_add_u32 s{sT2}, s{sT2}, s{sT1}")
        E(f"s_add_u32 s{sT2}, s{sT2}, {NF2}")
        E(f"s_cmp_lt_u32 s{sT1}, 9")
        E(f"s_cselect_b32 s{sT2}, s{sT2}, 255")
        E(f"s_sub_u32 s{sT3}, s{sT0}, 8")
        E(f"s_mul_i32 s{sT3}, s{sT3}, {8 // NC}")
        E(f"s_add_u32 s{sT3}, s{sT3}, s{sT1}")
        E(f"s_cmp_lt_u32 s{sT1}, {8 // NC}")
        E(f"s_cselect_b32 s{sT3}, s{sT3}, 255")
        E(f"s_cmp_lt_u32 s{sT0}, 8")
        E(f"s_cselect_b32 s{sTILE}, s{sT2}, s{sT3}")
    def t_flag():
        E(f"v_cmp_eq_u32 vcc, 0, v{vFL}")
        E.flush()
        E("s_cbranch_vccz L_flagok")
        E.label("L_flag")
        E("s_sleep 2")
        fladdr()
        E(f"buffer_load_dword v{vFL}, v{vFL}, {S4(sDB)}, 0 offen sc1", tag="extra")
        E("s_waitcnt vmcnt(0)")
        E(f"v_cmp_eq_u32 vcc, 0, v{vFL}")
        E.flush()
        E("s_cbranch_vccz L_flagok")
        spin("L_flagok")
        E("s_branch L_flag")
        E.label("L_flagok")
    sDO, sDL = 21, 24
    vDM1 = vFL
    def t_dmaprep():
        tmp = alloc("tmpd")
        E(f"s_mov_b32 s{sWF}, s16")
        E(f"s_and_b32 s{sWF+1}, s17, 0xffff")
        E(f"s_mov_b32 s{sWF+2}, {640*3456}")
        E(f"s_mov_b32 s{sWF+3}, 0x20000")
        E(f"v_lshrrev_b32 v{vDM1}, 3, v{vL}")
        E(f"v_mul_u32_u24 v{vDM1}, 3456, v{vDM1}")
        E(f"v_and_b32 v{tmp}, 1, v{vJ}")
        E(f"v_lshlrev_b32 v{tmp}, 2, v{tmp}")
        E(f"s_and_b32 s{sT0}, s{sW}, 1")
        E(f"s_lshl_b32 s{sT1}, s{sT0}, 1")
        E(f"v_xor_b32 v{tmp}, s{sT1}, v{tmp}")
        E(f"v_xor_b32 v{tmp}, v{vL}, v{tmp}")
        E(f"v_and_b32 v{tmp}, 7, v{tmp}")
        E(f"v_lshl_add_u32 v{vDM1}, v{tmp}, 4, v{vDM1}")
        E(f"s_lshr_b32 s{sT1}, s{sW}, 1")
        E(f"s_mul_i32 s{sT1}, s{sT1}, 15")
        E(f"s_lshl_b32 s{sT0}, s{sT0}, 3")
        E(f"s_add_u32 s{sT1}, s{sT1}, s{sT0}")
        E(f"s_mul_i32 s{sT1}, s{sT1}, 3456")
        E(f"s_mov_b32 s{sDO}, s{sT1}")
        E(f"s_lshl_b32 s{sDL}, s{sW}, 10")
        E(f"s_add_u32 s{sDL}, s{sDL}, {WT}")
    def t_ypw():
        stamp(7)
        E(f"s_mov_b64 exec, s[{sLO8}:{sLO8+1}]")
        for cg in range(5):
            if a.orot: E(f"ds_write_b128 v{ypa(cg)}, {r4(slot_of[f'y{cg}'])} offset:{YP}")
            else: E(f"ds_write_b128 v{vA}, {r4(slot_of[f'y{cg}'])} offset:{YP+cg*640}")
        E("s_mov_b64 exec, -1")
    def ypa(cg): return vA if cg == 4 else slot_of["ya"] + cg
    def t_ypaddr():
        alloc("ya")
        E(f"s_mul_i32 s{sT0}, s{sB}, 5")
        E(f"s_lshr_b32 s{sT0}, s{sT0}, 3")
        E(f"s_mul_i32 s{sT0}, s{sT0}, 640")
        for cg in range(5):
            E(f"v_add_u32 v{ypa(cg)}, s{sT0}, v{vA}")
            if cg < 4:
                E(f"s_add_u32 s{sT0}, s{sT0}, 640")
                E(f"s_cmp_ge_u32 s{sT0}, 3200")
                E(f"s_cselect_b32 s{sT0}, 0, s{sT0}")
    def t_or1():
        stamp(5)
        if a.dyn == 2:
            E("s_waitcnt lgkmcnt(0)")
            E(f"v_mov_b32 v{slot_of['tk']}, s{sTKO}")
        red_a()
        if a.dyn:
            E(f"s_cmp_eq_u32 s{sW}, 0")
            E("s_cselect_b32 exec_lo, 1, 0")
            E("s_mov_b32 exec_hi, 0")
            E(f"ds_write_b32 v{slot_of['tk']+1}, v{slot_of['tk']}")
            E("s_mov_b64 exec, -1")
        t_bar()
        stamp(6)
    def t_or2():
        if a.dyn: E(f"ds_read_b32 v{slot_of['tk']}, v{slot_of['tk']+1}")
        red_b(vS, epf()[1] if (a.endpf and a.epos == -2) else None)
        bfrag(Bs[0], vS)
        for cg in range(5): alloc(f"y{cg}")
    def t_y(f):
        def fn():
            fp, cg = divmod(f, 5) if not a.orot else (f % 4, f // 4)
            y = slot_of[f"y{cg}"]
            c = "0" if fp == 0 else r4(y)
            E(f"v_mfma_f32_16x16x32_bf16 {r4(y)}, {r4(slot_of[f'wo{f}'])}, {r4(Bs[fp])}, {c}")
            if fp < 3 and cg < 4: E(f"v_and_b32 v{Bs[fp+1]+cg}, v{vS+fp+1}, v{vM+cg}")
            if a.dyn and f == 4: E(f"v_readfirstlane_b32 s{sTKO}, v{slot_of['tk']}")
            if a.dyn and f == 9: t_role()
        return fn
    tasks = []
    if a.init0: tasks.append(Task(t_init, atomic=True))
    tasks.append(Task(t_setup))
    tasks.append(Task(t_ln1a, ["xs"], cost=3))
    tasks.append(Task(t_ln1b, [] if a.qp2 else ["xc"], cost=2))
    for t in range(10):
        tasks.append(Task(t_pair(t, "wq"), [f"wq{2*t+1}"], frees=[f"wq{2*t}", f"wq{2*t+1}"]))
        if t == 1 and not a.init0: tasks.append(Task(t_init, atomic=True))
        if t == 5: tasks.append(Task(t_flagset, ["wq11"], frees=["z0", "z1", "z2", "z3"], atomic=True))
        if t == a.l2pf and not a.spf and not a.nodma: tasks.append(Task(t_l2pf, atomic=True))
        if a.spf and a.nodma < 2 and a.endpf != 3:
            if t == 0: tasks.append(Task(t_spf0, atomic=True))
            if t in (2, 4, 6): tasks.append(Task(t_spf(t // 2 - 1), atomic=True))
    tasks.append(Task(red_a))
    tasks.append(Task(t_bar, barrier=a.bd1))
    tasks.append(Task(t_qr2))
    tasks.append(Task(t_bar, barrier=a.bd2))
    tasks.append(Task(t_qr3))
    if a.dcls: tasks.append(Task(t_cls_draw, atomic=True))
    for t in range(0, 16, 2):
        tasks.append(Task(t_k2(t), [f"k{2*t+3}"], frees=[f"k{2*t+i}" for i in range(4)], cost=2))
        if a.dcls and t == 4: tasks.append(Task(t_cls_pub, frees=["cp"], atomic=True))
    tasks.append(Task(t_sm1, cost=2))
    tasks.append(Task(t_smb, barrier=a.bd3))
    tasks.append(Task(t_sm2, cost=2))
    tasks.append(Task(t_pre_tail))
    if not a.dyn and not a.dcls: tasks.append(Task(t_role, atomic=True))
    if a.endpf and not a.dcls: tasks.append(Task(t_epf_prep, atomic=True))
    for t in range(16):
        tasks.append(Task(t_pair(t, "v"), [f"v{2*t+1}"], frees=[f"v{2*t}", f"v{2*t+1}"], cost=0.5))
        if t == 9:
            if not a.noflag: tasks.append(Task(t_flag, ["flag"], atomic=True))
            if a.dcls:
                tasks.append(Task(t_cls_get, atomic=True))
                tasks.append(Task(t_role, atomic=True))
                tasks.append(Task(t_epf_prep, atomic=True))
            tasks.append(Task(t_dmaprep, frees=["tmpd"]))
            if a.orot: tasks.append(Task(t_ypaddr, atomic=True))
    tasks.append(Task(t_or1, barrier=99))
    tasks.append(Task(t_or2))
    yorder = range(20) if not a.orot else [4 * cg + fp for fp in range(4) for cg in range(4)] + [16, 17, 18, 19]
    for f in yorder: tasks.append(Task(t_y(f), [f"wo{f}"], cost=0.25))
    tasks.append(Task(t_ypw))

    issued = {"xs", "xc"} | {f"k{f}" for f in range(a.nk0)}
    pend = deque(tasks)
    def ready(t): return all(n in issued and n not in E.vm for n in t.needs)
    def start(t):
        if t.q is None:
            for n in t.needs:
                assert n in issued, n
                if n in E.vm: E.wait_vm(n)
            t.q = E.record(t.fn)
    def step(t, budget):
        start(t)
        n = 0
        masked = False
        while t.q and (t.atomic or masked or n < budget):
            it = t.q.popleft(); E.play(it); n += 1
            if it[0] == "i" and "exec" in it[1].split(",")[0]:
                masked = not it[1].endswith("exec, -1")
        if not t.q:
            for x in t.frees: release(x)
        return n
    def run(t):
        step(t, 10**9)
    D = a.depth
    for i, (tag, fn, needs_slot) in enumerate(loads):
        while needs_slot and not free:
            run(pend.popleft())
        if tag == "epf":
            while any(t.fn is t_epf_prep for t in pend): run(pend.popleft())
            while pend[0].q is not None: run(pend.popleft())
        if tag == "flag" and a.dcls:
            while any(t.fn is t_cls_pub for t in pend): run(pend.popleft())
        if tag == "tk":
            while pend[0].q is not None: run(pend.popleft())
        lim = 63 if i < a.first else D
        if len(E.vm) >= lim:
            E(f"s_waitcnt vmcnt({lim-1})")
            E.vm = E.vm[len(E.vm) - (lim - 1):]
        fn(); issued.add(tag)
        if i + 1 < a.first: continue
        budget = a.budget
        while pend and budget > 0 and (pend[0].q is not None or ready(pend[0])):
            if pend[0].barrier > 0:
                pend[0].barrier -= 1
                break
            budget -= step(pend[0], budget)
            if not pend[0].q: pend.popleft()
    while pend: run(pend.popleft())
    assert set(E.vm) <= {"epf"}, E.vm
    E.vm = []
    E(f"s_mul_i32 s{sT0}, s{sB}, {HS}")
    E(f"s_lshl_b32 s{sT1}, s{sW}, 8")
    E(f"s_add_u32 s{sT0}, s{sT0}, s{sT1}")
    E(f"s_mov_b32 s{sT2}, 0x80008000")
    E(f"s_mov_b32 s{sT3}, 0x80008000")
    E("s_waitcnt lgkmcnt(0)")
    E("s_barrier")
    stamp(8)
    vP = vS
    for k, ad in enumerate((vA2, vA3)):
        for p in range(4):
            E(f"ds_read2st64_b32 {r2(vP+8*k+2*p)}, v{ad} offset0:{YP//256+26*p} offset1:{YP//256+26*p+13}")
    for k in range(2):
        b = vP + 8 * k
        if not a.ts: E(f"s_waitcnt lgkmcnt({4 if k == 0 else 0})")
        else: E("s_waitcnt lgkmcnt(0)")
        for st in (4, 2, 1):
            for p in range(st):
                E(f"v_add_f32 v{b+p}, v{b+p}, v{b+p+st}")
        if k == 1: E(f"v_cndmask_b32 v{b}, 0, v{b}, s[{sVA}:{sVA+1}]")
        E(f"v_cndmask_b32 v{b}, v{b}, 1.0, s[{sT2}:{sT3}]")
        if k == 1:
            E(f"s_cmp_ge_u32 s{sW}, 3")
            E("s_cbranch_scc1 L_arr")
        E(f"buffer_atomic_add_f32 v{b}, v{vA4}, {S4(sWS)}, s{sT0} offen offset:{2048*k}", tag="extra")
    E.label("L_arr")
    stamp(9)
    if a.endpf and a.epos == -1: epf()[1]()
    if a.hyb:
        E(f"s_cmp_lg_u32 s{sEM}, 1")
        E("s_cbranch_scc1 L_nohyb")
        E(f"s_mov_b32 s{sEM}, {(1 << 14) - 1}")
        epf()[1]()
        E.label("L_nohyb")
    if a.endpf: assert not (128 <= slot_of["epf"] - vF + 3 < 172), slot_of["epf"]
    E(f"s_cmp_ge_u32 s{sTILE}, {NF2 + NF1}")
    E("s_cbranch_scc1 L_fin")
    E(f"s_mov_b32 s{sWF+2}, {640*3456}")
    E(f"s_mov_b32 s{sWF+3}, 0x20000")
    E(f"s_cmp_lt_u32 s{sTILE}, {NF2}")
    E("s_cbranch_scc1 L_ffn2")

    vW = vF
    E(f"s_mov_b32 s{sROLE}, 1")
    E(f"s_sub_u32 s{sTILE}, s{sTILE}, {NF2}")
    E(f"s_mov_b32 s{sWF}, s16")
    E(f"s_and_b32 s{sWF+1}, s17, 0xffff")
    vDM, vX0 = vB0, vB0 + 1
    E(f"s_lshl_b32 s{sT0}, s{sTILE}, 7")
    E(f"s_add_u32 s{sDO}, s{sDO}, s{sT0}")
    xq = [vF + 172, vF + 174, vF + 176]
    if a.endpf: assert not (172 <= slot_of["epf"] - vF + 3 < 180)
    E(f"v_lshrrev_b32 v{vX0}, 2, v{vL}")
    E(f"v_mul_u32_u24 v{vX0}, 30, v{vX0}")
    E(f"v_and_b32 v{vX0+1}, 3, v{vL}")
    E(f"v_lshl_add_u32 v{vX0}, v{vX0+1}, 3, v{vX0}")
    E(f"s_mul_i32 s{sT0}, s{sW}, 1280")
    for i in range(3):
        E(f"buffer_load_dwordx2 {r2(xq[i])}, v{vX0}, {S4(sX)}, s{sT0} offen offset:{480*i}", tag="extra")
    if a.abar: E("s_barrier")
    stamp(10)
    late = True
    for t in range(11 if not a.nodma else 0):
        E(f"s_mov_b32 m0, s{sDL}")
        E(f"buffer_load_dwordx4 v{vDM1}, {S4(sWF)}, s{sDO} offen{fnt} lds", tag="extra")
        if t < 10:
            E(f"s_add_u32 s{sDO}, s{sDO}, {60*3456}")
            E(f"s_add_u32 s{sDL}, s{sDL}, 8192")
    if a.ts == 2: stamp(1)
    thr = struct.unpack("<I", struct.pack("<f", float(a.gate)))[0]
    if a.spec == 2:
        E(f"s_mul_i32 s{sT2}, s{sW}, {HS}")
        E(f"s_mul_i32 s{sT4}, s{sTILE}, {a.gstep}")
        E(f"s_and_b32 s{sT4}, s{sT4}, 0xffffffc0")
        E(f"s_add_u32 s{sT4}, s{sT4}, s{sT2}")
        E(f"buffer_load_dword v{vD2}, off, {S4(sWS)}, s{sT4} offset:60 sc1", tag="extra")
    hb = vF + 88
    ac = vF + 136
    xk = vF + 148
    hn = vF + 160
    for i in range(12): E(f"v_mov_b32 v{hn+i}, 0")
    for i in range(8, 11): E(f"v_mov_b32 v{ac+i}, 0")
    E(f"v_mov_b32 v{ac+11}, 0x42000000")
    sets2 = [vF + 180, vF + 192]
    if a.pp2:
        assert not (180 <= slot_of["epf"] - vF + 3 < 204)
        for b_ in sets2:
            for i in range(8, 11): E(f"v_mov_b32 v{b_+i}, 0")
            E(f"v_mov_b32 v{b_+11}, 0x42000000")
    vA = vB1
    E(f"v_lshlrev_b32 v{vA+2}, 3, v{vL}")
    E(f"s_mul_i32 s{sT1}, s{sW}, {HNS}")
    E(f"v_add_u32 v{vA+2}, s{sT1}, v{vA+2}")
    vTR1 = vQ
    E(f"v_lshlrev_b32 v{vTR1}, 10, v{vJ}")
    E(f"v_lshrrev_b32 v{vDM}, 2, v{vN}")
    E(f"v_lshl_add_u32 v{vTR1}, v{vDM}, 7, v{vTR1}")
    E(f"v_and_b32 v{vDM}, 2, v{vDM}")
    E(f"v_and_b32 v{vX0}, 1, v{vJ}")
    E(f"v_or_b32 v{vDM}, v{vDM}, v{vX0}")
    E(f"s_and_b32 s{sT0}, s{sW}, 3")
    E(f"v_xor_b32 v{vDM}, s{sT0}, v{vDM}")
    E(f"v_lshl_add_u32 v{vTR1}, v{vDM}, 5, v{vTR1}")
    E(f"v_and_b32 v{vDM}, 3, v{vN}")
    E(f"v_lshl_add_u32 v{vTR1}, v{vDM}, 3, v{vTR1}")
    E(f"v_add_u32 v{vTR1}, {WT}, v{vTR1}")
    E(f"v_add_u32 v{vTR1+1}, {11*4096}, v{vTR1}")
    E(f"v_and_b32 v{vA+3}, 7, v{vL}")
    E(f"v_mul_u32_u24 v{vA+3}, {HNS}, v{vA+3}")
    E(f"v_lshl_add_u32 v{vA+3}, v{vJ}, 4, v{vA+3}")
    E(f"v_lshrrev_b32 v{vDM}, 3, v{vN}")
    E(f"v_lshl_add_u32 v{vA+3}, v{vDM}, 6, v{vA+3}")
    E(f"v_lshlrev_b32 v{vA}, 5, v{vN}")
    E(f"v_lshl_add_u32 v{vA}, v{vJ}, 3, v{vA}")
    E(f"s_lshl_b32 s{sT3}, s{sTILE}, 2")
    E(f"s_add_u32 s{sT3}, s{sT3}, s{sW}")
    E(f"s_lshl_b32 s{sT3}, s{sT3}, 8")
    E(f"s_mul_i32 s{sT2}, s{sW}, {HS}")
    sM3, sCL = 12, 14
    E(f"s_mov_b32 s{sM3}, 0x77777777")
    E(f"s_mov_b32 s{sM3+1}, 0x77777777")
    E(f"s_mov_b32 s{sCL}, 0x88888888")
    E(f"s_mov_b32 s{sCL+1}, 0x88888888")
    def accload(ac=ac):
        E(f"buffer_load_dwordx4 {r4(ac)}, v{vL16}, {S4(sWS)}, s{sT2} offen sc1", tag="extra")
        E(f"buffer_load_dwordx4 {r4(ac+4)}, v{vL16}, {S4(sWS)}, s{sT2} offen offset:1024 sc1", tag="extra")
        E("s_mov_b32 exec_hi, 0xffff")
        E(f"buffer_load_dwordx4 {r4(ac+8)}, v{vL16}, {S4(sWS)}, s{sT2} offen offset:2048 sc1", tag="extra")
        E("s_mov_b32 exec_hi, -1")
    if a.ts == 2: stamp(2)
    E("s_waitcnt vmcnt(%d)" % (12 if a.spec == 2 and not a.nodma else 0))
    if a.ts == 2: stamp(3)
    for i in range(6):
        E(f"v_lshlrev_b32 v{xk+2*i}, 16, v{xq[i//2]+i%2}")
        E(f"v_and_b32 v{xk+2*i+1}, 0xffff0000, v{xq[i//2]+i%2}")
    sLO_, sHI_, sONE = 20, 21, 24
    vNI, vKM = hn + 6, hn + 7
    if a.ln2:
        E(f"s_mov_b32 s{sLO_}, 0x00003f80")
        E(f"s_mov_b32 s{sHI_}, 0x3f800000")
        E(f"s_mov_b32 s{sONE}, 0x3f803f80")
        E(f"v_mov_b32 v{vNI}, 0xbacccccd")
        E(f"v_mov_b32 v{vKM}, -1")
        E(f"v_mov_b32 v{vKM+1}, -1")
        E(f"v_mov_b32 v{vKM+2}, -1")
        E("s_mov_b32 exec_lo, 0")
        E(f"s_mov_b32 exec_hi, {0xffffffff ^ ((1 << 11) - 1):#x}")
        E(f"v_mov_b32 v{xk+8}, 0"); E(f"v_mov_b32 v{xk+9}, 0"); E(f"v_mov_b32 v{vKM+1}, 0")
        E(f"s_mov_b32 exec_hi, {0xffffffff ^ ((1 << 10) - 1):#x}")
        E(f"v_mov_b32 v{xk+10}, 0"); E(f"v_mov_b32 v{xk+11}, 0"); E(f"v_mov_b32 v{vKM+2}, 0")
        E(f"s_mov_b64 exec, s[{sCL}:{sCL+1}]")
        for i in (3, 7, 11): E(f"v_mov_b32 v{xk+i}, 0xc2000000")
        E(f"v_mov_b32 v{vKM}, 0xffff")
        E(f"v_and_b32 v{vKM+2}, 0xffff, v{vKM+2}")
        E("s_mov_b32 exec_lo, 0")
        E("s_mov_b32 exec_hi, 0xffff0000")
        E(f"v_mov_b32 v{xk+11}, 0xc2000000")
        E("s_mov_b64 exec, -1")
    if a.spec == 2:
        sSP = 25
        E("s_waitcnt vmcnt(0)")
        E(f"v_readfirstlane_b32 s{sSP}, v{vD2}")
        E(f"s_cmp_ge_u32 s{sSP}, {thr:#x}")
        E("s_cbranch_scc1 L_f1_sp")
        E(f"buffer_load_dword v{vD2}, off, {S4(sWS)}, s{sT4} offset:60 sc1", tag="extra")
        E("s_branch L_f1_sp2")
        E.label("L_f1_sp")
        accload()
        E.label("L_f1_sp2")
        E("s_barrier")
    else:
        E("s_barrier")
        if a.ts == 2: stamp(4)
        E(f"s_mul_i32 s{sT4}, s{sTILE}, {a.gstep}")
        E(f"s_and_b32 s{sT4}, s{sT4}, 0xffffffc0")
        E(f"s_add_u32 s{sT4}, s{sT4}, s{sT2}")
        if a.spec: accload()
        else: E(f"buffer_load_dword v{vD2}, off, {S4(sWS)}, s{sT4} offset:60 sc1", tag="extra")
    E(f"s_cmp_ge_u32 s{sW}, 4")
    E("s_cbranch_scc1 L_f1_notr")
    for t in range(22):
        o = (t % 11) * 4096
        E(f"ds_read_b64_tr_b16 {r2(vW+4*t)}, v{vTR1 + t//11} offset:{o}")
        E(f"ds_read_b64_tr_b16 {r2(vW+4*t+2)}, v{vTR1 + t//11} offset:{o+512}")
    stamp(11)
    E.label("L_f1_notr")
    if not a.spec: E("s_branch L_f1_gate")
    if a.spec == 2:
        E(f"s_cmp_lt_u32 s{sSP}, {thr:#x}")
        E("s_cbranch_scc1 L_f1_gate")
    if a.pp2:
        assert a.ln2 and not a.spec
        E.label("L_f1_regate")
        if a.sleep: E(f"s_sleep {a.sleep}")
        E(f"buffer_load_dword v{vD2}, off, {S4(sWS)}, s{sT4} offset:60 sc1", tag="extra")
        E.label("L_f1_gate")
        E("s_waitcnt vmcnt(0)")
        E(f"v_readfirstlane_b32 s{sT0}, v{vD2}")
        E(f"s_cmp_ge_u32 s{sT0}, {thr:#x}")
        E("s_cbranch_scc1 L_f1_full")
        spin("L_f1_full")
        E("s_branch L_f1_regate")
        E.label("L_f1_full")
        accload(sets2[0])
        E(f"s_cmp_ge_u32 s{sT0}, 0x42000000")
        E("s_cbranch_scc0 L_f1_two")
        E("s_waitcnt vmcnt(0)")
        E(f"v_min3_f32 v{vD1}, v{sets2[0]+3}, v{sets2[0]+7}, v{sets2[0]+11}")
        E(f"v_cmp_gt_f32 vcc, 0x42000000, v{vD1}")
        E(f"s_and_b64 vcc, vcc, s[{sCL}:{sCL+1}]")
        E("s_cbranch_scc0 L_f1_got0")
        accload(sets2[0])
        E.label("L_f1_two")
        E(f"s_sleep {a.pp2}")
        accload(sets2[1])
        E.label("L_f1_poll")
        for k in range(2):
            E("s_waitcnt vmcnt(3)")
            E(f"v_min3_f32 v{vD1}, v{sets2[k]+3}, v{sets2[k]+7}, v{sets2[k]+11}")
            E(f"v_cmp_gt_f32 vcc, 0x42000000, v{vD1}")
            E(f"s_and_b64 vcc, vcc, s[{sCL}:{sCL+1}]")
            E(f"s_cbranch_scc0 L_f1_got{k}")
            accload(sets2[k])
        spin("L_f1_got0")
        E("s_branch L_f1_poll")
        E.label("L_f1_got1")
        for i in range(6): E(f"v_cvt_pk_bf16_f32 v{hn+i}, v{sets2[1]+2*i}, v{sets2[1]+2*i+1}")
        E("s_branch L_f1_go")
        E.label("L_f1_got0")
        for i in range(6): E(f"v_cvt_pk_bf16_f32 v{hn+i}, v{sets2[0]+2*i}, v{sets2[0]+2*i+1}")
    else:
        E.label("L_f1_poll")
        E("s_waitcnt vmcnt(0)")
        E(f"v_min3_f32 v{vD1}, v{ac+3}, v{ac+7}, v{ac+11}")
        E(f"v_cmp_gt_f32 vcc, 0x42000000, v{vD1}")
        E(f"s_and_b64 vcc, vcc, s[{sCL}:{sCL+1}]")
        E("s_cbranch_scc0 L_f1_go")
        spin("L_f1_go")
        E(f"v_readlane_b32 s{sT0}, v{ac+3}, 3")
        E(f"s_cmp_ge_u32 s{sT0}, {thr:#x}")
        E("s_cbranch_scc1 L_f1_full")
        E.label("L_f1_regate")
        if a.sleep: E(f"s_sleep {a.sleep}")
        E(f"buffer_load_dword v{vD2}, off, {S4(sWS)}, s{sT4} offset:60 sc1", tag="extra")
        E.label("L_f1_gate")
        E("s_waitcnt vmcnt(0)")
        E(f"v_readfirstlane_b32 s{sT0}, v{vD2}")
        E(f"s_cmp_ge_u32 s{sT0}, {thr:#x}")
        E("s_cbranch_scc1 L_f1_full")
        spin("L_f1_full")
        E("s_branch L_f1_regate")
        E.label("L_f1_full")
        accload()
        E("s_branch L_f1_poll")
    E.label("L_f1_go")
    if a.tprio: E("s_setprio 2")
    stamp(12)
    t0_, t1_, t2_, vMN, vRC = vD1, vD1 + 1, vD1 + 2, vD2, vD2 + 1
    if a.ln2 == 0:
        hx = ac
        bf16r_many(E, range(ac, ac + 12))
        for i in range(12): E(f"v_add_f32 v{hx+i}, v{xk+i}, v{ac+i}")
        bf16r_many(E, range(hx, hx + 12))
        full = [0, 1, 2, 4, 5, 6]
        def masked(fn):
            for i in full: fn(i)
            E(f"s_mov_b32 exec_hi, {(1 << 11) - 1:#x}")
            fn(8); fn(9)
            E(f"s_mov_b32 exec_hi, {(1 << 10) - 1:#x}")
            fn(10)
            E(f"s_and_b64 exec, exec, s[{sM3}:{sM3+1}]")
            fn(11)
            E(f"s_mov_b64 exec, s[{sM3}:{sM3+1}]")
            fn(3); fn(7)
            E("s_mov_b64 exec, -1")
        t0_, t1_, t2_, vMN, vRC = vD1, vD1 + 1, vD1 + 2, vD2, vD2 + 1
        def f_sum(i):
            if i == 0: E(f"v_add_f32 v{t0_}, v{hx}, v{hx+1}")
            elif i == 1: pass
            elif i == 2: E(f"v_add_f32 v{t1_}, v{hx+2}, v{hx+4}")
            elif i == 4: pass
            else:
                d = t0_ if i % 2 else t1_
                E(f"v_add_f32 v{d}, v{d}, v{hx+i}")
        masked(f_sum)
        E(f"v_add_f32 v{t0_}, v{t0_}, v{t1_}")
        E(f"v_mov_b32 v{t2_}, 0x3acccccd")
        wave_reduce(E, t0_, sT0)
        E(f"v_mul_f32 v{vMN}, s{sT0}, v{t2_}")
        for i in range(12): E(f"v_sub_f32 v{xk+i}, v{hx+i}, v{vMN}")
        def f_var(i):
            if i == 0: E(f"v_mul_f32 v{t0_}, v{xk}, v{xk}")
            elif i == 1: E(f"v_mul_f32 v{t1_}, v{xk+1}, v{xk+1}")
            else:
                d = t0_ if i % 2 == 0 else t1_
                E(f"v_fmac_f32 v{d}, v{xk+i}, v{xk+i}")
        masked(f_var)
        E(f"v_add_f32 v{t0_}, v{t0_}, v{t1_}")
        bf16r(E, vMN, vMN)
        row_reduce(E, [t0_])
        for i in range(6): E(f"v_sub_f32 v{hx+i}, v{hx+i}, v{vMN}")
        E(f"v_add_f32_dpp v{t0_}, v{t0_}, v{t0_} row_bcast:15 row_mask:0xa bank_mask:0xf")
        for i in range(6, 12): E(f"v_sub_f32 v{hx+i}, v{hx+i}, v{vMN}")
        E(f"v_add_f32_dpp v{t0_}, v{t0_}, v{t0_} row_bcast:31 row_mask:0xc bank_mask:0xf")
        bf16r_many(E, range(hx, hx + 4))
        E(f"v_readlane_b32 s{sT0}, v{t0_}, 63")
        bf16r_many(E, range(hx + 4, hx + 8))
        E(f"v_mul_f32 v{t0_}, s{sT0}, v{t2_}")
        bf16r(E, t0_, t0_)
        E(f"v_add_f32 v{t0_}, 0x3727c5ac, v{t0_}")
        bf16r(E, t0_, t0_)
        E(f"v_sqrt_f32 v{t0_}, v{t0_}")
        bf16r_many(E, range(hx + 8, hx + 12))
        bf16r(E, t0_, t0_)
        E(f"v_rcp_f32 v{vRC}, v{t0_}")
        masked(lambda i: E(f"v_mul_f32 v{hn+i}, v{hx+i}, v{vRC}"))
        for i in range(6): E(f"v_cvt_pk_bf16_f32 v{xk+i}, v{hn+2*i}, v{hn+2*i+1}")
    else:
        pk = hn
        sel = (sLO_, sHI_)
        if not a.pp2:
            for i in range(6): E(f"v_cvt_pk_bf16_f32 v{pk+i}, v{ac+2*i}, v{ac+2*i+1}")
        for i in range(12): E(f"v_dot2_f32_bf16 v{ac+i}, v{pk+i//2}, s{sel[i%2]}, v{xk+i}")
        for i in range(6): E(f"v_cvt_pk_bf16_f32 v{pk+i}, v{ac+2*i}, v{ac+2*i+1}")
        for i in range(6):
            d = t0_ if i % 2 == 0 else t1_
            E(f"v_dot2_f32_bf16 v{d}, v{pk+i}, s{sONE}, {'0' if i < 2 else 'v%d' % d}")
        fill = []
        for i in range(6):
            fill.append(f"v_lshlrev_b32 v{xk+2*i}, 16, v{pk+i}")
            fill.append(f"v_and_b32 v{xk+2*i+1}, 0xffff0000, v{pk+i}")
        chain = [f"v_add_f32 v{t0_}, v{t0_}, v{t1_}"]
        chain += [f"v_add_f32_dpp v{t0_}, v{t0_}, v{t0_} row_ror:{sh} row_mask:0xf bank_mask:0xf" for sh in (8, 4, 2, 1)]
        chain += [f"v_add_f32_dpp v{t0_}, v{t0_}, v{t0_} row_bcast:15 row_mask:0xa bank_mask:0xf",
                  f"v_add_f32_dpp v{t0_}, v{t0_}, v{t0_} row_bcast:31 row_mask:0xc bank_mask:0xf",
                  f"v_readlane_b32 s{sT0}, v{t0_}, 63"]
        for c in chain:
            for _ in range(2):
                if fill: E(fill.pop(0))
            E(c)
        E(f"v_mul_f32 v{vMN}, s{sT0}, v{vNI}")
        for i in range(12): E(f"v_add_f32 v{ac+i}, v{xk+i}, v{vMN}")
        full = [0, 1, 2, 4, 5, 6]
        def masked(fn):
            for i in full: fn(i)
            E(f"s_mov_b32 exec_hi, {(1 << 11) - 1:#x}")
            fn(8); fn(9)
            E(f"s_mov_b32 exec_hi, {(1 << 10) - 1:#x}")
            fn(10)
            E(f"s_and_b64 exec, exec, s[{sM3}:{sM3+1}]")
            fn(11)
            E(f"s_mov_b64 exec, s[{sM3}:{sM3+1}]")
            fn(3); fn(7)
            E("s_mov_b64 exec, -1")
        def f_var(i):
            if i == 0: E(f"v_mul_f32 v{t0_}, v{ac}, v{ac}")
            elif i == 1: E(f"v_mul_f32 v{t1_}, v{ac+1}, v{ac+1}")
            else:
                d = t0_ if i % 2 == 0 else t1_
                E(f"v_fmac_f32 v{d}, v{ac+i}, v{ac+i}")
        masked(f_var)
        E(f"v_add_f32 v{t0_}, v{t0_}, v{t1_}")
        bf16r(E, vMN, vMN)
        fill = [f"v_add_f32 v{ac+i}, v{xk+i}, v{vMN}" for i in range(12)]
        fill += [f"v_cvt_pk_bf16_f32 v{pk+i}, v{ac+2*i}, v{ac+2*i+1}" for i in range(6)]
        for i in (1, 3, 4, 5): fill.append(f"v_and_b32 v{pk+i}, v{pk+i}, v{vKM + (0 if i < 4 else i - 3)}")
        for i in range(6):
            fill.append(f"v_lshlrev_b32 v{ac+2*i}, 16, v{pk+i}")
            fill.append(f"v_and_b32 v{ac+2*i+1}, 0xffff0000, v{pk+i}")
        chain = [f"v_add_f32_dpp v{t0_}, v{t0_}, v{t0_} row_ror:{sh} row_mask:0xf bank_mask:0xf" for sh in (8, 4, 2, 1)]
        chain += [f"v_add_f32_dpp v{t0_}, v{t0_}, v{t0_} row_bcast:15 row_mask:0xa bank_mask:0xf",
                  f"v_add_f32_dpp v{t0_}, v{t0_}, v{t0_} row_bcast:31 row_mask:0xc bank_mask:0xf",
                  f"v_readlane_b32 s{sT0}, v{t0_}, 63",
                  f"v_mul_f32 v{t0_}, s{sT0}, -v{vNI}",
                  f"v_cvt_pk_bf16_f32 v{t0_}, v{t0_}, v{t0_}", f"v_and_b32 v{t0_}, 0xffff0000, v{t0_}",
                  f"v_add_f32 v{t0_}, 0x3727c5ac, v{t0_}",
                  f"v_cvt_pk_bf16_f32 v{t0_}, v{t0_}, v{t0_}", f"v_and_b32 v{t0_}, 0xffff0000, v{t0_}",
                  f"v_sqrt_f32 v{t0_}, v{t0_}",
                  f"v_cvt_pk_bf16_f32 v{t0_}, v{t0_}, v{t0_}", f"v_and_b32 v{t0_}, 0xffff0000, v{t0_}",
                  f"v_rcp_f32 v{vRC}, v{t0_}"]
        for c in chain:
            E(c)
            for _ in range(2):
                if fill: E(fill.pop(0))
        for c in fill: E(c)
        for i in range(12): E(f"v_mul_f32 v{ac+i}, v{ac+i}, v{vRC}")
        for i in range(6): E(f"v_cvt_pk_bf16_f32 v{xk+i}, v{ac+2*i}, v{ac+2*i+1}")
    E(f"ds_write_b64 v{vA+2}, {r2(xk)} offset:{HN}")
    E(f"ds_write_b64 v{vA+2}, {r2(xk+2)} offset:{HN+512}")
    E("s_mov_b32 exec_hi, 0xffff")
    E(f"ds_write_b64 v{vA+2}, {r2(xk+4)} offset:{HN+1024}")
    E("s_mov_b32 exec_hi, -1")
    E("s_waitcnt lgkmcnt(0)")
    E("s_barrier")
    E(f"s_cmp_ge_u32 s{sW}, 4")
    E("s_cbranch_scc1 L_fin")
    if a.ts:
        stamp(13); E("s_waitcnt lgkmcnt(0)")
    for u in range(11):
        E(f"ds_read_b128 {r4(hb+4*u)}, v{vA+3} offset:{HN+128*u}")
    for u in range(11):
        E(f"s_waitcnt lgkmcnt({10-u})")
        c1 = "0" if u == 0 else r4(vD1)
        c2 = "0" if u == 0 else r4(vD2)
        E(f"v_mfma_f32_16x16x32_bf16 {r4(vD1)}, {r4(vW+8*u)}, {r4(hb+4*u)}, {c1}")
        E(f"v_mfma_f32_16x16x32_bf16 {r4(vD2)}, {r4(vW+8*u+4)}, {r4(hb+4*u)}, {c2}")
    for i in range(4):
        E(f"v_add_f32_dpp v{vD1+i}, v{vD2+i}, v{vD1+i} row_ror:8 row_mask:0xf bank_mask:0xf")
    for i in range(4): E(f"v_max_f32 v{vD1+i}, 0, v{vD1+i}")
    E(f"v_cvt_pk_bf16_f32 v{vD2}, v{vD1}, v{vD1+1}")
    E(f"v_cvt_pk_bf16_f32 v{vD2+1}, v{vD1+2}, v{vD1+3}")
    E(f"s_mov_b64 exec, s[{sLO8}:{sLO8+1}]")
    E(f"buffer_store_dwordx2 {r2(vD2)}, v{vA}, {S4(sH1)}, s{sT3} offen sc1", tag="extra")
    stamp(14)
    E("s_branch L_fin")

    E.label("L_ffn2")
    E.comment("FFN2: %d columns of w2" % (16 * NC))
    E(f"s_mov_b64 s[{sDRY}:{sDRY+1}], {0 if a.dry & 2 else -1}")
    E(f"s_mov_b32 s{sROLE}, 2")
    E(f"s_mov_b32 s{sWF}, s18")
    E(f"s_and_b32 s{sWF+1}, s19, 0xffff")
    vDA = vQ + 2
    vA = vD1
    lpr = 2 * NC
    rpi = 64 // lpr
    nd2 = 7 * NC
    E(f"v_lshrrev_b32 v{vDA}, {NC}, v{vL}")
    E(f"v_mul_u32_u24 v{vDA}, 1280, v{vDA}")
    E(f"v_and_b32 v{vA+1}, {lpr-1}, v{vL}")
    E(f"v_lshl_add_u32 v{vDA}, v{vA+1}, 4, v{vDA}")
    sD0, sD2 = 12, 13
    E(f"s_mul_i32 s{sD0}, s{sW}, {7*32*1280}")
    E(f"s_mul_i32 s{sT1}, s{sTILE}, {32*NC}")
    E(f"s_add_u32 s{sD0}, s{sD0}, s{sT1}")
    E(f"s_mul_i32 s{sT3}, s{sW}, {nd2*1024}")
    E(f"s_add_u32 s{sT3}, s{sT3}, {WT}")
    E(f"s_mov_b32 s{sD2}, s{sT3}")
    def dma2():
        for t in range(nd2 if not a.nodma else 0):
            E(f"s_mov_b32 m0, s{sD2}")
            E(f"buffer_load_dwordx4 v{vDA}, {S4(sWF)}, s{sD0} offen{fnt} lds", tag="extra")
            if t < nd2 - 1:
                E(f"s_add_u32 s{sD0}, s{sD0}, {rpi*1280}")
                E(f"s_add_u32 s{sD2}, s{sD2}, 1024")
    E("s_barrier")
    stamp(10)
    if not a.late2: dma2()
    vB7 = vQ
    vXO = vQ + 1
    E(f"v_and_b32 v{vB7}, 7, v{vL}")
    E(f"v_mul_u32_u24 v{vXO}, 1280, v{vB7}")
    E(f"v_lshl_add_u32 v{vXO}, v{vJ}, 3, v{vXO}")
    E(f"s_and_b32 s{sT4}, s{sW}, {NC-1}")
    E(f"s_lshl_b32 s{sT4}, s{sT4}, 5")
    E(f"s_add_u32 s{sT1}, s{sT1}, s{sT4}")
    xr = vS
    E(f"buffer_load_dwordx2 {r2(xr)}, v{vXO}, {S4(sX)}, s{sT1} offen", tag="extra")
    vHA = vF + 128
    E(f"s_lshr_b32 s{sT0}, s{sT1}, 1")
    E(f"v_lshl_add_u32 v{vA}, v{vJ}, 2, s{sT0}")
    E(f"v_mul_u32_u24 v{vA+1}, {HS}, v{vB7}")
    for r in range(4):
        E(f"v_add_u32 v{vA+2}, {r}, v{vA}")
        E(f"v_mul_u32_u24 v{vA+3}, 4370, v{vA+2}")
        E(f"v_lshrrev_b32 v{vA+3}, 16, v{vA+3}")
        E(f"v_add_u32 v{vA+2}, v{vA+2}, v{vA+3}")
        E(f"v_lshl_add_u32 v{vHA+r}, v{vA+2}, 2, v{vA+1}")
        if r in (0, 3):
            E(f"v_lshl_add_u32 v{vHA+4+r//3}, v{vA+3}, 6, v{vA+1}")
    vH1 = vB1 + 1
    E(f"v_lshrrev_b32 v{vH1}, 1, v{vJ}")
    E(f"v_lshlrev_b32 v{vH1}, 8, v{vH1}")
    E(f"v_lshl_add_u32 v{vH1}, v{vB7}, 5, v{vH1}")
    E(f"v_and_b32 v{vB1+2}, 1, v{vJ}")
    E(f"v_lshl_add_u32 v{vH1}, v{vB1+2}, 4, v{vH1}")
    E(f"v_lshrrev_b32 v{vB1+2}, 3, v{vN}")
    E(f"v_lshl_add_u32 v{vH1}, v{vB1+2}, 9, v{vH1}")
    rb = 32 * NC
    vTR = vB1 + 2
    E(f"v_mul_u32_u24 v{vTR}, {8*rb}, v{vJ}")
    E(f"v_lshrrev_b32 v{vB1+3}, 2, v{vN}")
    E(f"v_lshl_add_u32 v{vTR}, v{vB1+3}, {4+NC}, v{vTR}")
    E(f"v_and_b32 v{vB1+3}, 3, v{vN}")
    E(f"v_lshl_add_u32 v{vTR}, v{vB1+3}, 3, v{vTR}")
    E(f"v_add_u32 v{vTR}, s{sT3}, v{vTR}")
    vRWp, vRRp = vB0, vB0 + 1
    E(f"s_lshl_b32 s{sT0}, s{sW}, 11")
    E(f"v_add_u32 v{vRWp}, s{sT0}, v{vL16}")
    E(f"s_lshl_b32 s{sT0}, s{sT4}, 5")
    E(f"v_add_u32 v{vRRp}, s{sT0}, v{vL16}")
    E(f"s_mul_i32 s{sT2}, s{sW}, {7*512}")
    acc = [vF + 96 + 4 * i for i in range(4)]
    ac = vS + 4
    hx = vS + 12
    hxk = vS + 8
    hb = vF + 64
    def trs():
        E("s_waitcnt vmcnt(0)")
        for t in range(7):
            for c in range(NC):
                E(f"ds_read_b64_tr_b16 {r2(vW+8*t+4*c)}, v{vTR} offset:{t*32*rb+c*32}")
                E(f"ds_read_b64_tr_b16 {r2(vW+8*t+4*c+2)}, v{vTR} offset:{t*32*rb+c*32+4*rb}")
        for i in range(2):
            E(f"v_lshlrev_b32 v{hxk+2*i}, 16, v{xr+i}")
            E(f"v_and_b32 v{hxk+2*i+1}, 0xffff0000, v{xr+i}")
        E("s_waitcnt lgkmcnt(0)")
        stamp(11)
    def cpoll(lbl, thr_):
        E.label(lbl)
        E(f"buffer_load_dword v{vD1}, v{vHA+4}, {S4(sWS)}, 0 offen offset:60 sc1", tag="extra")
        E(f"buffer_load_dword v{vD1+1}, v{vHA+5}, {S4(sWS)}, 0 offen offset:60 sc1", tag="extra")
        E("s_waitcnt vmcnt(0)")
        E(f"v_min_f32 v{vD1}, v{vD1}, v{vD1+1}")
        E(f"v_cmp_gt_f32 vcc, {thr_:#x}, v{vD1}")
        E(f"s_cbranch_vccz {lbl}_ok")
        spin(f"{lbl}_ok")
        E(f"s_sleep {a.sleep3}")
        E(f"s_branch {lbl}")
        E.label(f"{lbl}_ok")
    E.label("L_f2_top")
    E(f"s_mov_b64 exec, s[{sDRY}:{sDRY+1}]")
    E("s_cbranch_execz L_f2_got")
    if a.late2:
        E(f"s_cmp_ge_u32 s{sW}, 1")
        E("s_cbranch_scc1 L_f2_g_ok")
        cpoll("L_f2_g", struct.unpack("<I", struct.pack("<f", float(a.late2)))[0])
        E("s_barrier")
        dma2()
    trs()
    E(f"s_cmp_ge_u32 s{sW}, {NC}")
    E("s_cbranch_scc1 L_f2_go")
    cpoll("L_f2_c", 0x42000000)
    for r in range(4):
        E(f"buffer_load_dword v{ac+r}, v{vHA+r}, {S4(sWS)}, 0 offen sc1", tag="extra")
    E.label("L_f2_go")
    E("s_barrier")
    stamp(12)
    E.label("L_f2_poll2")
    for u in range(4):
        E(f"buffer_load_dwordx4 {r4(hb+4*u)}, v{vH1}, {S4(sH1)}, s{sT2} offen offset:{1024*u} sc1", tag="extra")
    E("s_waitcnt vmcnt(0)")
    E(f"v_max3_u32 v{vD1}, v{hb}, v{hb+1}, v{hb+2}")
    E(f"v_max3_u32 v{vD1+1}, v{hb+3}, v{hb+4}, v{hb+5}")
    for k in range(6, 16, 2):
        tgt = vD1 + ((k // 2) % 2)
        E(f"v_max3_u32 v{tgt}, v{tgt}, v{hb+k}, v{hb+k+1}")
    E(f"v_max_u32 v{vD1}, v{vD1}, v{vD1+1}")
    E(f"v_cmp_eq_u32 vcc, -1, v{vD1}")
    E("s_cbranch_vccz L_f2_got")
    spin("L_f2_got")
    if a.sleep2: E(f"s_sleep {a.sleep2}")
    E("s_branch L_f2_poll2")
    E.label("L_f2_got")
    if a.tprio: E("s_setprio 2")
    stamp(13)
    for t in range(7):
        u, half = divmod(t, 2)
        for c in range(NC):
            d = acc[2 * c + half]
            cc = "0" if u == 0 else r4(d)
            E(f"v_mfma_f32_16x16x32_bf16 {r4(d)}, {r4(vW+8*t+4*c)}, {r4(hb+4*u)}, {cc}")
    bf16r_many(E, range(ac, ac + 4))
    for i in range(4): E(f"v_add_f32 v{hx+i}, v{hxk+i}, v{ac+i}")
    bf16r_many(E, range(hx, hx + 4))
    for c in range(NC):
        for r in range(4):
            E(f"v_cndmask_b32 v{acc[2*c]+r}, v{acc[2*c+1]+r}, v{acc[2*c]+r}, s[{sLO8}:{sLO8+1}]")
        E(f"ds_write_b128 v{vRWp}, {r4(acc[2*c])} offset:{F2R+1024*c}")
    E("s_waitcnt lgkmcnt(0)")
    E("s_barrier")
    E(f"s_cmp_ge_u32 s{sW}, {NC}")
    E("s_cbranch_scc1 L_f2_next")
    pb = vF + 144
    for p in range(8):
        E(f"ds_read_b128 {r4(pb+4*p)}, v{vRRp} offset:{F2R+2048*p}")
    if a.ts: E("s_waitcnt lgkmcnt(0)")
    for p in range(4):
        if not a.ts: E(f"s_waitcnt lgkmcnt({6-2*p})")
        for i in range(4): E(f"v_add_f32 v{pb+8*p+i}, v{pb+8*p+i}, v{pb+8*p+4+i}")
        if p % 2 == 1:
            for i in range(4): E(f"v_add_f32 v{pb+8*p-8+i}, v{pb+8*p-8+i}, v{pb+8*p+i}")
    for i in range(4): E(f"v_add_f32 v{pb+i}, v{pb+i}, v{pb+16+i}")
    for i in range(4):
        E(f"v_add_f32_dpp v{pb+i}, v{pb+i}, v{pb+i} row_ror:8 row_mask:0xf bank_mask:0xf")
    bf16r_many(E, range(pb, pb + 4))
    for i in range(4): E(f"v_add_f32 v{pb+i}, v{hx+i}, v{pb+i}")
    E(f"v_cvt_pk_bf16_f32 v{vD2}, v{pb}, v{pb+1}")
    E(f"v_cvt_pk_bf16_f32 v{vD2+1}, v{pb+2}, v{pb+3}")
    E(f"s_and_b64 exec, exec, s[{sLO8}:{sLO8+1}]")
    E("s_cbranch_execz L_f2_next")
    E(f"buffer_store_dwordx2 {r2(vD2)}, v{vXO}, {S4(sOUT)}, s{sT1} offen{a.opol}", tag="extra")
    stamp(14)
    E.label("L_f2_next")
    E(f"s_cmp_lg_u32 s{sDRY}, 0")
    E("s_cbranch_scc1 L_fin")
    E(f"s_mov_b64 s[{sDRY}:{sDRY+1}], -1")
    if a.tprio: E("s_setprio 0")
    E("s_branch L_f2_top")
    E.label("L_fin")
    if a.ts and a.echo:
        E(f"s_cmp_lg_u32 s{sROLE}, 2")
        E("s_cbranch_scc1 L_end")
        E(f"s_cmp_lg_u32 s{sW}, 0")
        E("s_cbranch_scc1 L_end")
        E("s_waitcnt vmcnt(0)")
        stamp(15)
        E("s_waitcnt lgkmcnt(0)")
        if a.skew == 8:
            E("s_mov_b64 exec, -1")
            E(f"s_mov_b32 s{sT0}, 0x30000")
            E(f"v_lshlrev_b32 v{vS+1}, 2, v{vL}")
            E(f"buffer_load_dword v{vS}, v{vS+1}, {S4(sWS)}, s{sT0} offen sc1", tag="extra")
            E("s_waitcnt vmcnt(0)")
            E(f"v_readlane_b32 s{sT0}, v{vS}, 0")
            E(f"s_mov_b32 s{sT1}, s{sT0}")
            for i in range(1, 8):
                E(f"v_readlane_b32 s{sT4}, v{vS}, {i}")
                E(f"s_max_u32 s{sT0}, s{sT0}, s{sT4}")
                E(f"s_min_u32 s{sT1}, s{sT1}, s{sT4}")
            E(f"s_sub_u32 s{sT0}, s{sT0}, s{sT1}")
            E(f"s_mul_i32 s{sT0}, s{sT0}, {a.emul}")
        elif a.skew >= 0:
            E("s_mov_b64 exec, -1")
            E(f"s_mov_b32 s{sT0}, 0x30000")
            E(f"buffer_load_dword v{vS}, off, {S4(sWS)}, s{sT0} offset:{4*a.skew} sc1", tag="extra")
            E(f"buffer_load_dword v{vS+1}, off, {S4(sWS)}, s{sT0} offset:4 sc1", tag="extra")
            E("s_waitcnt vmcnt(0)")
            E(f"v_sub_u32 v{vS}, v{vS}, v{vS+1}")
            E(f"v_readfirstlane_b32 s{sT0}, v{vS}")
            E(f"s_add_u32 s{sT0}, s{sT0}, 200")
            E(f"s_lshl_b32 s{sT0}, s{sT0}, 2")
        else:
            E(f"s_sub_u32 s{sT0}, s{sTS+2*a.echo}, s{sTS+2*a.echo0}")
            E(f"s_mul_i32 s{sT0}, s{sT0}, {a.emul}")
        E(f"s_min_u32 s{sT0}, s{sT0}, 20000")
        E(f"s_add_u32 s{sT0}, s{sT0}, s{sTS+30}")
        E.label("L_echo")
        E(f"s_memrealtime s[{sT2}:{sT2+1}]")
        E("s_waitcnt lgkmcnt(0)")
        E(f"s_sub_u32 s{sT1}, s{sT0}, s{sT2}")
        E(f"s_cmp_gt_i32 s{sT1}, 0")
        E("s_cbranch_scc1 L_echo")
    elif a.ts:
        E("s_waitcnt vmcnt(0)")
        stamp(15)
        write_stamps()
    E.label("L_end")
    E("s_endpgm")
    E.label("L_codeend")

    out = HDR
    out += f"; @launch grid=(256,1,1) block=(512,1,1) lds={LDS_TOTAL}\n"
    out += """; ---------------------------------------------------------------------------------------------------------
;  reduce : o.wo partial sums are added (f32 atomics) into ws blocks of {15 sums, 1 arrival count};
;           one workgroup per batch zeroes them at entry and raises a flag in d_debug.
; ---------------------------------------------------------------------------------------------------------
"""
    out += f""".amdgcn_target "amdgcn-amd-amdhsa--gfx950"
.text
.globl {NAME}
.p2align 8
.type {NAME},@function
{NAME}:
"""
    out += E.text().replace("CODE_BYTES", f"L_codeend-{NAME}")
    out += f""".section .rodata,"a"
.p2align 6
.amdhsa_kernel {NAME}
  .amdhsa_next_free_vgpr 256
  .amdhsa_next_free_sgpr 102
  .amdhsa_accum_offset 256
  .amdhsa_group_segment_fixed_size 0
  .amdhsa_kernarg_size 88
  .amdhsa_user_sgpr_count 2
  .amdhsa_user_sgpr_kernarg_segment_ptr 1
  .amdhsa_system_sgpr_workgroup_id_x 1
  .amdhsa_float_denorm_mode_32 3
.end_amdhsa_kernel
"""
    return out

def parser():
    p = argparse.ArgumentParser()
    p.add_argument("-o", default="sequential_preLN__sliding_block_cached__dense_activation_relu__decode.s")
    p.add_argument("--fnt", type=int, default=0)
    p.add_argument("--ts", type=int, default=0)
    p.add_argument("--sleep", type=int, default=1)
    p.add_argument("--sleep2", type=int, default=1)
    p.add_argument("--depth", type=int, default=5)
    p.add_argument("--first", type=int, default=1)
    p.add_argument("--budget", type=int, default=16)
    p.add_argument("--qspan", type=int, default=32)
    p.add_argument("--ostart", type=int, default=0)
    p.add_argument("--otail", type=int, default=4)
    p.add_argument("--tkpos", type=int, default=28)
    p.add_argument("--pf", type=int, default=2)
    p.add_argument("--spf", type=int, default=1)
    p.add_argument("--dcls", type=int, default=0)
    p.add_argument("--dclsm", type=int, default=10)
    p.add_argument("--fpos", type=int, default=16)
    p.add_argument("--pp2", type=int, default=0)
    p.add_argument("--hyb", type=int, default=0)
    p.add_argument("--fastpro", type=int, default=1)
    p.add_argument("--init0", type=int, default=0)
    p.add_argument("--sent2", type=int, default=2)
    p.add_argument("--sentg", type=int, default=4)
    p.add_argument("--nosent", type=int, default=0)
    p.add_argument("--noflag", type=int, default=0)
    p.add_argument("--orot", type=int, default=0)
    p.add_argument("--qrot", type=int, default=1)
    p.add_argument("--x13", type=int, default=1)
    p.add_argument("--tprio", type=int, default=0)
    p.add_argument("--prio", type=int, default=-1)
    p.add_argument("--emul", type=int, default=1)
    p.add_argument("--dyn", type=int, default=0)
    p.add_argument("--abar", type=int, default=0)
    p.add_argument("--spec", type=int, default=0)
    p.add_argument("--qp2", type=int, default=1)
    p.add_argument("--nc2", type=int, default=2)
    p.add_argument("--late2", type=int, default=0)
    p.add_argument("--nk0", type=int, default=4)
    p.add_argument("--pfwg", type=int, default=16)
    p.add_argument("--ln2", type=int, default=1)
    p.add_argument("--endpf", type=int, default=3)
    p.add_argument("--epos", type=int, default=-2)
    p.add_argument("--nodma", type=int, default=0)
    p.add_argument("--gate", type=float, default=31)
    p.add_argument("--gstep", type=int, default=104)
    p.add_argument("--dplan", default="0000")
    p.add_argument("--opol", default="")
    p.add_argument("--skew", type=int, default=-1)
    p.add_argument("--htab", default="0x76325410")
    p.add_argument("--rtab", default="0x210cba98")
    p.add_argument("--sphalf", type=int, default=2)
    p.add_argument("--npoll2", type=int, default=1)
    p.add_argument("--stag2", type=int, default=4)
    p.add_argument("--pub", default="sc1")
    p.add_argument("--sub", default="sc1")
    p.add_argument("--zwg", type=int, default=28)
    p.add_argument("--nrep", type=int, default=8)
    p.add_argument("--sleep3", type=int, default=4)
    p.add_argument("--h1wait", type=int, default=0)
    p.add_argument("--npoll", type=int, default=1)
    p.add_argument("--stag", type=int, default=3)
    p.add_argument("--static", type=int, default=0)
    p.add_argument("--l2pf", type=int, default=6)
    p.add_argument("--echo", type=int, default=0)
    p.add_argument("--echo0", type=int, default=0)
    p.add_argument("--kvpol", default=" nt")
    p.add_argument("--wpol", default="")
    p.add_argument("--bd1", type=int, default=0)
    p.add_argument("--bd2", type=int, default=0)
    p.add_argument("--bd3", type=int, default=0)
    p.add_argument("--hmap", type=int, default=3)
    p.add_argument("--tlb", type=int, default=0)
    p.add_argument("--dry", type=int, default=2)
    return p

if __name__ == "__main__":
    a = parser().parse_args()
    open(a.o, "w").write(gen(a))
```

```python
import sys, argparse, struct
from collections import deque
from asmlib import Emitter
from gen2 import (NAME, HDR, srd, srd_off, r4, r2, S4, row_reduce, wave_reduce, bf16r, bf16r_many, unpack10, ln_stats,
                  LOG2E, SCALE, sT0, sT1, sT2, sT3, sT4)

RED = 0
QF = 8448
ML = 8704
YP = 9216
YPS = 3328
HN = 9216
HNS = 1408
F2R = 9216
WT = 35840
LDS_TOTAL = 150528
HS = 3072
H1_BASE = 32768
TS_BASE = 1 << 20
NF1 = 27

sW, sH, sB = 3, 26, 27
sK, sV, sWQ, sWO, sX, sWS, sDB, sWF, sOUT, sH1 = 28, 32, 36, 40, 44, 48, 52, 56, 60, 64
sROLE, sTILE = 100, 101
sSPIN = 9
sLO8 = 10
sKO, sVO, sQ0, sQ1, sOO = 12, 13, 14, 15, 20
sDRY = 22
sEX = 24
sTKO = 25
sTS = 68
vL, vL16, vWQ, vWO = 0, 1, 2, 3
vM = 4
vQ = 8
vB0, vB1 = 12, 16
vD1, vD2 = 20, 24
vT = 28
vS = 32
vF = 48
vJ, vN = vT, vT + 1

class Task:
    def __init__(self, fn, needs=(), frees=(), barrier=0, cost=1, atomic=False):
        self.fn, self.needs, self.frees, self.barrier, self.cost = fn, list(needs), list(frees), barrier, cost
        self.atomic = atomic
        self.q = None

class RecEmitter(Emitter):
    def __init__(self):
        super().__init__(); self.rec = None
    def __call__(self, text, tag=None):
        if self.rec is not None: self.rec.append(("i", text, tag))
        else: super().__call__(text, tag)
    def label(self, name):
        if self.rec is not None: self.rec.append(("l", name, None))
        else: super().label(name)
    def flush(self, n=None):
        if self.rec is not None: self.rec.append(("f", None, None))
        else: super().flush(n)
    def record(self, fn):
        self.rec = []; fn(); r = self.rec; self.rec = None; return deque(r)
    def play(self, item):
        k, a, b = item
        if k == "i": self(a, b)
        elif k == "l": self.label(a)
        else: self.flush()

def gen(a):
    E = RecEmitter()
    NC = a.nc2
    NF2 = 40 // NC
    nt = a.kvpol
    wnt = a.wpol
    fnt = " nt" if a.fnt else ""
    def stamp(i):
        if a.ts: E(f"s_memrealtime s[{sTS+2*i}:{sTS+2*i+1}]")
    def spin(lbl):
        E(f"s_sub_u32 s{sSPIN}, s{sSPIN}, 1")
        E(f"s_cmp_lt_i32 s{sSPIN}, 0")
        E(f"s_cbranch_scc1 {lbl}")
    def write_stamps():
        E("s_waitcnt lgkmcnt(0)")
        E("s_mov_b64 exec, 1")
        E(f"s_lshl_b32 s{sT0}, s2, 3")
        E(f"s_add_u32 s{sT0}, s{sT0}, s{sW}")
        E(f"s_lshl_b32 s{sT0}, s{sT0}, 8")
        E(f"s_add_u32 s{sT0}, s{sT0}, {TS_BASE}")
        for i in range(16):
            E(f"v_mov_b32 v{vT}, s{sTS+2*i}")
            E(f"v_mov_b32 v{vT+1}, s{sTS+2*i+1}")
            E(f"buffer_store_dwordx2 {r2(vT)}, off, {S4(sWS)}, s{sT0} offset:{8*i}", tag="extra")
            E("s_nop 1")
        E(f"s_getreg_b32 s{sT1}, hwreg(HW_REG_XCC_ID)")
        E(f"v_mov_b32 v{vT}, s{sT1}")
        E(f"v_mov_b32 v{vT+1}, s{sROLE}")
        E(f"buffer_store_dwordx2 {r2(vT)}, off, {S4(sWS)}, s{sT0} offset:128", tag="extra")
        E("s_nop 1")
        E(f"v_mov_b32 v{vT}, s{sSPIN}")
        E(f"v_mov_b32 v{vT+1}, 0")
        E(f"buffer_store_dwordx2 {r2(vT)}, off, {S4(sWS)}, s{sT0} offset:136", tag="extra")

    E("s_cmp_ge_u32 s2, 256")
    E("s_cbranch_scc1 L_end")
    if a.jit:
        m_, v_ = a.jit.split(",")
        E(f"s_and_b32 s3, s2, {m_}")
        E(f"s_cmp_lg_u32 s3, {v_}")
        E("s_cbranch_scc1 L_nojit")
        for _ in range(12): E("s_sleep 127")
        E.label("L_nojit")
    E("s_load_dwordx16 s[4:19], s[0:1], 0")
    E("s_load_dwordx4 s[20:23], s[0:1], 64")
    E("s_load_dwordx2 s[24:25], s[0:1], 80")
    if a.ts:
        for i in range(1, 16): E(f"s_mov_b64 s[{sTS+2*i}:{sTS+2*i+1}], 0")
        stamp(0)
    if a.fastpro:
        assert a.hmap == 3 and int(a.htab, 0) == 0x76325410 and a.x13 and a.qp2
        vXS, vXC = vT + 2, vT + 3
        t0, t1, t2, t3 = 64, 65, 66, 67
        E(f"v_lshrrev_b32 v{vT}, 6, v0")
        E(f"v_and_b32 v{vL}, 63, v0")
        E(f"v_readfirstlane_b32 s{sW}, v{vT}")
        E(f"s_and_b32 s{sH}, s2, 0xe1")
        E(f"s_bfe_u32 s{t1}, s2, 0x30002")
        E(f"s_lshl1_add_u32 s{sH}, s{t1}, s{sH}")
        E(f"s_and_b32 s{t1}, s2, 2")
        E(f"s_lshl3_add_u32 s{sH}, s{t1}, s{sH}")
        E(f"v_lshlrev_b32 v{vL16}, 4, v{vL}")
        E(f"s_lshl_b32 s{t0}, s{sH}, 20")
        E(f"s_add_u32 s{t0}, s{t0}, 0xc0000")
        E(f"s_and_b32 s{t1}, s2, 8")
        E(f"s_add_u32 s{sTILE}, s{t1}, s{sW}")
        E(f"s_lshl_b32 s{sTILE}, s{sTILE}, 10")
        E(f"s_lshl_b32 s{t1}, s{t1}, 11")
        E(f"s_sub_u32 s{t2}, 8192, s{t1}")
        E(f"s_add_u32 s{t3}, 8192, s{t1}")
        E(f"s_mov_b32 s{sROLE}, s{sTILE}")
        E(f"s_mov_b32 s{sK+2}, 0x40000")
        E(f"s_mov_b32 s{sK+3}, 0x20000")
        E("s_waitcnt lgkmcnt(0)")
        E(f"s_add_u32 s{sK}, s6, s{t0}")
        E(f"s_addc_u32 s{sK+1}, s7, 0")
        E(f"s_and_b32 s{sK+1}, s{sK+1}, 0xffff")
        def kvstep(f): return (f"s{f % 2}" if a.x13 else "8192")
        slot_of = {}
        free = deque(range(52))
        def alloc(tag):
            s = free.popleft(); slot_of[tag] = vF + 4 * s; return slot_of[tag]
        def release(tag):
            free.append((slot_of[tag] - vF) // 4)
        for f in range(a.nk0):
            if f: E(f"s_add_u32 s{sTILE}, s{sTILE}, s{t2 + (f-1) % 2}")
            E(f"buffer_load_dwordx4 {r4(alloc(f'k{f}'))}, v{vL16}, {S4(sK)}, s{sTILE} offen{nt}", tag=f"k{f}")
        E(f"s_mov_b64 s[0:1], s[{t2}:{t3}]")
        E(f"s_lshr_b32 s{sB}, s2, 5")
        E(f"s_and_b32 s{sH}, s{sH}, 31")
        E(f"v_mul_u32_u24 v{vXS}, 20, v{vL}")
        E(f"s_mul_i32 s{t3}, s{sB}, 1280")
        E(f"s_lshl_b32 s{t1}, s{sH}, 8")
        E(f"s_mul_i32 s{t2}, s{sH}, {128*1280}")
        E(f"v_lshrrev_b32 v{vJ}, 4, v{vL}")
        E(f"v_and_b32 v{vN}, 15, v{vL}")
        E(f"v_lshlrev_b32 v{vWQ}, 13, v{vJ}")
        E(f"v_lshl_add_u32 v{vWQ}, v{vN}, 4, v{vWQ}")
        if a.pf:
            E(f"s_cmp_gt_u32 s{sW}, {a.pf - 1}")
            E("s_cbranch_scc1 L_nopf")
            E(f"s_cmp_ge_u32 s2, {a.pfwg}")
            E("s_cbranch_scc1 L_nopf")
            E(f"s_getpc_b64 s[{sWF}:{sWF+1}]")
            E.label("L_pc")
            E(f"s_lshl_b32 s{sOUT}, s{sW}, 13")
            E(f"v_lshlrev_b32 v{vB0}, 7, v{vL}")
            E(f"v_add_u32 v{vB0}, s{sOUT}, v{vB0}")
            E(f"v_min_u32 v{vB0}, L_codeend-L_pc-4, v{vB0}")
            E(f"v_mov_b32 v{vB0+3}, s{sWF+1}")
            E(f"v_add_co_u32 v{vB0+2}, vcc, s{sWF}, v{vB0}")
            E(f"v_addc_co_u32 v{vB0+3}, vcc, 0, v{vB0+3}, vcc")
            E(f"global_load_dword v{vS+15}, v[{vB0+2}:{vB0+3}], off", tag="extra")
            E.label("L_nopf")
    else:
        E(f"v_lshrrev_b32 v{vT}, 6, v0")
        E(f"v_and_b32 v{vL}, 63, v0")
        E(f"v_readfirstlane_b32 s{sW}, v{vT}")
        if a.hmap == 3:
            E(f"s_and_b32 s{sH}, s2, 7")
            E(f"s_lshl_b32 s{sH}, s{sH}, 2")
            E(f"s_lshr_b32 s{sH}, {a.htab}, s{sH}")
            E(f"s_and_b32 s{sB}, s{sH}, 4")
            E(f"s_lshl_b32 s{sB}, s{sB}, 2")
            E(f"s_and_b32 s{sH}, s{sH}, 3")
            E(f"s_add_u32 s{sH}, s{sH}, s{sB}")
            E(f"s_bfe_u32 s{sB}, s2, 0x20003")
            E(f"s_lshl_b32 s{sB}, s{sB}, 2")
            E(f"s_add_u32 s{sH}, s{sH}, s{sB}")
        elif a.hmap == 2:
            E(f"s_and_b32 s{sH}, s2, 6")
            E(f"s_lshr_b32 s{sH}, 0x8d, s{sH}")
            E(f"s_and_b32 s{sH}, s{sH}, 3")
            E(f"s_and_b32 s{sB}, s2, 1")
            E(f"s_lshl_b32 s{sB}, s{sB}, 4")
            E(f"s_add_u32 s{sH}, s{sH}, s{sB}")
            E(f"s_bfe_u32 s{sB}, s2, 0x20003")
            E(f"s_lshl_b32 s{sB}, s{sB}, 2")
            E(f"s_add_u32 s{sH}, s{sH}, s{sB}")
        elif a.hmap:
            E(f"s_and_b32 s{sH}, s2, 7")
            E(f"s_lshl_b32 s{sH}, s{sH}, 2")
            E(f"s_bfe_u32 s{sB}, s2, 0x20003")
            E(f"s_add_u32 s{sH}, s{sH}, s{sB}")
        else:
            E(f"s_and_b32 s{sH}, s2, 31")
        E(f"s_lshr_b32 s{sB}, s2, 5")
        E(f"v_lshlrev_b32 v{vL16}, 4, v{vL}")
        E(f"v_lshrrev_b32 v{vJ}, 4, v{vL}")
        E(f"v_and_b32 v{vN}, 15, v{vL}")
        E(f"v_mul_u32_u24 v{vWQ}, {8192 if a.qp2 else 81920}, v{vJ}")
        E(f"v_lshl_add_u32 v{vWQ}, v{vN}, 4, v{vWQ}")
        vXS, vXC = vT + 2, vT + 3
        E(f"v_mul_u32_u24 v{vXS}, 20, v{vL}")
        t0, t1, t2, t3 = 64, 65, 66, 67
        if not a.qp2:
            E(f"v_lshrrev_b32 v{vXC}, 3, v{vN}")
            E(f"v_lshl_add_u32 v{vXC}, v{vXC}, 2, v{vJ}")
            E(f"s_lshl_b32 s{t0}, s{sW}, 3")
            E(f"v_add_u32 v{vXC}, s{t0}, v{vXC}")
            E(f"v_mul_u32_u24 v{vXC}, 20, v{vXC}")
        E(f"s_lshl_b32 s{t0}, s{sB}, 5")
        E(f"s_add_u32 s{t0}, s{t0}, s{sH}")
        E(f"s_lshl_b32 s{t0}, s{t0}, 20")
        E(f"s_add_u32 s{t0}, s{t0}, 0xc0000")
        E(f"s_lshl_b32 s{t1}, s{sH}, 8")
        E(f"s_mul_i32 s{t2}, s{sH}, {128*1280}")
        E(f"s_mul_i32 s{t3}, s{sB}, 1280")
        E(f"s_mov_b32 s{sROLE}, 0")
        E(f"s_lshl_b32 s{sTILE}, s{sW}, 10")
        if a.x13:
            E(f"s_and_b32 s{sROLE}, s{sH}, 4")
            E(f"s_lshl_b32 s{sROLE}, s{sROLE}, 11")
            E(f"s_add_u32 s{sTILE}, s{sTILE}, s{sROLE}")
        if a.pf:
            E(f"s_cmp_gt_u32 s{sW}, {a.pf - 1}")
            E("s_cbranch_scc1 L_nopf")
            E(f"s_cmp_ge_u32 s2, {a.pfwg}")
            E("s_cbranch_scc1 L_nopf")
            E(f"s_getpc_b64 s[{sWF}:{sWF+1}]")
            E.label("L_pc")
            E(f"s_lshl_b32 s{sOUT}, s{sW}, 13")
            E(f"v_lshlrev_b32 v{vB0}, 7, v{vL}")
            E(f"v_add_u32 v{vB0}, s{sOUT}, v{vB0}")
            E(f"v_min_u32 v{vB0}, L_codeend-L_pc-4, v{vB0}")
            E(f"v_mov_b32 v{vB0+3}, s{sWF+1}")
            E(f"v_add_co_u32 v{vB0+2}, vcc, s{sWF}, v{vB0}")
            E(f"v_addc_co_u32 v{vB0+3}, vcc, 0, v{vB0+3}, vcc")
            E(f"global_load_dword v{vS+15}, v[{vB0+2}:{vB0+3}], off", tag="extra")
            E.label("L_nopf")
        E("s_waitcnt lgkmcnt(0)")
        srd_off(E, sK, 6, f"s{t0}", 0x40000)
        if a.x13:
            E(f"s_lshl_b32 s{sROLE}, s{sROLE}, 1")
            E(f"s_sub_u32 s0, 8192, s{sROLE}")
            E(f"s_add_u32 s1, 8192, s{sROLE}")
            E(f"s_mov_b32 s{sROLE}, s{sTILE}")
        def kvstep(f): return (f"s{f % 2}" if a.x13 else "8192")
        slot_of = {}
        free = deque(range(52))
        def alloc(tag):
            s = free.popleft(); slot_of[tag] = vF + 4 * s; return slot_of[tag]
        def release(tag):
            free.append((slot_of[tag] - vF) // 4)
        for f in range(a.nk0):
            if f: E(f"s_add_u32 s{sTILE}, s{sTILE}, {kvstep(f-1)}")
            E(f"buffer_load_dwordx4 {r4(alloc(f'k{f}'))}, v{vL16}, {S4(sK)}, s{sTILE} offen{nt}", tag=f"k{f}")
    srd(E, sX, 4, 5, 10240)
    xs_raw, xc_raw = vS, vS + 6
    E(f"buffer_load_dwordx4 {r4(xs_raw)}, v{vXS}, {S4(sX)}, s{t3} offen", tag="xs")
    E(f"buffer_load_dword v{xs_raw+4}, v{vXS}, {S4(sX)}, s{t3} offen offset:16", tag="xs")
    if not a.qp2:
        E(f"buffer_load_dwordx4 {r4(xc_raw)}, v{vXC}, {S4(sX)}, s{t3} offen", tag="xc")
        E(f"buffer_load_dword v{xc_raw+4}, v{vXC}, {S4(sX)}, s{t3} offen offset:16", tag="xc")
    srd_off(E, sWQ, 10, f"s{t1}", 639 * 8192 + 256)
    srd_off(E, sV, 8, f"s{t0}", 0x40000)
    srd_off(E, sWO, 12, f"s{t2}", 128 * 1280)
    srd(E, sWS, 24, 25, 1 << 22)
    srd(E, sDB, 22, 23, 256)
    srd(E, sOUT, 20, 21, 10240)
    srd_off(E, sH1, 24, H1_BASE, 108 * 256)
    E(f"s_add_u32 s{sKO}, s{sTILE}, {kvstep(a.nk0-1)}")
    if a.x13:
        E(f"s_mov_b32 s{sVO}, s{sROLE}")
        E(f"s_mov_b32 s{sROLE}, 0")
    else: E(f"s_lshl_b32 s{sVO}, s{sW}, 10")
    if a.qp2 and a.qrot:
        E(f"s_lshl_b32 s{sQ1}, s{sW}, 15")
        E(f"s_mul_i32 s{sQ0}, s{sB}, 10")
        E(f"s_lshr_b32 s{sQ0}, s{sQ0}, 3")
        E(f"s_lshl_b32 s{sQ0}, s{sQ0}, 19")
        E(f"s_add_u32 s{sQ0}, s{sQ0}, s{sQ1}")
    elif a.qp2:
        E(f"s_lshl_b32 s{sQ0}, s{sW}, 15")
    else:
        E(f"s_mul_i32 s{sQ0}, s{sW}, 655360")
        E(f"s_add_u32 s{sQ1}, s{sQ0}, 327680")
    E(f"s_mul_i32 s{sOO}, s{sW}, 1280")
    sOC = 25
    if a.orot:
        assert not a.dyn and a.endpf == 3
        E(f"s_mul_i32 s{sOC}, s{sB}, 5")
        E(f"s_lshr_b32 s{sOC}, s{sOC}, 3")
        E(f"s_lshl_b32 s{sOC}, s{sOC}, 8")
        E(f"s_add_u32 s{sOO}, s{sOO}, s{sOC}")

    if a.tlb:
        E(f"s_cmp_lg_u32 s{sW}, 1")
        E("s_cbranch_scc1 L_notlb")
        E(f"buffer_load_dword v{vS+14}, off, {S4(sV)}, 0 nt", tag="extra")
        E(f"buffer_load_dword v{vS+14}, off, {S4(sWO)}, 0 nt", tag="extra")
        if a.tlb > 1:
            E(f"s_mov_b32 s{sWF+2}, {640*3456}")
            E(f"s_mov_b32 s{sWF+3}, 0x20000")
            E(f"s_mov_b32 s{sT0}, {640*3456-4}")
            for p in (16, 18):
                E(f"s_mov_b32 s{sWF}, s{p}")
                E(f"s_and_b32 s{sWF+1}, s{p+1}, 0xffff")
                E(f"buffer_load_dword v{vS+14}, off, {S4(sWF)}, 0 nt", tag="extra")
                E(f"buffer_load_dword v{vS+14}, off, {S4(sWF)}, s{sT0} nt", tag="extra")
            E(f"s_mov_b32 s{sT0}, 0x20000")
            E(f"buffer_load_dword v{vS+14}, off, {S4(sWS)}, s{sT0} nt", tag="extra")
            E(f"buffer_load_dword v{vS+14}, off, {S4(sOUT)}, 0 nt", tag="extra")
        E.label("L_notlb")
    if a.skew >= 0:
        E("s_cmp_ge_u32 s2, 8")
        E("s_cbranch_scc1 L_noskew")
        E("s_waitcnt lgkmcnt(0)")
        E(f"v_mov_b32 v{vS+12}, s{sTS}")
        E(f"s_lshl_b32 s{sT0}, s2, 2")
        E(f"s_add_u32 s{sT0}, s{sT0}, 0x30000")
        E(f"buffer_store_dword v{vS+12}, off, {S4(sWS)}, s{sT0} sc1", tag="extra")
        E.label("L_noskew")
    def t_init():
        z = [alloc("z0"), alloc("z1"), alloc("z2"), alloc("z3")]
        zr = [z[0], z[0] + 2, z[1], z[1] + 2, z[2], z[2] + 2]
        init_seen.update(issued)
        E(f"s_cmp_lg_u32 s{sW}, 7")
        E("s_cbranch_scc1 L_nosent")
        if a.sent2:
            E(f"s_and_b32 s{sT0}, s2, {7 & ~a.sent2}")
            E(f"s_cmp_lg_u32 s{sT0}, {a.sentg}")
            E("s_cbranch_scc1 L_nosent")
            E(f"s_lshr_b32 s{sT0}, s2, 3")
            E(f"s_cmp_ge_u32 s{sT0}, 27")
            E("s_cbranch_scc1 L_nosent")
            E(f"s_and_b32 s{sT1}, s2, {a.sent2}")
            E(f"s_cselect_b32 s{sT1}, 27, 0")
            E(f"s_add_u32 s{sT0}, s{sT0}, s{sT1}")
            E(f"s_lshl_b32 s{sT0}, s{sT0}, 9")
            E(f"v_mov_b32 v{z[0]}, -1")
            E(f"v_mov_b32 v{z[0]+1}, -1")
            E(f"v_lshlrev_b32 v{z[3]}, 3, v{vL}")
            E(f"buffer_atomic_swap_x2 {r2(z[0])}, v{z[3]}, {S4(sH1)}, s{sT0} offen sc0", tag="extra")
        else:
            E(f"v_mov_b32 v{z[0]}, -1")
            E(f"v_lshlrev_b32 v{z[3]}, 2, v{vL}")
            E(f"s_lshl_b32 s{sT0}, s2, 8")
            if not a.nosent: E(f"buffer_atomic_swap v{z[0]}, v{z[3]}, {S4(sH1)}, s{sT0} offen sc0", tag="extra")
        E.label("L_nosent")
        E(f"s_cmp_lg_u32 s{sW}, 6")
        E("s_cbranch_scc1 L_noinit")
        E(f"s_and_b32 s{sT0}, s2, 31")
        E(f"s_cmp_lg_u32 s{sT0}, {a.zwg}")
        E("s_cbranch_scc1 L_noinit")
        for q in z[:3]:
            for i in range(4): E(f"v_mov_b32 v{q+i}, 0")
        E(f"v_lshlrev_b32 v{z[3]}, 3, v{vL}")
        E(f"s_mul_i32 s{sT0}, s{sB}, {HS}")
        for i in range(6):
            E(f"buffer_atomic_swap_x2 {r2(zr[i])}, v{z[3]}, {S4(sWS)}, s{sT0} offen offset:{512*i} sc0", tag="extra")
        E.label("L_noinit")
    init_seen = set()
    def t_flagset():
        assert "wq11" not in init_seen
        E(f"s_cmp_lg_u32 s{sW}, 6")
        E("s_cbranch_scc1 L_noflag")
        E(f"s_and_b32 s{sT0}, s2, 31")
        E(f"s_cmp_lg_u32 s{sT0}, {a.zwg}")
        E("s_cbranch_scc1 L_noflag")
        E(f"v_mov_b32 v{slot_of['z3']}, 1")
        E(f"s_lshl_b32 s{sT0}, s{sB}, 2")
        E("s_mov_b64 exec, 1")
        E(f"buffer_store_dword v{slot_of['z3']}, off, {S4(sDB)}, s{sT0} sc1", tag="extra")
        E("s_mov_b64 exec, -1")
        E.label("L_noflag")

    def kload(f):
        def fn():
            E(f"buffer_load_dwordx4 {r4(alloc(f'k{f}'))}, v{vL16}, {S4(sK)}, s{sKO} offen{nt}", tag=f"k{f}")
            if f < 31: E(f"s_add_u32 s{sKO}, s{sKO}, {kvstep(f)}")
        return (f"k{f}", fn, True)
    def vload(f):
        def fn():
            E(f"buffer_load_dwordx4 {r4(alloc(f'v{f}'))}, v{vL16}, {S4(sV)}, s{sVO} offen{nt}", tag=f"v{f}")
            if f < 31: E(f"s_add_u32 s{sVO}, s{sVO}, {kvstep(f)}")
        return (f"v{f}", fn, True)
    def qload(f):
        def fn():
            s = sQ0 if (f % 2 == 0 or a.qp2) else sQ1
            E(f"buffer_load_dwordx4 {r4(alloc(f'wq{f}'))}, v{vWQ}, {S4(sWQ)}, s{s} offen{wnt}", tag=f"wq{f}")
            if a.qp2:
                if f < 19: E(f"s_add_u32 s{s}, s{s}, {32*8192}")
                if a.qrot and f < 19 and f % 2 == 1:
                    E(f"s_cmp_ge_u32 s{s}, {640*8192}")
                    E(f"s_cselect_b32 s{s}, s{sQ1}, s{s}")
            elif f < 18: E(f"s_add_u32 s{s}, s{s}, 8192")
        return (f"wq{f}", fn, True)
    def oload(f):
        def fn():
            if a.orot:
                E(f"buffer_load_dwordx4 {r4(alloc(f'wo{f}'))}, v{vWO}, {S4(sWO)}, s{sOO} offen{wnt}", tag=f"wo{f}")
                if f % 4 < 3: E(f"s_add_u32 s{sOO}, s{sOO}, {8*1280}")
                elif f < 19:
                    E(f"s_add_u32 s{sOC}, s{sOC}, 256")
                    E(f"s_cmp_ge_u32 s{sOC}, 1280")
                    E(f"s_cselect_b32 s{sOC}, 0, s{sOC}")
                    E(f"s_mul_i32 s{sOO}, s{sW}, 1280")
                    E(f"s_add_u32 s{sOO}, s{sOO}, s{sOC}")
                return
            fp, cg = divmod(f, 5)
            E(f"buffer_load_dwordx4 {r4(alloc(f'wo{f}'))}, v{vWO}, {S4(sWO)}, s{sOO} offen offset:{cg*256}{wnt}", tag=f"wo{f}")
            if cg == 4 and fp < 3: E(f"s_add_u32 s{sOO}, s{sOO}, {8*1280}")
        return (f"wo{f}", fn, True)
    vFL = vWQ
    vTK = vQ + 3
    sCLS = 25
    FM = 15 if a.dcls else 7
    def fladdr():
        E(f"v_and_b32 v{vFL}, 7, v{vL}")
        if a.dcls:
            E(f"s_and_b32 s{sCLS}, s2, 7")
            E(f"s_add_u32 s{sCLS}, s{sCLS}, 8")
            E("s_mov_b32 exec_lo, 0")
            E(f"v_mov_b32 v{vFL}, s{sCLS}")
            E("s_mov_b32 exec_lo, -1")
        E(f"v_lshlrev_b32 v{vFL}, 2, v{vFL}")
    def get_class():
        if a.dcls:
            E(f"s_mov_b32 s{sT0}, s{sCLS}")
            return
        E(f"s_and_b32 s{sT0}, s2, 7")
        E(f"s_lshl_b32 s{sT0}, s{sT0}, 2")
        E(f"s_lshr_b32 s{sT0}, {a.rtab}, s{sT0}")
        E(f"s_and_b32 s{sT0}, s{sT0}, 15")
    def t_cls_draw():
        E(f"s_cmp_lg_u32 s{sW}, 5")
        E("s_cbranch_scc1 L_nodraw")
        E(f"s_lshr_b32 s{sT0}, s2, 3")
        E(f"s_cmp_lg_u32 s{sT0}, {a.dclsm}")
        E("s_cbranch_scc1 L_nodraw")
        E(f"s_and_b32 s{sT0}, s2, 5")
        E(f"s_cmp_eq_u32 s{sT0}, 1")
        E("s_cbranch_scc1 L_nodraw")
        E(f"s_mov_b32 s{sCLS}, 1")
        E(f"s_atomic_add s{sCLS}, s[{sDB}:{sDB+1}], 128 glc")
        E.label("L_nodraw")
    def t_cls_pub():
        v = alloc("cp")
        E(f"s_cmp_lg_u32 s{sW}, 5")
        E("s_cbranch_scc1 L_nopub")
        E(f"s_lshr_b32 s{sT0}, s2, 3")
        E(f"s_cmp_lg_u32 s{sT0}, {a.dclsm}")
        E("s_cbranch_scc1 L_nopub")
        E("s_waitcnt lgkmcnt(0)")
        E(f"s_add_u32 s{sT1}, s{sCLS}, 5")
        E(f"s_cmp_lt_u32 s{sCLS}, 3")
        E(f"s_cselect_b32 s{sT1}, s{sCLS}, s{sT1}")
        E(f"s_bfe_u32 s{sT2}, s2, 0x10001")
        E(f"s_add_u32 s{sT2}, s{sT2}, 11")
        E(f"s_and_b32 s{sT0}, s2, 5")
        E(f"s_cmp_eq_u32 s{sT0}, 1")
        E(f"s_cselect_b32 s{sT1}, s{sT2}, s{sT1}")
        E(f"s_add_u32 s{sT1}, s{sT1}, 1")
        E(f"v_mov_b32 v{v}, s{sT1}")
        E(f"s_and_b32 s{sT0}, s2, 7")
        E(f"s_lshl_b32 s{sT0}, s{sT0}, 2")
        E("s_mov_b64 exec, 1")
        E(f"buffer_store_dword v{v}, off, {S4(sDB)}, s{sT0} offset:32 sc1", tag="extra")
        E("s_mov_b64 exec, -1")
        E.label("L_nopub")
    def t_cls_get():
        E(f"v_readlane_b32 s{sCLS}, v{vFL}, 32")
        E(f"s_sub_u32 s{sCLS}, s{sCLS}, 1")
    def fload():
        def fn():
            fladdr()
            E(f"buffer_load_dword v{vFL}, v{vFL}, {S4(sDB)}, 0 offen sc1", tag="flag")
        return ("flag", fn, False)
    TKL = QF
    def ticket():
        def fn():
            v = alloc("tk")
            E(f"v_mov_b32 v{v+1}, {TKL}")
            if a.dyn == 2:
                E(f"s_lshr_b32 s{sTKO}, s2, 3")
                E(f"s_cmp_lg_u32 s{sW}, 0")
                E("s_cbranch_scc1 L_notk")
                E(f"s_and_b32 s{sT0}, s2, 7")
                E(f"s_lshl_b32 s{sT0}, s{sT0}, 2")
                E(f"s_lshr_b32 s{sT0}, {a.rtab}, s{sT0}")
                E(f"s_and_b32 s{sT0}, s{sT0}, 15")
                E(f"s_cmp_ge_u32 s{sT0}, 8")
                E("s_cbranch_scc1 L_notk")
                E(f"s_lshl_b32 s{sT0}, s{sT0}, 6")
                E(f"s_add_u32 s{sT0}, s{sT0}, 64")
                E(f"s_mov_b32 s{sTKO}, 1")
                E(f"s_atomic_add s{sTKO}, s[{sDB}:{sDB+1}], s{sT0} glc")
            else:
                E(f"s_cmp_lg_u32 s{sW}, 0")
                E("s_cbranch_scc1 L_notk")
                E(f"v_mov_b32 v{v}, 1")
                E(f"s_and_b32 s{sTKO}, s2, 7")
                E(f"s_lshl_b32 s{sTKO}, s{sTKO}, 4")
                E("s_mov_b64 exec, 1")
                E(f"buffer_atomic_add v{v}, off, {S4(sDB)}, s{sTKO} offset:128 sc0", tag="extra")
                E("s_mov_b64 exec, -1")
            E.label("L_notk")
        return ("tk", fn, True)
    def l2pf_outer():
        def fn():
            vPF = vS + 13
            E(f"s_and_b32 s{sT0}, s2, 7")
            E(f"s_lshl_b32 s{sT0}, s{sT0}, 2")
            E(f"s_lshr_b32 s{sT0}, {a.rtab}, s{sT0}")
            E(f"s_and_b32 s{sT0}, s{sT0}, 15")
            E(f"s_lshr_b32 s{sT1}, s2, 3")
            E(f"s_mov_b32 s{sWF+2}, {640*3456}")
            E(f"s_mov_b32 s{sWF+3}, 0x20000")
            E(f"s_cmp_ge_u32 s{sT0}, 8")
            E("s_cbranch_scc1 L_l2b")
            E(f"s_cmp_ge_u32 s{sW}, 3")
            E("s_cbranch_scc1 L_nol2")
            E(f"s_mov_b32 s{sWF}, s16")
            E(f"s_and_b32 s{sWF+1}, s17, 0xffff")
            E(f"s_mul_i32 s{sT2}, s{sT0}, {9*128}")
            E(f"s_mul_i32 s{sT0}, s{sW}, {3*128}")
            E(f"s_add_u32 s{sT2}, s{sT2}, s{sT0}")
            E(f"s_mul_i32 s{sT1}, s{sT1}, {20*3456}")
            E(f"s_add_u32 s{sT2}, s{sT2}, s{sT1}")
            E(f"v_mul_u32_u24 v{vPF}, 43, v{vL}")
            E(f"v_lshrrev_b32 v{vPF}, 7, v{vPF}")
            E(f"v_mul_u32_u24 v{vPF}, {3456-384}, v{vPF}")
            E(f"v_lshl_add_u32 v{vPF}, v{vL}, 7, v{vPF}")
            E(f"s_mov_b32 exec_hi, 0xfffffff")
            E("s_branch L_l2go")
            E.label("L_l2b")
            E(f"s_cmp_ge_u32 s{sW}, 2")
            E("s_cbranch_scc1 L_nol2")
            E(f"s_mov_b32 s{sWF}, s18")
            E(f"s_and_b32 s{sWF+1}, s19, 0xffff")
            E(f"s_sub_u32 s{sT0}, s{sT0}, 8")
            E(f"s_lshl_b32 s{sT0}, s{sT0}, 1")
            E(f"s_add_u32 s{sT2}, s{sT0}, s{sW}")
            E(f"s_lshl_b32 s{sT2}, s{sT2}, 7")
            E(f"s_mul_i32 s{sT1}, s{sT1}, {54*1280}")
            E(f"s_add_u32 s{sT2}, s{sT2}, s{sT1}")
            E(f"v_mul_u32_u24 v{vPF}, 1280, v{vL}")
            E(f"s_mov_b32 exec_hi, 0x3fffff")
            E.label("L_l2go")
            E(f"buffer_load_dword v{vPF}, v{vPF}, {S4(sWF)}, s{sT2} offen", tag="extra")
            E("s_mov_b64 exec, -1")
            E.label("L_nol2")
        return fn
    t_l2pf = l2pf_outer()
    sPO, sPC, sPD = 21, 24, 25
    def t_spf0():
        E(f"s_and_b32 s{sT0}, s2, 7")
        E(f"s_lshl_b32 s{sT0}, s{sT0}, 2")
        E(f"s_lshr_b32 s{sT0}, {a.rtab}, s{sT0}")
        E(f"s_and_b32 s{sPC}, s{sT0}, 15")
        E(f"s_lshr_b32 s{sT1}, s2, 3")
        E(f"s_mov_b32 s{sWF+2}, {640*3456}")
        E(f"s_mov_b32 s{sWF+3}, 0x20000")
        E(f"s_mul_i32 s{sT2}, s{sT1}, 20")
        E(f"s_add_u32 s{sT2}, s{sT2}, s{sW}")
        E(f"s_mul_i32 s{sT2}, s{sT2}, 3456")
        E(f"s_mul_i32 s{sT0}, s{sPC}, 1152")
        E(f"s_add_u32 s{sT2}, s{sT2}, s{sT0}")
        E(f"s_mul_i32 s{sT3}, s{sT1}, 54")
        E(f"s_add_u32 s{sT3}, s{sT3}, s{sW}")
        E(f"s_mul_i32 s{sT3}, s{sT3}, 1280")
        E(f"s_sub_u32 s{sT0}, s{sPC}, 8")
        E(f"s_lshl_b32 s{sT0}, s{sT0}, 8")
        E(f"s_add_u32 s{sT3}, s{sT3}, s{sT0}")
        E(f"s_cmp_lt_u32 s{sPC}, 8")
        E(f"s_cselect_b32 s{sPO}, s{sT2}, s{sT3}")
        E(f"s_cselect_b32 s{sWF}, s16, s18")
        E(f"s_cselect_b32 s{sWF+1}, s17, s19")
        E(f"s_and_b32 s{sWF+1}, s{sWF+1}, 0xffff")
    def t_spf(part):
        def fn():
            E(f"s_cmp_lt_u32 s{sPC}, 8")
            E(f"s_cbranch_scc0 L_spb{part}")
            if part == 2:
                E(f"s_cmp_ge_u32 s{sW}, 4")
                E(f"s_cbranch_scc1 L_spe{part}")
            for ln in range(9 if not a.endpf & 1 else 0):
                for hf in range(a.sphalf):
                    E(f"s_buffer_load_dword s{sPD}, {S4(sWF)}, s{sPO} offset:{part*8*3456 + ln*128 + hf*64}")
            E(f"s_branch L_spe{part}")
            E.label(f"L_spb{part}")
            for k in (([0, 1, 2], [3, 4], [5, 6])[part] if not a.endpf & 2 else []):
                for ln in range(2):
                    for hf in range(a.sphalf):
                        E(f"s_buffer_load_dword s{sPD}, {S4(sWF)}, s{sPO} offset:{k*8*1280 + ln*128 + hf*64}")
            E.label(f"L_spe{part}")
        return fn
    sEO, sEM = 14, 15
    sES = 36
    def t_epf_prep():
        k_ = next(k for k in free if not (125 <= 4 * k < 204))
        free.remove(k_); free.appendleft(k_)
        v = alloc("epf")
        get_class()
        E(f"s_lshr_b32 s{sT1}, s2, 3")
        E(f"s_mul_i32 s{sT2}, s{sT1}, {20*3456}")
        E(f"s_mul_i32 s{sT3}, s{sT0}, 1152")
        E(f"s_add_u32 s{sT2}, s{sT2}, s{sT3}")
        E(f"s_mul_i32 s{sT3}, s{sT1}, {54*1280}")
        E(f"s_sub_u32 s{sT1}, s{sT0}, 8")
        E(f"s_lshl_b32 s{sT1}, s{sT1}, 8")
        E(f"s_add_u32 s{sT3}, s{sT3}, s{sT1}")
        E(f"s_mul_i32 s{sT1}, s{sW}, 23")
        E(f"v_add_u32 v{v}, s{sT1}, v{vL}")
        E(f"v_mul_u32_u24 v{v+1}, 7282, v{v}")
        E(f"v_lshrrev_b32 v{v+1}, 16, v{v+1}")
        E(f"v_mul_u32_u24 v{v+1}, {3456-1152}, v{v+1}")
        E(f"v_lshl_add_u32 v{v+1}, v{v}, 7, v{v+1}")
        E(f"s_mul_i32 s{sT1}, s{sW}, 14")
        E(f"v_add_u32 v{v}, s{sT1}, v{vL}")
        E(f"v_lshrrev_b32 v{v+2}, 1, v{v}")
        E(f"v_mul_u32_u24 v{v+2}, {1280-256}, v{v+2}")
        E(f"v_lshl_add_u32 v{v+2}, v{v}, 7, v{v+2}")
        E(f"s_cmp_lt_u32 s{sT0}, 8")
        E(f"s_cselect_b32 s{sEO}, s{sT2}, s{sT3}")
        E(f"s_mov_b32 s{sEM}, {(1 << 14) - 1 if (a.endpf & 2 and not a.hyb) else 1}")
        E(f"s_cselect_b32 s{sEM}, {(1 << 23) - 1 if a.endpf & 1 else 1}, s{sEM}")
        E(f"s_cselect_b32 s{sES}, s16, s18")
        E(f"s_cselect_b32 s{sES+1}, s17, s19")
        E(f"s_cselect_b64 vcc, -1, 0")
        E(f"s_and_b32 s{sES+1}, s{sES+1}, 0xffff")
        E(f"s_mov_b32 s{sES+2}, {640*3456}")
        E(f"s_mov_b32 s{sES+3}, 0x20000")
        E(f"v_cndmask_b32 v{v}, v{v+2}, v{v+1}, vcc")
    def epf():
        def fn():
            v = slot_of["epf"]
            E(f"s_mov_b32 exec_lo, s{sEM}")
            E(f"s_mov_b32 exec_hi, 0")
            E(f"buffer_load_dword v{v+3}, v{v}, {S4(sES)}, s{sEO} offen", tag="epf")
            E("s_mov_b64 exec, -1")
        return ("epf", fn, False)
    def prio(k, lo, hi):
        def fn():
            E(f"s_cmp_ge_u32 s{sW}, 4")
            E(f"s_cbranch_scc1 L_pr{k}a")
            E(f"s_setprio {lo}")
            E(f"s_branch L_pr{k}b")
            E.label(f"L_pr{k}a")
            E(f"s_setprio {hi}")
            E.label(f"L_pr{k}b")
        return ("tk", fn, False)
    loads = []
    qi = 0
    for f in range(a.nk0, 32):
        want = min(20, (f - a.nk0 + 1) * 20 // (a.qspan - a.nk0 + 1) + 1)
        while qi < want:
            loads.append(qload(qi)); qi += 1
        loads.append(kload(f))
    while qi < 20:
        loads.append(qload(qi)); qi += 1
    nmid = 20 - a.otail
    oi = 0
    for f in range(32):
        loads.append(vload(f))
        if f == a.fpos and not a.noflag: loads.append(fload())
        if f == a.prio: loads.append(prio(0, 0, 1))
        if f == a.tkpos and a.dyn: loads.append(ticket())
        want = max(0, (f + 1 - a.ostart)) * nmid // (32 - a.ostart)
        while oi < want:
            loads.append(oload(oi)); oi += 1
    while oi < 20:
        loads.append(oload(oi)); oi += 1
    if a.endpf and a.epos >= 0: loads.insert(len(loads) - a.epos, epf())

    vRW, vRR = vXS, vXC
    def t_setup():
        E(f"s_mov_b32 s{sSPIN}, 0x40000")
        E(f"s_mov_b32 s{sLO8}, 0x00ff00ff")
        E(f"s_mov_b32 s{sLO8+1}, 0x00ff00ff")
        E(f"v_mul_u32_u24 v{vWO}, 40960, v{vJ}")
        E(f"v_and_b32 v{vB0}, 1, v{vN}")
        E(f"v_lshrrev_b32 v{vB0+1}, 1, v{vN}")
        E(f"v_lshl_add_u32 v{vWO}, v{vN}, 4, v{vWO}")
        E(f"v_lshlrev_b32 v{vB0}, 4, v{vB0}")
        E(f"v_mov_b32 v{vB0+2}, 0xffff")
        E(f"v_lshlrev_b32 v{vB0}, v{vB0}, v{vB0+2}")
        E(f"v_and_b32 v{vB0+1}, 3, v{vB0+1}")
        for w in range(4):
            E(f"v_cmp_eq_u32 vcc, {w}, v{vB0+1}")
            E(f"v_cndmask_b32 v{vM+w}, 0, v{vB0}, vcc")
        E(f"v_lshrrev_b32 v{vB0}, 3, v{vN}")
        E(f"s_lshl_b32 s{sT0}, s{sW}, 1")
        E(f"v_add_u32 v{vB0}, s{sT0}, v{vB0}")
        E(f"v_mul_u32_u24 v{vRW}, 528, v{vB0}")
        E(f"v_and_b32 v{vB0}, 7, v{vN}")
        E(f"v_lshl_add_u32 v{vRW}, v{vB0}, 6, v{vRW}")
        E(f"v_lshl_add_u32 v{vRW}, v{vJ}, 4, v{vRW}")
        E(f"v_mul_u32_u24 v{vRR}, 528, v{vN}")
        E(f"v_lshl_add_u32 v{vRR}, v{vJ}, 4, v{vRR}")
        E(f"s_lshl_b32 s{sT0}, s{sW}, 6")
        E(f"v_add_u32 v{vRR}, s{sT0}, v{vRR}")
    f0 = 8
    vMEAN, vRCP = 18, 19
    def t_ln1a():
        stamp(1)
        unpack10(E, xs_raw, f0)
        ln_stats(E, f0, 20, 21, 22, vMEAN, vRCP)
    def t_ln1b():
        if not a.qp2: unpack10(E, xc_raw, f0)
        for i in range(10): E(f"v_sub_f32 v{f0+i}, v{f0+i}, v{vMEAN}")
        bf16r_many(E, range(f0, f0 + 10))
        for i in range(10): E(f"v_mul_f32 v{f0+i}, v{f0+i}, v{vRCP}")
        if not a.qp2:
            for i in range(10): E(f"v_cvt_pk_bf16_f32 v{vS+i}, v{f0+i}, v{f0+i}")
            return
        for i in range(5): E(f"v_cvt_pk_bf16_f32 v{vS+i}, v{f0+2*i}, v{f0+2*i+1}")
        E(f"s_mul_i32 s{sT0}, s{sW}, 2816")
        E(f"v_mul_u32_u24 v20, 20, v{vL}")
        E(f"v_add_u32 v20, s{sT0}, v20")
        for i in range(5): E(f"ds_write_b32 v20, v{vS+i} offset:{WT+4*i}")
        if a.qrot:
            for i in range(5): E(f"ds_write_b32 v20, v{vS+i} offset:{WT+1280+4*i}")
        E(f"v_lshrrev_b32 v21, 3, v{vN}")
        E(f"v_lshlrev_b32 v21, 6, v21")
        E(f"v_lshl_add_u32 v21, v{vJ}, 1, v21")
        E(f"s_mul_i32 s{sT0}, s{sW}, 2824")
        if a.qrot:
            E(f"s_mul_i32 s{sT1}, s{sB}, 10")
            E(f"s_lshr_b32 s{sT1}, s{sT1}, 3")
            E(f"s_lshl_b32 s{sT1}, s{sT1}, 7")
            E(f"s_add_u32 s{sT0}, s{sT0}, s{sT1}")
        E(f"v_add_u32 v21, s{sT0}, v21")
        E("s_waitcnt lgkmcnt(0)")
        for i in range(10): E(f"ds_read_u16 v{vS+i}, v21 offset:{WT+128*i}")
        E("s_waitcnt lgkmcnt(0)")
        for i in range(10): E(f"v_lshl_or_b32 v{vS+i}, v{vS+i}, 16, v{vS+i}")
    def bfrag(dst, src):
        for w in range(4): E(f"v_and_b32 v{dst+w}, v{src}, v{vM+w}")
    def t_pair(t, pre):
        def fn():
            B = vB0 if t % 2 == 0 else vB1
            bfrag(B, vS + t)
            c1 = "0" if t == 0 else r4(vD1)
            c2 = "0" if t == 0 else r4(vD2)
            E(f"v_mfma_f32_16x16x32_bf16 {r4(vD1)}, {r4(slot_of[f'{pre}{2*t}'])}, {r4(B)}, {c1}")
            E(f"v_mfma_f32_16x16x32_bf16 {r4(vD2)}, {r4(slot_of[f'{pre}{2*t+1}'])}, {r4(B)}, {c2}")
        return fn
    def red_a():
        for r in range(4):
            E(f"v_cndmask_b32 v{vD1+r}, v{vD2+r}, v{vD1+r}, s[{sLO8}:{sLO8+1}]")
        E(f"ds_write_b128 v{vRW}, {r4(vD1)} offset:{RED}")
    def t_bar():
        E("s_waitcnt lgkmcnt(0)")
        E("s_barrier")
    def red_b(dst, mid=None):
        E(f"ds_read_b128 {r4(dst)}, v{vRR} offset:{RED}")
        if mid: mid()
        E("s_waitcnt lgkmcnt(0)")
        row_reduce(E, [dst + i for i in range(4)])
        for i in range(4): E(f"v_cvt_pk_bf16_f32 v{dst+i}, v{dst+i}, v{dst+i}")
    def t_qr2():
        E(f"v_lshlrev_b32 v{vB1}, 6, v{vJ}")
        E(f"s_lshl_b32 s{sT0}, s{sW}, 1")
        E(f"v_add_u32 v{vB1}, s{sT0}, v{vB1}")
        red_b(vB0)
        E(f"s_mov_b32 exec_lo, 0x00010001")
        E(f"s_mov_b32 exec_hi, 0x00010001")
        for i in range(4): E(f"ds_write_b16 v{vB1}, v{vB0+i} offset:{QF+16*i}")
        E("s_mov_b64 exec, -1")
        E(f"v_lshlrev_b32 v{vB1}, 4, v{vN}")
    def t_qr3():
        E(f"ds_read_b128 {r4(vQ)}, v{vB1} offset:{QF}")
        E("s_waitcnt lgkmcnt(0)")
        stamp(2)
    def t_k2(t):
        def fn():
            ks = [slot_of[f"k{2*t+i}"] for i in range(4)]
            acc = [vB0 + i for i in range(4)]
            for i in range(4):
                for u in range(4):
                    E(f"v_dot2_f32_bf16 v{acc[u]}, v{ks[u]+i}, v{vQ+i}, {'0' if i == 0 else 'v%d' % acc[u]}")
            s0, s1 = vS + t, vS + t + 1
            E(f"v_add_f32_dpp v{s0}, v{acc[0]}, v{acc[0]} row_ror:8 row_mask:0xf bank_mask:0x3")
            E(f"v_add_f32_dpp v{s0}, v{acc[1]}, v{acc[1]} row_ror:8 row_mask:0xf bank_mask:0xc")
            E(f"v_add_f32_dpp v{s1}, v{acc[2]}, v{acc[2]} row_ror:8 row_mask:0xf bank_mask:0x3")
            E(f"v_add_f32_dpp v{s1}, v{acc[3]}, v{acc[3]} row_ror:8 row_mask:0xf bank_mask:0xc")
            for mod in ("row_half_mirror", "quad_perm:[1,0,3,2]", "quad_perm:[2,3,0,1]"):
                for s in (s0, s1):
                    E(f"v_add_f32_dpp v{s}, v{s}, v{s} {mod} row_mask:0xf bank_mask:0xf")
            bf16r_many(E, [s0, s1])
            E(f"v_mul_f32 v{s0}, {SCALE:#x}, v{s0}")
            E(f"v_mul_f32 v{s1}, {SCALE:#x}, v{s1}")
            bf16r_many(E, [s0, s1])
        return fn
    m, l = vD1, vD1 + 1
    def t_sm1():
        E(f"v_max3_f32 v{m}, v{vS}, v{vS+1}, v{vS+2}")
        for i in range(3, 15, 2): E(f"v_max3_f32 v{m}, v{m}, v{vS+i}, v{vS+i+1}")
        E(f"v_max_f32 v{m}, v{m}, v{vS+15}")
        for i in range(16): E(f"v_sub_f32 v{vS+i}, v{vS+i}, v{m}")
        for i in range(16): E(f"v_mul_f32 v{vS+i}, {LOG2E:#x}, v{vS+i}")
        for i in range(16): E(f"v_exp_f32 v{vS+i}, v{vS+i}")
        E(f"v_add_f32 v{l}, v{vS}, v{vS+1}")
        E(f"v_add_f32 v{vB0}, v{vS+2}, v{vS+3}")
        for i in range(4, 16, 2):
            E(f"v_add_f32 v{l}, v{l}, v{vS+i}")
            E(f"v_add_f32 v{vB0}, v{vB0}, v{vS+i+1}")
        E(f"v_add_f32 v{l}, v{l}, v{vB0}")
        E(f"v_and_b32 v{vB0}, 56, v{vL}")
        E(f"s_lshl_b32 s{sT0}, s{sW}, 6")
        E(f"v_add_u32 v{vB0}, s{sT0}, v{vB0}")
        E(f"ds_write_b64 v{vB0}, {r2(m)} offset:{ML}")
        E(f"v_lshlrev_b32 v{vB0}, 3, v{vL}")
        stamp(3)
    def t_smb():
        E("s_waitcnt lgkmcnt(0)")
        E("s_barrier")
        stamp(4)
    def t_sm2():
        mg, lg = vD2, vD2 + 1
        E(f"ds_read_b64 {r2(mg)}, v{vB0} offset:{ML}")
        E("s_waitcnt lgkmcnt(0)")
        E(f"v_mov_b32 v{vB0}, v{mg}")
        wave_reduce(E, vB0, sT0, "v_max_f32")
        E(f"v_subrev_f32 v{mg}, s{sT0}, v{mg}")
        E(f"v_subrev_f32 v{m}, s{sT0}, v{m}")
        E(f"v_mul_f32 v{mg}, {LOG2E:#x}, v{mg}")
        E(f"v_mul_f32 v{m}, {LOG2E:#x}, v{m}")
        E(f"v_exp_f32 v{mg}, v{mg}")
        E(f"v_exp_f32 v{m}, v{m}")
        E(f"v_mul_f32 v{lg}, v{lg}, v{mg}")
        wave_reduce(E, lg, sT1)
        E(f"v_rcp_f32 v{l}, s{sT1}")
        E(f"v_mul_f32 v{m}, v{m}, v{l}")
        for i in range(16): E(f"v_mul_f32 v{vS+i}, v{vS+i}, v{m}")
        for i in range(16): E(f"v_cvt_pk_bf16_f32 v{vS+i}, v{vS+i}, v{vS+i}")
    Bs = [vB0, vB1, vD1, vD2]
    vA, vA2, vA3 = vQ, vQ + 1, vQ + 2
    vFL2 = vD2 + 2
    vA4 = vQ + 3
    sVA = 22
    def t_pre_tail():
        E(f"v_and_b32 v{vA}, 7, v{vL}")
        E(f"v_mul_u32_u24 v{vA}, 80, v{vA}")
        E(f"v_lshl_add_u32 v{vA}, v{vJ}, 4, v{vA}")
        E(f"s_mul_i32 s{sT0}, s{sW}, {YPS}")
        E(f"v_add_u32 v{vA}, s{sT0}, v{vA}")
        for k, (dst, add) in enumerate(((vA2, 0), (vA3, 480))):
            E(f"s_mul_i32 s{sT0}, s{sW}, 60")
            E(f"s_add_u32 s{sT0}, s{sT0}, {add}")
            E(f"v_mul_u32_u24 v{vA4}, 15, v{vJ}")
            E(f"v_add3_u32 v{vA4}, v{vA4}, v{vN}, s{sT0}")
            if k == 1:
                E(f"s_mov_b32 s{sT1}, 640")
                E(f"v_cmp_gt_u32 s[{sVA}:{sVA+1}], s{sT1}, v{vA4}")
            E(f"v_min_u32 v{vA4}, 639, v{vA4}")
            E(f"v_lshrrev_b32 v{dst}, 7, v{vA4}")
            E(f"v_mul_u32_u24 v{dst}, 640, v{dst}")
            E(f"v_and_b32 v{vFL2}, 7, v{vA4}")
            E(f"v_mul_u32_u24 v{vFL2}, 80, v{vFL2}")
            E(f"v_add_u32 v{dst}, v{dst}, v{vFL2}")
            E(f"v_bfe_u32 v{vFL2}, v{vA4}, 3, 4")
            E(f"v_lshl_add_u32 v{dst}, v{vFL2}, 2, v{dst}")
        E(f"v_lshlrev_b32 v{vA4}, 2, v{vL}")
    def t_role():
        get_class()
        if a.dyn: E(f"s_mov_b32 s{sT1}, s{sTKO}")
        else: E(f"s_lshr_b32 s{sT1}, s2, 3")
        E(f"s_mul_i32 s{sT2}, s{sT0}, 9")
        E(f"s_add_u32 s{sT2}, s{sT2}, s{sT1}")
        E(f"s_add_u32 s{sT2}, s{sT2}, {NF2}")
        E(f"s_cmp_lt_u32 s{sT1}, 9")
        E(f"s_cselect_b32 s{sT2}, s{sT2}, 255")
        E(f"s_sub_u32 s{sT3}, s{sT0}, 8")
        E(f"s_mul_i32 s{sT3}, s{sT3}, {8 // NC}")
        E(f"s_add_u32 s{sT3}, s{sT3}, s{sT1}")
        E(f"s_cmp_lt_u32 s{sT1}, {8 // NC}")
        E(f"s_cselect_b32 s{sT3}, s{sT3}, 255")
        E(f"s_cmp_lt_u32 s{sT0}, 8")
        E(f"s_cselect_b32 s{sTILE}, s{sT2}, s{sT3}")
    def t_flag():
        E(f"v_cmp_eq_u32 vcc, 0, v{vFL}")
        E.flush()
        E("s_cbranch_vccz L_flagok")
        E.label("L_flag")
        E("s_sleep 2")
        fladdr()
        E(f"buffer_load_dword v{vFL}, v{vFL}, {S4(sDB)}, 0 offen sc1", tag="extra")
        E("s_waitcnt vmcnt(0)")
        E(f"v_cmp_eq_u32 vcc, 0, v{vFL}")
        E.flush()
        E("s_cbranch_vccz L_flagok")
        spin("L_flagok")
        E("s_branch L_flag")
        E.label("L_flagok")
    sDO, sDL = 21, 24
    vDM1 = vFL
    def t_dmaprep():
        tmp = alloc("tmpd")
        E(f"s_mov_b32 s{sWF}, s16")
        E(f"s_and_b32 s{sWF+1}, s17, 0xffff")
        E(f"s_mov_b32 s{sWF+2}, {640*3456}")
        E(f"s_mov_b32 s{sWF+3}, 0x20000")
        E(f"v_lshrrev_b32 v{vDM1}, 3, v{vL}")
        E(f"v_mul_u32_u24 v{vDM1}, 3456, v{vDM1}")
        E(f"v_and_b32 v{tmp}, 1, v{vJ}")
        E(f"v_lshlrev_b32 v{tmp}, 2, v{tmp}")
        E(f"s_and_b32 s{sT0}, s{sW}, 1")
        E(f"s_lshl_b32 s{sT1}, s{sT0}, 1")
        E(f"v_xor_b32 v{tmp}, s{sT1}, v{tmp}")
        E(f"v_xor_b32 v{tmp}, v{vL}, v{tmp}")
        E(f"v_and_b32 v{tmp}, 7, v{tmp}")
        E(f"v_lshl_add_u32 v{vDM1}, v{tmp}, 4, v{vDM1}")
        E(f"s_lshr_b32 s{sT1}, s{sW}, 1")
        E(f"s_mul_i32 s{sT1}, s{sT1}, 15")
        E(f"s_lshl_b32 s{sT0}, s{sT0}, 3")
        E(f"s_add_u32 s{sT1}, s{sT1}, s{sT0}")
        E(f"s_mul_i32 s{sT1}, s{sT1}, 3456")
        E(f"s_mov_b32 s{sDO}, s{sT1}")
        E(f"s_lshl_b32 s{sDL}, s{sW}, 10")
        E(f"s_add_u32 s{sDL}, s{sDL}, {WT}")
    def t_ypw():
        stamp(7)
        E(f"s_mov_b64 exec, s[{sLO8}:{sLO8+1}]")
        for cg in range(5):
            if a.orot: E(f"ds_write_b128 v{ypa(cg)}, {r4(slot_of[f'y{cg}'])} offset:{YP}")
            else: E(f"ds_write_b128 v{vA}, {r4(slot_of[f'y{cg}'])} offset:{YP+cg*640}")
        E("s_mov_b64 exec, -1")
    def ypa(cg): return vA if cg == 4 else slot_of["ya"] + cg
    def t_ypaddr():
        alloc("ya")
        E(f"s_mul_i32 s{sT0}, s{sB}, 5")
        E(f"s_lshr_b32 s{sT0}, s{sT0}, 3")
        E(f"s_mul_i32 s{sT0}, s{sT0}, 640")
        for cg in range(5):
            E(f"v_add_u32 v{ypa(cg)}, s{sT0}, v{vA}")
            if cg < 4:
                E(f"s_add_u32 s{sT0}, s{sT0}, 640")
                E(f"s_cmp_ge_u32 s{sT0}, 3200")
                E(f"s_cselect_b32 s{sT0}, 0, s{sT0}")
    def t_or1():
        stamp(5)
        if a.dyn == 2:
            E("s_waitcnt lgkmcnt(0)")
            E(f"v_mov_b32 v{slot_of['tk']}, s{sTKO}")
        red_a()
        if a.dyn:
            E(f"s_cmp_eq_u32 s{sW}, 0")
            E("s_cselect_b32 exec_lo, 1, 0")
            E("s_mov_b32 exec_hi, 0")
            E(f"ds_write_b32 v{slot_of['tk']+1}, v{slot_of['tk']}")
            E("s_mov_b64 exec, -1")
        t_bar()
        stamp(6)
    def t_or2():
        if a.dyn: E(f"ds_read_b32 v{slot_of['tk']}, v{slot_of['tk']+1}")
        red_b(vS, epf()[1] if (a.endpf and a.epos == -2) else None)
        bfrag(Bs[0], vS)
        for cg in range(5): alloc(f"y{cg}")
    def t_y(f):
        def fn():
            fp, cg = divmod(f, 5) if not a.orot else (f % 4, f // 4)
            y = slot_of[f"y{cg}"]
            c = "0" if fp == 0 else r4(y)
            E(f"v_mfma_f32_16x16x32_bf16 {r4(y)}, {r4(slot_of[f'wo{f}'])}, {r4(Bs[fp])}, {c}")
            if fp < 3 and cg < 4: E(f"v_and_b32 v{Bs[fp+1]+cg}, v{vS+fp+1}, v{vM+cg}")
            if a.dyn and f == 4: E(f"v_readfirstlane_b32 s{sTKO}, v{slot_of['tk']}")
            if a.dyn and f == 9: t_role()
        return fn
    tasks = []
    if a.init0: tasks.append(Task(t_init, atomic=True))
    tasks.append(Task(t_setup))
    tasks.append(Task(t_ln1a, ["xs"], cost=3))
    tasks.append(Task(t_ln1b, [] if a.qp2 else ["xc"], cost=2))
    for t in range(10):
        tasks.append(Task(t_pair(t, "wq"), [f"wq{2*t+1}"], frees=[f"wq{2*t}", f"wq{2*t+1}"]))
        if t == 1 and not a.init0: tasks.append(Task(t_init, atomic=True))
        if t == 5: tasks.append(Task(t_flagset, ["wq11"], frees=["z0", "z1", "z2", "z3"], atomic=True))
        if t == a.l2pf and not a.spf and not a.nodma: tasks.append(Task(t_l2pf, atomic=True))
        if a.spf and a.nodma < 2 and a.endpf != 3:
            if t == 0: tasks.append(Task(t_spf0, atomic=True))
            if t in (2, 4, 6): tasks.append(Task(t_spf(t // 2 - 1), atomic=True))
    tasks.append(Task(red_a))
    tasks.append(Task(t_bar, barrier=a.bd1))
    tasks.append(Task(t_qr2))
    tasks.append(Task(t_bar, barrier=a.bd2))
    tasks.append(Task(t_qr3))
    if a.dcls: tasks.append(Task(t_cls_draw, atomic=True))
    for t in range(0, 16, 2):
        tasks.append(Task(t_k2(t), [f"k{2*t+3}"], frees=[f"k{2*t+i}" for i in range(4)], cost=2))
        if a.dcls and t == 4: tasks.append(Task(t_cls_pub, frees=["cp"], atomic=True))
    tasks.append(Task(t_sm1, cost=2))
    tasks.append(Task(t_smb, barrier=a.bd3))
    tasks.append(Task(t_sm2, cost=2))
    tasks.append(Task(t_pre_tail))
    if not a.dyn and not a.dcls: tasks.append(Task(t_role, atomic=True))
    if a.endpf and not a.dcls: tasks.append(Task(t_epf_prep, atomic=True))
    for t in range(16):
        tasks.append(Task(t_pair(t, "v"), [f"v{2*t+1}"], frees=[f"v{2*t}", f"v{2*t+1}"], cost=0.5))
        if t == 9:
            if not a.noflag: tasks.append(Task(t_flag, ["flag"], atomic=True))
            if a.dcls:
                tasks.append(Task(t_cls_get, atomic=True))
                tasks.append(Task(t_role, atomic=True))
                tasks.append(Task(t_epf_prep, atomic=True))
            tasks.append(Task(t_dmaprep, frees=["tmpd"]))
            if a.orot: tasks.append(Task(t_ypaddr, atomic=True))
    tasks.append(Task(t_or1, barrier=99))
    tasks.append(Task(t_or2))
    yorder = range(20) if not a.orot else [4 * cg + fp for fp in range(4) for cg in range(4)] + [16, 17, 18, 19]
    for f in yorder: tasks.append(Task(t_y(f), [f"wo{f}"], cost=0.25))
    tasks.append(Task(t_ypw))

    issued = {"xs", "xc"} | {f"k{f}" for f in range(a.nk0)}
    pend = deque(tasks)
    def ready(t): return all(n in issued and n not in E.vm for n in t.needs)
    def start(t):
        if t.q is None:
            for n in t.needs:
                assert n in issued, n
                if n in E.vm: E.wait_vm(n)
            t.q = E.record(t.fn)
    def step(t, budget):
        start(t)
        n = 0
        masked = False
        while t.q and (t.atomic or masked or n < budget):
            it = t.q.popleft(); E.play(it); n += 1
            if it[0] == "i" and "exec" in it[1].split(",")[0]:
                masked = not it[1].endswith("exec, -1")
        if not t.q:
            for x in t.frees: release(x)
        return n
    def run(t):
        step(t, 10**9)
    D = a.depth
    for i, (tag, fn, needs_slot) in enumerate(loads):
        while needs_slot and not free:
            run(pend.popleft())
        if tag == "epf":
            while any(t.fn is t_epf_prep for t in pend): run(pend.popleft())
            while pend[0].q is not None: run(pend.popleft())
        if tag == "flag" and a.dcls:
            while any(t.fn is t_cls_pub for t in pend): run(pend.popleft())
        if tag == "tk":
            while pend[0].q is not None: run(pend.popleft())
        lim = 63 if i < a.first else D
        if len(E.vm) >= lim:
            E(f"s_waitcnt vmcnt({lim-1})")
            E.vm = E.vm[len(E.vm) - (lim - 1):]
        fn(); issued.add(tag)
        if i + 1 < a.first: continue
        budget = a.budget
        while pend and budget > 0 and (pend[0].q is not None or ready(pend[0])):
            if pend[0].barrier > 0:
                pend[0].barrier -= 1
                break
            budget -= step(pend[0], budget)
            if not pend[0].q: pend.popleft()
    while pend: run(pend.popleft())
    assert set(E.vm) <= {"epf"}, E.vm
    E.vm = []
    E(f"s_mul_i32 s{sT0}, s{sB}, {HS}")
    E(f"s_lshl_b32 s{sT1}, s{sW}, 8")
    E(f"s_add_u32 s{sT0}, s{sT0}, s{sT1}")
    E(f"s_mov_b32 s{sT2}, 0x80008000")
    E(f"s_mov_b32 s{sT3}, 0x80008000")
    E("s_waitcnt lgkmcnt(0)")
    E("s_barrier")
    stamp(8)
    vP = vS
    for k, ad in enumerate((vA2, vA3)):
        for p in range(4):
            E(f"ds_read2st64_b32 {r2(vP+8*k+2*p)}, v{ad} offset0:{YP//256+26*p} offset1:{YP//256+26*p+13}")
    for k in range(2):
        b = vP + 8 * k
        if not a.ts: E(f"s_waitcnt lgkmcnt({4 if k == 0 else 0})")
        else: E("s_waitcnt lgkmcnt(0)")
        for st in (4, 2, 1):
            for p in range(st):
                E(f"v_add_f32 v{b+p}, v{b+p}, v{b+p+st}")
        if k == 1: E(f"v_cndmask_b32 v{b}, 0, v{b}, s[{sVA}:{sVA+1}]")
        E(f"v_cndmask_b32 v{b}, v{b}, 1.0, s[{sT2}:{sT3}]")
        if k == 1:
            E(f"s_cmp_ge_u32 s{sW}, 3")
            E("s_cbranch_scc1 L_arr")
        E(f"buffer_atomic_add_f32 v{b}, v{vA4}, {S4(sWS)}, s{sT0} offen offset:{2048*k}", tag="extra")
    E.label("L_arr")
    stamp(9)
    if a.endpf and a.epos == -1: epf()[1]()
    if a.hyb:
        E(f"s_cmp_lg_u32 s{sEM}, 1")
        E("s_cbranch_scc1 L_nohyb")
        E(f"s_mov_b32 s{sEM}, {(1 << 14) - 1}")
        epf()[1]()
        E.label("L_nohyb")
    if a.endpf: assert not (128 <= slot_of["epf"] - vF + 3 < 172), slot_of["epf"]
    E(f"s_cmp_ge_u32 s{sTILE}, {NF2 + NF1}")
    E("s_cbranch_scc1 L_fin")
    E(f"s_mov_b32 s{sWF+2}, {640*3456}")
    E(f"s_mov_b32 s{sWF+3}, 0x20000")
    E(f"s_cmp_lt_u32 s{sTILE}, {NF2}")
    E("s_cbranch_scc1 L_ffn2")

    vW = vF
    E(f"s_mov_b32 s{sROLE}, 1")
    E(f"s_sub_u32 s{sTILE}, s{sTILE}, {NF2}")
    E(f"s_mov_b32 s{sWF}, s16")
    E(f"s_and_b32 s{sWF+1}, s17, 0xffff")
    vDM, vX0 = vB0, vB0 + 1
    E(f"s_lshl_b32 s{sT0}, s{sTILE}, 7")
    E(f"s_add_u32 s{sDO}, s{sDO}, s{sT0}")
    xq = [vF + 172, vF + 174, vF + 176]
    if a.endpf: assert not (172 <= slot_of["epf"] - vF + 3 < 180)
    E(f"v_lshrrev_b32 v{vX0}, 2, v{vL}")
    E(f"v_mul_u32_u24 v{vX0}, 30, v{vX0}")
    E(f"v_and_b32 v{vX0+1}, 3, v{vL}")
    E(f"v_lshl_add_u32 v{vX0}, v{vX0+1}, 3, v{vX0}")
    E(f"s_mul_i32 s{sT0}, s{sW}, 1280")
    for i in range(3):
        E(f"buffer_load_dwordx2 {r2(xq[i])}, v{vX0}, {S4(sX)}, s{sT0} offen offset:{480*i}", tag="extra")
    if a.abar: E("s_barrier")
    stamp(10)
    late = True
    for t in range(11 if not a.nodma else 0):
        E(f"s_mov_b32 m0, s{sDL}")
        E(f"buffer_load_dwordx4 v{vDM1}, {S4(sWF)}, s{sDO} offen{fnt} lds", tag="extra")
        if t < 10:
            E(f"s_add_u32 s{sDO}, s{sDO}, {60*3456}")
            E(f"s_add_u32 s{sDL}, s{sDL}, 8192")
    if a.ts == 2: stamp(1)
    thr = struct.unpack("<I", struct.pack("<f", float(a.gate)))[0]
    if a.spec == 2:
        E(f"s_mul_i32 s{sT2}, s{sW}, {HS}")
        E(f"s_mul_i32 s{sT4}, s{sTILE}, {a.gstep}")
        E(f"s_and_b32 s{sT4}, s{sT4}, 0xffffffc0")
        E(f"s_add_u32 s{sT4}, s{sT4}, s{sT2}")
        E(f"buffer_load_dword v{vD2}, off, {S4(sWS)}, s{sT4} offset:60 sc1", tag="extra")
    hb = vF + 88
    ac = vF + 136
    xk = vF + 148
    hn = vF + 160
    for i in range(12): E(f"v_mov_b32 v{hn+i}, 0")
    for i in range(8, 11): E(f"v_mov_b32 v{ac+i}, 0")
    E(f"v_mov_b32 v{ac+11}, 0x42000000")
    sets2 = [vF + 180, vF + 192]
    if a.pp2:
        assert not (180 <= slot_of["epf"] - vF + 3 < 204)
        for b_ in sets2:
            for i in range(8, 11): E(f"v_mov_b32 v{b_+i}, 0")
            E(f"v_mov_b32 v{b_+11}, 0x42000000")
    vA = vB1
    E(f"v_lshlrev_b32 v{vA+2}, 3, v{vL}")
    E(f"s_mul_i32 s{sT1}, s{sW}, {HNS}")
    E(f"v_add_u32 v{vA+2}, s{sT1}, v{vA+2}")
    vTR1 = vQ
    E(f"v_lshlrev_b32 v{vTR1}, 10, v{vJ}")
    E(f"v_lshrrev_b32 v{vDM}, 2, v{vN}")
    E(f"v_lshl_add_u32 v{vTR1}, v{vDM}, 7, v{vTR1}")
    E(f"v_and_b32 v{vDM}, 2, v{vDM}")
    E(f"v_and_b32 v{vX0}, 1, v{vJ}")
    E(f"v_or_b32 v{vDM}, v{vDM}, v{vX0}")
    E(f"s_and_b32 s{sT0}, s{sW}, 3")
    E(f"v_xor_b32 v{vDM}, s{sT0}, v{vDM}")
    E(f"v_lshl_add_u32 v{vTR1}, v{vDM}, 5, v{vTR1}")
    E(f"v_and_b32 v{vDM}, 3, v{vN}")
    E(f"v_lshl_add_u32 v{vTR1}, v{vDM}, 3, v{vTR1}")
    E(f"v_add_u32 v{vTR1}, {WT}, v{vTR1}")
    E(f"v_add_u32 v{vTR1+1}, {11*4096}, v{vTR1}")
    E(f"v_and_b32 v{vA+3}, 7, v{vL}")
    E(f"v_mul_u32_u24 v{vA+3}, {HNS}, v{vA+3}")
    E(f"v_lshl_add_u32 v{vA+3}, v{vJ}, 4, v{vA+3}")
    E(f"v_lshrrev_b32 v{vDM}, 3, v{vN}")
    E(f"v_lshl_add_u32 v{vA+3}, v{vDM}, 6, v{vA+3}")
    E(f"v_lshlrev_b32 v{vA}, 5, v{vN}")
    E(f"v_lshl_add_u32 v{vA}, v{vJ}, 3, v{vA}")
    E(f"s_lshl_b32 s{sT3}, s{sTILE}, 2")
    E(f"s_add_u32 s{sT3}, s{sT3}, s{sW}")
    E(f"s_lshl_b32 s{sT3}, s{sT3}, 8")
    E(f"s_mul_i32 s{sT2}, s{sW}, {HS}")
    sM3, sCL = 12, 14
    E(f"s_mov_b32 s{sM3}, 0x77777777")
    E(f"s_mov_b32 s{sM3+1}, 0x77777777")
    E(f"s_mov_b32 s{sCL}, 0x88888888")
    E(f"s_mov_b32 s{sCL+1}, 0x88888888")
    def accload(ac=ac):
        E(f"buffer_load_dwordx4 {r4(ac)}, v{vL16}, {S4(sWS)}, s{sT2} offen sc1", tag="extra")
        E(f"buffer_load_dwordx4 {r4(ac+4)}, v{vL16}, {S4(sWS)}, s{sT2} offen offset:1024 sc1", tag="extra")
        E("s_mov_b32 exec_hi, 0xffff")
        E(f"buffer_load_dwordx4 {r4(ac+8)}, v{vL16}, {S4(sWS)}, s{sT2} offen offset:2048 sc1", tag="extra")
        E("s_mov_b32 exec_hi, -1")
    if a.ts == 2: stamp(2)
    E("s_waitcnt vmcnt(%d)" % (12 if a.spec == 2 and not a.nodma else 0))
    if a.ts == 2: stamp(3)
    for i in range(6):
        E(f"v_lshlrev_b32 v{xk+2*i}, 16, v{xq[i//2]+i%2}")
        E(f"v_and_b32 v{xk+2*i+1}, 0xffff0000, v{xq[i//2]+i%2}")
    sLO_, sHI_, sONE = 20, 21, 24
    vNI, vKM = hn + 6, hn + 7
    if a.ln2:
        E(f"s_mov_b32 s{sLO_}, 0x00003f80")
        E(f"s_mov_b32 s{sHI_}, 0x3f800000")
        E(f"s_mov_b32 s{sONE}, 0x3f803f80")
        E(f"v_mov_b32 v{vNI}, 0xbacccccd")
        E(f"v_mov_b32 v{vKM}, -1")
        E(f"v_mov_b32 v{vKM+1}, -1")
        E(f"v_mov_b32 v{vKM+2}, -1")
        E("s_mov_b32 exec_lo, 0")
        E(f"s_mov_b32 exec_hi, {0xffffffff ^ ((1 << 11) - 1):#x}")
        E(f"v_mov_b32 v{xk+8}, 0"); E(f"v_mov_b32 v{xk+9}, 0"); E(f"v_mov_b32 v{vKM+1}, 0")
        E(f"s_mov_b32 exec_hi, {0xffffffff ^ ((1 << 10) - 1):#x}")
        E(f"v_mov_b32 v{xk+10}, 0"); E(f"v_mov_b32 v{xk+11}, 0"); E(f"v_mov_b32 v{vKM+2}, 0")
        E(f"s_mov_b64 exec, s[{sCL}:{sCL+1}]")
        for i in (3, 7, 11): E(f"v_mov_b32 v{xk+i}, 0xc2000000")
        E(f"v_mov_b32 v{vKM}, 0xffff")
        E(f"v_and_b32 v{vKM+2}, 0xffff, v{vKM+2}")
        E("s_mov_b32 exec_lo, 0")
        E("s_mov_b32 exec_hi, 0xffff0000")
        E(f"v_mov_b32 v{xk+11}, 0xc2000000")
        E("s_mov_b64 exec, -1")
    if a.spec == 2:
        sSP = 25
        E("s_waitcnt vmcnt(0)")
        E(f"v_readfirstlane_b32 s{sSP}, v{vD2}")
        E(f"s_cmp_ge_u32 s{sSP}, {thr:#x}")
        E("s_cbranch_scc1 L_f1_sp")
        E(f"buffer_load_dword v{vD2}, off, {S4(sWS)}, s{sT4} offset:60 sc1", tag="extra")
        E("s_branch L_f1_sp2")
        E.label("L_f1_sp")
        accload()
        E.label("L_f1_sp2")
        E("s_barrier")
    else:
        E("s_barrier")
        if a.ts == 2: stamp(4)
        E(f"s_mul_i32 s{sT4}, s{sTILE}, {a.gstep}")
        E(f"s_and_b32 s{sT4}, s{sT4}, 0xffffffc0")
        E(f"s_add_u32 s{sT4}, s{sT4}, s{sT2}")
        if a.spec: accload()
        else: E(f"buffer_load_dword v{vD2}, off, {S4(sWS)}, s{sT4} offset:60 sc1", tag="extra")
    E(f"s_cmp_ge_u32 s{sW}, 4")
    E("s_cbranch_scc1 L_f1_notr")
    for t in range(22):
        o = (t % 11) * 4096
        E(f"ds_read_b64_tr_b16 {r2(vW+4*t)}, v{vTR1 + t//11} offset:{o}")
        E(f"ds_read_b64_tr_b16 {r2(vW+4*t+2)}, v{vTR1 + t//11} offset:{o+512}")
    stamp(11)
    E.label("L_f1_notr")
    if not a.spec: E("s_branch L_f1_gate")
    if a.spec == 2:
        E(f"s_cmp_lt_u32 s{sSP}, {thr:#x}")
        E("s_cbranch_scc1 L_f1_gate")
    if a.pp2:
        assert a.ln2 and not a.spec
        E.label("L_f1_regate")
        if a.sleep: E(f"s_sleep {a.sleep}")
        E(f"buffer_load_dword v{vD2}, off, {S4(sWS)}, s{sT4} offset:60 sc1", tag="extra")
        E.label("L_f1_gate")
        E("s_waitcnt vmcnt(0)")
        E(f"v_readfirstlane_b32 s{sT0}, v{vD2}")
        E(f"s_cmp_ge_u32 s{sT0}, {thr:#x}")
        E("s_cbranch_scc1 L_f1_full")
        spin("L_f1_full")
        E("s_branch L_f1_regate")
        E.label("L_f1_full")
        accload(sets2[0])
        E(f"s_cmp_ge_u32 s{sT0}, 0x42000000")
        E("s_cbranch_scc0 L_f1_two")
        E("s_waitcnt vmcnt(0)")
        E(f"v_min3_f32 v{vD1}, v{sets2[0]+3}, v{sets2[0]+7}, v{sets2[0]+11}")
        E(f"v_cmp_gt_f32 vcc, 0x42000000, v{vD1}")
        E(f"s_and_b64 vcc, vcc, s[{sCL}:{sCL+1}]")
        E("s_cbranch_scc0 L_f1_got0")
        accload(sets2[0])
        E.label("L_f1_two")
        E(f"s_sleep {a.pp2}")
        accload(sets2[1])
        E.label("L_f1_poll")
        for k in range(2):
            E("s_waitcnt vmcnt(3)")
            E(f"v_min3_f32 v{vD1}, v{sets2[k]+3}, v{sets2[k]+7}, v{sets2[k]+11}")
            E(f"v_cmp_gt_f32 vcc, 0x42000000, v{vD1}")
            E(f"s_and_b64 vcc, vcc, s[{sCL}:{sCL+1}]")
            E(f"s_cbranch_scc0 L_f1_got{k}")
            accload(sets2[k])
        spin("L_f1_got0")
        E("s_branch L_f1_poll")
        E.label("L_f1_got1")
        for i in range(6): E(f"v_cvt_pk_bf16_f32 v{hn+i}, v{sets2[1]+2*i}, v{sets2[1]+2*i+1}")
        E("s_branch L_f1_go")
        E.label("L_f1_got0")
        for i in range(6): E(f"v_cvt_pk_bf16_f32 v{hn+i}, v{sets2[0]+2*i}, v{sets2[0]+2*i+1}")
    else:
        E.label("L_f1_poll")
        E("s_waitcnt vmcnt(0)")
        E(f"v_min3_f32 v{vD1}, v{ac+3}, v{ac+7}, v{ac+11}")
        E(f"v_cmp_gt_f32 vcc, 0x42000000, v{vD1}")
        E(f"s_and_b64 vcc, vcc, s[{sCL}:{sCL+1}]")
        E("s_cbranch_scc0 L_f1_go")
        spin("L_f1_go")
        E(f"v_readlane_b32 s{sT0}, v{ac+3}, 3")
        E(f"s_cmp_ge_u32 s{sT0}, {thr:#x}")
        E("s_cbranch_scc1 L_f1_full")
        E.label("L_f1_regate")
        if a.sleep: E(f"s_sleep {a.sleep}")
        E(f"buffer_load_dword v{vD2}, off, {S4(sWS)}, s{sT4} offset:60 sc1", tag="extra")
        E.label("L_f1_gate")
        E("s_waitcnt vmcnt(0)")
        E(f"v_readfirstlane_b32 s{sT0}, v{vD2}")
        E(f"s_cmp_ge_u32 s{sT0}, {thr:#x}")
        E("s_cbranch_scc1 L_f1_full")
        spin("L_f1_full")
        E("s_branch L_f1_regate")
        E.label("L_f1_full")
        accload()
        E("s_branch L_f1_poll")
    E.label("L_f1_go")
    if a.tprio: E("s_setprio 2")
    stamp(12)
    t0_, t1_, t2_, vMN, vRC = vD1, vD1 + 1, vD1 + 2, vD2, vD2 + 1
    if a.ln2 == 0:
        hx = ac
        bf16r_many(E, range(ac, ac + 12))
        for i in range(12): E(f"v_add_f32 v{hx+i}, v{xk+i}, v{ac+i}")
        bf16r_many(E, range(hx, hx + 12))
        full = [0, 1, 2, 4, 5, 6]
        def masked(fn):
            for i in full: fn(i)
            E(f"s_mov_b32 exec_hi, {(1 << 11) - 1:#x}")
            fn(8); fn(9)
            E(f"s_mov_b32 exec_hi, {(1 << 10) - 1:#x}")
            fn(10)
            E(f"s_and_b64 exec, exec, s[{sM3}:{sM3+1}]")
            fn(11)
            E(f"s_mov_b64 exec, s[{sM3}:{sM3+1}]")
            fn(3); fn(7)
            E("s_mov_b64 exec, -1")
        t0_, t1_, t2_, vMN, vRC = vD1, vD1 + 1, vD1 + 2, vD2, vD2 + 1
        def f_sum(i):
            if i == 0: E(f"v_add_f32 v{t0_}, v{hx}, v{hx+1}")
            elif i == 1: pass
            elif i == 2: E(f"v_add_f32 v{t1_}, v{hx+2}, v{hx+4}")
            elif i == 4: pass
            else:
                d = t0_ if i % 2 else t1_
                E(f"v_add_f32 v{d}, v{d}, v{hx+i}")
        masked(f_sum)
        E(f"v_add_f32 v{t0_}, v{t0_}, v{t1_}")
        E(f"v_mov_b32 v{t2_}, 0x3acccccd")
        wave_reduce(E, t0_, sT0)
        E(f"v_mul_f32 v{vMN}, s{sT0}, v{t2_}")
        for i in range(12): E(f"v_sub_f32 v{xk+i}, v{hx+i}, v{vMN}")
        def f_var(i):
            if i == 0: E(f"v_mul_f32 v{t0_}, v{xk}, v{xk}")
            elif i == 1: E(f"v_mul_f32 v{t1_}, v{xk+1}, v{xk+1}")
            else:
                d = t0_ if i % 2 == 0 else t1_
                E(f"v_fmac_f32 v{d}, v{xk+i}, v{xk+i}")
        masked(f_var)
        E(f"v_add_f32 v{t0_}, v{t0_}, v{t1_}")
        bf16r(E, vMN, vMN)
        row_reduce(E, [t0_])
        for i in range(6): E(f"v_sub_f32 v{hx+i}, v{hx+i}, v{vMN}")
        E(f"v_add_f32_dpp v{t0_}, v{t0_}, v{t0_} row_bcast:15 row_mask:0xa bank_mask:0xf")
        for i in range(6, 12): E(f"v_sub_f32 v{hx+i}, v{hx+i}, v{vMN}")
        E(f"v_add_f32_dpp v{t0_}, v{t0_}, v{t0_} row_bcast:31 row_mask:0xc bank_mask:0xf")
        bf16r_many(E, range(hx, hx + 4))
        E(f"v_readlane_b32 s{sT0}, v{t0_}, 63")
        bf16r_many(E, range(hx + 4, hx + 8))
        E(f"v_mul_f32 v{t0_}, s{sT0}, v{t2_}")
        bf16r(E, t0_, t0_)
        E(f"v_add_f32 v{t0_}, 0x3727c5ac, v{t0_}")
        bf16r(E, t0_, t0_)
        E(f"v_sqrt_f32 v{t0_}, v{t0_}")
        bf16r_many(E, range(hx + 8, hx + 12))
        bf16r(E, t0_, t0_)
        E(f"v_rcp_f32 v{vRC}, v{t0_}")
        masked(lambda i: E(f"v_mul_f32 v{hn+i}, v{hx+i}, v{vRC}"))
        for i in range(6): E(f"v_cvt_pk_bf16_f32 v{xk+i}, v{hn+2*i}, v{hn+2*i+1}")
    else:
        pk = hn
        sel = (sLO_, sHI_)
        if not a.pp2:
            for i in range(6): E(f"v_cvt_pk_bf16_f32 v{pk+i}, v{ac+2*i}, v{ac+2*i+1}")
        for i in range(12): E(f"v_dot2_f32_bf16 v{ac+i}, v{pk+i//2}, s{sel[i%2]}, v{xk+i}")
        for i in range(6): E(f"v_cvt_pk_bf16_f32 v{pk+i}, v{ac+2*i}, v{ac+2*i+1}")
        for i in range(6):
            d = t0_ if i % 2 == 0 else t1_
            E(f"v_dot2_f32_bf16 v{d}, v{pk+i}, s{sONE}, {'0' if i < 2 else 'v%d' % d}")
        fill = []
        for i in range(6):
            fill.append(f"v_lshlrev_b32 v{xk+2*i}, 16, v{pk+i}")
            fill.append(f"v_and_b32 v{xk+2*i+1}, 0xffff0000, v{pk+i}")
        chain = [f"v_add_f32 v{t0_}, v{t0_}, v{t1_}"]
        chain += [f"v_add_f32_dpp v{t0_}, v{t0_}, v{t0_} row_ror:{sh} row_mask:0xf bank_mask:0xf" for sh in (8, 4, 2, 1)]
        chain += [f"v_add_f32_dpp v{t0_}, v{t0_}, v{t0_} row_bcast:15 row_mask:0xa bank_mask:0xf",
                  f"v_add_f32_dpp v{t0_}, v{t0_}, v{t0_} row_bcast:31 row_mask:0xc bank_mask:0xf",
                  f"v_readlane_b32 s{sT0}, v{t0_}, 63"]
        for c in chain:
            for _ in range(2):
                if fill: E(fill.pop(0))
            E(c)
        E(f"v_mul_f32 v{vMN}, s{sT0}, v{vNI}")
        for i in range(12): E(f"v_add_f32 v{ac+i}, v{xk+i}, v{vMN}")
        full = [0, 1, 2, 4, 5, 6]
        def masked(fn):
            for i in full: fn(i)
            E(f"s_mov_b32 exec_hi, {(1 << 11) - 1:#x}")
            fn(8); fn(9)
            E(f"s_mov_b32 exec_hi, {(1 << 10) - 1:#x}")
            fn(10)
            E(f"s_and_b64 exec, exec, s[{sM3}:{sM3+1}]")
            fn(11)
            E(f"s_mov_b64 exec, s[{sM3}:{sM3+1}]")
            fn(3); fn(7)
            E("s_mov_b64 exec, -1")
        def f_var(i):
            if i == 0: E(f"v_mul_f32 v{t0_}, v{ac}, v{ac}")
            elif i == 1: E(f"v_mul_f32 v{t1_}, v{ac+1}, v{ac+1}")
            else:
                d = t0_ if i % 2 == 0 else t1_
                E(f"v_fmac_f32 v{d}, v{ac+i}, v{ac+i}")
        masked(f_var)
        E(f"v_add_f32 v{t0_}, v{t0_}, v{t1_}")
        bf16r(E, vMN, vMN)
        fill = [f"v_add_f32 v{ac+i}, v{xk+i}, v{vMN}" for i in range(12)]
        fill += [f"v_cvt_pk_bf16_f32 v{pk+i}, v{ac+2*i}, v{ac+2*i+1}" for i in range(6)]
        for i in (1, 3, 4, 5): fill.append(f"v_and_b32 v{pk+i}, v{pk+i}, v{vKM + (0 if i < 4 else i - 3)}")
        for i in range(6):
            fill.append(f"v_lshlrev_b32 v{ac+2*i}, 16, v{pk+i}")
            fill.append(f"v_and_b32 v{ac+2*i+1}, 0xffff0000, v{pk+i}")
        chain = [f"v_add_f32_dpp v{t0_}, v{t0_}, v{t0_} row_ror:{sh} row_mask:0xf bank_mask:0xf" for sh in (8, 4, 2, 1)]
        chain += [f"v_add_f32_dpp v{t0_}, v{t0_}, v{t0_} row_bcast:15 row_mask:0xa bank_mask:0xf",
                  f"v_add_f32_dpp v{t0_}, v{t0_}, v{t0_} row_bcast:31 row_mask:0xc bank_mask:0xf",
                  f"v_readlane_b32 s{sT0}, v{t0_}, 63",
                  f"v_mul_f32 v{t0_}, s{sT0}, -v{vNI}",
                  f"v_cvt_pk_bf16_f32 v{t0_}, v{t0_}, v{t0_}", f"v_and_b32 v{t0_}, 0xffff0000, v{t0_}",
                  f"v_add_f32 v{t0_}, 0x3727c5ac, v{t0_}",
                  f"v_cvt_pk_bf16_f32 v{t0_}, v{t0_}, v{t0_}", f"v_and_b32 v{t0_}, 0xffff0000, v{t0_}",
                  f"v_sqrt_f32 v{t0_}, v{t0_}",
                  f"v_cvt_pk_bf16_f32 v{t0_}, v{t0_}, v{t0_}", f"v_and_b32 v{t0_}, 0xffff0000, v{t0_}",
                  f"v_rcp_f32 v{vRC}, v{t0_}"]
        for c in chain:
            E(c)
            for _ in range(2):
                if fill: E(fill.pop(0))
        for c in fill: E(c)
        for i in range(12): E(f"v_mul_f32 v{ac+i}, v{ac+i}, v{vRC}")
        for i in range(6): E(f"v_cvt_pk_bf16_f32 v{xk+i}, v{ac+2*i}, v{ac+2*i+1}")
    E(f"ds_write_b64 v{vA+2}, {r2(xk)} offset:{HN}")
    E(f"ds_write_b64 v{vA+2}, {r2(xk+2)} offset:{HN+512}")
    E("s_mov_b32 exec_hi, 0xffff")
    E(f"ds_write_b64 v{vA+2}, {r2(xk+4)} offset:{HN+1024}")
    E("s_mov_b32 exec_hi, -1")
    E("s_waitcnt lgkmcnt(0)")
    E("s_barrier")
    E(f"s_cmp_ge_u32 s{sW}, 4")
    E("s_cbranch_scc1 L_fin")
    if a.ts:
        stamp(13); E("s_waitcnt lgkmcnt(0)")
    for u in range(11):
        E(f"ds_read_b128 {r4(hb+4*u)}, v{vA+3} offset:{HN+128*u}")
    for u in range(11):
        E(f"s_waitcnt lgkmcnt({10-u})")
        c1 = "0" if u == 0 else r4(vD1)
        c2 = "0" if u == 0 else r4(vD2)
        E(f"v_mfma_f32_16x16x32_bf16 {r4(vD1)}, {r4(vW+8*u)}, {r4(hb+4*u)}, {c1}")
        E(f"v_mfma_f32_16x16x32_bf16 {r4(vD2)}, {r4(vW+8*u+4)}, {r4(hb+4*u)}, {c2}")
    for i in range(4):
        E(f"v_add_f32_dpp v{vD1+i}, v{vD2+i}, v{vD1+i} row_ror:8 row_mask:0xf bank_mask:0xf")
    for i in range(4): E(f"v_max_f32 v{vD1+i}, 0, v{vD1+i}")
    E(f"v_cvt_pk_bf16_f32 v{vD2}, v{vD1}, v{vD1+1}")
    E(f"v_cvt_pk_bf16_f32 v{vD2+1}, v{vD1+2}, v{vD1+3}")
    E(f"s_mov_b64 exec, s[{sLO8}:{sLO8+1}]")
    E(f"buffer_store_dwordx2 {r2(vD2)}, v{vA}, {S4(sH1)}, s{sT3} offen sc1", tag="extra")
    stamp(14)
    E("s_branch L_fin")

    E.label("L_ffn2")
    E.comment("FFN2: %d columns of w2" % (16 * NC))
    E(f"s_mov_b64 s[{sDRY}:{sDRY+1}], {0 if a.dry & 2 else -1}")
    E(f"s_mov_b32 s{sROLE}, 2")
    E(f"s_mov_b32 s{sWF}, s18")
    E(f"s_and_b32 s{sWF+1}, s19, 0xffff")
    vDA = vQ + 2
    vA = vD1
    lpr = 2 * NC
    rpi = 64 // lpr
    nd2 = 7 * NC
    E(f"v_lshrrev_b32 v{vDA}, {NC}, v{vL}")
    E(f"v_mul_u32_u24 v{vDA}, 1280, v{vDA}")
    E(f"v_and_b32 v{vA+1}, {lpr-1}, v{vL}")
    E(f"v_lshl_add_u32 v{vDA}, v{vA+1}, 4, v{vDA}")
    sD0, sD2 = 12, 13
    E(f"s_mul_i32 s{sD0}, s{sW}, {7*32*1280}")
    E(f"s_mul_i32 s{sT1}, s{sTILE}, {32*NC}")
    E(f"s_add_u32 s{sD0}, s{sD0}, s{sT1}")
    E(f"s_mul_i32 s{sT3}, s{sW}, {nd2*1024}")
    E(f"s_add_u32 s{sT3}, s{sT3}, {WT}")
    E(f"s_mov_b32 s{sD2}, s{sT3}")
    def dma2():
        for t in range(nd2 if not a.nodma else 0):
            E(f"s_mov_b32 m0, s{sD2}")
            E(f"buffer_load_dwordx4 v{vDA}, {S4(sWF)}, s{sD0} offen{fnt} lds", tag="extra")
            if t < nd2 - 1:
                E(f"s_add_u32 s{sD0}, s{sD0}, {rpi*1280}")
                E(f"s_add_u32 s{sD2}, s{sD2}, 1024")
    E("s_barrier")
    stamp(10)
    if not a.late2: dma2()
    vB7 = vQ
    vXO = vQ + 1
    E(f"v_and_b32 v{vB7}, 7, v{vL}")
    E(f"v_mul_u32_u24 v{vXO}, 1280, v{vB7}")
    E(f"v_lshl_add_u32 v{vXO}, v{vJ}, 3, v{vXO}")
    E(f"s_and_b32 s{sT4}, s{sW}, {NC-1}")
    E(f"s_lshl_b32 s{sT4}, s{sT4}, 5")
    E(f"s_add_u32 s{sT1}, s{sT1}, s{sT4}")
    xr = vS
    E(f"buffer_load_dwordx2 {r2(xr)}, v{vXO}, {S4(sX)}, s{sT1} offen", tag="extra")
    vHA = vF + 128
    E(f"s_lshr_b32 s{sT0}, s{sT1}, 1")
    E(f"v_lshl_add_u32 v{vA}, v{vJ}, 2, s{sT0}")
    E(f"v_mul_u32_u24 v{vA+1}, {HS}, v{vB7}")
    for r in range(4):
        E(f"v_add_u32 v{vA+2}, {r}, v{vA}")
        E(f"v_mul_u32_u24 v{vA+3}, 4370, v{vA+2}")
        E(f"v_lshrrev_b32 v{vA+3}, 16, v{vA+3}")
        E(f"v_add_u32 v{vA+2}, v{vA+2}, v{vA+3}")
        E(f"v_lshl_add_u32 v{vHA+r}, v{vA+2}, 2, v{vA+1}")
        if r in (0, 3):
            E(f"v_lshl_add_u32 v{vHA+4+r//3}, v{vA+3}, 6, v{vA+1}")
    vH1 = vB1 + 1
    E(f"v_lshrrev_b32 v{vH1}, 1, v{vJ}")
    E(f"v_lshlrev_b32 v{vH1}, 8, v{vH1}")
    E(f"v_lshl_add_u32 v{vH1}, v{vB7}, 5, v{vH1}")
    E(f"v_and_b32 v{vB1+2}, 1, v{vJ}")
    E(f"v_lshl_add_u32 v{vH1}, v{vB1+2}, 4, v{vH1}")
    E(f"v_lshrrev_b32 v{vB1+2}, 3, v{vN}")
    E(f"v_lshl_add_u32 v{vH1}, v{vB1+2}, 9, v{vH1}")
    rb = 32 * NC
    vTR = vB1 + 2
    E(f"v_mul_u32_u24 v{vTR}, {8*rb}, v{vJ}")
    E(f"v_lshrrev_b32 v{vB1+3}, 2, v{vN}")
    E(f"v_lshl_add_u32 v{vTR}, v{vB1+3}, {4+NC}, v{vTR}")
    E(f"v_and_b32 v{vB1+3}, 3, v{vN}")
    E(f"v_lshl_add_u32 v{vTR}, v{vB1+3}, 3, v{vTR}")
    E(f"v_add_u32 v{vTR}, s{sT3}, v{vTR}")
    vRWp, vRRp = vB0, vB0 + 1
    E(f"s_lshl_b32 s{sT0}, s{sW}, 11")
    E(f"v_add_u32 v{vRWp}, s{sT0}, v{vL16}")
    E(f"s_lshl_b32 s{sT0}, s{sT4}, 5")
    E(f"v_add_u32 v{vRRp}, s{sT0}, v{vL16}")
    E(f"s_mul_i32 s{sT2}, s{sW}, {7*512}")
    acc = [vF + 96 + 4 * i for i in range(4)]
    ac = vS + 4
    hx = vS + 12
    hxk = vS + 8
    hb = vF + 64
    def trs():
        E("s_waitcnt vmcnt(0)")
        for t in range(7):
            for c in range(NC):
                E(f"ds_read_b64_tr_b16 {r2(vW+8*t+4*c)}, v{vTR} offset:{t*32*rb+c*32}")
                E(f"ds_read_b64_tr_b16 {r2(vW+8*t+4*c+2)}, v{vTR} offset:{t*32*rb+c*32+4*rb}")
        for i in range(2):
            E(f"v_lshlrev_b32 v{hxk+2*i}, 16, v{xr+i}")
            E(f"v_and_b32 v{hxk+2*i+1}, 0xffff0000, v{xr+i}")
        E("s_waitcnt lgkmcnt(0)")
        stamp(11)
    def cpoll(lbl, thr_):
        E.label(lbl)
        E(f"buffer_load_dword v{vD1}, v{vHA+4}, {S4(sWS)}, 0 offen offset:60 sc1", tag="extra")
        E(f"buffer_load_dword v{vD1+1}, v{vHA+5}, {S4(sWS)}, 0 offen offset:60 sc1", tag="extra")
        E("s_waitcnt vmcnt(0)")
        E(f"v_min_f32 v{vD1}, v{vD1}, v{vD1+1}")
        E(f"v_cmp_gt_f32 vcc, {thr_:#x}, v{vD1}")
        E(f"s_cbranch_vccz {lbl}_ok")
        spin(f"{lbl}_ok")
        E(f"s_sleep {a.sleep3}")
        E(f"s_branch {lbl}")
        E.label(f"{lbl}_ok")
    E.label("L_f2_top")
    E(f"s_mov_b64 exec, s[{sDRY}:{sDRY+1}]")
    E("s_cbranch_execz L_f2_got")
    if a.late2:
        E(f"s_cmp_ge_u32 s{sW}, 1")
        E("s_cbranch_scc1 L_f2_g_ok")
        cpoll("L_f2_g", struct.unpack("<I", struct.pack("<f", float(a.late2)))[0])
        E("s_barrier")
        dma2()
    trs()
    E(f"s_cmp_ge_u32 s{sW}, {NC}")
    E("s_cbranch_scc1 L_f2_go")
    cpoll("L_f2_c", 0x42000000)
    for r in range(4):
        E(f"buffer_load_dword v{ac+r}, v{vHA+r}, {S4(sWS)}, 0 offen sc1", tag="extra")
    E.label("L_f2_go")
    E("s_barrier")
    stamp(12)
    E.label("L_f2_poll2")
    for u in range(4):
        E(f"buffer_load_dwordx4 {r4(hb+4*u)}, v{vH1}, {S4(sH1)}, s{sT2} offen offset:{1024*u} sc1", tag="extra")
    E("s_waitcnt vmcnt(0)")
    E(f"v_max3_u32 v{vD1}, v{hb}, v{hb+1}, v{hb+2}")
    E(f"v_max3_u32 v{vD1+1}, v{hb+3}, v{hb+4}, v{hb+5}")
    for k in range(6, 16, 2):
        tgt = vD1 + ((k // 2) % 2)
        E(f"v_max3_u32 v{tgt}, v{tgt}, v{hb+k}, v{hb+k+1}")
    E(f"v_max_u32 v{vD1}, v{vD1}, v{vD1+1}")
    E(f"v_cmp_eq_u32 vcc, -1, v{vD1}")
    E("s_cbranch_vccz L_f2_got")
    spin("L_f2_got")
    if a.sleep2: E(f"s_sleep {a.sleep2}")
    E("s_branch L_f2_poll2")
    E.label("L_f2_got")
    if a.tprio: E("s_setprio 2")
    stamp(13)
    for t in range(7):
        u, half = divmod(t, 2)
        for c in range(NC):
            d = acc[2 * c + half]
            cc = "0" if u == 0 else r4(d)
            E(f"v_mfma_f32_16x16x32_bf16 {r4(d)}, {r4(vW+8*t+4*c)}, {r4(hb+4*u)}, {cc}")
    bf16r_many(E, range(ac, ac + 4))
    for i in range(4): E(f"v_add_f32 v{hx+i}, v{hxk+i}, v{ac+i}")
    bf16r_many(E, range(hx, hx + 4))
    for c in range(NC):
        for r in range(4):
            E(f"v_cndmask_b32 v{acc[2*c]+r}, v{acc[2*c+1]+r}, v{acc[2*c]+r}, s[{sLO8}:{sLO8+1}]")
        E(f"ds_write_b128 v{vRWp}, {r4(acc[2*c])} offset:{F2R+1024*c}")
    E("s_waitcnt lgkmcnt(0)")
    E("s_barrier")
    E(f"s_cmp_ge_u32 s{sW}, {NC}")
    E("s_cbranch_scc1 L_f2_next")
    pb = vF + 144
    for p in range(8):
        E(f"ds_read_b128 {r4(pb+4*p)}, v{vRRp} offset:{F2R+2048*p}")
    if a.ts: E("s_waitcnt lgkmcnt(0)")
    for p in range(4):
        if not a.ts: E(f"s_waitcnt lgkmcnt({6-2*p})")
        for i in range(4): E(f"v_add_f32 v{pb+8*p+i}, v{pb+8*p+i}, v{pb+8*p+4+i}")
        if p % 2 == 1:
            for i in range(4): E(f"v_add_f32 v{pb+8*p-8+i}, v{pb+8*p-8+i}, v{pb+8*p+i}")
    for i in range(4): E(f"v_add_f32 v{pb+i}, v{pb+i}, v{pb+16+i}")
    for i in range(4):
        E(f"v_add_f32_dpp v{pb+i}, v{pb+i}, v{pb+i} row_ror:8 row_mask:0xf bank_mask:0xf")
    bf16r_many(E, range(pb, pb + 4))
    for i in range(4): E(f"v_add_f32 v{pb+i}, v{hx+i}, v{pb+i}")
    E(f"v_cvt_pk_bf16_f32 v{vD2}, v{pb}, v{pb+1}")
    E(f"v_cvt_pk_bf16_f32 v{vD2+1}, v{pb+2}, v{pb+3}")
    E(f"s_and_b64 exec, exec, s[{sLO8}:{sLO8+1}]")
    E("s_cbranch_execz L_f2_next")
    E(f"buffer_store_dwordx2 {r2(vD2)}, v{vXO}, {S4(sOUT)}, s{sT1} offen{a.opol}", tag="extra")
    stamp(14)
    E.label("L_f2_next")
    E(f"s_cmp_lg_u32 s{sDRY}, 0")
    E("s_cbranch_scc1 L_fin")
    E(f"s_mov_b64 s[{sDRY}:{sDRY+1}], -1")
    if a.tprio: E("s_setprio 0")
    E("s_branch L_f2_top")
    E.label("L_fin")
    if a.ts and a.echo:
        E(f"s_cmp_lg_u32 s{sROLE}, 2")
        E("s_cbranch_scc1 L_end")
        E(f"s_cmp_lg_u32 s{sW}, 0")
        E("s_cbranch_scc1 L_end")
        E("s_waitcnt vmcnt(0)")
        stamp(15)
        E("s_waitcnt lgkmcnt(0)")
        if a.skew == 8:
            E("s_mov_b64 exec, -1")
            E(f"s_mov_b32 s{sT0}, 0x30000")
            E(f"v_lshlrev_b32 v{vS+1}, 2, v{vL}")
            E(f"buffer_load_dword v{vS}, v{vS+1}, {S4(sWS)}, s{sT0} offen sc1", tag="extra")
            E("s_waitcnt vmcnt(0)")
            E(f"v_readlane_b32 s{sT0}, v{vS}, 0")
            E(f"s_mov_b32 s{sT1}, s{sT0}")
            for i in range(1, 8):
                E(f"v_readlane_b32 s{sT4}, v{vS}, {i}")
                E(f"s_max_u32 s{sT0}, s{sT0}, s{sT4}")
                E(f"s_min_u32 s{sT1}, s{sT1}, s{sT4}")
            E(f"s_sub_u32 s{sT0}, s{sT0}, s{sT1}")
            E(f"s_mul_i32 s{sT0}, s{sT0}, {a.emul}")
        elif a.skew >= 0:
            E("s_mov_b64 exec, -1")
            E(f"s_mov_b32 s{sT0}, 0x30000")
            E(f"buffer_load_dword v{vS}, off, {S4(sWS)}, s{sT0} offset:{4*a.skew} sc1", tag="extra")
            E(f"buffer_load_dword v{vS+1}, off, {S4(sWS)}, s{sT0} offset:4 sc1", tag="extra")
            E("s_waitcnt vmcnt(0)")
            E(f"v_sub_u32 v{vS}, v{vS}, v{vS+1}")
            E(f"v_readfirstlane_b32 s{sT0}, v{vS}")
            E(f"s_add_u32 s{sT0}, s{sT0}, 200")
            E(f"s_lshl_b32 s{sT0}, s{sT0}, 2")
        else:
            E(f"s_sub_u32 s{sT0}, s{sTS+2*a.echo}, s{sTS+2*a.echo0}")
            E(f"s_mul_i32 s{sT0}, s{sT0}, {a.emul}")
        E(f"s_min_u32 s{sT0}, s{sT0}, 20000")
        E(f"s_add_u32 s{sT0}, s{sT0}, s{sTS+30}")
        E.label("L_echo")
        E(f"s_memrealtime s[{sT2}:{sT2+1}]")
        E("s_waitcnt lgkmcnt(0)")
        E(f"s_sub_u32 s{sT1}, s{sT0}, s{sT2}")
        E(f"s_cmp_gt_i32 s{sT1}, 0")
        E("s_cbranch_scc1 L_echo")
    elif a.ts:
        E("s_waitcnt vmcnt(0)")
        stamp(15)
        write_stamps()
    E.label("L_end")
    E("s_endpgm")
    E.label("L_codeend")

    out = HDR
    out += f"; @launch grid=(256,1,1) block=(512,1,1) lds={LDS_TOTAL}\n"
    out += """; ---------------------------------------------------------------------------------------------------------
;  reduce : o.wo partial sums are added (f32 atomics) into ws blocks of {15 sums, 1 arrival count};
;           one workgroup per batch zeroes them at entry and raises a flag in d_debug.
; ---------------------------------------------------------------------------------------------------------
"""
    out += f""".amdgcn_target "amdgcn-amd-amdhsa--gfx950"
.text
.globl {NAME}
.p2align 8
.type {NAME},@function
{NAME}:
"""
    out += E.text().replace("CODE_BYTES", f"L_codeend-{NAME}")
    out += f""".section .rodata,"a"
.p2align 6
.amdhsa_kernel {NAME}
  .amdhsa_next_free_vgpr 256
  .amdhsa_next_free_sgpr 102
  .amdhsa_accum_offset 256
  .amdhsa_group_segment_fixed_size 0
  .amdhsa_kernarg_size 88
  .amdhsa_user_sgpr_count 2
  .amdhsa_user_sgpr_kernarg_segment_ptr 1
  .amdhsa_system_sgpr_workgroup_id_x 1
  .amdhsa_float_denorm_mode_32 3
.end_amdhsa_kernel
"""
    return out

def parser():
    p = argparse.ArgumentParser()
    p.add_argument("-o", default="sequential_preLN__sliding_block_cached__dense_activation_relu__decode.s")
    p.add_argument("--fnt", type=int, default=0)
    p.add_argument("--ts", type=int, default=0)
    p.add_argument("--sleep", type=int, default=1)
    p.add_argument("--sleep2", type=int, default=1)
    p.add_argument("--depth", type=int, default=5)
    p.add_argument("--first", type=int, default=1)
    p.add_argument("--budget", type=int, default=16)
    p.add_argument("--qspan", type=int, default=32)
    p.add_argument("--ostart", type=int, default=0)
    p.add_argument("--otail", type=int, default=4)
    p.add_argument("--tkpos", type=int, default=28)
    p.add_argument("--pf", type=int, default=2)
    p.add_argument("--spf", type=int, default=1)
    p.add_argument("--jit", default="")
    p.add_argument("--dcls", type=int, default=0)
    p.add_argument("--dclsm", type=int, default=10)
    p.add_argument("--fpos", type=int, default=16)
    p.add_argument("--pp2", type=int, default=0)
    p.add_argument("--hyb", type=int, default=0)
    p.add_argument("--fastpro", type=int, default=1)
    p.add_argument("--init0", type=int, default=0)
    p.add_argument("--sent2", type=int, default=2)
    p.add_argument("--sentg", type=int, default=4)
    p.add_argument("--nosent", type=int, default=0)
    p.add_argument("--noflag", type=int, default=0)
    p.add_argument("--orot", type=int, default=0)
    p.add_argument("--qrot", type=int, default=1)
    p.add_argument("--x13", type=int, default=1)
    p.add_argument("--tprio", type=int, default=0)
    p.add_argument("--prio", type=int, default=-1)
    p.add_argument("--emul", type=int, default=1)
    p.add_argument("--dyn", type=int, default=0)
    p.add_argument("--abar", type=int, default=0)
    p.add_argument("--spec", type=int, default=0)
    p.add_argument("--qp2", type=int, default=1)
    p.add_argument("--nc2", type=int, default=2)
    p.add_argument("--late2", type=int, default=0)
    p.add_argument("--nk0", type=int, default=4)
    p.add_argument("--pfwg", type=int, default=16)
    p.add_argument("--ln2", type=int, default=1)
    p.add_argument("--endpf", type=int, default=3)
    p.add_argument("--epos", type=int, default=-2)
    p.add_argument("--nodma", type=int, default=0)
    p.add_argument("--gate", type=float, default=31)
    p.add_argument("--gstep", type=int, default=104)
    p.add_argument("--dplan", default="0000")
    p.add_argument("--opol", default="")
    p.add_argument("--skew", type=int, default=-1)
    p.add_argument("--htab", default="0x76325410")
    p.add_argument("--rtab", default="0x210cba98")
    p.add_argument("--sphalf", type=int, default=2)
    p.add_argument("--npoll2", type=int, default=1)
    p.add_argument("--stag2", type=int, default=4)
    p.add_argument("--pub", default="sc1")
    p.add_argument("--sub", default="sc1")
    p.add_argument("--zwg", type=int, default=28)
    p.add_argument("--nrep", type=int, default=8)
    p.add_argument("--sleep3", type=int, default=4)
    p.add_argument("--h1wait", type=int, default=0)
    p.add_argument("--npoll", type=int, default=1)
    p.add_argument("--stag", type=int, default=3)
    p.add_argument("--static", type=int, default=0)
    p.add_argument("--l2pf", type=int, default=6)
    p.add_argument("--echo", type=int, default=0)
    p.add_argument("--echo0", type=int, default=0)
    p.add_argument("--kvpol", default=" nt")
    p.add_argument("--wpol", default="")
    p.add_argument("--bd1", type=int, default=0)
    p.add_argument("--bd2", type=int, default=0)
    p.add_argument("--bd3", type=int, default=0)
    p.add_argument("--hmap", type=int, default=3)
    p.add_argument("--tlb", type=int, default=0)
    p.add_argument("--dry", type=int, default=2)
    return p

if __name__ == "__main__":
    a = parser().parse_args()
    open(a.o, "w").write(gen(a))
```
